```python
import torch

def _softmax(x, axis=-1):
    return torch.softmax(x, dim=axis)
def _gelu(x):
    return torch.nn.functional.gelu(x, approximate="tanh")
def _silu(x):
    return torch.nn.functional.silu(x)
def _sigmoid(x):
    return torch.sigmoid(x)
def _layernorm(x, axis=-1, eps=1e-5):
    m = x.mean(dim=axis, keepdim=True)
    v = x.var(dim=axis, keepdim=True, unbiased=False)
    return (x - m) / torch.sqrt(v + eps)
def _scatter_add(tgt, idx, src, axis=0):
    return tgt.clone().index_add_(axis, idx, src)
def _segment_sum(src, seg, n):
    out = torch.zeros((n,) + src.shape[1:], dtype=src.dtype)
    return out.index_add_(0, seg, src)
def _pad(x, pw):
    flat = tuple(v for pair in reversed(pw) for v in pair)
    return torch.nn.functional.pad(x, flat)

kernel_name = 'sequential_preLN__ssm_conv_s4d__moe_arch_mod__prompt'

def setup_inputs():

    _w = (lambda a: (lambda t: t.to(torch.bfloat16) if t.is_floating_point() else t)(torch.as_tensor(a)))
    def _A_setup():
        Bsz, L, D, N = 1, 2048, 640, 128
        return {
            "u": _w((lambda *s: torch.randn(*s, dtype=torch.bfloat16) * 0.05)(Bsz, L, D)),
            "log_A_real": _w((lambda *s: torch.randn(*s, dtype=torch.bfloat16) * 6.4)(D, N) * 0.5),
            "A_imag": _w((lambda *s: torch.randn(*s, dtype=torch.bfloat16) * 0.05)(D, N) * 3.14),
            "C_real": _w((lambda *s: torch.randn(*s, dtype=torch.bfloat16) * 0.05)(D, N) / N ** 0.5),
            "C_imag": _w((lambda *s: torch.randn(*s, dtype=torch.bfloat16) * 0.05)(D, N) / N ** 0.5),
            "log_dt": _w((lambda *s: torch.randn(*s, dtype=torch.bfloat16) * 0.05)(D) * 0.5 - 4.0),
            "D_skip": _w((lambda *s: torch.randn(*s, dtype=torch.bfloat16) * 0.05)(D)),
        }
    _A_in = _A_setup()

    def _B_setup():
        B, S, D, F, C = 1, 2048, 640, 1728, 1
        return {
            "x": _w((lambda *s: torch.randn(*s, dtype=torch.bfloat16) * 0.05)(B, S, D)),
            "w_r": _w((lambda *s: torch.randn(*s, dtype=torch.bfloat16) * 0.05)(D)),
            "w_gate": _w((lambda *s: torch.randn(*s, dtype=torch.bfloat16) * 0.05)(D, F)),
            "w_up": _w((lambda *s: torch.randn(*s, dtype=torch.bfloat16) * 0.05)(D, F)),
            "w_down": _w((lambda *s: torch.randn(*s, dtype=torch.bfloat16) * 0.05)(F, D)),
        }
    _B_in = _B_setup()

    return {
        "A_u": _A_in["u"],
        "A_log_A_real": _A_in["log_A_real"],
        "A_A_imag": _A_in["A_imag"],
        "A_C_real": _A_in["C_real"],
        "A_C_imag": _A_in["C_imag"],
        "A_log_dt": _A_in["log_dt"],
        "A_D_skip": _A_in["D_skip"],
        "B_x": _B_in["x"],
        "B_w_r": _B_in["w_r"],
        "B_w_gate": _B_in["w_gate"],
        "B_w_up": _B_in["w_up"],
        "B_w_down": _B_in["w_down"],
    }

def reference(A_u, A_log_A_real, A_A_imag, A_C_real, A_C_imag, A_log_dt, A_D_skip, B_x, B_w_r, B_w_gate, B_w_up, B_w_down):
    def _A_ref(u, log_A_real, A_imag, C_real, C_imag, log_dt, D_skip):
        L = u.shape[1]
        dt = torch.exp(log_dt)
        A = -torch.exp(log_A_real) + 1j * A_imag
        C = (C_real + 1j * C_imag) * dt[:, None]
        pos = (lambda x, dt: x.to(dt))(torch.arange(L), log_dt.dtype)
        P = torch.exp((A * dt[:, None])[:, :, None] * pos[None, None, :])
        K = 2.0 * torch.einsum("dn,dnl->dl", C, P).real
        L2 = 2 * L
        u_t = (lambda x, *d: x.permute(*d))(u, 0, 2, 1)
        Kf = (lambda x, *a, **k: torch.fft.rfft(x.float(), *a, **k))(K, L2)
        Uf = (lambda x, *a, **k: torch.fft.rfft(x.float(), *a, **k))(u_t, L2)
        y = (lambda x, *a, **k: torch.fft.irfft(x, *a, **k).to(torch.bfloat16))(Uf * Kf[None, :, :], L2)[:, :, :L]
        y = (lambda x, *d: x.permute(*d))(y, 0, 2, 1)
        return y + u * D_skip[None, None, :]

    def _B_ref(x, w_r, w_gate, w_up, w_down):
        B, S, D = x.shape
        C = 1
        r = x @ w_r
        idx = torch.argsort(-r, axis=-1)[:, :C]
        idx_e = (lambda x, n, axis: torch.repeat_interleave(x, n, dim=axis))(idx.reshape(B, C, 1), D, axis=2)
        x_sel = (lambda x, i, axis: torch.take_along_dim(x, i, dim=axis))(x, idx_e, axis=1)
        g = _silu(x_sel @ w_gate)
        u = x_sel @ w_up
        y = (g * u) @ w_down
        r_sel = _sigmoid((lambda x, i, axis: torch.take_along_dim(x, i, dim=axis))(r, idx, axis=1))
        y = y * r_sel.reshape(B, C, 1)
        b_off = (torch.arange(B) * S).reshape(B, 1)
        flat_idx = (idx + b_off).reshape(B * C)
        zero = (x * 0.0).reshape(B * S, D)
        upd = _scatter_add(zero, flat_idx, y.reshape(B * C, D), axis=0)
        return x + upd.reshape(B, S, D)

    x = A_u
    h = x + _A_ref(_layernorm(x, axis=-1), A_log_A_real, A_A_imag, A_C_real, A_C_imag, A_log_dt, A_D_skip)
    h2 = h + _B_ref(_layernorm(h, axis=-1), B_w_r, B_w_gate, B_w_up, B_w_down)
    return h2
```

```python
import struct, sys

NAME = 'sequential_preLN__ssm_conv_s4d__moe_arch_mod__prompt'

WS_UT = 0x000000
WS_YT = 0x300000
WS_KC = 0x600000
WS_SC = 0x700000
WS_TT = 0x800000
WS_KEY = 0xC00000
WS_CAND = 0xC10000
WS_ACT = 0xD00000
WS_SIZE = 0x1000000

def fbits(x):
    return struct.unpack('<I', struct.pack('<f', x))[0]

LOG2E = 1.4426950408889634
LOG2E_HI = struct.unpack('<f', struct.pack('<f', LOG2E))[0]
LOG2E_LO = LOG2E - LOG2E_HI
LN2 = 0.6931471805599453
INV2PI = 0.15915494309189535

class A:
    def __init__(self):
        self.L = []
        self.uid = 0
    def __call__(self, s):
        for line in s.strip('\n').split('\n'):
            self.L.append('    ' + line.strip())
    def label(self, s):
        self.L.append(s + ':')
    def newlabel(self, base):
        self.uid += 1
        return f'L_{base}_{self.uid}'
    def text(self):
        return '\n'.join(self.L) + '\n'

def srd(a, s, lo, hi, size):
    a(f's_mov_b32 s{s}, s{lo}')
    a(f's_and_b32 s{s+1}, s{hi}, 0xffff')
    a(f's_mov_b32 s{s+2}, {size}')
    a(f's_mov_b32 s{s+3}, 0x00020000')

def wave_reduce(a, op, v, tmp=None):
    for m in ['quad_perm:[1,0,3,2] row_mask:0xf bank_mask:0xf',
              'quad_perm:[2,3,0,1] row_mask:0xf bank_mask:0xf',
              'row_half_mirror row_mask:0xf bank_mask:0xf',
              'row_mirror row_mask:0xf bank_mask:0xf',
              'row_bcast:15 row_mask:0xa bank_mask:0xf',
              'row_bcast:31 row_mask:0xc bank_mask:0xf']:
        a('s_nop 1')
        a(f'{op}_dpp v{v}, v{v}, v{v} {m}')

def round_bf16(a, v, t):
    a(f'v_cvt_pk_bf16_f32 v{t}, v{v}, v{v}')
    a(f'v_lshlrev_b32 v{v}, 16, v{t}')

def unpack(a, src, lo, hi):
    a(f'v_lshlrev_b32 v{lo}, 16, v{src}')
    a(f'v_and_b32 v{hi}, 0xffff0000, v{src}')

def exp_bf16(a, v, t0, t1, s_l2e, s_l2elo, s_ln2):
    a(f'v_mul_f32 v{t0}, s{s_l2e}, v{v}')
    a(f'v_fma_f32 v{t1}, v{v}, s{s_l2e}, -v{t0}')
    a(f'v_fmac_f32 v{t1}, s{s_l2elo}, v{v}')
    a(f'v_exp_f32 v{t0}, v{t0}')
    a(f'v_mul_f32 v{t1}, s{s_ln2}, v{t1}')
    a(f'v_fma_f32 v{v}, v{t0}, v{t1}, v{t0}')
    round_bf16(a, v, t0)

def kernel_header(a, name):
    a.L.append(f'.globl {name}')
    a.L.append('.p2align 8')
    a.L.append(f'.type {name},@function')
    a.label(name)

def kd(name, vgpr, sgpr=96):
    acc = (vgpr + 3) // 4 * 4
    return f'''.p2align 6
.amdhsa_kernel {name}
  .amdhsa_next_free_vgpr {vgpr}
  .amdhsa_next_free_sgpr {sgpr}
  .amdhsa_accum_offset {acc}
  .amdhsa_group_segment_fixed_size 0
  .amdhsa_kernarg_size 120
  .amdhsa_user_sgpr_count 2
  .amdhsa_user_sgpr_kernarg_segment_ptr 1
  .amdhsa_system_sgpr_workgroup_id_x 1
.end_amdhsa_kernel
'''

KT_RS = 544
KT_E0 = 41
KT_SZ = 57 * KT_RS
K1_TILE = 3 * KT_SZ
K1_TS = 1344
K1_LDS = K1_TILE + 8 * K1_TS + 64 * KT_RS // 8

def gen_k1(a):
    name = 'k1_kernel'
    kernel_header(a, name)
    end = a.newlabel('k1end')
    a(f'''
    s_cmp_ge_u32 s2, 256
    s_cbranch_scc1 {end}
    s_load_dwordx8 s[4:11], s[0:1], 0
    s_load_dwordx4 s[12:15], s[0:1], 32
    s_load_dwordx2 s[16:17], s[0:1], 48    ; D
    s_load_dwordx2 s[18:19], s[0:1], 112   ; ws
    v_lshrrev_b32 v1, 6, v0
    v_and_b32 v2, 63, v0                   ; lane
    v_readfirstlane_b32 s20, v1            ; wave
    s_and_b32 s21, s2, 7
    s_lshl_b32 s21, s21, 5
    s_lshr_b32 s22, s2, 3
    s_add_u32 s21, s21, s22                ; rb
    s_lshl_b32 s22, s21, 3
    s_add_u32 s22, s22, s20                ; row
    s_mul_i32 s23, s22, 1280
    v_lshlrev_b32 v3, 4, v2                ; lane*16
    v_lshlrev_b32 v4, 2, v2                ; lane*4
    s_waitcnt lgkmcnt(0)
    ''')
    srd(a, 24, 4, 5, 2621440)
    srd(a, 28, 16, 17, 1280)
    srd(a, 32, 18, 19, WS_SIZE)
    srd(a, 36, 6, 7, 163840)
    srd(a, 40, 8, 9, 163840)
    srd(a, 44, 10, 11, 163840)
    srd(a, 48, 12, 13, 163840)
    srd(a, 52, 14, 15, 1280)
    a('''
    buffer_load_dwordx4 v[8:11], v3, s[24:27], s23 offen
    buffer_load_dword v12, v4, s[24:27], s23 offen offset:1024
    buffer_load_dwordx4 v[14:17], v3, s[28:31], 0 offen
    buffer_load_dword v18, v4, s[28:31], 0 offen offset:1024
    ''')
    a('''
    s_lshr_b32 s56, s20, 1
    s_lshl_b32 s56, s56, 8
    s_add_u32 s56, s56, s2                 ; ch
    s_lshl_b32 s57, s56, 8
    s_and_b32 s58, s20, 1
    s_lshl_b32 s58, s58, 7
    s_add_u32 s58, s58, s57
    v_lshlrev_b32 v5, 1, v2                ; lane*2
    s_lshl_b32 s59, s56, 1
    v_mov_b32 v6, 0
    buffer_load_ushort v20, v5, s[36:39], s58 offen
    buffer_load_ushort v21, v5, s[40:43], s58 offen
    buffer_load_ushort v22, v5, s[44:47], s58 offen
    buffer_load_ushort v23, v5, s[48:51], s58 offen
    buffer_load_dword v24, v4, s[44:47], s57 offen
    buffer_load_dword v25, v4, s[48:51], s57 offen
    buffer_load_ushort v26, v6, s[52:55], s59 offen
    ''')
    X = 30
    a('s_waitcnt vmcnt(9)')
    for i in range(4):
        unpack(a, 8 + i, X + 2 * i, X + 2 * i + 1)
    unpack(a, 12, X + 8, X + 9)
    a(f'''
    v_add_f32 v40, v{X}, v{X+1}
    v_add_f32 v41, v{X+2}, v{X+3}
    v_add_f32 v42, v{X+4}, v{X+5}
    v_add_f32 v43, v{X+6}, v{X+7}
    v_add_f32 v44, v{X+8}, v{X+9}
    v_add_f32 v40, v40, v41
    v_add_f32 v42, v42, v43
    v_add_f32 v40, v40, v44
    v_add_f32 v40, v40, v42
    ''')
    wave_reduce(a, 'v_add_f32', 40)
    a(f'''
    s_nop 0
    v_readlane_b32 s60, v40, 63
    s_mov_b32 s61, {fbits(1.0/640):#x}
    v_mov_b32 v41, s61
    s_nop 0
    v_mul_f32 v41, s60, v41                ; mean (f32)
    ''')
    for i in range(10):
        a(f'v_sub_f32 v{44+i}, v{X+i}, v41')
    a('v_mul_f32 v40, v44, v44')
    a('v_mul_f32 v42, v45, v45')
    for i in range(2, 10, 2):
        a(f'v_fmac_f32 v40, v{44+i}, v{44+i}')
        a(f'v_fmac_f32 v42, v{45+i}, v{45+i}')
    a('v_add_f32 v40, v40, v42')
    wave_reduce(a, 'v_add_f32', 40)
    a(f'''
    s_nop 0
    v_readlane_b32 s60, v40, 63
    v_mov_b32 v42, s61
    s_nop 0
    v_mul_f32 v42, s60, v42                ; var
    ''')
    round_bf16(a, 42, 43)
    a(f'v_add_f32 v42, {fbits(1e-5):#x}, v42')
    round_bf16(a, 42, 43)
    a('v_sqrt_f32 v42, v42')
    a('s_nop 0')
    round_bf16(a, 42, 43)
    a('v_rcp_f32 v42, v42')
    round_bf16(a, 41, 43)
    a('s_waitcnt vmcnt(7)')
    for i in range(4):
        unpack(a, 14 + i, 54 + 2 * i, 55 + 2 * i)
    unpack(a, 18, 62, 63)
    for p in range(5):
        x0, x1 = X + 2 * p, X + 2 * p + 1
        a(f'''
        v_sub_f32 v{x0}, v{x0}, v41
        v_sub_f32 v{x1}, v{x1}, v41
        v_cvt_pk_bf16_f32 v44, v{x0}, v{x1}
        v_lshlrev_b32 v{x0}, 16, v44
        v_and_b32 v{x1}, 0xffff0000, v44
        v_mul_f32 v{x0}, v{x0}, v42
        v_mul_f32 v{x1}, v{x1}, v42
        v_cvt_pk_bf16_f32 v44, v{x0}, v{x1}
        v_lshlrev_b32 v{x0}, 16, v44
        v_and_b32 v{x1}, 0xffff0000, v44
        v_cvt_pk_f16_f32 v{64+p}, v{x0}, v{x1}
        v_mul_f32 v{x0}, v{x0}, v{54+2*p}
        v_mul_f32 v{x1}, v{x1}, v{55+2*p}
        v_cvt_pk_bf16_f32 v{70+p}, v{x0}, v{x1}
        ''')
    a(f'''
    s_and_b32 s62, s20, 3
    s_lshl_b32 s62, s62, 1
    s_lshr_b32 s63, s20, 2
    s_or_b32 s62, s62, s63
    s_mul_i32 s62, s62, {K1_TS}
    s_add_u32 s62, s62, {K1_TILE}
    v_add_u32 v44, s62, v3
    v_add_u32 v45, s62, v4
    ds_write_b128 v44, v[64:67]
    ds_write_b32 v45, v68 offset:1024
    s_add_u32 s63, s23, {WS_TT}
    buffer_store_dwordx4 v[70:73], v3, s[32:35], s63 offen
    buffer_store_dword v74, v4, s[32:35], s63 offen offset:1024
    s_waitcnt lgkmcnt(0)
    s_barrier
    ''')
    a(f'''
    v_lshrrev_b32 v44, 2, v2
    v_and_b32 v44, 3, v44
    v_mul_u32_u24 v44, {K1_TS}, v44
    v_lshrrev_b32 v45, 4, v2
    v_lshlrev_b32 v45, 5, v45
    v_add_u32 v44, v44, v45
    v_and_b32 v45, 3, v2
    v_lshlrev_b32 v45, 3, v45
    v_add_u32 v44, v44, v45
    s_lshl_b32 s62, s20, 7                 ; U*128 bytes
    s_add_u32 s62, s62, {K1_TILE}
    v_add_u32 v44, s62, v44
    ds_read_b64_tr_b16 v[64:65], v44
    ds_read_b64_tr_b16 v[66:67], v44 offset:{4*K1_TS}
    v_lshlrev_b32 v45, 12, v2              ; lane*4096
    s_lshl_b32 s62, s20, 18                ; U*64*4096
    s_lshl_b32 s63, s21, 4                 ; rb*16
    s_add_u32 s62, s62, s63
    s_add_u32 s62, s62, {WS_UT}
    s_waitcnt lgkmcnt(0)
    buffer_store_dwordx4 v[64:67], v45, s[32:35], s62 offen
    ''')
    lk = a.newlabel('kgen')
    lmf = a.newlabel('kmfma')
    a(f'''
    s_cmp_lt_u32 s20, 6
    s_cbranch_scc1 {lk}
    ds_read_b64_tr_b16 v[68:69], v44 offset:256
    ds_read_b64_tr_b16 v[70:71], v44 offset:{4*K1_TS+256}
    s_add_u32 s62, s62, {2<<18}
    s_waitcnt lgkmcnt(0)
    buffer_store_dwordx4 v[68:71], v45, s[32:35], s62 offen
    s_branch {lmf}
    ''')
    a.label(lk)
    a(f'''
    s_cmp_ge_u32 s56, 640
    s_cbranch_scc1 {lmf}
    s_mov_b32 s64, {fbits(LOG2E_HI):#x}
    s_mov_b32 s65, {fbits(LOG2E_LO):#x}
    s_mov_b32 s66, {fbits(LN2):#x}
    s_mov_b32 s67, {fbits(INV2PI):#x}
    s_waitcnt vmcnt(3)
    v_lshlrev_b32 v20, 16, v20             ; logA
    v_lshlrev_b32 v21, 16, v21             ; Aim
    v_lshlrev_b32 v22, 16, v22             ; Cr
    v_lshlrev_b32 v23, 16, v23             ; Ci
    v_lshlrev_b32 v26, 16, v26             ; logdt
    v_and_b32 v24, 0x7f807f80, v24
    v_and_b32 v25, 0x7f807f80, v25
    v_pk_max_u16 v24, v24, v25
    v_lshrrev_b32 v25, 16, v24
    v_and_b32 v24, 0xffff, v24
    v_max_u32 v24, v24, v25
    ''')
    wave_reduce(a, 'v_max_u32', 24)
    exp_bf16(a, 20, 27, 28, 64, 65, 66)
    exp_bf16(a, 26, 27, 28, 64, 65, 66)
    a(f'''
    v_readlane_b32 s68, v24, 63
    s_lshr_b32 s68, s68, 7                 ; ef
    s_min_u32 s68, s68, 252
    s_sub_u32 s69, 253, s68
    s_lshl_b32 s69, s69, 23                ; 2^(126-ef)
    s_add_u32 s70, s68, 2
    s_lshl_b32 s70, s70, 23
    v_mul_f32 v20, v20, v26                ; -zr
    v_mul_f32 v21, v21, v26                ; zi
    v_mul_f32 v20, s64, v20
    v_sub_f32 v20, 0, v20                  ; zr*log2e
    v_mul_f32 v21, s67, v21                ; zi/(2pi)
    v_mul_f32 v22, s69, v22
    v_mul_f32 v23, s69, v23                ; C' = v[22:23]
    v_mul_f32 v26, s70, v26
    ''')
    a(f'''
    s_lshl_b32 s71, s56, 2
    s_add_u32 s71, s71, {WS_SC}
    v_cmp_eq_u32 vcc, 0, v2
    s_and_saveexec_b64 s[72:73], vcc
    buffer_store_dword v26, v6, s[32:35], s71 offen
    s_mov_b64 exec, s[72:73]
    ''')
    a(f'''
    s_lshr_b32 s71, s20, 1
    s_mul_i32 s71, s71, {KT_SZ}
    s_and_b32 s72, s20, 1
    s_lshl_b32 s72, s72, 8
    s_add_u32 s71, s71, s72
    v_add_u32 v27, s71, v4
    ''')
    def direct(dst, p):
        a(f'''
        v_mul_f32 v28, {float(p)}, v20
        v_mul_f32 v29, {float(p)}, v21
        v_exp_f32 v28, v28
        v_fract_f32 v29, v29
        v_cos_f32 v{dst}, v29
        v_sin_f32 v{dst+1}, v29
        s_nop 0
        v_mul_f32 v{dst}, v{dst}, v28
        v_mul_f32 v{dst+1}, v{dst+1}, v28
        ''')
    def cmul(r, x, y, t=28):
        a(f'v_pk_mul_f32 v[{t}:{t+1}], v[{x}:{x+1}], v[{y}:{y+1}] op_sel:[1,1] op_sel_hi:[1,0]')
        a(f'v_pk_fma_f32 v[{r}:{r+1}], v[{x}:{x+1}], v[{y}:{y+1}], v[{t}:{t+1}] op_sel:[0,0,0] op_sel_hi:[0,1,1] neg_lo:[0,0,1]')
    pk = [76]
    def putG(row, x):
        r = 76 + (pk[0] % 8); pk[0] += 1
        a(f'v_cvt_pk_f16_f32 v{r}, v{x}, -v{x+1}')
        a(f'ds_write_b32 v27, v{r} offset:{row*KT_RS}')
    def putE(b, x):
        r = 76 + (pk[0] % 8); pk[0] += 1
        a(f'v_cvt_pk_f16_f32 v{r}, v{x}, v{x+1}')
        a(f'ds_write_b32 v27, v{r} offset:{(KT_E0+b)*KT_RS}')
    def direct2(dst, p):
        a(f'''
        v_mul_f32 v28, {fbits(float(p)):#x}, v20
        v_mul_f32 v29, {fbits(float(p)):#x}, v21
        v_exp_f32 v28, v28
        v_fract_f32 v29, v29
        v_cos_f32 v{dst}, v29
        v_sin_f32 v{dst+1}, v29
        s_nop 0
        v_mul_f32 v{dst}, v{dst}, v28
        v_mul_f32 v{dst+1}, v{dst+1}, v28
        ''')
    def ES(c): return 30 + 2 * c
    direct2(ES(1), 1)
    direct2(46, 128)
    direct2(48, 8)
    cmul(ES(2), ES(1), ES(1))
    cmul(ES(3), ES(2), ES(1))
    cmul(ES(4), ES(2), ES(2))
    cmul(ES(5), ES(4), ES(1))
    cmul(ES(6), ES(4), ES(2))
    cmul(ES(7), ES(4), ES(3))
    H = 22
    tmp = [54, 56, 58, 60]
    ti = [0]
    def prodG(row, h, e):
        t = tmp[ti[0] % 4]; ti[0] += 1
        cmul(t, h, e)
        putG(row, t)
    hreg = [50, 52]
    for aa in range(17):
        if aa < 2:
            putG(8 * aa, H)
            for c in range(1, 8):
                prodG(8 * aa + c, H, ES(c))
        elif aa < 4:
            base = 16 + 4 * (aa - 2)
            putG(base, H)
            for c in range(1, 4):
                prodG(base + c, H, ES(2 * c))
        elif aa < 8:
            base = 24 + 2 * (aa - 4)
            putG(base, H)
            prodG(base + 1, H, ES(4))
        else:
            putG(32 + (aa - 8), H)
        if aa < 16:
            nh = hreg[aa % 2]
            cmul(nh, H, 46)
            H = nh
    a('v_mov_b32 v62, 0x00003c00')
    a(f'ds_write_b32 v27, v62 offset:{KT_E0*KT_RS}')
    putE(1, 48)
    E = 48
    ereg = [54, 56]
    for b in range(2, 16):
        ne = ereg[b % 2]
        cmul(ne, E, 48)
        putE(b, ne)
        E = ne
    a.label(lmf)
    a('''
    s_waitcnt lgkmcnt(0)
    s_barrier
    ''')
    a(f'''
    v_and_b32 v44, 15, v2
    v_lshrrev_b32 v45, 4, v2
    v_mul_u32_u24 v46, {KT_RS}, v44
    v_lshl_add_u32 v46, v45, 4, v46
    s_mov_b32 s74, s20
    ''')
    ltask = a.newlabel('task')
    a.label(ltask)
    a(f'''
    s_mul_i32 s75, s74, 43
    s_lshr_b32 s75, s75, 7
    s_mul_i32 s76, s75, 3
    s_sub_u32 s76, s74, s76                ; tile
    s_lshl_b32 s77, s75, 8
    s_add_u32 s77, s77, s2                 ; ch
    s_cmp_ge_u32 s77, 640
    s_cbranch_scc1 {end}
    s_mul_i32 s78, s75, {KT_SZ}
    s_mul_i32 s79, s76, {16*KT_RS}
    s_add_u32 s79, s79, s78
    s_add_u32 s78, s78, {KT_E0*KT_RS}
    v_add_u32 v47, s79, v46
    v_add_u32 v48, s78, v46
    ''')
    for ks in range(8):
        a(f'ds_read_b128 v[{64+8*ks}:{67+8*ks}], v47 offset:{64*ks}')
        a(f'ds_read_b128 v[{68+8*ks}:{71+8*ks}], v48 offset:{64*ks}')
    lt2 = a.newlabel('t2'); lt1 = a.newlabel('t1'); lnext = a.newlabel('next')
    a(f'''
    s_mul_i32 s78, s77, 1536
    s_add_u32 s78, s78, {WS_KC}
    s_cmp_eq_u32 s76, 2
    s_cbranch_scc1 {lt2}
    ''')
    for ks in range(8):
        a(f's_waitcnt lgkmcnt({14-2*ks})')
        c = '0' if ks == 0 else 'v[56:59]'
        a(f'v_mfma_f32_16x16x32_f16 v[56:59], v[{64+8*ks}:{67+8*ks}], v[{68+8*ks}:{71+8*ks}], {c}')
    a(f'''
    s_cmp_eq_u32 s76, 1
    s_cbranch_scc1 {lt1}
    v_lshrrev_b32 v49, 1, v45
    v_lshlrev_b32 v49, 8, v49
    v_lshl_add_u32 v49, v44, 4, v49
    v_and_b32 v50, 1, v45
    v_lshl_add_u32 v49, v50, 3, v49
    s_nop 4
    v_cvt_pk_f16_f32 v60, v56, v57
    v_cvt_pk_f16_f32 v61, v58, v59
    buffer_store_dwordx2 v[60:61], v49, s[32:35], s78 offen
    s_branch {lnext}
    ''')
    a.label(lt1)
    a(f'''
    ; tile 1: q<2: a0 = 2*(256 + 64q + 4b), a1 = a0+4 ; q>=2: a0 = 2*(384 + 64(q-2) + 2b), a1 = a0 + 64
    v_lshlrev_b32 v49, 7, v45              ; 128*q
    v_lshl_add_u32 v50, v44, 3, v49        ; + 8b
    v_add_u32 v50, 512, v50
    v_add_u32 v51, 4, v50
    v_lshl_add_u32 v52, v44, 2, v49        ; 128q + 4b
    v_add_u32 v52, 512, v52                ; 768 - 256
    v_add_u32 v53, 64, v52
    v_cmp_gt_u32 vcc, 2, v45
    s_nop 1
    v_cndmask_b32 v50, v52, v50, vcc
    v_cndmask_b32 v51, v53, v51, vcc
    v_cvt_pk_f16_f32 v60, v56, v57
    v_cvt_pk_f16_f32 v61, v58, v59
    buffer_store_dword v60, v50, s[32:35], s78 offen
    buffer_store_dword v61, v51, s[32:35], s78 offen
    s_branch {lnext}
    ''')
    a.label(lt2)
    for ks in range(8):
        a(f's_waitcnt lgkmcnt({14-2*ks})')
        c = '0' if ks == 0 else 'v[56:59]'
        a(f'v_mfma_f32_16x16x32_f16 v[56:59], v[{68+8*ks}:{71+8*ks}], v[{64+8*ks}:{67+8*ks}], {c}')
    a(f'''
    v_lshlrev_b32 v49, 5, v44
    v_lshl_add_u32 v49, v45, 3, v49
    v_add_u32 v49, 1024, v49
    s_nop 5
    v_cvt_pk_f16_f32 v60, v56, v57
    v_cvt_pk_f16_f32 v61, v58, v59
    buffer_store_dwordx2 v[60:61], v49, s[32:35], s78 offen
    ''')
    a.label(lnext)
    a(f'''
    s_cmp_lg_u32 s74, 7
    s_cbranch_scc1 {end}
    s_mov_b32 s74, 8
    s_branch {ltask}
    ''')
    a.label(end)
    a('s_endpgm')
    return name, 128

C_CS = 4224
C_KC = 0
C_UP = 1344
C_US = 1152
C_CP = C_UP + 4 * C_US
C_SL = C_CP + 4 * C_CS
C_RED = 3 * C_SL
K2_LDS = C_RED + 36 * 1024

def iota(m):
    if m < 0: return None
    if m < 256: return m
    import numpy as np
    f = np.array([m], dtype=np.float32).view(np.uint32)[0]
    r = (int(f) + 0x7fff + ((int(f) >> 16) & 1)) >> 16
    return r - (134 << 7) + 128

def gen_k2(a):
    name = 'k2_kernel'
    kernel_header(a, name)
    end = a.newlabel('k2end')
    a(f'''
    s_cmp_ge_u32 s2, 256
    s_cbranch_scc1 {end}
    s_load_dwordx2 s[18:19], s[0:1], 112   ; ws
    v_lshrrev_b32 v1, 6, v0
    v_and_b32 v2, 63, v0                   ; lane
    v_readfirstlane_b32 s20, v1            ; wave
    s_lshr_b32 s21, s2, 1
    s_mul_i32 s21, s21, 5                  ; 5p
    s_and_b32 s22, s2, 1                   ; odd
    s_mul_i32 s23, s22, 3
    s_add_u32 s23, s23, s21                ; chA
    s_add_u32 s24, s23, 1                  ; chB
    s_add_u32 s25, s21, 2                  ; chS
    v_lshlrev_b32 v3, 3, v0                ; tid*8
    v_lshlrev_b32 v4, 2, v0                ; tid*4
    s_waitcnt lgkmcnt(0)
    ''')
    srd(a, 32, 18, 19, WS_SIZE)
    for c in range(3):
        a(f'''
        s_lshl_b32 s26, s{23+c}, 12
        s_add_u32 s26, s26, {WS_UT}
        buffer_load_dwordx2 v[{8+2*c}:{9+2*c}], v3, s[32:35], s26 offen
        ''')
    for c in range(3):
        a(f'''
        s_mul_i32 s26, s{23+c}, 1536
        s_add_u32 s26, s26, {WS_KC}
        buffer_load_dword v{14+c}, v4, s[32:35], s26 offen
        ''')
    for c in range(3):
        a(f'''
        s_lshl_b32 s26, s{23+c}, 2
        s_add_u32 s26, s26, {WS_SC}
        s_load_dword s{40+c}, s[18:19], s26
        ''')
    a(f'''
    v_mov_b32 v17, 0
    v_lshrrev_b32 v18, 7, v0
    v_mul_u32_u24 v18, {C_SL}, v18
    v_bfe_u32 v19, v0, 5, 2
    v_mul_u32_u24 v20, {C_US}, v19
    v_add_u32 v20, v20, v18
    v_and_b32 v21, 31, v0
    v_lshl_add_u32 v20, v21, 2, v20
    v_mul_u32_u24 v22, {C_CS}, v19
    v_add_u32 v22, v22, v18
    v_and_b32 v21, 7, v0
    v_lshl_add_u32 v22, v21, 2, v22
    v_and_b32 v21, 3, v0
    v_lshl_add_u32 v23, v21, 2, v18
    v_cmp_gt_u32 vcc, 384, v0
    s_and_saveexec_b64 s[28:29], vcc
    ds_write_b32 v20, v17 offset:{C_UP}
    ds_write_b32 v22, v17 offset:{C_CP}
    ds_write_b32 v23, v17 offset:{C_KC}
    s_mov_b64 exec, s[28:29]
    ''')
    GA = 24
    a('v_lshlrev_b32 v5, 2, v0')
    for d in range(7):
        delta = d - 3
        a(f'''
        v_add_u32 v31, {delta}, v5
        v_cvt_f32_i32 v32, v31
        v_cvt_pk_bf16_f32 v32, v32, v32
        v_and_b32 v32, 0xffff, v32
        v_subrev_u32 v32, {(134<<7)-128}, v32
        v_cmp_gt_i32 vcc, 256, v31
        s_nop 1
        v_cndmask_b32 v32, v32, v31, vcc
        v_lshl_add_u32 v32, v32, 1, 16
        v_cmp_gt_i32 vcc, 0, v31
        s_nop 1
        v_cndmask_b32 v{GA+d}, v32, v17, vcc
        ''')
    a(f'''
    v_lshrrev_b32 v31, 1, v0
    v_lshlrev_b32 v31, 2, v31
    v_and_b32 v32, 1, v0
    v_mul_u32_u24 v32, {2*C_US}, v32
    v_add_u32 v31, v31, v32
    ''')
    for c in range(3):
        a(f's_waitcnt vmcnt({5-c})')
        a(f'ds_write_b32 v31, v{8+2*c} offset:{c*C_SL + C_UP + 128}')
        a(f'ds_write_b32 v31, v{9+2*c} offset:{c*C_SL + C_UP + 128 + C_US}')
    a('''
    v_cmp_gt_u32 vcc, 328, v0
    s_and_saveexec_b64 s[28:29], vcc
    ''')
    for c in range(3):
        a(f's_waitcnt vmcnt({2-c})')
        a(f'ds_write_b32 v4, v{14+c} offset:{c*C_SL + C_KC + 16}')
    a('''
    s_mov_b64 exec, s[28:29]
    s_waitcnt lgkmcnt(0)
    s_barrier
    ''')
    a('v_lshlrev_b32 v6, 3, v0')
    for c in range(3):
        o = c * C_SL + C_KC
        r = 32 + 16 * c
        for dd in range(7):
            a(f'ds_read_u16 v{r+dd}, v{GA+dd} offset:{o}')
    for c in range(3):
        r = 32 + 16 * c
        a(f's_waitcnt lgkmcnt({min(15, 7*(2-c) + 4*c)})')
        for i in range(6):
            a(f'v_lshl_or_b32 v{r+8+i}, v{r+i+1}, 16, v{r+i}')
        for s_ in range(4):
            off = c * C_SL + C_CP + s_ * C_CS + 32
            a(f'v_add_u32 v7, {off}, v6')
            a(f'ds_write2_b32 v7, v{r+8+3-s_}, v{r+8+5-s_} offset0:0 offset1:1')
    a('''
    s_waitcnt lgkmcnt(0)
    s_barrier
    ''')
    a(f'''
    v_lshrrev_b32 v8, 4, v2                ; g
    v_mul_u32_u24 v9, {C_CS}, v8
    v_bfe_u32 v10, v2, 2, 2                ; rho'
    v_and_b32 v11, 3, v2                   ; c'
    v_sub_u32 v10, v11, v10
    v_lshl_add_u32 v9, v10, 3, v9
    v_add_u32 v9, {C_CP+32}, v9            ; vA
    v_mul_u32_u24 v10, {C_US}, v8
    v_and_b32 v11, 15, v2                  ; n
    v_lshl_add_u32 v10, v11, 3, v10
    v_add_u32 v10, {C_UP+8}, v10           ; vB
    v_lshlrev_b32 v12, 5, v11
    v_lshl_add_u32 v12, v8, 3, v12
    v_lshlrev_b32 v13, 4, v2               ; lane*16
    ''')
    ACC = 16
    FA = 48
    FB = 80
    def class_body(tiles, first):
        mx = max(tiles)
        n = 0
        for m in range(mx + 1):
            a(f'ds_read_b64_tr_b16 v[{FA+4*m}:{FA+4*m+1}], v14 offset:{512*m+32}')
            a(f'ds_read_b64_tr_b16 v[{FA+4*m+2}:{FA+4*m+3}], v14 offset:{512*m}')
            a(f'ds_read_b64 v[{FB+4*m}:{FB+4*m+1}], v15 offset:{128*m}')
            a(f'ds_read_b64 v[{FB+4*m+2}:{FB+4*m+3}], v15 offset:{128*m+8}')
        for s in range(mx + 1):
            a(f's_waitcnt lgkmcnt({min(15, 4*(mx-s))})')
            for (m, aa) in [(s, i) for i in range(s + 1)] + [(i, s) for i in range(s)]:
                c = m + aa
                if c in tiles:
                    a(f'v_mfma_f32_16x16x32_f16 v[{ACC+4*c}:{ACC+4*c+3}], v[{FA+4*m}:{FA+4*m+3}], v[{FB+4*aa}:{FB+4*aa+3}], v[{ACC+4*c}:{ACC+4*c+3}]')
    def conv_loop(tiles, nclass):
        for i in range(32):
            a(f'v_mov_b32 v{ACC+i}, 0')
        a(f'''
        s_sub_u32 s38, 7, s36
        s_lshl_b32 s38, s38, 6
        s_add_u32 s38, s38, s37
        v_add_u32 v14, s38, v9
        s_lshl_b32 s38, s36, 4
        s_add_u32 s38, s38, s37
        v_add_u32 v15, s38, v10
        s_mov_b32 s39, 0
        ''')
        lp = a.newlabel('cls')
        a.label(lp)
        class_body(tiles, False)
        a(f'''
        v_subrev_u32 v14, 64, v14
        v_add_u32 v15, 16, v15
        s_add_u32 s39, s39, 1
        s_cmp_lt_u32 s39, {nclass}
        s_cbranch_scc1 {lp}
        s_nop 7
        ''')
    def epilogue(c, sreg_scale, sreg_out):
        r = ACC + 4 * c
        a(f'''
        v_mul_f32 v{r}, s{sreg_scale}, v{r}
        v_mul_f32 v{r+1}, s{sreg_scale}, v{r+1}
        v_mul_f32 v{r+2}, s{sreg_scale}, v{r+2}
        v_mul_f32 v{r+3}, s{sreg_scale}, v{r+3}
        v_cvt_pk_bf16_f32 v{r}, v{r}, v{r+1}
        v_cvt_pk_bf16_f32 v{r+1}, v{r+2}, v{r+3}
        buffer_store_dwordx2 v[{r}:{r+1}], v12, s[32:35], s{sreg_out} offen offset:{512*c}
        ''')
    lS = a.newlabel('shared')
    a(f'''
    s_cmp_ge_u32 s20, 4
    s_cbranch_scc1 {lS}
    s_lshr_b32 s44, s20, 1
    s_mul_i32 s37, s44, {C_SL}
    s_and_b32 s45, s20, 1
    s_lshl_b32 s36, s45, 2
    s_cmp_eq_u32 s44, 0
    s_cselect_b32 s46, s40, s41            ; scale
    s_cselect_b32 s47, s23, s24            ; channel
    s_lshl_b32 s47, s47, 12
    s_add_u32 s47, s47, {WS_YT}
    s_lshl_b32 s48, s44, 13
    s_add_u32 s48, s48, {C_RED}
    v_add_u32 v13, s48, v13
    ''')
    conv_loop(list(range(8)), 4)
    lodd = a.newlabel('odd')
    a(f'''
    s_cmp_eq_u32 s45, 1
    s_cbranch_scc1 {lodd}
    ''')
    for par in range(2):
        keep = [0, 1, 2, 3] if par == 0 else [4, 5, 6, 7]
        give = [4, 5, 6, 7] if par == 0 else [0, 1, 2, 3]
        if par == 1:
            a.label(lodd)
        for c in give:
            a(f'ds_write_b128 v13, v[{ACC+4*c}:{ACC+4*c+3}] offset:{1024*c}')
        a('s_waitcnt lgkmcnt(0)')
        a('s_barrier')
        for i, c in enumerate(keep):
            a(f'ds_read_b128 v[{FA+4*i}:{FA+4*i+3}], v13 offset:{1024*c}')
        for i, c in enumerate(keep):
            a(f's_waitcnt lgkmcnt({3-i})')
            for e in range(4):
                a(f'v_add_f32 v{ACC+4*c+e}, v{ACC+4*c+e}, v{FA+4*i+e}')
            epilogue(c, 46, 47)
        a(f's_branch {end}')
    a.label(lS)
    lSo = a.newlabel('sharedodd')
    a(f'''
    s_sub_u32 s45, s20, 4                  ; ww
    s_lshl_b32 s36, s45, 1
    s_mov_b32 s37, {2*C_SL}
    s_lshl_b32 s47, s25, 12
    s_add_u32 s47, s47, {WS_YT}
    v_add_u32 v13, {C_RED + 16384}, v13
    s_cmp_eq_u32 s22, 1
    s_cbranch_scc1 {lSo}
    ''')
    for par in range(2):
        tiles = [0, 1, 2, 3, 7] if par == 0 else [4, 5, 6]
        if par == 1:
            a.label(lSo)
        conv_loop(tiles, 2)
        a('s_lshl_b32 s48, s45, 10')
        a('v_add_u32 v14, s48, v13')
        for i, c in enumerate(tiles):
            a(f'ds_write_b128 v14, v[{ACC+4*c}:{ACC+4*c+3}] offset:{4096*i}')
        a('s_waitcnt lgkmcnt(0)')
        a('s_barrier')
        for ww in range(4):
            lnx = a.newlabel('nx')
            a(f's_cmp_lg_u32 s45, {ww}')
            a(f's_cbranch_scc1 {lnx}')
            for i, c in enumerate(tiles):
                if i % 4 != ww: continue
                for k in range(4):
                    a(f'ds_read_b128 v[{FA+4*k}:{FA+4*k+3}], v13 offset:{4096*i + 1024*k}')
                a('s_waitcnt lgkmcnt(0)')
                for e in range(4):
                    a(f'v_add_f32 v{FA+e}, v{FA+e}, v{FA+4+e}')
                    a(f'v_add_f32 v{FA+8+e}, v{FA+8+e}, v{FA+12+e}')
                    a(f'v_add_f32 v{ACC+4*c+e}, v{FA+e}, v{FA+8+e}')
                epilogue(c, 42, 47)
            a(f's_branch {end}')
            a.label(lnx)
        a(f's_branch {end}')
    a.label(end)
    a('s_endpgm')
    return name, 128

K3_LDS = 4 * 2560 + 64

def gen_k3(a):
    name = 'k3_kernel'
    kernel_header(a, name)
    end = a.newlabel('k3end')
    a(f'''
    s_cmp_ge_u32 s2, 256
    s_cbranch_scc1 {end}
    s_load_dwordx2 s[4:5], s[0:1], 0       ; x
    s_load_dwordx2 s[6:7], s[0:1], 64      ; w_r
    s_load_dwordx2 s[8:9], s[0:1], 96      ; out
    s_load_dwordx2 s[18:19], s[0:1], 112   ; ws
    v_lshrrev_b32 v1, 6, v0
    v_and_b32 v2, 63, v0                   ; lane
    v_readfirstlane_b32 s20, v1            ; wave
    s_and_b32 s21, s2, 7
    s_lshl_b32 s21, s21, 5
    s_lshr_b32 s22, s2, 3
    s_add_u32 s21, s21, s22                ; rb
    s_lshl_b32 s22, s21, 3
    s_add_u32 s22, s22, s20                ; row
    s_mul_i32 s23, s22, 1280
    v_lshlrev_b32 v3, 4, v2                ; lane*16
    v_lshlrev_b32 v4, 2, v2                ; lane*4
    v_lshlrev_b32 v5, 12, v0               ; tid*4096
    v_lshlrev_b32 v6, 2, v0                ; tid*4
    s_waitcnt lgkmcnt(0)
    ''')
    srd(a, 24, 4, 5, 2621440)
    srd(a, 28, 6, 7, 1280)
    srd(a, 32, 18, 19, WS_SIZE)
    srd(a, 36, 8, 9, 2621440)
    a(f'''
    s_lshl_b32 s40, s21, 4
    s_add_u32 s40, s40, {WS_YT}
    buffer_load_dwordx4 v[8:11], v5, s[32:35], s40 offen
    s_add_u32 s41, s40, {512*4096}
    v_cmp_gt_u32 vcc, 128, v0
    s_and_saveexec_b64 s[42:43], vcc
    buffer_load_dwordx4 v[12:15], v5, s[32:35], s41 offen
    s_mov_b64 exec, s[42:43]
    buffer_load_dwordx4 v[16:19], v3, s[24:27], s23 offen
    buffer_load_dword v20, v4, s[24:27], s23 offen offset:1024
    s_add_u32 s41, s23, {WS_TT}
    buffer_load_dwordx4 v[22:25], v3, s[32:35], s41 offen
    buffer_load_dword v26, v4, s[32:35], s41 offen offset:1024
    buffer_load_dwordx4 v[28:31], v3, s[28:31], 0 offen
    buffer_load_dword v32, v4, s[28:31], 0 offen offset:1024
    s_waitcnt vmcnt(6)
    ds_write2st64_b32 v6, v8, v9 offset0:0 offset1:10
    ds_write2st64_b32 v6, v10, v11 offset0:20 offset1:30
    s_and_saveexec_b64 s[42:43], vcc
    ds_write2st64_b32 v6, v12, v13 offset0:8 offset1:18
    ds_write2st64_b32 v6, v14, v15 offset0:28 offset1:38
    s_mov_b64 exec, s[42:43]
    s_waitcnt lgkmcnt(0)
    s_barrier
    s_lshr_b32 s44, s20, 1
    s_mul_i32 s44, s44, 2560
    v_lshlrev_b32 v7, 5, v2
    v_add_u32 v7, s44, v7
    v_lshlrev_b32 v33, 3, v2
    v_add_u32 v33, s44, v33
    ds_read_b128 v[8:11], v7
    ds_read_b128 v[12:15], v7 offset:16
    ds_read_b64 v[34:35], v33 offset:2048
    s_and_b32 s45, s20, 1
    s_lshl_b32 s45, s45, 4                 ; shift 0/16
    ''')
    X = 40; T = 50; W = 60; H = 70
    a('s_waitcnt vmcnt(0)')
    for i in range(4):
        unpack(a, 16 + i, X + 2 * i, X + 2 * i + 1)
        unpack(a, 22 + i, T + 2 * i, T + 2 * i + 1)
        unpack(a, 28 + i, W + 2 * i, W + 2 * i + 1)
    unpack(a, 20, X + 8, X + 9)
    unpack(a, 26, T + 8, T + 9)
    unpack(a, 32, W + 8, W + 9)
    a('s_waitcnt lgkmcnt(0)')
    ysrc = list(range(8, 16)) + [34, 35]
    for i in range(10):
        a(f'v_lshrrev_b32 v{ysrc[i]}, s45, v{ysrc[i]}')
        a(f'v_lshlrev_b32 v{ysrc[i]}, 16, v{ysrc[i]}')
    for p in range(5):
        i0, i1 = 2 * p, 2 * p + 1
        a(f'''
        v_add_f32 v{T+i0}, v{ysrc[i0]}, v{T+i0}
        v_add_f32 v{T+i1}, v{ysrc[i1]}, v{T+i1}
        v_cvt_pk_bf16_f32 v36, v{T+i0}, v{T+i1}
        v_lshlrev_b32 v{T+i0}, 16, v36
        v_and_b32 v{T+i1}, 0xffff0000, v36
        v_add_f32 v{T+i0}, v{X+i0}, v{T+i0}
        v_add_f32 v{T+i1}, v{X+i1}, v{T+i1}
        v_cvt_pk_bf16_f32 v{80+p}, v{T+i0}, v{T+i1}
        v_lshlrev_b32 v{H+i0}, 16, v{80+p}
        v_and_b32 v{H+i1}, 0xffff0000, v{80+p}
        ''')
    a(f'''
    v_add_f32 v36, v{H}, v{H+1}
    v_add_f32 v37, v{H+2}, v{H+3}
    v_add_f32 v38, v{H+4}, v{H+5}
    v_add_f32 v39, v{H+6}, v{H+7}
    v_add_f32 v21, v{H+8}, v{H+9}
    v_add_f32 v36, v36, v37
    v_add_f32 v38, v38, v39
    v_add_f32 v36, v36, v21
    v_add_f32 v36, v36, v38
    ''')
    wave_reduce(a, 'v_add_f32', 36)
    a(f'''
    s_nop 0
    v_readlane_b32 s46, v36, 63
    s_mov_b32 s47, {fbits(1.0/640):#x}
    v_mov_b32 v37, s47
    s_nop 0
    v_mul_f32 v37, s46, v37                ; mean
    ''')
    for i in range(10):
        a(f'v_sub_f32 v{X+i}, v{H+i}, v37')
    a(f'v_mul_f32 v36, v{X}, v{X}')
    a(f'v_mul_f32 v38, v{X+1}, v{X+1}')
    for i in range(2, 10, 2):
        a(f'v_fmac_f32 v36, v{X+i}, v{X+i}')
        a(f'v_fmac_f32 v38, v{X+i+1}, v{X+i+1}')
    a('v_add_f32 v36, v36, v38')
    wave_reduce(a, 'v_add_f32', 36)
    a(f'''
    s_nop 0
    v_readlane_b32 s46, v36, 63
    v_mov_b32 v38, s47
    s_nop 0
    v_mul_f32 v38, s46, v38
    ''')
    round_bf16(a, 38, 39)
    a(f'v_add_f32 v38, {fbits(1e-5):#x}, v38')
    round_bf16(a, 38, 39)
    a('v_sqrt_f32 v38, v38')
    a('s_nop 0')
    round_bf16(a, 38, 39)
    a('v_rcp_f32 v38, v38')
    round_bf16(a, 37, 39)
    a('v_mov_b32 v36, 0')
    a('v_mov_b32 v21, 0')
    for p in range(5):
        i0, i1 = 2 * p, 2 * p + 1
        a(f'''
        v_sub_f32 v{X+i0}, v{H+i0}, v37
        v_sub_f32 v{X+i1}, v{H+i1}, v37
        v_cvt_pk_bf16_f32 v39, v{X+i0}, v{X+i1}
        v_lshlrev_b32 v{X+i0}, 16, v39
        v_and_b32 v{X+i1}, 0xffff0000, v39
        v_mul_f32 v{X+i0}, v{X+i0}, v38
        v_mul_f32 v{X+i1}, v{X+i1}, v38
        v_cvt_pk_bf16_f32 v{86+p}, v{X+i0}, v{X+i1}
        v_lshlrev_b32 v{X+i0}, 16, v{86+p}
        v_and_b32 v{X+i1}, 0xffff0000, v{86+p}
        v_fmac_f32 v36, v{X+i0}, v{W+i0}
        v_fmac_f32 v21, v{X+i1}, v{W+i1}
        v_add_f32 v{X+i0}, v{H+i0}, v{X+i0}
        v_add_f32 v{X+i1}, v{H+i1}, v{X+i1}
        v_cvt_pk_bf16_f32 v{92+p}, v{X+i0}, v{X+i1}
        ''')
    a('''
    buffer_store_dwordx4 v[92:95], v3, s[36:39], s23 offen
    buffer_store_dword v96, v4, s[36:39], s23 offen offset:1024
    v_add_f32 v36, v36, v21
    ''')
    wave_reduce(a, 'v_add_f32', 36)
    a(f'''
    v_cvt_pk_bf16_f32 v36, v36, v36
    v_and_b32 v36, 0xffff, v36
    v_xor_b32 v37, 0xffff, v36
    v_or_b32 v38, 0x8000, v36
    v_cmp_lt_u32 vcc, 0x7fff, v36
    s_nop 1
    v_cndmask_b32 v36, v38, v37, vcc
    s_sub_u32 s46, 2047, s22
    v_lshl_or_b32 v36, v36, 16, s46
    s_nop 0
    v_readlane_b32 s48, v36, 63
    s_lshl_b32 s49, s20, 2
    v_mov_b32 v37, s49
    v_mov_b32 v38, s48
    ds_write_b32 v37, v38 offset:10240
    s_waitcnt lgkmcnt(0)
    s_barrier
    v_and_b32 v37, 7, v2
    v_lshlrev_b32 v37, 2, v37
    ds_read_b32 v38, v37 offset:10240
    s_waitcnt lgkmcnt(0)
    s_nop 1
    v_max_u32_dpp v38, v38, v38 quad_perm:[1,0,3,2] row_mask:0xf bank_mask:0xf
    s_nop 1
    v_max_u32_dpp v38, v38, v38 quad_perm:[2,3,0,1] row_mask:0xf bank_mask:0xf
    s_nop 1
    v_max_u32_dpp v38, v38, v38 row_half_mirror row_mask:0xf bank_mask:0xf
    s_nop 0
    v_readfirstlane_b32 s50, v38
    s_cmp_lg_u32 s50, s48
    s_cbranch_scc1 {end}
    s_mul_i32 s51, s21, 2560
    s_add_u32 s51, s51, {WS_CAND}
    buffer_store_dwordx4 v[86:89], v3, s[32:35], s51 offen
    buffer_store_dword v90, v4, s[32:35], s51 offen offset:1024
    buffer_store_dwordx4 v[80:83], v3, s[32:35], s51 offen offset:1280
    buffer_store_dword v84, v4, s[32:35], s51 offen offset:2304
    s_lshl_b32 s51, s21, 2
    s_add_u32 s51, s51, {WS_KEY}
    v_mov_b32 v37, 0
    v_cmp_eq_u32 vcc, 0, v2
    s_and_saveexec_b64 s[42:43], vcc
    buffer_store_dword v38, v37, s[32:35], s51 offen
    ''')
    a.label(end)
    a('s_endpgm')
    return name, 104

def find_key(a, vl16, sdst):
    a(f'''
    buffer_load_dwordx4 v[8:11], v{vl16}, s[32:35], s60 offen
    s_waitcnt vmcnt(0)
    v_max_u32 v8, v8, v9
    v_max_u32 v10, v10, v11
    v_max_u32 v8, v8, v10
    ''')
    wave_reduce(a, 'v_max_u32', 8)
    a(f'''
    s_nop 0
    v_readlane_b32 s{sdst}, v8, 63
    ''')

def reduce8(a, R):
    a('s_nop 1')
    for j in range(4):
        a(f'v_permlane32_swap_b32 v{R+j}, v{R+j+4}')
    for j in range(4):
        a(f'v_add_f32 v{R+j}, v{R+j}, v{R+j+4}')
    a('s_nop 1')
    for j in range(2):
        a(f'v_permlane16_swap_b32 v{R+j}, v{R+j+2}')
    for j in range(2):
        a(f'v_add_f32 v{R+j}, v{R+j}, v{R+j+2}')
    for m in ['quad_perm:[1,0,3,2]', 'quad_perm:[2,3,0,1]', 'row_half_mirror', 'row_mirror']:
        a('s_nop 0')
        for j in range(2):
            a(f'v_add_f32_dpp v{R+j}, v{R+j}, v{R+j} {m} row_mask:0xf bank_mask:0xf')

def gen_k4(a):
    name = 'k4_kernel'
    kernel_header(a, name)
    end = a.newlabel('k4end')
    a(f'''
    s_cmp_ge_u32 s2, 216
    s_cbranch_scc1 {end}
    s_load_dwordx4 s[4:7], s[0:1], 72
    s_load_dwordx2 s[18:19], s[0:1], 112   ; ws
    v_lshrrev_b32 v1, 6, v0
    v_and_b32 v2, 63, v0
    v_readfirstlane_b32 s20, v1
    s_and_b32 s21, s2, 7
    s_mul_i32 s21, s21, 27
    s_lshr_b32 s22, s2, 3
    s_add_u32 s21, s21, s22                ; cb
    s_and_b32 s22, s20, 1                  ; matrix
    s_lshr_b32 s23, s20, 1
    s_mul_i32 s24, s23, 160
    v_lshlrev_b32 v3, 4, v2
    v_mul_u32_u24 v4, 3456, v2
    v_lshlrev_b32 v5, 1, v2
    s_mov_b32 s60, {WS_KEY}
    s_waitcnt lgkmcnt(0)
    s_cmp_eq_u32 s22, 0
    s_cselect_b32 s4, s4, s6
    s_cselect_b32 s5, s5, s7
    ''')
    srd(a, 24 + 4, 4, 5, 640 * 3456)
    srd(a, 32, 18, 19, WS_SIZE)
    a(f'''
    s_mul_i32 s25, s24, 3456
    s_lshl_b32 s26, s21, 4
    s_add_u32 s25, s25, s26
    buffer_load_dwordx4 v[16:19], v4, s[28:31], s25 offen
    s_add_u32 s25, s25, {64*3456}
    buffer_load_dwordx4 v[20:23], v4, s[28:31], s25 offen
    s_add_u32 s25, s25, {64*3456}
    v_mov_b32 v24, 0
    v_mov_b32 v25, 0
    v_mov_b32 v26, 0
    v_mov_b32 v27, 0
    v_mov_b32 v14, 0
    v_cmp_gt_u32 vcc, 32, v2
    s_and_saveexec_b64 s[42:43], vcc
    buffer_load_dwordx4 v[24:27], v4, s[28:31], s25 offen
    s_mov_b64 exec, s[42:43]
    ''')
    find_key(a, 3, 44)
    a(f'''
    s_and_b32 s45, s44, 0xffff
    s_sub_u32 s45, 2047, s45               ; row
    s_lshr_b32 s45, s45, 3                 ; rb
    s_mul_i32 s46, s45, 2560
    s_add_u32 s46, s46, {WS_CAND}
    s_lshl_b32 s47, s24, 1
    s_add_u32 s46, s46, s47
    buffer_load_ushort v12, v5, s[32:35], s46 offen
    buffer_load_ushort v13, v5, s[32:35], s46 offen offset:128
    v_cmp_gt_u32 vcc, 32, v2
    s_and_saveexec_b64 s[42:43], vcc
    buffer_load_ushort v14, v5, s[32:35], s46 offen offset:256
    s_mov_b64 exec, s[42:43]
    s_waitcnt vmcnt(0)
    v_lshlrev_b32 v12, 16, v12
    v_lshlrev_b32 v13, 16, v13
    v_lshlrev_b32 v14, 16, v14
    ''')
    R = 32
    for e in range(3):
        for i in range(4):
            unpack(a, 16 + 4 * e + i, 28, 29)
            if e == 0:
                a(f'v_mul_f32 v{R+2*i}, v12, v28')
                a(f'v_mul_f32 v{R+2*i+1}, v12, v29')
            else:
                a(f'v_fmac_f32 v{R+2*i}, v{12+e}, v28')
                a(f'v_fmac_f32 v{R+2*i+1}, v{12+e}, v29')
    reduce8(a, R)
    a(f'''
    v_lshrrev_b32 v6, 4, v2
    v_lshlrev_b32 v6, 3, v6                ; q*8 bytes: (2*(q&1)+4*(q>>1))*4 = q*8
    s_lshl_b32 s47, s20, 5
    v_add_u32 v6, s47, v6
    v_and_b32 v7, 15, v2
    v_cmp_eq_u32 vcc, 0, v7
    s_and_saveexec_b64 s[42:43], vcc
    ds_write_b64 v6, v[{R}:{R+1}]
    s_mov_b64 exec, s[42:43]
    s_waitcnt lgkmcnt(0)
    s_barrier
    s_cmp_lg_u32 s20, 0
    s_cbranch_scc1 {end}
    v_and_b32 v6, 7, v2
    v_lshlrev_b32 v6, 2, v6
    ds_read_b32 v8, v6
    ds_read_b32 v9, v6 offset:64
    ds_read_b32 v10, v6 offset:128
    ds_read_b32 v11, v6 offset:192
    ds_read_b32 v12, v6 offset:32
    ds_read_b32 v13, v6 offset:96
    ds_read_b32 v14, v6 offset:160
    ds_read_b32 v15, v6 offset:224
    s_waitcnt lgkmcnt(0)
    v_add_f32 v8, v8, v9
    v_add_f32 v10, v10, v11
    v_add_f32 v12, v12, v13
    v_add_f32 v14, v14, v15
    v_add_f32 v8, v8, v10                  ; gate
    v_add_f32 v12, v12, v14                ; up
    ''')
    round_bf16(a, 8, 9)
    round_bf16(a, 12, 9)
    a(f'''
    v_mul_f32 v9, {fbits(-LOG2E):#x}, v8
    v_exp_f32 v9, v9
    s_nop 0
    v_add_f32 v9, 1.0, v9
    v_rcp_f32 v9, v9
    s_nop 0
    v_mul_f32 v8, v8, v9
    ''')
    round_bf16(a, 8, 9)
    a(f'''
    v_mul_f32 v8, v8, v12
    v_cvt_pk_bf16_f32 v8, v8, v8
    s_lshl_b32 s47, s21, 4
    s_add_u32 s47, s47, {WS_ACT}
    v_cmp_gt_u32 vcc, 8, v2
    s_and_saveexec_b64 s[42:43], vcc
    buffer_store_short v8, v5, s[32:35], s47 offen
    ''')
    a.label(end)
    a('s_endpgm')
    return name, 48

def gen_k5(a):
    name = 'k5_kernel'
    kernel_header(a, name)
    end = a.newlabel('k5end')
    a(f'''
    s_cmp_ge_u32 s2, 80
    s_cbranch_scc1 {end}
    s_load_dwordx4 s[4:7], s[0:1], 88
    s_load_dwordx2 s[18:19], s[0:1], 112   ; ws
    v_lshrrev_b32 v1, 6, v0
    v_and_b32 v2, 63, v0
    v_readfirstlane_b32 s20, v1
    s_and_b32 s21, s2, 7
    s_mul_i32 s21, s21, 10
    s_lshr_b32 s22, s2, 3
    s_add_u32 s21, s21, s22                ; ob
    v_lshlrev_b32 v3, 4, v2
    v_mul_u32_u24 v4, 1280, v0
    v_lshlrev_b32 v5, 1, v0
    s_mov_b32 s60, {WS_KEY}
    s_waitcnt lgkmcnt(0)
    ''')
    srd(a, 28, 4, 5, 1728 * 1280)
    srd(a, 32, 18, 19, WS_SIZE)
    srd(a, 36, 6, 7, 2621440)
    a(f'''
    s_lshl_b32 s25, s21, 4
    buffer_load_dwordx4 v[16:19], v4, s[28:31], s25 offen
    s_add_u32 s25, s25, {512*1280}
    buffer_load_dwordx4 v[20:23], v4, s[28:31], s25 offen
    s_add_u32 s25, s25, {512*1280}
    buffer_load_dwordx4 v[24:27], v4, s[28:31], s25 offen
    s_add_u32 s25, s25, {512*1280}
    buffer_load_dwordx4 v[28:31], v4, s[28:31], s25 offen
    s_mov_b32 s25, {WS_ACT}
    v_mov_b32 v15, 0
    buffer_load_ushort v12, v5, s[32:35], s25 offen
    buffer_load_ushort v13, v5, s[32:35], s25 offen offset:1024
    buffer_load_ushort v14, v5, s[32:35], s25 offen offset:2048
    v_cmp_gt_u32 vcc, 192, v0
    s_and_saveexec_b64 s[42:43], vcc
    buffer_load_ushort v15, v5, s[32:35], s25 offen offset:3072
    s_mov_b64 exec, s[42:43]
    ''')
    find_key(a, 3, 44)
    a(f'''
    s_and_b32 s45, s44, 0xffff
    s_sub_u32 s45, 2047, s45               ; row
    s_lshr_b32 s46, s45, 3                 ; rb
    s_mul_i32 s46, s46, 2560
    s_add_u32 s46, s46, {WS_CAND}
    s_lshl_b32 s47, s21, 4
    s_add_u32 s46, s46, s47
    v_lshlrev_b32 v7, 1, v2
    buffer_load_ushort v44, v7, s[32:35], s46 offen
    buffer_load_ushort v45, v7, s[32:35], s46 offen offset:1280
    v_lshlrev_b32 v12, 16, v12
    v_lshlrev_b32 v13, 16, v13
    v_lshlrev_b32 v14, 16, v14
    v_lshlrev_b32 v15, 16, v15
    ''')
    R = 32
    for e in range(4):
        for i in range(4):
            unpack(a, 16 + 4 * e + i, 8, 9)
            if e == 0:
                a(f'v_mul_f32 v{R+2*i}, v12, v8')
                a(f'v_mul_f32 v{R+2*i+1}, v12, v9')
            else:
                a(f'v_fmac_f32 v{R+2*i}, v{12+e}, v8')
                a(f'v_fmac_f32 v{R+2*i+1}, v{12+e}, v9')
    reduce8(a, R)
    a(f'''
    v_lshrrev_b32 v6, 4, v2
    v_lshlrev_b32 v6, 3, v6
    s_lshl_b32 s47, s20, 5
    v_add_u32 v6, s47, v6
    v_and_b32 v8, 15, v2
    v_cmp_eq_u32 vcc, 0, v8
    s_and_saveexec_b64 s[42:43], vcc
    ds_write_b64 v6, v[{R}:{R+1}]
    s_mov_b64 exec, s[42:43]
    s_waitcnt lgkmcnt(0)
    s_barrier
    s_cmp_lg_u32 s20, 0
    s_cbranch_scc1 {end}
    v_and_b32 v6, 7, v2
    v_lshlrev_b32 v6, 2, v6
    ds_read_b32 v8, v6
    ds_read_b32 v9, v6 offset:64
    ds_read_b32 v10, v6 offset:128
    ds_read_b32 v11, v6 offset:192
    ds_read_b32 v12, v6 offset:32
    ds_read_b32 v13, v6 offset:96
    ds_read_b32 v14, v6 offset:160
    ds_read_b32 v15, v6 offset:224
    s_lshr_b32 s48, s44, 16                ; ord16
    s_xor_b32 s49, s48, 0xffff
    s_and_b32 s50, s48, 0x7fff
    s_cmp_ge_u32 s48, 0x8000
    s_cselect_b32 s48, s50, s49
    s_lshl_b32 s48, s48, 16
    v_mov_b32 v16, s48
    v_mul_f32 v16, {fbits(-LOG2E):#x}, v16
    v_exp_f32 v16, v16
    s_nop 0
    v_add_f32 v16, 1.0, v16
    v_rcp_f32 v16, v16
    s_waitcnt lgkmcnt(0)
    v_add_f32 v8, v8, v9
    v_add_f32 v10, v10, v11
    v_add_f32 v12, v12, v13
    v_add_f32 v14, v14, v15
    v_add_f32 v8, v8, v10
    v_add_f32 v12, v12, v14
    v_add_f32 v8, v8, v12
    ''')
    round_bf16(a, 8, 9)
    round_bf16(a, 16, 9)
    a('v_mul_f32 v8, v8, v16')
    round_bf16(a, 8, 9)
    a('''
    s_waitcnt vmcnt(0)
    v_lshlrev_b32 v44, 16, v44
    v_lshlrev_b32 v45, 16, v45
    v_add_f32 v8, v44, v8
    ''')
    round_bf16(a, 8, 9)
    a(f'''
    v_add_f32 v8, v45, v8
    v_cvt_pk_bf16_f32 v8, v8, v8
    s_mul_i32 s45, s45, 1280
    s_lshl_b32 s47, s21, 4
    s_add_u32 s45, s45, s47
    v_cmp_gt_u32 vcc, 8, v2
    s_and_saveexec_b64 s[42:43], vcc
    buffer_store_short v8, v7, s[36:39], s45 offen
    ''')
    a.label(end)
    a('s_endpgm')
    return name, 48

def main():
    a = A()
    ks = []
    ks.append(gen_k1(a) + (256, K1_LDS))
    ks.append(gen_k2(a) + (256, K2_LDS))
    ks.append(gen_k3(a) + (256, K3_LDS))
    ks.append(gen_k4(a) + (216, 512))
    ks.append(gen_k5(a) + (80, 512))
    hdr = ''
    for (n, v, g, lds) in ks:
        hdr += f'; @launch kernel={n} grid=({g},1,1) block=(512,1,1) lds={lds}\n'
    hdr += '.amdgcn_target "amdgcn-amd-amdhsa--gfx950"\n.text\n'
    out = hdr + a.text() + '.section .rodata,"a"\n'
    for (n, v, g, lds) in ks:
        out += kd(n, v)
    path = sys.argv[1] if len(sys.argv) > 1 else f'cdna_kernels/{NAME}.s'
    open(path, 'w').write(out)
    print('wrote', path, len(out))

if __name__ == '__main__':
    main()
```

```python
import struct, sys

NAME = 'sequential_preLN__ssm_conv_s4d__moe_arch_mod__prompt'
KNAME = NAME + '_kernel'

WS_U = 0x000000
WS_YT = 0x280000
WS_CAND = 0x520000
WS_KEY = 0x500000
WS_FLAG2 = 0x501000
WS_FLAG1 = 0x502000
WS_GO = 0x508000
WS_ACT = 0x504000
WS_STAMP = 0xE00000
WS_SIZE = 0x1000000
NREP = 8
SPIN_MAX = 1 << 18
OOB = 0x7ffffff0
STAMPS = False
WARM = True

def fbits(x):
    return struct.unpack('<I', struct.pack('<f', x))[0]

LOG2E = 1.4426950408889634
LOG2E_HI = struct.unpack('<f', struct.pack('<f', LOG2E))[0]
LOG2E_LO = LOG2E - LOG2E_HI
LN2 = 0.6931471805599453
INV2PI = 0.15915494309189535

class A:
    def __init__(self):
        self.L = []
        self.uid = 0
    def __call__(self, s):
        for line in s.strip('\n').split('\n'):
            if line.strip():
                self.L.append('    ' + line.strip())
    def label(self, s):
        self.L.append(s + ':')
    def newlabel(self, base):
        self.uid += 1
        return f'L_{base}_{self.uid}'
    def text(self):
        return '\n'.join(self.L) + '\n'

NSTAMP = 12
def stamp(a, i):
    if STAMPS:
        a(f's_memrealtime s[{76+2*i}:{77+2*i}]')
def cstamp(a, i):
    if STAMPS:
        a(f's_memtime s[{76+2*i}:{77+2*i}]')
def stamp_init(a):
    if STAMPS:
        for i in range(NSTAMP):
            a(f's_mov_b32 s{76+2*i}, 0')
def stamp_flush(a):
    if STAMPS:
        a('s_mov_b64 exec, -1')
        a(f's_memrealtime s[{76+2*(NSTAMP-1)}:{77+2*(NSTAMP-1)}]')
        a('s_waitcnt lgkmcnt(0)')
        for i in range(NSTAMP):
            a(f'v_mov_b32 v{8+i}, s{76+2*i}')
        a(f'''
        s_lshl_b32 s76, s2, 3
        s_add_u32 s76, s76, s20
        s_lshl_b32 s76, s76, 6
        s_add_u32 s76, s76, {WS_STAMP}
        v_mov_b32 v24, 0
        s_mov_b64 exec, 1
        buffer_store_dwordx4 v[8:11], v24, s[32:35], s76 offen
        buffer_store_dwordx4 v[12:15], v24, s[32:35], s76 offen offset:16
        buffer_store_dwordx4 v[16:19], v24, s[32:35], s76 offen offset:32
        ''')

def srd(a, s, lo, hi, size):
    a(f's_mov_b32 s{s}, s{lo}')
    a(f's_and_b32 s{s+1}, s{hi}, 0xffff')
    a(f's_mov_b32 s{s+2}, {size}')
    a(f's_mov_b32 s{s+3}, 0x00020000')

def wave_reduce(a, op, v):
    for m in ['quad_perm:[1,0,3,2] row_mask:0xf bank_mask:0xf',
              'quad_perm:[2,3,0,1] row_mask:0xf bank_mask:0xf',
              'row_half_mirror row_mask:0xf bank_mask:0xf',
              'row_mirror row_mask:0xf bank_mask:0xf',
              'row_bcast:15 row_mask:0xa bank_mask:0xf',
              'row_bcast:31 row_mask:0xc bank_mask:0xf']:
        a('s_nop 1')
        a(f'{op}_dpp v{v}, v{v}, v{v} {m}')

def round_bf16(a, v, t):
    a(f'v_cvt_pk_bf16_f32 v{t}, v{v}, v{v}')
    a(f'v_lshlrev_b32 v{v}, 16, v{t}')

def unpack(a, src, lo, hi):
    a(f'v_lshlrev_b32 v{lo}, 16, v{src}')
    a(f'v_and_b32 v{hi}, 0xffff0000, v{src}')

def exp_bf16(a, v, t0, t1, s_l2e, s_l2elo, s_ln2):
    a(f'v_mul_f32 v{t0}, s{s_l2e}, v{v}')
    a(f'v_fma_f32 v{t1}, v{v}, s{s_l2e}, -v{t0}')
    a(f'v_fmac_f32 v{t1}, s{s_l2elo}, v{v}')
    a(f'v_exp_f32 v{t0}, v{t0}')
    a(f'v_mul_f32 v{t1}, s{s_ln2}, v{t1}')
    a(f'v_fma_f32 v{v}, v{t0}, v{t1}, v{t0}')
    round_bf16(a, v, t0)

def reduceN(a, R, n):
    h = n // 2; qn = n // 4
    a('s_nop 1')
    for j in range(h):
        a(f'v_permlane32_swap_b32 v{R+j}, v{R+j+h}')
    for j in range(h):
        a(f'v_add_f32 v{R+j}, v{R+j}, v{R+j+h}')
    a('s_nop 1')
    for j in range(qn):
        a(f'v_permlane16_swap_b32 v{R+j}, v{R+j+qn}')
    for j in range(qn):
        a(f'v_add_f32 v{R+j}, v{R+j}, v{R+j+qn}')
    for m in ['quad_perm:[1,0,3,2]', 'quad_perm:[2,3,0,1]', 'row_half_mirror', 'row_mirror']:
        a('s_nop 0')
        for j in range(qn):
            a(f'v_add_f32_dpp v{R+j}, v{R+j}, v{R+j} {m} row_mask:0xf bank_mask:0xf')

KT_RS = 544
KT_E0 = 41
KT_SZ = 57 * KT_RS
L_TILE = 3 * KT_SZ
TS = 1344
L_KC = L_TILE + 8 * TS
KC_SZ = 1344
L_UP = L_KC + 3 * KC_SZ
US = 1152
UP_SZ = 4 * US
L_MISC = L_UP + 3 * UP_SZ
M_CNT1 = L_MISC
M_CNT2 = L_MISC + 4
M_SCALE = L_MISC + 16
M_PAIR = L_MISC + 96
M_KEYS = L_MISC + 32
M_GKEY = L_MISC + 64
M_P1 = L_MISC + 128
M_P2 = L_MISC + 384
LDS_TOTAL = L_MISC + 1024
CS = 4224
CP_SZ = 4 * CS
L_RED = 3 * CP_SZ
L_Y2 = 0

VX = 200
VT = 206
VW = 168
GA = 152
VU = 160

def gen(a):
    a.L.append(f'.globl {KNAME}')
    a.L.append('.p2align 8')
    a.L.append(f'.type {KNAME},@function')
    a.label(KNAME)
    end = 'L_end'
    stamp_init(a)
    stamp(a, 0)
    a(f'''
    s_cmp_ge_u32 s2, 256
    s_cbranch_scc1 {end}x
    s_load_dwordx8 s[4:11], s[0:1], 0
    s_load_dwordx4 s[12:15], s[0:1], 32
    s_load_dwordx2 s[16:17], s[0:1], 48    ; D
    s_load_dwordx2 s[18:19], s[0:1], 112   ; ws
    s_load_dwordx8 s[64:71], s[0:1], 64
    s_load_dwordx4 s[72:75], s[0:1], 96
    v_lshrrev_b32 v1, 6, v0
    v_and_b32 v2, 63, v0                   ; lane
    v_readfirstlane_b32 s20, v1            ; wave
    s_and_b32 s21, s2, 7
    s_lshl_b32 s21, s21, 5
    s_lshr_b32 s22, s2, 3
    s_add_u32 s21, s21, s22                ; rb
    s_lshl_b32 s22, s21, 3
    s_add_u32 s22, s22, s20                ; row
    s_mul_i32 s23, s22, 1280
    v_lshlrev_b32 v3, 4, v2                ; lane*16
    v_lshlrev_b32 v4, 2, v2                ; lane*4
    s_lshr_b32 s60, s2, 1
    s_mul_i32 s60, s60, 5
    s_and_b32 s61, s2, 1                   ; odd
    s_mul_i32 s62, s61, 3
    s_add_u32 s62, s62, s60                ; chA
    s_add_u32 s63, s60, 2                  ; chS
    s_lshr_b32 s56, s20, 1
    s_add_u32 s57, s62, s56
    s_cmp_eq_u32 s56, 2
    s_cselect_b32 s57, s63, s57
    s_waitcnt lgkmcnt(0)
    ''')
    srd(a, 24, 4, 5, 2621440)
    srd(a, 32, 18, 19, WS_SIZE)
    srd(a, 28, 16, 17, 1280)
    lnz = a.newlabel('nz')
    a(f'''
    s_lshl_b32 s17, s2, 3
    s_add_u32 s17, s17, s20
    s_cmp_lg_u32 s17, 7
    s_cbranch_scc1 {lnz}
    v_mov_b32 v8, 0
    v_mov_b32 v9, 0
    v_mov_b32 v10, 0
    v_mov_b32 v11, 0
    s_mov_b32 s4, {WS_FLAG1}
    buffer_store_dwordx4 v[8:11], v3, s[32:35], s4 offen sc1
    buffer_store_dwordx4 v[8:11], v3, s[32:35], s4 offen offset:1024 sc1
    buffer_store_dwordx4 v[8:11], v3, s[32:35], s4 offen offset:2048 sc1
    buffer_store_dwordx4 v[8:11], v3, s[32:35], s4 offen offset:3072 sc1
    v_lshlrev_b32 v12, 12, v2
    s_mov_b32 s4, {WS_GO + 256}
    s_mov_b64 exec, {(1<<NREP)-1:#x}
    buffer_store_dword v8, v12, s[32:35], s4 offen sc1
    s_mov_b64 exec, -1
    s_nop 1
    ''')
    a.label(lnz)
    a('''
    buffer_load_dwordx4 v[8:11], v3, s[24:27], s23 offen
    buffer_load_dword v12, v4, s[24:27], s23 offen offset:1024
    ''')
    srd(a, 36, 6, 7, 163840)
    srd(a, 40, 8, 9, 163840)
    srd(a, 44, 10, 11, 163840)
    srd(a, 48, 12, 13, 163840)
    srd(a, 52, 14, 15, 1280)
    a('''
    buffer_load_dwordx4 v[14:17], v3, s[28:31], 0 offen
    buffer_load_dword v18, v4, s[28:31], 0 offen offset:1024
    s_lshl_b32 s58, s57, 8
    s_and_b32 s59, s20, 1
    s_lshl_b32 s59, s59, 7
    s_add_u32 s59, s59, s58
    v_lshlrev_b32 v5, 1, v2
    s_lshl_b32 s16, s57, 1
    v_mov_b32 v6, 0
    buffer_load_ushort v20, v5, s[36:39], s59 offen
    buffer_load_ushort v21, v5, s[40:43], s59 offen
    buffer_load_ushort v22, v5, s[44:47], s59 offen
    buffer_load_ushort v23, v5, s[48:51], s59 offen
    buffer_load_dword v24, v4, s[44:47], s58 offen
    buffer_load_dword v25, v4, s[48:51], s58 offen
    buffer_load_ushort v26, v6, s[52:55], s16 offen
    ''')
    if WARM:
        lnw = a.newlabel('nw')
        a(f'''
        s_cmp_ge_u32 s20, 6
        s_cbranch_scc1 {lnw}
        v_lshlrev_b32 v27, 21, v2
        s_mov_b32 s4, s18
        s_mov_b32 s5, s19
        s_mov_b32 s6, {WS_SIZE // 2}
        s_cmp_eq_u32 s20, 1
        s_cselect_b32 s4, s72, s4
        s_cselect_b32 s5, s73, s5
        s_cselect_b32 s6, 2621440, s6
        s_cmp_eq_u32 s20, 2
        s_cselect_b32 s4, s74, s4
        s_cselect_b32 s5, s75, s5
        s_cselect_b32 s6, 256, s6
        s_cmp_eq_u32 s20, 3
        s_cselect_b32 s4, s64, s4
        s_cselect_b32 s5, s65, s5
        s_cselect_b32 s6, 1280, s6
        s_cmp_eq_u32 s20, 4
        s_cselect_b32 s4, s66, s4
        s_cselect_b32 s5, s67, s5
        s_cselect_b32 s6, {640*3456}, s6
        s_cmp_eq_u32 s20, 5
        s_cselect_b32 s4, s70, s4
        s_cselect_b32 s5, s71, s5
        s_cselect_b32 s6, {1728*1280}, s6
        s_and_b32 s5, s5, 0xffff
        s_mov_b32 s7, 0x00020000
        s_mov_b64 exec, 0xf
        buffer_load_dword v244, v27, s[4:7], 0 offen
        s_mov_b64 exec, -1
        ''')
        a.label(lnw)
    a(f'''
    v_mov_b32 v27, 0
    v_lshrrev_b32 v28, 5, v0
    v_mul_u32_u24 v28, {US}, v28
    v_and_b32 v29, 31, v0
    v_lshl_add_u32 v28, v29, 2, v28
    v_add_u32 v28, {L_UP}, v28
    v_cmp_gt_u32 vcc, 384, v0
    s_and_saveexec_b64 s[4:5], vcc
    ds_write_b32 v28, v27
    s_mov_b64 exec, s[4:5]
    v_lshrrev_b32 v28, 2, v0
    v_mul_u32_u24 v28, {KC_SZ}, v28
    v_and_b32 v29, 3, v0
    v_lshl_add_u32 v28, v29, 2, v28
    v_add_u32 v28, {L_KC}, v28
    v_lshlrev_b32 v29, 2, v0
    v_add_u32 v29, {L_MISC}, v29
    v_cmp_gt_u32 vcc, 12, v0
    s_and_saveexec_b64 s[4:5], vcc
    ds_write_b32 v28, v27
    ds_write_b32 v29, v27
    ds_write_b32 v29, v27 offset:96
    s_mov_b64 exec, s[4:5]
    ''')
    a('v_lshlrev_b32 v5, 2, v0')
    a(f'v_mov_b32 v27, {L_KC}')
    for d in range(7):
        a(f'''
        v_add_u32 v31, {d-3}, v5
        v_cvt_f32_i32 v32, v31
        v_cvt_pk_bf16_f32 v32, v32, v32
        v_and_b32 v32, 0xffff, v32
        v_subrev_u32 v32, {(134<<7)-128}, v32
        v_cmp_gt_i32 vcc, 256, v31
        s_nop 1
        v_cndmask_b32 v32, v32, v31, vcc
        v_lshl_add_u32 v32, v32, 1, v27
        v_add_u32 v32, 16, v32
        v_cmp_gt_i32 vcc, 0, v31
        s_nop 1
        v_cndmask_b32 v{GA+d}, v32, v27, vcc
        ''')
    a(f'''
    v_lshrrev_b32 v31, 3, v0
    v_mul_u32_u24 v31, {CS}, v31
    v_and_b32 v32, 7, v0
    v_lshl_add_u32 v{VU+4}, v32, 2, v31
    ''')
    for e in range(2):
        vi, vr, vk, va, vl = 31, 32, 33, VU + 2 * e, VU + 2 * e + 1
        a(f'''
        v_add_u32 v{vi}, {512*e}, v0
        v_mul_u32_u24 v{vr}, 43691, v{vi}
        v_lshrrev_b32 v{vr}, 17, v{vr}
        v_mul_u32_u24 v{vk}, 3, v{vr}
        v_sub_u32 v{vk}, v{vi}, v{vk}
        v_mul_u32_u24 v{va}, 10240, v{vr}
        v_lshl_add_u32 v{va}, v{vk}, 4, v{va}
        s_lshl_b32 s5, s61, 1
        v_add_u32 v{vk}, s5, v{vk}
        v_subrev_u32 v{vl}, 3, v{vk}
        v_cmp_gt_u32 vcc, 3, v{vk}
        s_nop 1
        v_cndmask_b32 v{vk}, v{vl}, v{vk}, vcc
        v_mul_u32_u24 v{vl}, {UP_SZ}, v{vk}
        v_lshl_add_u32 v{vl}, v{vr}, 2, v{vl}
        v_add_u32 v{vl}, {L_UP + 128}, v{vl}
        ''')
    a(f'''
    v_mov_b32 v31, {OOB:#x}
    v_cmp_gt_u32 vcc, 256, v0
    s_nop 1
    v_cndmask_b32 v{VU+2}, v31, v{VU+2}, vcc
    ''')
    X = 30
    a('s_waitcnt vmcnt(9)')
    srd(a, 24, 74, 75, 256)
    lnr = a.newlabel('nr')
    a(f'''
    s_cmp_lg_u32 s17, 7
    s_cbranch_scc1 {lnr}
    v_mov_b32 v27, 0
    v_mov_b32 v28, 1
    s_mov_b64 exec, 1
    buffer_store_dword v28, v27, s[24:27], 0 offen sc1      ; READY
    s_mov_b64 exec, -1
    ''')
    a.label(lnr)
    for i in range(4):
        unpack(a, 8 + i, X + 2 * i, X + 2 * i + 1)
        a(f'v_mov_b32 v{VX+i}, v{8+i}')
    unpack(a, 12, X + 8, X + 9)
    a(f'v_mov_b32 v{VX+4}, v12')
    a(f'''
    v_add_f32 v40, v{X}, v{X+1}
    v_add_f32 v41, v{X+2}, v{X+3}
    v_add_f32 v42, v{X+4}, v{X+5}
    v_add_f32 v43, v{X+6}, v{X+7}
    v_add_f32 v44, v{X+8}, v{X+9}
    v_add_f32 v40, v40, v41
    v_add_f32 v42, v42, v43
    v_add_f32 v40, v40, v44
    v_add_f32 v40, v40, v42
    ''')
    wave_reduce(a, 'v_add_f32', 40)
    a(f'''
    s_nop 0
    v_readlane_b32 s4, v40, 63
    s_mov_b32 s5, {fbits(1.0/640):#x}
    v_mov_b32 v41, s5
    s_nop 0
    v_mul_f32 v41, s4, v41
    ''')
    for i in range(10):
        a(f'v_sub_f32 v{44+i}, v{X+i}, v41')
    a('v_mul_f32 v40, v44, v44')
    a('v_mul_f32 v42, v45, v45')
    for i in range(2, 10, 2):
        a(f'v_fmac_f32 v40, v{44+i}, v{44+i}')
        a(f'v_fmac_f32 v42, v{45+i}, v{45+i}')
    a('v_add_f32 v40, v40, v42')
    wave_reduce(a, 'v_add_f32', 40)
    a(f'''
    s_nop 0
    v_readlane_b32 s4, v40, 63
    v_mov_b32 v42, s5
    s_nop 0
    v_mul_f32 v42, s4, v42
    ''')
    round_bf16(a, 42, 43)
    a(f'v_add_f32 v42, {fbits(1e-5):#x}, v42')
    round_bf16(a, 42, 43)
    a('v_sqrt_f32 v42, v42')
    a('s_nop 0')
    round_bf16(a, 42, 43)
    a('v_rcp_f32 v42, v42')
    round_bf16(a, 41, 43)
    a('s_waitcnt vmcnt(7)')
    for i in range(4):
        unpack(a, 14 + i, 54 + 2 * i, 55 + 2 * i)
    unpack(a, 18, 62, 63)
    for p in range(5):
        x0, x1 = X + 2 * p, X + 2 * p + 1
        a(f'''
        v_sub_f32 v{x0}, v{x0}, v41
        v_sub_f32 v{x1}, v{x1}, v41
        v_cvt_pk_bf16_f32 v44, v{x0}, v{x1}
        v_lshlrev_b32 v{x0}, 16, v44
        v_and_b32 v{x1}, 0xffff0000, v44
        v_mul_f32 v{x0}, v{x0}, v42
        v_mul_f32 v{x1}, v{x1}, v42
        v_cvt_pk_bf16_f32 v44, v{x0}, v{x1}
        v_lshlrev_b32 v{x0}, 16, v44
        v_and_b32 v{x1}, 0xffff0000, v44
        v_cvt_pk_f16_f32 v{64+p}, v{x0}, v{x1}
        ''')
    a(f'''
    s_and_b32 s4, s20, 3
    s_lshl_b32 s4, s4, 1
    s_lshr_b32 s5, s20, 2
    s_or_b32 s4, s4, s5
    s_mul_i32 s4, s4, {TS}
    s_add_u32 s4, s4, {L_TILE}
    v_add_u32 v44, s4, v3
    v_add_u32 v45, s4, v4
    ds_write_b128 v44, v[64:67]
    ds_write_b32 v45, v68 offset:1024
    ''')
    for p in range(5):
        x0, x1 = X + 2 * p, X + 2 * p + 1
        a(f'''
        v_mul_f32 v{x0}, v{x0}, v{54+2*p}
        v_mul_f32 v{x1}, v{x1}, v{55+2*p}
        v_cvt_pk_bf16_f32 v{VT+p}, v{x0}, v{x1}
        ''')
    a('''
    s_waitcnt lgkmcnt(0)
    s_barrier
    ''')
    def zero_mailboxes():
        lz = a.newlabel('zero')
        a(f'''
        v_mov_b32 v46, 0
        v_mov_b32 v47, 0
        v_lshlrev_b32 v48, 3, v0
        s_mul_i32 s5, s2, 5120
        s_add_u32 s5, s5, {WS_CAND}
        buffer_store_dwordx2 v[46:47], v48, s[32:35], s5 offen sc1
        s_cmp_ge_u32 s20, 2
        s_cbranch_scc1 {lz}
        s_add_u32 s5, s5, 4096
        buffer_store_dwordx2 v[46:47], v48, s[32:35], s5 offen sc1
        s_cmp_ge_u32 s20, 1
        s_cbranch_scc1 {lz}
        s_mov_b64 exec, 0x3
        v_lshlrev_b32 v48, 12, v0
        s_lshl_b32 s5, s2, 4
        s_add_u32 s5, s5, {WS_KEY}
        buffer_store_dword v46, v48, s[32:35], s5 offen sc1
        v_lshlrev_b32 v48, 7, v0
        s_and_b32 s5, s2, {NREP-1}
        s_lshl_b32 s5, s5, 12
        s_add_u32 s5, s5, {WS_GO}
        s_cmp_lt_u32 s2, {NREP}
        s_cselect_b32 s5, s5, 0x40000000
        buffer_store_dword v46, v48, s[32:35], s5 offen sc1
        s_mov_b64 exec, 0xff
        s_lshl_b32 s5, s2, 5
        s_add_u32 s5, s5, {WS_ACT}
        buffer_store_dword v46, v4, s[32:35], s5 offen sc1
        s_mov_b64 exec, -1
        ''')
        a.label(lz)
    def spin(body, slp=0):
        lsp = a.newlabel('spin'); lso = a.newlabel('spinout')
        a('s_mov_b32 s4, 0')
        a.label(lsp)
        a(body)
        a(f'''
        s_add_u32 s4, s4, 1
        s_cmp_ge_u32 s4, {SPIN_MAX}
        s_cbranch_scc1 {lso}
        s_cmp_eq_u64 vcc, exec
        s_cbranch_scc1 {lso}
        ''')
        if slp: a(f's_sleep {slp}')
        a(f's_branch {lsp}')
        a.label(lso)
    def signal(cnt_addr, which):
        ls = a.newlabel('sig')
        a(f'''
        s_waitcnt vmcnt(0)
        v_mov_b32 v46, {cnt_addr}
        v_mov_b32 v47, 1
        s_mov_b64 exec, 1
        ds_add_rtn_u32 v48, v46, v47
        s_waitcnt lgkmcnt(0)
        v_readfirstlane_b32 s4, v48
        s_lshl_b32 s5, s2, 4
        s_add_u32 s5, s5, {WS_FLAG1 if which == 1 else WS_FLAG2}
        s_cmp_lg_u32 s4, {1 if which == 1 else 7}
        s_cbranch_scc1 {ls}
        v_mov_b32 v46, 0
        ''')
        if which == 1:
            lrd = a.newlabel('rdy')
            a(f'''
            v_cmp_ne_u32 vcc, 0, v49
            s_cbranch_vccnz {lrd}
            ''')
            spin('''
            buffer_load_dword v48, v46, s[24:27], 0 offen sc1
            s_waitcnt vmcnt(0)
            v_cmp_ne_u32 vcc, 0, v48
            ''')
            a.label(lrd)
        a('buffer_store_dword v47, v46, s[32:35], s5 offen sc1')
        a.label(ls)
        a('s_mov_b64 exec, -1')
    def gather_flags(base, r):
        a(f'''
        s_mov_b32 s5, {base}
        s_mov_b32 s6, {base + 2048}
        ''')
        spin(f'''
        buffer_load_dword v{r}, v3, s[32:35], s5 offen sc1
        buffer_load_dword v{r+1}, v3, s[32:35], s5 offen offset:1024 sc1
        buffer_load_dword v{r+2}, v3, s[32:35], s6 offen sc1
        buffer_load_dword v{r+3}, v3, s[32:35], s6 offen offset:1024 sc1
        s_waitcnt vmcnt(0)
        v_min_u32 v{r+4}, v{r}, v{r+1}
        v_min3_u32 v{r+4}, v{r+4}, v{r+2}, v{r+3}
        v_cmp_ne_u32 vcc, 0, v{r+4}
        ''')
    def bcast(goaddr, vval, vt):
        a(f'''
        v_lshlrev_b32 v{vt}, 12, v2
        s_mov_b32 s5, {goaddr}
        s_mov_b64 exec, {(1<<NREP)-1:#x}
        buffer_store_dword v{vval}, v{vt}, s[32:35], s5 offen sc1
        s_mov_b64 exec, -1
        ''')
    def slave(goaddr, vr=47):
        a(f'''
        s_and_b32 s5, s2, {NREP-1}
        s_lshl_b32 s5, s5, 12
        s_add_u32 s5, s5, {goaddr}
        v_mov_b32 v46, 0
        ''')
        spin(f'''
        buffer_load_dword v{vr}, v46, s[32:35], s5 offen sc1
        s_waitcnt vmcnt(0)
        v_cmp_ne_u32 vcc, 0, v{vr}
        ''')
    def master1():
        gather_flags(WS_FLAG1, 44)
        a('v_mov_b32 v47, 1')
        bcast(WS_GO + 256, 47, 46)
    def sync2():
        lsl = a.newlabel('sl'); ld = a.newlabel('sd')
        a(f'''
        s_cmp_lg_u32 s2, 0
        s_cbranch_scc1 {lsl}
        ''')
        gather_flags(WS_FLAG2, 44)
        a('v_mov_b32 v47, 1')
        bcast(WS_GO, 47, 46)
        a(f's_branch {ld}')
        a.label(lsl)
        slave(WS_GO)
        a.label(ld)
    lmf = a.newlabel('kmfma'); lpf = a.newlabel('pf')
    a(f'''
    s_cmp_ge_u32 s20, 6
    s_cbranch_scc1 {lpf}
    s_mov_b32 s8, {fbits(LOG2E_HI):#x}
    s_mov_b32 s9, {fbits(LOG2E_LO):#x}
    s_mov_b32 s10, {fbits(LN2):#x}
    s_mov_b32 s11, {fbits(INV2PI):#x}
    s_waitcnt vmcnt({1 if WARM else 0})
    v_lshlrev_b32 v20, 16, v20
    v_lshlrev_b32 v21, 16, v21
    v_lshlrev_b32 v22, 16, v22
    v_lshlrev_b32 v23, 16, v23
    v_lshlrev_b32 v26, 16, v26
    v_and_b32 v24, 0x7f807f80, v24
    v_and_b32 v25, 0x7f807f80, v25
    v_pk_max_u16 v24, v24, v25
    v_lshrrev_b32 v25, 16, v24
    v_and_b32 v24, 0xffff, v24
    v_max_u32 v24, v24, v25
    ''')
    wave_reduce(a, 'v_max_u32', 24)
    exp_bf16(a, 20, 27, 28, 8, 9, 10)
    exp_bf16(a, 26, 27, 28, 8, 9, 10)
    a(f'''
    v_readlane_b32 s12, v24, 63
    s_lshr_b32 s12, s12, 7
    s_min_u32 s12, s12, 252
    s_sub_u32 s13, 253, s12
    s_lshl_b32 s13, s13, 23
    s_add_u32 s14, s12, 2
    s_lshl_b32 s14, s14, 23
    v_mul_f32 v20, v20, v26
    v_mul_f32 v21, v21, v26
    v_mul_f32 v20, s8, v20
    v_sub_f32 v20, 0, v20
    v_mul_f32 v21, s11, v21
    v_mul_f32 v22, s13, v22
    v_mul_f32 v23, s13, v23
    v_mul_f32 v26, s14, v26
    s_lshl_b32 s15, s56, 2
    s_add_u32 s15, s15, {M_SCALE}
    v_mov_b32 v27, s15
    s_mov_b64 exec, 1
    ds_write_b32 v27, v26
    s_mov_b64 exec, -1
    s_mul_i32 s15, s56, {KT_SZ}
    s_and_b32 s16, s20, 1
    s_lshl_b32 s16, s16, 8
    s_add_u32 s15, s15, s16
    v_add_u32 v27, s15, v4
    ''')
    def cmul(r, x, y, t=28):
        a(f'v_pk_mul_f32 v[{t}:{t+1}], v[{x}:{x+1}], v[{y}:{y+1}] op_sel:[1,1] op_sel_hi:[1,0]')
        a(f'v_pk_fma_f32 v[{r}:{r+1}], v[{x}:{x+1}], v[{y}:{y+1}], v[{t}:{t+1}] op_sel:[0,0,0] op_sel_hi:[0,1,1] neg_lo:[0,0,1]')
    pk = [0]
    def putG(row, x):
        r = 76 + (pk[0] % 8); pk[0] += 1
        a(f'v_cvt_pk_f16_f32 v{r}, v{x}, -v{x+1}')
        a(f'ds_write_b32 v27, v{r} offset:{row*KT_RS}')
    def putE(b, x):
        r = 76 + (pk[0] % 8); pk[0] += 1
        a(f'v_cvt_pk_f16_f32 v{r}, v{x}, v{x+1}')
        a(f'ds_write_b32 v27, v{r} offset:{(KT_E0+b)*KT_RS}')
    def direct(dst, p):
        a(f'''
        v_mul_f32 v28, {fbits(float(p)):#x}, v20
        v_mul_f32 v29, {fbits(float(p)):#x}, v21
        v_exp_f32 v28, v28
        v_fract_f32 v29, v29
        v_cos_f32 v{dst}, v29
        v_sin_f32 v{dst+1}, v29
        s_nop 0
        v_mul_f32 v{dst}, v{dst}, v28
        v_mul_f32 v{dst+1}, v{dst+1}, v28
        ''')
    def ES(c): return 30 + 2 * c
    direct(ES(1), 1)
    direct(50, 128)
    direct(52, 8)
    cmul(ES(2), ES(1), ES(1))
    cmul(ES(3), ES(2), ES(1))
    cmul(ES(4), ES(2), ES(2))
    cmul(ES(5), ES(4), ES(1))
    cmul(ES(6), ES(4), ES(2))
    cmul(ES(7), ES(4), ES(3))
    a('v_mov_b32 v62, 0x00003c00')
    a(f'ds_write_b32 v27, v62 offset:{KT_E0*KT_RS}')
    putE(1, 52)
    E = 52
    ereg = [58, 60]
    for b in range(2, 16):
        ne = ereg[b % 2]
        cmul(ne, E, 52)
        putE(b, ne)
        E = ne
    H = 22
    tmp = [58, 60, 62, 64]
    ti = [0]
    def prodG(row, h, e):
        t = tmp[ti[0] % 4]; ti[0] += 1
        cmul(t, h, e)
        putG(row, t)
    hreg = [54, 56]
    for aa in range(17):
        if aa < 2:
            putG(8 * aa, H)
            for c in range(1, 8):
                prodG(8 * aa + c, H, ES(c))
        elif aa < 4:
            base = 16 + 4 * (aa - 2)
            putG(base, H)
            for c in range(1, 4):
                prodG(base + c, H, ES(2 * c))
        elif aa < 8:
            base = 24 + 2 * (aa - 4)
            putG(base, H)
            prodG(base + 1, H, ES(4))
        else:
            putG(32 + (aa - 8), H)
        if aa < 16:
            nh = hreg[aa % 2]
            cmul(nh, H, 50)
            H = nh
    a(f'''
    s_lshl_b32 s4, s56, 2
    s_add_u32 s4, s4, {M_PAIR}
    v_mov_b32 v46, s4
    v_mov_b32 v47, 1
    s_waitcnt lgkmcnt(0)
    s_mov_b64 exec, 1
    ds_add_u32 v46, v47
    ''')
    spin('''
    ds_read_b32 v48, v46
    s_waitcnt lgkmcnt(0)
    v_cmp_le_u32 vcc, 2, v48
    ''')
    a('s_mov_b64 exec, -1')
    a(f's_branch {lmf}')
    a.label(lpf)
    a(f'''
    v_lshrrev_b32 v44, 2, v2
    v_and_b32 v44, 3, v44
    v_mul_u32_u24 v44, {TS}, v44
    v_lshrrev_b32 v45, 4, v2
    v_lshlrev_b32 v45, 5, v45
    v_add_u32 v44, v44, v45
    v_and_b32 v45, 3, v2
    v_lshlrev_b32 v45, 3, v45
    v_add_u32 v44, v44, v45
    s_sub_u32 s6, s20, 6
    s_mul_i32 s4, s6, 640
    s_add_u32 s4, s4, {L_TILE}
    v_add_u32 v44, s4, v44
    s_mul_i32 s4, s21, 10240
    s_mul_i32 s5, s6, 5120
    s_add_u32 s4, s4, s5
    s_add_u32 s4, s4, {WS_U}
    s_add_u32 s5, s4, 4096
    ''')
    a('v_mov_b32 v46, 0')
    a('buffer_load_dword v49, v46, s[24:27], 0 offen sc1')
    for u_ in range(5):
        a(f'ds_read_b64_tr_b16 v[{64+4*u_}:{65+4*u_}], v44 offset:{128*u_}')
        a(f'ds_read_b64_tr_b16 v[{66+4*u_}:{67+4*u_}], v44 offset:{4*TS+128*u_}')
    for u_ in range(5):
        a(f's_waitcnt lgkmcnt({8-2*u_})')
        if u_ < 4:
            a(f'buffer_store_dwordx4 v[{64+4*u_}:{67+4*u_}], v3, s[32:35], s4 offen offset:{1024*u_} sc1')
        else:
            a(f'buffer_store_dwordx4 v[{64+4*u_}:{67+4*u_}], v3, s[32:35], s5 offen sc1')
    stamp(a, 2)
    a('s_waitcnt vmcnt(5)')
    stamp(a, 5)
    signal(M_CNT1, 1)
    stamp(a, 4)
    lnm = a.newlabel('notmaster')
    a(f'''
    s_cmp_lg_u32 s2, 0
    s_cbranch_scc1 {lnm}
    s_cmp_lg_u32 s20, 7
    s_cbranch_scc1 {lnm}
    ''')
    master1()
    a.label(lnm)
    srd(a, 36, 66, 67, 640 * 3456)
    srd(a, 40, 68, 69, 640 * 3456)
    srd(a, 44, 70, 71, 1728 * 1280)
    a(f'''
    s_and_b32 s4, s2, 7
    s_lshr_b32 s5, s2, 3
    s_mul_i32 s6, s4, 432
    s_mul_i32 s7, s5, {20*3456}
    s_add_u32 s6, s6, s7
    v_lshrrev_b32 v46, 5, v2
    v_mul_u32_u24 v46, 3456, v46
    v_and_b32 v47, 31, v2
    v_lshl_add_u32 v46, v47, 4, v46
    v_mov_b32 v48, {OOB:#x}
    v_cmp_gt_u32 vcc, 27, v47
    s_cmp_eq_u32 s20, 6
    s_cselect_b32 s36, s36, s40
    v_cndmask_b32 v46, v48, v46, vcc
    s_cselect_b32 s37, s37, s41
    ''')
    for i in range(10):
        a(f's_add_u32 s7, s6, {2*i*3456}')
        a(f'buffer_load_dwordx4 v[{216+4*(i%8)}:{219+4*(i%8)}], v46, s[36:39], s7 offen')
    a(f'''
    s_mul_i32 s6, s4, 160
    s_mul_i32 s7, s5, {54*1280}
    s_add_u32 s6, s6, s7
    s_sub_u32 s7, s20, 6
    s_mul_i32 s7, s7, {27*1280}
    s_add_u32 s6, s6, s7
    v_mul_u32_u24 v46, 205, v2
    v_lshrrev_b32 v46, 11, v46             ; lane/10
    v_mul_u32_u24 v47, 10, v46
    v_sub_u32 v47, v2, v47
    v_mul_u32_u24 v46, 1280, v46
    v_lshl_add_u32 v46, v47, 4, v46
    v_cmp_gt_u32 vcc, 60, v2
    s_nop 1
    v_cndmask_b32 v46, v48, v46, vcc
    ''')
    for i in range(5):
        a(f's_add_u32 s7, s6, {6*i*1280}')
        a(f'buffer_load_dwordx4 v[{216+4*i}:{219+4*i}], v46, s[44:47], s7 offen')
    lk2 = a.newlabel('kdone')
    a(f's_branch {lk2}')
    a.label(lmf)
    a(f'''
    v_and_b32 v44, 15, v2
    v_lshrrev_b32 v45, 4, v2
    v_mul_u32_u24 v46, {KT_RS}, v44
    v_lshl_add_u32 v46, v45, 4, v46
    s_and_b32 s4, s20, 1
    s_mov_b32 s5, s56
    ''')
    ltask = a.newlabel('task')
    a.label(ltask)
    a(f'''
    s_mov_b32 s6, s4                       ; tile
    s_mul_i32 s8, s5, {KT_SZ}
    s_mul_i32 s9, s6, {16*KT_RS}
    s_add_u32 s9, s9, s8
    s_add_u32 s8, s8, {KT_E0*KT_RS}
    v_add_u32 v47, s9, v46
    v_add_u32 v48, s8, v46
    ''')
    for ks in range(8):
        a(f'ds_read_b128 v[{64+8*ks}:{67+8*ks}], v47 offset:{64*ks}')
        a(f'ds_read_b128 v[{68+8*ks}:{71+8*ks}], v48 offset:{64*ks}')
    lt2 = a.newlabel('t2'); lt1 = a.newlabel('t1'); lnext = a.newlabel('next')
    a(f'''
    s_mul_i32 s8, s5, {KC_SZ}
    s_add_u32 s8, s8, {L_KC + 16}
    s_cmp_eq_u32 s6, 2
    s_cbranch_scc1 {lt2}
    ''')
    for ks in range(8):
        a(f's_waitcnt lgkmcnt({14-2*ks})')
        c = '0' if ks == 0 else 'v[56:59]'
        a(f'v_mfma_f32_16x16x32_f16 v[56:59], v[{64+8*ks}:{67+8*ks}], v[{68+8*ks}:{71+8*ks}], {c}')
    a(f'''
    s_cmp_eq_u32 s6, 1
    s_cbranch_scc1 {lt1}
    v_lshrrev_b32 v49, 1, v45
    v_lshlrev_b32 v49, 8, v49
    v_lshl_add_u32 v49, v44, 4, v49
    v_and_b32 v50, 1, v45
    v_lshl_add_u32 v49, v50, 3, v49
    v_add_u32 v49, s8, v49
    s_nop 4
    v_cvt_pk_f16_f32 v60, v56, v57
    v_cvt_pk_f16_f32 v61, v58, v59
    ds_write_b64 v49, v[60:61]
    s_branch {lnext}
    ''')
    a.label(lt1)
    a(f'''
    v_lshlrev_b32 v49, 7, v45
    v_add_u32 v49, s8, v49
    v_lshl_add_u32 v50, v44, 3, v49
    v_add_u32 v50, 512, v50
    v_add_u32 v51, 4, v50
    v_lshl_add_u32 v52, v44, 2, v49
    v_add_u32 v52, 512, v52
    v_add_u32 v53, 64, v52
    v_cmp_gt_u32 vcc, 2, v45
    s_nop 1
    v_cndmask_b32 v50, v52, v50, vcc
    v_cndmask_b32 v51, v53, v51, vcc
    v_cvt_pk_f16_f32 v60, v56, v57
    v_cvt_pk_f16_f32 v61, v58, v59
    ds_write_b32 v50, v60
    ds_write_b32 v51, v61
    s_branch {lnext}
    ''')
    a.label(lt2)
    for ks in range(8):
        a(f's_waitcnt lgkmcnt({14-2*ks})')
        c = '0' if ks == 0 else 'v[56:59]'
        a(f'v_mfma_f32_16x16x32_f16 v[56:59], v[{68+8*ks}:{71+8*ks}], v[{64+8*ks}:{67+8*ks}], {c}')
    a(f'''
    v_lshlrev_b32 v49, 5, v44
    v_lshl_add_u32 v49, v45, 3, v49
    v_add_u32 v49, 1024, v49
    v_add_u32 v49, s8, v49
    v_cmp_gt_u32 vcc, 9, v44
    s_nop 4
    v_cvt_pk_f16_f32 v60, v56, v57
    v_cvt_pk_f16_f32 v61, v58, v59
    s_and_saveexec_b64 s[10:11], vcc
    ds_write_b64 v49, v[60:61]
    s_mov_b64 exec, s[10:11]
    ''')
    a.label(lnext)
    a(f'''
    s_cmp_lg_u32 s4, 0
    s_cbranch_scc1 {lk2}
    s_mov_b32 s4, 2
    s_branch {ltask}
    ''')
    a.label(lk2)
    lp1 = a.newlabel('p1')
    a(f'''
    s_cmp_lg_u32 s20, 0
    s_cbranch_scc1 {lp1}
    ''')
    slave(WS_GO + 256)
    a.label(lp1)
    a(f'''
    v_lshlrev_b32 v6, 3, v0
    v_mov_b32 v18, 0
    s_lshl_b32 s4, s61, 1
    s_add_u32 s4, s4, s60
    s_lshl_b32 s4, s4, 4
    s_add_u32 s4, s4, {WS_U}
    s_waitcnt lgkmcnt(0)
    s_barrier
    buffer_load_dwordx4 v[8:11], v{VU}, s[32:35], s4 offen sc1
    buffer_load_dwordx4 v[12:15], v{VU+2}, s[32:35], s4 offen sc1
    ''')
    stamp(a, 6)
    for c in range(3):
        r = 32 + 16 * c
        for dd in range(7):
            a(f'ds_read_u16 v{r+dd}, v{GA+dd} offset:{c*KC_SZ}')
    a('''
    v_cmp_gt_u32 vcc, 96, v0
    s_and_saveexec_b64 s[4:5], vcc
    ds_write_b32 v164, v18
    s_mov_b64 exec, s[4:5]
    ''')
    for c in range(3):
        r = 32 + 16 * c
        a(f's_waitcnt lgkmcnt({min(15, 7*(2-c) + 4*c)})')
        for i in range(6):
            a(f'v_lshl_or_b32 v{r+8+i}, v{r+i+1}, 16, v{r+i}')
        for s_ in range(4):
            off = c * CP_SZ + s_ * CS + 32
            a(f'v_add_u32 v7, {off}, v6')
            a(f'ds_write2_b32 v7, v{r+8+3-s_}, v{r+8+5-s_} offset0:0 offset1:1')
    srd(a, 44, 70, 71, 1728 * 1280)
    a(f'''
    s_and_b32 s52, s2, 7
    s_mul_i32 s52, s52, 27
    s_lshr_b32 s53, s2, 3
    s_add_u32 s52, s52, s53                ; cb (b<216)
    s_sub_u32 s53, s53, 27
    s_and_b32 s54, s2, 7
    s_mul_i32 s54, s54, 5
    s_add_u32 s53, s53, s54
    s_and_b32 s54, s20, 1
    s_cmp_eq_u32 s54, 0
    s_cselect_b32 s40, s66, s68
    s_cselect_b32 s41, s67, s69
    s_and_b32 s41, s41, 0xffff
    s_mov_b32 s42, {640*3456}
    s_mov_b32 s43, 0x00020000
    v_cmp_gt_u32 vcc, 256, v0
    s_waitcnt vmcnt(1)
    ds_write_b32 v{VU+1}, v8
    ds_write_b32 v{VU+1}, v9 offset:{US}
    ds_write_b32 v{VU+1}, v10 offset:{2*US}
    ds_write_b32 v{VU+1}, v11 offset:{3*US}
    s_waitcnt vmcnt(0)
    s_and_saveexec_b64 s[4:5], vcc
    ds_write_b32 v{VU+3}, v12
    ds_write_b32 v{VU+3}, v13 offset:{US}
    ds_write_b32 v{VU+3}, v14 offset:{2*US}
    ds_write_b32 v{VU+3}, v15 offset:{3*US}
    s_mov_b64 exec, s[4:5]
    ''')
    lwd = a.newlabel('wd'); lwe = a.newlabel('we')
    a(f'''
    s_cmp_ge_u32 s2, 216
    s_cbranch_scc1 {lwd}
    s_lshr_b32 s54, s20, 1
    s_mul_i32 s54, s54, {160*3456}
    s_lshl_b32 s55, s52, 4
    s_add_u32 s12, s54, s55
    v_mul_u32_u24 v16, 3456, v2
    v_mov_b32 v17, {OOB:#x}
    v_cmp_gt_u32 vcc, 32, v2
    s_add_u32 s13, s12, {64*3456}
    s_add_u32 s14, s12, {128*3456}
    v_cndmask_b32 v17, v17, v16, vcc
    s_mov_b32 s15, 0x40000000
    s_mov_b32 s16, 0x40000000
    s_mov_b32 s17, 0x40000000
    s_mov_b32 s18, 0x40000000
    s_branch {lwe}
    ''')
    a.label(lwd)
    a(f'''
    s_mov_b32 s40, s44
    s_mov_b32 s41, s45
    s_mov_b32 s42, s46
    s_lshl_b32 s12, s53, 5
    v_lshrrev_b32 v16, 1, v0
    v_mul_u32_u24 v16, 1280, v16
    v_and_b32 v17, 1, v0
    v_lshl_add_u32 v16, v17, 4, v16
    v_mov_b32 v17, v16
    ''')
    for e in range(1, 7):
        a(f's_add_u32 s{12+e}, s12, {256*1280*e}')
    a.label(lwe)
    WL = [f'buffer_load_dwordx4 v[{VW+4*e}:{VW+4*e+3}], v{17 if e == 2 else 16}, s[40:43], s{12+e} offen' for e in range(7)]
    zero_mailboxes()
    a(f'''
    v_lshrrev_b32 v8, 4, v2
    v_mul_u32_u24 v9, {CS}, v8
    v_bfe_u32 v10, v2, 2, 2
    v_and_b32 v11, 3, v2
    v_sub_u32 v10, v11, v10
    v_lshl_add_u32 v9, v10, 3, v9
    v_add_u32 v9, 32, v9
    v_mul_u32_u24 v10, {US}, v8
    v_and_b32 v11, 15, v2
    v_lshl_add_u32 v10, v11, 3, v10
    v_add_u32 v10, {L_UP+8}, v10
    v_lshlrev_b32 v12, 5, v11
    v_lshl_add_u32 v12, v8, 3, v12
    v_lshlrev_b32 v13, 4, v2
    v_mov_b32 v5, {M_SCALE}
    ds_read_b96 v[20:22], v5
    ''')
    ACC = 24
    for i in range(8, 32):
        a(f'v_mov_b32 v{ACC+i}, 0')
    a('''
    s_waitcnt lgkmcnt(0)
    s_barrier
    ''')
    for i in range(8):
        a(f'v_mov_b32 v{ACC+i}, 0')
    a('''
    v_readfirstlane_b32 s48, v20
    v_readfirstlane_b32 s49, v21
    v_readfirstlane_b32 s50, v22
    ''')
    stamp(a, 8)
    FR = [56, 112]
    def loads(setbase, tiles_mx, cls_idx):
        out = []
        for m in range(tiles_mx + 1):
            fa, fb = setbase[0] + 4 * m, setbase[1] + 4 * m
            oa = 512 * m + 64 * (3 - cls_idx)
            ob = 128 * m + 16 * cls_idx
            out.append(f'ds_read_b64_tr_b16 v[{fa}:{fa+1}], v14 offset:{oa+32}')
            out.append(f'ds_read_b64_tr_b16 v[{fa+2}:{fa+3}], v14 offset:{oa}')
            out.append(f'ds_read_b64 v[{fb}:{fb+1}], v15 offset:{ob}')
            out.append(f'ds_read_b64 v[{fb+2}:{fb+3}], v15 offset:{ob+8}')
        return out
    SETS = [(56, 88), (120, 216)]
    def conv(tiles, ncls):
        mx = max(tiles)
        for ins in loads(SETS[0], mx, 0):
            a(ins)
        for ci in range(ncls):
            st = SETS[ci % 2]
            nxt = loads(SETS[(ci + 1) % 2], mx, ci + 1) if ci + 1 < ncls else []
            mf = []
            for s in range(mx + 1):
                grp = []
                for (m, aa) in [(s, i) for i in range(s + 1)] + [(i, s) for i in range(s)]:
                    c = m + aa
                    if c in tiles:
                        grp.append(f'v_mfma_f32_16x16x32_f16 v[{ACC+4*c}:{ACC+4*c+3}], v[{st[0]+4*m}:{st[0]+4*m+3}], v[{st[1]+4*aa}:{st[1]+4*aa+3}], v[{ACC+4*c}:{ACC+4*c+3}]')
                mf.append(grp)
            wl = WL[ci * 7 // ncls:(ci + 1) * 7 // ncls]
            if ci == 0:
                for s_ in range(3):
                    a(f's_waitcnt lgkmcnt({min(15, 4*(mx-s_))})')
                    for ins in mf[s_]:
                        a(ins)
                flat = [x for g in mf[3:] for x in g]
            else:
                flat = [x for g in mf for x in g]
            a('s_waitcnt lgkmcnt(0)')
            k = 0
            per = 2 if len(flat) * 2 >= len(nxt) else 3
            wpos = [len(flat) * (j + 1) // (len(wl) + 1) for j in range(len(wl))]
            for i, ins in enumerate(flat):
                a(ins)
                for _ in range(per):
                    if k < len(nxt):
                        a(nxt[k]); k += 1
                while wpos and wpos[0] == i:
                    a(wl[len(wl) - len(wpos)]); wpos.pop(0)
            while k < len(nxt):
                a(nxt[k]); k += 1
        a('s_nop 7')
        a('s_nop 1')
        stamp(a, 7)
    def epilogue(c, sreg_scale, sreg_out):
        r = ACC + 4 * c
        a(f'''
        v_mul_f32 v{r}, s{sreg_scale}, v{r}
        v_mul_f32 v{r+1}, s{sreg_scale}, v{r+1}
        v_mul_f32 v{r+2}, s{sreg_scale}, v{r+2}
        v_mul_f32 v{r+3}, s{sreg_scale}, v{r+3}
        v_cvt_pk_bf16_f32 v{r}, v{r}, v{r+1}
        v_cvt_pk_bf16_f32 v{r+1}, v{r+2}, v{r+3}
        buffer_store_dwordx2 v[{r}:{r+1}], v12, s[32:35], s{sreg_out} offen offset:{512*c} sc1
        ''')
    lS = a.newlabel('shared'); lcd = a.newlabel('convdone')
    FA = 56
    a(f'''
    s_cmp_ge_u32 s20, 4
    s_cbranch_scc1 {lS}
    s_lshr_b32 s4, s20, 1                  ; slot 0/1
    s_and_b32 s5, s20, 1
    s_lshl_b32 s6, s5, 2
    s_mul_i32 s7, s4, {CP_SZ}
    s_sub_u32 s8, 4, s6                    ; 7-(first+3)
    s_lshl_b32 s8, s8, 6
    s_add_u32 s7, s7, s8
    v_add_u32 v14, s7, v9
    s_mul_i32 s7, s4, {UP_SZ}
    s_lshl_b32 s8, s6, 4
    s_add_u32 s7, s7, s8
    v_add_u32 v15, s7, v10
    s_cmp_eq_u32 s4, 0
    s_cselect_b32 s9, s48, s49
    s_add_u32 s10, s62, s4
    s_lshl_b32 s10, s10, 12
    s_add_u32 s10, s10, {WS_YT}
    s_lshl_b32 s11, s4, 13
    s_add_u32 s11, s11, {L_RED}
    v_add_u32 v13, s11, v13
    ''')
    conv(list(range(8)), 4)
    lodd = a.newlabel('odd')
    a(f'''
    s_cmp_eq_u32 s5, 1
    s_cbranch_scc1 {lodd}
    ''')
    for par in range(2):
        keep = [0, 1, 2, 3] if par == 0 else [4, 5, 6, 7]
        give = [4, 5, 6, 7] if par == 0 else [0, 1, 2, 3]
        if par == 1:
            a.label(lodd)
        for c in give:
            a(f'ds_write_b128 v13, v[{ACC+4*c}:{ACC+4*c+3}] offset:{1024*c}')
        a('s_waitcnt lgkmcnt(0)')
        a('s_barrier')
        for i, c in enumerate(keep):
            a(f'ds_read_b128 v[{FA+4*i}:{FA+4*i+3}], v13 offset:{1024*c}')
        for i, c in enumerate(keep):
            a(f's_waitcnt lgkmcnt({3-i})')
            for e in range(4):
                a(f'v_add_f32 v{ACC+4*c+e}, v{ACC+4*c+e}, v{FA+4*i+e}')
            epilogue(c, 9, 10)
        a(f's_branch {lcd}')
    a.label(lS)
    lSo = a.newlabel('sharedodd')
    a(f'''
    s_sub_u32 s5, s20, 4                   ; ww
    s_lshl_b32 s6, s5, 1
    s_sub_u32 s8, 4, s6
    s_lshl_b32 s8, s8, 6
    s_add_u32 s7, s8, {2*CP_SZ}
    v_add_u32 v14, s7, v9
    s_lshl_b32 s8, s6, 4
    s_add_u32 s7, s8, {2*UP_SZ}
    v_add_u32 v15, s7, v10
    s_lshl_b32 s10, s63, 12
    s_add_u32 s10, s10, {WS_YT}
    v_add_u32 v13, {L_RED + 16384}, v13
    s_cmp_eq_u32 s61, 1
    s_cbranch_scc1 {lSo}
    ''')
    for par in range(2):
        tiles = [0, 1, 2, 3, 7] if par == 0 else [4, 5, 6]
        if par == 1:
            a.label(lSo)
        conv(tiles, 2)
        a('s_lshl_b32 s11, s5, 10')
        a('v_add_u32 v14, s11, v13')
        for i, c in enumerate(tiles):
            a(f'ds_write_b128 v14, v[{ACC+4*c}:{ACC+4*c+3}] offset:{4096*i}')
        a('s_waitcnt lgkmcnt(0)')
        a('s_barrier')
        for ww in range(4):
            lnx = a.newlabel('nx')
            a(f's_cmp_lg_u32 s5, {ww}')
            a(f's_cbranch_scc1 {lnx}')
            for i, c in enumerate(tiles):
                if i % 4 != ww: continue
                for k in range(4):
                    a(f'ds_read_b128 v[{FA+4*k}:{FA+4*k+3}], v13 offset:{4096*i + 1024*k}')
                a('s_waitcnt lgkmcnt(0)')
                for e in range(4):
                    a(f'v_add_f32 v{FA+e}, v{FA+e}, v{FA+4+e}')
                    a(f'v_add_f32 v{FA+8+e}, v{FA+8+e}, v{FA+12+e}')
                    a(f'v_add_f32 v{ACC+4*c+e}, v{FA+e}, v{FA+8+e}')
                epilogue(c, 50, 10)
            a(f's_branch {lcd}')
            a.label(lnx)
        a(f's_branch {lcd}')
    a.label(lcd)
    stamp(a, 9)
    srd(a, 28, 64, 65, 1280)
    srd(a, 36, 72, 73, 2621440)
    a('''
    buffer_load_dwordx4 v[28:31], v3, s[28:31], 0 offen
    buffer_load_dword v32, v4, s[28:31], 0 offen offset:1024
    ''')
    signal(M_CNT2, 2)
    stamp(a, 1)
    lp2 = a.newlabel('p2')
    a(f'''
    v_lshlrev_b32 v5, 12, v0
    v_lshlrev_b32 v6, 2, v0
    v_mov_b32 v7, {OOB:#x}
    v_cmp_gt_u32 vcc, 128, v0
    s_lshl_b32 s40, s21, 4
    s_add_u32 s40, s40, {WS_YT}
    v_cndmask_b32 v7, v7, v5, vcc
    s_add_u32 s41, s40, {512*4096}
    s_cmp_lg_u32 s20, 0
    s_cbranch_scc1 {lp2}
    ''')
    sync2()
    a.label(lp2)
    a('s_barrier')
    stamp(a, 3)
    a(f'''
    buffer_load_dwordx4 v[8:11], v5, s[32:35], s40 offen sc1
    buffer_load_dwordx4 v[12:15], v7, s[32:35], s41 offen sc1
    v_cmp_gt_u32 vcc, 128, v0
    s_lshr_b32 s44, s20, 1
    s_mul_i32 s44, s44, 2560
    v_lshlrev_b32 v7, 5, v2
    v_add_u32 v7, s44, v7
    v_lshlrev_b32 v33, 3, v2
    v_add_u32 v33, s44, v33
    s_and_b32 s45, s20, 1
    s_lshl_b32 s45, s45, 4
    ''')
    XR = 40; T = 50; W = 60; H = 70
    for i in range(4):
        unpack(a, VX + i, XR + 2 * i, XR + 2 * i + 1)
        unpack(a, VT + i, T + 2 * i, T + 2 * i + 1)
        unpack(a, 28 + i, W + 2 * i, W + 2 * i + 1)
    unpack(a, VX + 4, XR + 8, XR + 9)
    unpack(a, VT + 4, T + 8, T + 9)
    unpack(a, 32, W + 8, W + 9)
    a(f'''
    s_waitcnt vmcnt(1)
    ds_write2st64_b32 v6, v8, v9 offset0:0 offset1:10
    ds_write2st64_b32 v6, v10, v11 offset0:20 offset1:30
    s_waitcnt vmcnt(0)
    s_and_saveexec_b64 s[42:43], vcc
    ds_write2st64_b32 v6, v12, v13 offset0:8 offset1:18
    ds_write2st64_b32 v6, v14, v15 offset0:28 offset1:38
    s_mov_b64 exec, s[42:43]
    s_waitcnt lgkmcnt(0)
    s_barrier
    ds_read_b128 v[8:11], v7
    ds_read_b128 v[12:15], v7 offset:16
    ds_read_b64 v[34:35], v33 offset:2048
    ''')
    stamp(a, 10)
    X = XR
    a('s_waitcnt lgkmcnt(0)')
    ysrc = list(range(8, 16)) + [34, 35]
    for i in range(10):
        a(f'v_lshrrev_b32 v{ysrc[i]}, s45, v{ysrc[i]}')
        a(f'v_lshlrev_b32 v{ysrc[i]}, 16, v{ysrc[i]}')
    for p in range(5):
        i0, i1 = 2 * p, 2 * p + 1
        a(f'''
        v_add_f32 v{T+i0}, v{ysrc[i0]}, v{T+i0}
        v_add_f32 v{T+i1}, v{ysrc[i1]}, v{T+i1}
        v_cvt_pk_bf16_f32 v36, v{T+i0}, v{T+i1}
        v_lshlrev_b32 v{T+i0}, 16, v36
        v_and_b32 v{T+i1}, 0xffff0000, v36
        v_add_f32 v{T+i0}, v{X+i0}, v{T+i0}
        v_add_f32 v{T+i1}, v{X+i1}, v{T+i1}
        v_cvt_pk_bf16_f32 v36, v{T+i0}, v{T+i1}
        v_lshlrev_b32 v{H+i0}, 16, v36
        v_and_b32 v{H+i1}, 0xffff0000, v36
        ''')
    a(f'''
    v_add_f32 v36, v{H}, v{H+1}
    v_add_f32 v37, v{H+2}, v{H+3}
    v_add_f32 v38, v{H+4}, v{H+5}
    v_add_f32 v39, v{H+6}, v{H+7}
    v_add_f32 v21, v{H+8}, v{H+9}
    v_add_f32 v36, v36, v37
    v_add_f32 v38, v38, v39
    v_add_f32 v36, v36, v21
    v_add_f32 v36, v36, v38
    ''')
    wave_reduce(a, 'v_add_f32', 36)
    a(f'''
    s_nop 0
    v_readlane_b32 s46, v36, 63
    s_mov_b32 s47, {fbits(1.0/640):#x}
    v_mov_b32 v37, s47
    s_nop 0
    v_mul_f32 v37, s46, v37
    ''')
    for i in range(10):
        a(f'v_sub_f32 v{X+i}, v{H+i}, v37')
    a(f'v_mul_f32 v36, v{X}, v{X}')
    a(f'v_mul_f32 v38, v{X+1}, v{X+1}')
    for i in range(2, 10, 2):
        a(f'v_fmac_f32 v36, v{X+i}, v{X+i}')
        a(f'v_fmac_f32 v38, v{X+i+1}, v{X+i+1}')
    a('v_add_f32 v36, v36, v38')
    wave_reduce(a, 'v_add_f32', 36)
    a(f'''
    s_nop 0
    v_readlane_b32 s46, v36, 63
    v_mov_b32 v38, s47
    s_nop 0
    v_mul_f32 v38, s46, v38
    ''')
    round_bf16(a, 38, 39)
    a(f'v_add_f32 v38, {fbits(1e-5):#x}, v38')
    round_bf16(a, 38, 39)
    a('v_sqrt_f32 v38, v38')
    a('s_nop 0')
    round_bf16(a, 38, 39)
    a('v_rcp_f32 v38, v38')
    round_bf16(a, 37, 39)
    a('v_mov_b32 v36, 0')
    a('v_mov_b32 v21, 0')
    for p in range(5):
        i0, i1 = 2 * p, 2 * p + 1
        a(f'''
        v_sub_f32 v{X+i0}, v{H+i0}, v37
        v_sub_f32 v{X+i1}, v{H+i1}, v37
        v_cvt_pk_bf16_f32 v39, v{X+i0}, v{X+i1}
        v_lshlrev_b32 v{X+i0}, 16, v39
        v_and_b32 v{X+i1}, 0xffff0000, v39
        v_mul_f32 v{X+i0}, v{X+i0}, v38
        v_mul_f32 v{X+i1}, v{X+i1}, v38
        v_cvt_pk_bf16_f32 v39, v{X+i0}, v{X+i1}
        v_lshlrev_b32 v{X+i0}, 16, v39
        v_and_b32 v{X+i1}, 0xffff0000, v39
        v_fmac_f32 v36, v{X+i0}, v{W+i0}
        v_fmac_f32 v21, v{X+i1}, v{W+i1}
        ''')
    a('v_add_f32 v36, v36, v21')
    wave_reduce(a, 'v_add_f32', 36)
    a(f'''
    v_cvt_pk_bf16_f32 v36, v36, v36
    v_and_b32 v36, 0xffff, v36
    v_xor_b32 v37, 0xffff, v36
    v_or_b32 v38, 0x8000, v36
    v_cmp_lt_u32 vcc, 0x7fff, v36
    s_sub_u32 s46, 4095, s22
    s_lshl_b32 s49, s20, 2
    v_cndmask_b32 v36, v38, v37, vcc
    v_lshl_or_b32 v36, v36, 16, s46
    s_add_u32 s49, s49, {M_KEYS}
    v_mov_b32 v37, s49
    v_readlane_b32 s48, v36, 63
    s_nop 1
    v_mov_b32 v38, s48
    ds_write_b32 v37, v38
    ''')
    for p in range(5):
        i0, i1 = 2 * p, 2 * p + 1
        a(f'''
        v_add_f32 v{T+i0}, v{H+i0}, v{X+i0}
        v_add_f32 v{T+i1}, v{H+i1}, v{X+i1}
        v_cvt_pk_bf16_f32 v{92+p}, v{T+i0}, v{T+i1}
        ''')
    lnb = a.newlabel('notbest'); lpoll = a.newlabel('poll'); lb2 = a.newlabel('b2')
    a(f'''
    v_and_b32 v37, 7, v2
    v_lshlrev_b32 v37, 2, v37
    v_add_u32 v37, {M_KEYS}, v37
    s_waitcnt lgkmcnt(0)
    s_barrier
    ds_read_b32 v38, v37
    s_waitcnt lgkmcnt(0)
    s_nop 1
    v_max_u32_dpp v38, v38, v38 quad_perm:[1,0,3,2] row_mask:0xf bank_mask:0xf
    s_nop 1
    v_max_u32_dpp v38, v38, v38 quad_perm:[2,3,0,1] row_mask:0xf bank_mask:0xf
    s_nop 1
    v_max_u32_dpp v38, v38, v38 row_half_mirror row_mask:0xf bank_mask:0xf
    s_nop 0
    v_readfirstlane_b32 s50, v38
    s_cmp_lg_u32 s50, s48
    s_cbranch_scc1 {lnb}
    s_lshl_b32 s51, s21, 4
    s_add_u32 s51, s51, {WS_KEY}
    v_mov_b32 v37, 0
    s_mov_b64 exec, 1
    buffer_store_dword v38, v37, s[32:35], s51 offen sc1
    s_mov_b64 exec, -1
    ''')
    for i in range(10):
        a(f'v_or_b32 v{X+i}, 1, v{X+i}')
        a(f'v_or_b32 v{H+i}, 1, v{H+i}')
    a(f'''
    s_mul_i32 s51, s21, 5120
    s_add_u32 s51, s51, {WS_CAND}
    v_lshlrev_b32 v37, 5, v2
    v_lshlrev_b32 v39, 3, v2
    buffer_store_dwordx4 v[{X}:{X+3}], v37, s[32:35], s51 offen sc1
    buffer_store_dwordx4 v[{X+4}:{X+7}], v37, s[32:35], s51 offen offset:16 sc1
    buffer_store_dwordx2 v[{X+8}:{X+9}], v39, s[32:35], s51 offen offset:2048 sc1
    s_add_u32 s51, s51, 2560
    buffer_store_dwordx4 v[{H}:{H+3}], v37, s[32:35], s51 offen sc1
    buffer_store_dwordx4 v[{H+4}:{H+7}], v37, s[32:35], s51 offen offset:16 sc1
    buffer_store_dwordx2 v[{H+8}:{H+9}], v39, s[32:35], s51 offen offset:2048 sc1
    s_branch {lpoll}
    ''')
    a.label(lnb)
    a('''
    buffer_store_dwordx4 v[92:95], v3, s[36:39], s23 offen
    buffer_store_dword v96, v4, s[36:39], s23 offen offset:1024
    ''')
    a.label(lpoll)
    UW = 100
    lks = a.newlabel('kslave'); lkd = a.newlabel('kd'); lu3 = a.newlabel('u3')
    for i in range(12):
        unpack(a, VW + i, UW + 2 * i, UW + 2 * i + 1)
    a(f'''
    s_cmp_lt_u32 s2, 216
    s_cbranch_scc1 {lu3}
    ''')
    for i in range(12, 28):
        unpack(a, VW + i, UW + 2 * i, UW + 2 * i + 1)
    a.label(lu3)
    a(f'''
    s_cmp_lg_u32 s20, 0
    s_cbranch_scc1 {lb2}
    s_cmp_lg_u32 s2, 0
    s_cbranch_scc1 {lks}
    ''')
    gather_flags(WS_KEY, 8)
    a('''
    v_max_u32 v8, v8, v9
    v_max3_u32 v8, v8, v10, v11
    ''')
    wave_reduce(a, 'v_max_u32', 8)
    a('''
    s_nop 0
    v_readlane_b32 s6, v8, 63
    s_nop 1
    v_mov_b32 v8, s6
    ''')
    bcast(WS_GO + 128, 8, 9)
    a(f's_branch {lkd}')
    a.label(lks)
    slave(WS_GO + 128, 8)
    a.label(lkd)
    a(f'''
    v_mov_b32 v9, {M_GKEY}
    s_mov_b64 exec, 1
    ds_write_b32 v9, v8
    s_mov_b64 exec, -1
    s_waitcnt lgkmcnt(0)
    ''')
    a.label(lb2)
    lw = a.newlabel('iswin'); ldown = a.newlabel('down')
    a(f'''
    s_barrier
    v_mov_b32 v9, {M_GKEY}
    ds_read_b32 v8, v9
    s_waitcnt lgkmcnt(0)
    v_readfirstlane_b32 s44, v8
    s_cmp_lg_u32 s50, s48
    s_cbranch_scc1 {lw}
    s_cmp_eq_u32 s44, s48
    s_cbranch_scc1 {lw}
    buffer_store_dwordx4 v[92:95], v3, s[36:39], s23 offen
    buffer_store_dword v96, v4, s[36:39], s23 offen offset:1024
    ''')
    a.label(lw)
    a(f'''
    s_and_b32 s45, s44, 0x7ff
    s_sub_u32 s45, 2047, s45
    s_lshr_b32 s46, s45, 3
    s_mul_i32 s46, s46, 5120
    s_add_u32 s46, s46, {WS_CAND}
    s_cmp_ge_u32 s2, 216
    s_cbranch_scc1 {ldown}
    s_lshr_b32 s47, s20, 1
    s_mul_i32 s47, s47, 640
    s_add_u32 s47, s47, s46
    v_add_u32 v5, 512, v4
    v_mov_b32 v6, {OOB:#x}
    v_cmp_gt_u32 vcc, 32, v2
    v_mov_b32 v7, 1
    s_mov_b32 s58, 0
    v_cndmask_b32 v5, v6, v5, vcc
    v_cndmask_b32 v7, v7, 0, vcc
    ''')
    lsp = a.newlabel('spin'); lso = a.newlabel('spinout')
    a.label(lsp)
    a(f'''
    buffer_load_dword v12, v4, s[32:35], s47 offen sc1
    buffer_load_dword v13, v4, s[32:35], s47 offen offset:256 sc1
    buffer_load_dword v14, v5, s[32:35], s47 offen sc1
    s_add_u32 s58, s58, 1
    s_waitcnt vmcnt(0)
    v_or_b32 v15, v14, v7
    v_and_b32 v15, v15, v12
    v_and_b32 v15, v15, v13
    v_and_b32 v15, 1, v15
    v_cmp_ne_u32 vcc, 0, v15
    s_cmp_ge_u32 s58, {SPIN_MAX}
    s_cbranch_scc1 {lso}
    s_cmp_eq_u64 vcc, -1
    s_cbranch_scc0 {lsp}
    ''')
    a.label(lso)
    a('''
    v_and_b32 v12, 0xffff0000, v12
    v_and_b32 v13, 0xffff0000, v13
    v_and_b32 v14, 0xffff0000, v14
    ''')
    R = 40
    for e in range(3):
        for i in range(8):
            op = 'v_mul_f32' if e == 0 else 'v_fmac_f32'
            a(f'{op} v{R+i}, v{12+e}, v{UW+8*e+i}')
    reduceN(a, R, 8)
    a(f'''
    v_lshrrev_b32 v6, 4, v2
    v_lshlrev_b32 v6, 3, v6
    s_lshl_b32 s47, s20, 5
    s_add_u32 s47, s47, {M_P1}
    v_add_u32 v6, s47, v6
    s_mov_b32 exec_lo, 0x00010001
    s_mov_b32 exec_hi, 0x00010001
    ds_write_b64 v6, v[{R}:{R+1}]
    s_mov_b64 exec, -1
    s_waitcnt lgkmcnt(0)
    s_barrier
    s_cmp_lg_u32 s20, 0
    s_cbranch_scc1 {end}
    v_and_b32 v6, 7, v2
    v_lshlrev_b32 v6, 2, v6
    v_add_u32 v6, {M_P1}, v6
    ds_read_b32 v8, v6
    ds_read_b32 v9, v6 offset:64
    ds_read_b32 v10, v6 offset:128
    ds_read_b32 v11, v6 offset:192
    ds_read_b32 v12, v6 offset:32
    ds_read_b32 v13, v6 offset:96
    ds_read_b32 v14, v6 offset:160
    ds_read_b32 v15, v6 offset:224
    s_waitcnt lgkmcnt(0)
    v_add_f32 v8, v8, v9
    v_add_f32 v10, v10, v11
    v_add_f32 v12, v12, v13
    v_add_f32 v14, v14, v15
    v_add_f32 v8, v8, v10
    v_add_f32 v12, v12, v14
    ''')
    round_bf16(a, 8, 9)
    round_bf16(a, 12, 9)
    a(f'''
    v_mul_f32 v9, {fbits(-LOG2E):#x}, v8
    v_exp_f32 v9, v9
    s_nop 0
    v_add_f32 v9, 1.0, v9
    v_rcp_f32 v9, v9
    s_nop 0
    v_mul_f32 v8, v8, v9
    ''')
    round_bf16(a, 8, 9)
    a(f'''
    v_mul_f32 v8, v8, v12
    v_cvt_pk_bf16_f32 v8, v8, v8
    v_lshl_or_b32 v8, v8, 16, 1
    s_lshl_b32 s47, s52, 5
    s_add_u32 s47, s47, {WS_ACT}
    s_mov_b64 exec, 0xff
    buffer_store_dword v8, v4, s[32:35], s47 offen sc1
    s_mov_b64 exec, -1
    s_branch {end}
    ''')
    a.label(ldown)
    a(f'''
    v_lshrrev_b32 v5, 1, v0
    v_lshlrev_b32 v5, 2, v5
    v_cmp_gt_u32 vcc, 384, v0
    v_mov_b32 v7, 1
    s_mov_b32 s47, {WS_ACT}
    s_mov_b32 s54, {WS_ACT + 4096}
    v_cndmask_b32 v7, v7, 0, vcc
    s_lshl_b32 s55, s53, 6
    s_add_u32 s55, s55, s46
    v_and_b32 v6, 15, v2
    v_lshlrev_b32 v6, 2, v6
    ''')
    spin('''
    buffer_load_dword v12, v5, s[32:35], s47 offen sc1
    buffer_load_dword v13, v5, s[32:35], s47 offen offset:1024 sc1
    buffer_load_dword v14, v5, s[32:35], s47 offen offset:2048 sc1
    buffer_load_dword v15, v5, s[32:35], s47 offen offset:3072 sc1
    buffer_load_dword v16, v5, s[32:35], s54 offen sc1
    buffer_load_dword v17, v5, s[32:35], s54 offen offset:1024 sc1
    buffer_load_dword v18, v5, s[32:35], s54 offen offset:2048 sc1
    buffer_load_dword v20, v6, s[32:35], s55 offen sc1
    buffer_load_dword v21, v6, s[32:35], s55 offen offset:2560 sc1
    s_waitcnt vmcnt(0)
    v_or_b32 v19, v18, v7
    v_and_b32 v19, v19, v12
    v_and_b32 v19, v19, v13
    v_and_b32 v19, v19, v14
    v_and_b32 v19, v19, v15
    v_and_b32 v19, v19, v16
    v_and_b32 v19, v19, v17
    v_and_b32 v19, v19, v20
    v_and_b32 v19, v19, v21
    v_and_b32 v19, 1, v19
    v_cmp_ne_u32 vcc, 0, v19
    ''')
    for i in list(range(12, 19)) + [20, 21]:
        a(f'v_and_b32 v{i}, 0xffff0000, v{i}')
    for e in range(7):
        for i in range(8):
            op = 'v_mul_f32' if e == 0 else 'v_fmac_f32'
            a(f'{op} v{R+i}, v{12+e}, v{UW+8*e+i}')
    a('s_nop 1')
    for j in range(4):
        a(f'v_permlane32_swap_b32 v{R+j}, v{R+j+4}')
    for j in range(4):
        a(f'v_add_f32 v{R+j}, v{R+j}, v{R+j+4}')
    a('s_nop 1')
    for j in range(2):
        a(f'v_permlane16_swap_b32 v{R+j}, v{R+j+2}')
    for j in range(2):
        a(f'v_add_f32 v{R+j}, v{R+j}, v{R+j+2}')
    for m in ['quad_perm:[2,3,0,1]', 'row_ror:4', 'row_ror:8']:
        a('s_nop 0')
        for j in range(2):
            a(f'v_add_f32_dpp v{R+j}, v{R+j}, v{R+j} {m} row_mask:0xf bank_mask:0xf')
    a(f'''
    v_lshrrev_b32 v7, 4, v2
    v_lshlrev_b32 v7, 3, v7
    v_and_b32 v8, 1, v2
    v_lshl_add_u32 v7, v8, 5, v7
    s_lshl_b32 s47, s20, 6
    s_add_u32 s47, s47, {M_P2}
    v_add_u32 v7, s47, v7
    s_mov_b32 exec_lo, 0x00030003
    s_mov_b32 exec_hi, 0x00030003
    ds_write_b64 v7, v[{R}:{R+1}]
    s_mov_b64 exec, -1
    s_waitcnt lgkmcnt(0)
    s_barrier
    s_cmp_lg_u32 s20, 0
    s_cbranch_scc1 {end}
    v_add_u32 v6, {M_P2}, v6
    ds_read_b32 v8, v6
    ds_read_b32 v9, v6 offset:64
    ds_read_b32 v10, v6 offset:128
    ds_read_b32 v11, v6 offset:192
    ds_read_b32 v12, v6 offset:256
    ds_read_b32 v13, v6 offset:320
    ds_read_b32 v14, v6 offset:384
    ds_read_b32 v15, v6 offset:448
    s_lshr_b32 s48, s44, 16
    s_xor_b32 s49, s48, 0xffff
    s_and_b32 s50, s48, 0x7fff
    s_cmp_ge_u32 s48, 0x8000
    s_cselect_b32 s48, s50, s49
    s_lshl_b32 s48, s48, 16
    v_mov_b32 v18, s48
    v_mul_f32 v18, {fbits(-LOG2E):#x}, v18
    v_exp_f32 v18, v18
    s_nop 0
    v_add_f32 v18, 1.0, v18
    v_rcp_f32 v18, v18
    s_waitcnt lgkmcnt(0)
    v_add_f32 v8, v8, v9
    v_add_f32 v10, v10, v11
    v_add_f32 v12, v12, v13
    v_add_f32 v14, v14, v15
    v_add_f32 v8, v8, v10
    v_add_f32 v12, v12, v14
    v_add_f32 v8, v8, v12
    ''')
    round_bf16(a, 8, 9)
    round_bf16(a, 18, 9)
    a('v_mul_f32 v8, v8, v18')
    round_bf16(a, 8, 9)
    a('v_add_f32 v8, v20, v8')
    round_bf16(a, 8, 9)
    a(f'''
    v_add_f32 v8, v21, v8
    v_cvt_pk_bf16_f32 v8, v8, v8
    s_mul_i32 s45, s45, 1280
    s_lshl_b32 s47, s53, 5
    s_add_u32 s45, s45, s47
    v_lshlrev_b32 v7, 1, v2
    s_mov_b64 exec, 0xffff
    buffer_store_short v8, v7, s[36:39], s45 offen
    s_mov_b64 exec, -1
    ''')
    a.label(end)
    stamp_flush(a)
    a.label(end + 'x')
    a('s_endpgm')

def main():
    global STAMPS
    if len(sys.argv) > 2 and sys.argv[2] == 'stamps': STAMPS = True
    a = A()
    gen(a)
    hdr = f'; @launch grid=(256,1,1) block=(512,1,1) lds={LDS_TOTAL}\n'
    hdr += '.amdgcn_target "amdgcn-amd-amdhsa--gfx950"\n.text\n'
    out = hdr + a.text() + f'''.section .rodata,"a"
.p2align 6
.amdhsa_kernel {KNAME}
  .amdhsa_next_free_vgpr 248
  .amdhsa_next_free_sgpr 102
  .amdhsa_accum_offset 248
  .amdhsa_group_segment_fixed_size 0
  .amdhsa_kernarg_size 120
  .amdhsa_user_sgpr_count 2
  .amdhsa_user_sgpr_kernarg_segment_ptr 1
  .amdhsa_system_sgpr_workgroup_id_x 1
.end_amdhsa_kernel
'''
    path = sys.argv[1] if len(sys.argv) > 1 else f'cdna_kernels/{NAME}.s'
    open(path, 'w').write(out)
    print('wrote', path, len(out))

if __name__ == '__main__':
    main()
```

```python
import struct, sys

NAME = 'sequential_preLN__ssm_conv_s4d__moe_arch_mod__prompt'
KNAME = NAME + '_kernel'

WS_U = 0x000000
WS_YT = 0x280000
WS_CAND = 0x520000
WS_KEY = 0x500000
WS_FLAG2 = 0x501000
WS_FLAG1 = 0x502000
WS_GO = 0x508000
WS_PART = 0x6A0000
WS_YP = 0x6C0000
WS_ACT = 0x504000
WS_STAMP = 0xE00000
WS_SIZE = 0x1000000
NREP = 8
SPIN_MAX = 1 << 18
OOB = 0x7ffffff0
STAMPS = False
TAILST = False
WARM = True
PF = 'none'
SIGPOS = 2
WPOS = 'conv'
CODEPF = True
WSH = 21
PRIO = 0

def fbits(x):
    return struct.unpack('<I', struct.pack('<f', x))[0]

LOG2E = 1.4426950408889634
LOG2E_HI = struct.unpack('<f', struct.pack('<f', LOG2E))[0]
LOG2E_LO = LOG2E - LOG2E_HI
LN2 = 0.6931471805599453
INV2PI = 0.15915494309189535

class A:
    def __init__(self):
        self.L = []
        self.uid = 0
    def __call__(self, s):
        for line in s.strip('\n').split('\n'):
            if line.strip():
                self.L.append('    ' + line.strip())
    def label(self, s):
        self.L.append(s + ':')
    def newlabel(self, base):
        self.uid += 1
        return f'L_{base}_{self.uid}'
    def text(self):
        return '\n'.join(self.L) + '\n'

NSTAMP = 12
def stamp(a, i):
    if STAMPS:
        a(f's_memrealtime s[{76+2*i}:{77+2*i}]')
def cstamp(a, i):
    if STAMPS:
        a(f's_memtime s[{76+2*i}:{77+2*i}]')
def stamp_init(a):
    if STAMPS:
        for i in range(NSTAMP):
            a(f's_mov_b32 s{76+2*i}, 0')
def stamp_flush(a):
    if STAMPS:
        a('s_mov_b64 exec, -1')
        a(f's_memrealtime s[{76+2*(NSTAMP-1)}:{77+2*(NSTAMP-1)}]')
        a('s_waitcnt lgkmcnt(0)')
        for i in range(NSTAMP):
            a(f'v_mov_b32 v{8+i}, s{76+2*i}')
        a(f'''
        s_lshl_b32 s76, s2, 3
        s_add_u32 s76, s76, s20
        s_lshl_b32 s76, s76, 6
        s_add_u32 s76, s76, {WS_STAMP}
        v_mov_b32 v24, 0
        s_mov_b64 exec, 1
        buffer_store_dwordx4 v[8:11], v24, s[32:35], s76 offen
        buffer_store_dwordx4 v[12:15], v24, s[32:35], s76 offen offset:16
        buffer_store_dwordx4 v[16:19], v24, s[32:35], s76 offen offset:32
        ''')

def srd(a, s, lo, hi, size):
    a(f's_mov_b32 s{s}, s{lo}')
    a(f's_and_b32 s{s+1}, s{hi}, 0xffff')
    a(f's_mov_b32 s{s+2}, {size}')
    a(f's_mov_b32 s{s+3}, 0x00020000')

def wave_reduce(a, op, v):
    for m in ['quad_perm:[1,0,3,2] row_mask:0xf bank_mask:0xf',
              'quad_perm:[2,3,0,1] row_mask:0xf bank_mask:0xf',
              'row_half_mirror row_mask:0xf bank_mask:0xf',
              'row_mirror row_mask:0xf bank_mask:0xf',
              'row_bcast:15 row_mask:0xa bank_mask:0xf',
              'row_bcast:31 row_mask:0xc bank_mask:0xf']:
        a('s_nop 1')
        a(f'{op}_dpp v{v}, v{v}, v{v} {m}')

def round_bf16(a, v, t):
    a(f'v_cvt_pk_bf16_f32 v{t}, v{v}, v{v}')
    a(f'v_lshlrev_b32 v{v}, 16, v{t}')

def unpack(a, src, lo, hi):
    a(f'v_lshlrev_b32 v{lo}, 16, v{src}')
    a(f'v_and_b32 v{hi}, 0xffff0000, v{src}')

def exp_bf16(a, v, t0, t1, s_l2e, s_l2elo, s_ln2):
    a(f'v_mul_f32 v{t0}, s{s_l2e}, v{v}')
    a(f'v_fma_f32 v{t1}, v{v}, s{s_l2e}, -v{t0}')
    a(f'v_fmac_f32 v{t1}, s{s_l2elo}, v{v}')
    a(f'v_exp_f32 v{t0}, v{t0}')
    a(f'v_mul_f32 v{t1}, s{s_ln2}, v{t1}')
    a(f'v_fma_f32 v{v}, v{t0}, v{t1}, v{t0}')
    round_bf16(a, v, t0)

def ln_stats(a, src, tmp, vs1, vs2, vmean, vrs, vt, s0, s1, s2_):
    a(f'v_readfirstlane_b32 s{s2_}, v{src}')
    a('s_nop 1')
    for i in range(10):
        a(f'v_subrev_f32 v{tmp+i}, s{s2_}, v{src+i}')
    a(f'''
    v_add_f32 v{vs1}, v{tmp}, v{tmp+1}
    v_mul_f32 v{vs2}, v{tmp}, v{tmp}
    v_add_f32 v{vmean}, v{tmp+2}, v{tmp+3}
    v_mul_f32 v{vrs}, v{tmp+1}, v{tmp+1}
    ''')
    for i in range(4, 10, 2):
        a(f'v_add_f32 v{vs1}, v{vs1}, v{tmp+i}')
        a(f'v_add_f32 v{vmean}, v{vmean}, v{tmp+i+1}')
    for i in range(2, 10, 2):
        a(f'v_fmac_f32 v{vs2}, v{tmp+i}, v{tmp+i}')
        a(f'v_fmac_f32 v{vrs}, v{tmp+i+1}, v{tmp+i+1}')
    a(f'v_add_f32 v{vs1}, v{vs1}, v{vmean}')
    a(f'v_add_f32 v{vs2}, v{vs2}, v{vrs}')
    for m in ['quad_perm:[1,0,3,2] row_mask:0xf bank_mask:0xf',
              'quad_perm:[2,3,0,1] row_mask:0xf bank_mask:0xf',
              'row_half_mirror row_mask:0xf bank_mask:0xf',
              'row_mirror row_mask:0xf bank_mask:0xf',
              'row_bcast:15 row_mask:0xa bank_mask:0xf',
              'row_bcast:31 row_mask:0xc bank_mask:0xf']:
        a('s_nop 0')
        a(f'v_add_f32_dpp v{vs1}, v{vs1}, v{vs1} {m}')
        a(f'v_add_f32_dpp v{vs2}, v{vs2}, v{vs2} {m}')
    a(f'''
    v_mov_b32 v{vt}, {fbits(1.0/640):#x}
    v_readlane_b32 s{s0}, v{vs1}, 63
    v_readlane_b32 s{s1}, v{vs2}, 63
    s_nop 0
    v_mul_f32 v{vmean}, s{s0}, v{vt}
    v_mul_f32 v{vrs}, s{s1}, v{vt}
    v_fma_f32 v{vrs}, -v{vmean}, v{vmean}, v{vrs}
    v_add_f32 v{vmean}, s{s2_}, v{vmean}
    v_max_f32 v{vrs}, 0, v{vrs}
    ''')
    round_bf16(a, vrs, vt)
    a(f'v_add_f32 v{vrs}, {fbits(1e-5):#x}, v{vrs}')
    round_bf16(a, vrs, vt)
    a(f'v_sqrt_f32 v{vrs}, v{vrs}')
    a('s_nop 0')
    round_bf16(a, vrs, vt)
    a(f'v_rcp_f32 v{vrs}, v{vrs}')
    round_bf16(a, vmean, vt)

def reduceN(a, R, n):
    h = n // 2; qn = n // 4
    a('s_nop 1')
    for j in range(h):
        a(f'v_permlane32_swap_b32 v{R+j}, v{R+j+h}')
    for j in range(h):
        a(f'v_add_f32 v{R+j}, v{R+j}, v{R+j+h}')
    a('s_nop 1')
    for j in range(qn):
        a(f'v_permlane16_swap_b32 v{R+j}, v{R+j+qn}')
    for j in range(qn):
        a(f'v_add_f32 v{R+j}, v{R+j}, v{R+j+qn}')
    for m in ['quad_perm:[1,0,3,2]', 'quad_perm:[2,3,0,1]', 'row_half_mirror', 'row_mirror']:
        a('s_nop 0')
        for j in range(qn):
            a(f'v_add_f32_dpp v{R+j}, v{R+j}, v{R+j} {m} row_mask:0xf bank_mask:0xf')

KT_RS = 544
KT_E0 = 41
KT_SZ = 57 * KT_RS
L_TILE = 3 * KT_SZ
TS = 1344
L_KC = L_TILE + 8 * TS
KC_SZ = 1344
L_UP = L_KC + 3 * KC_SZ
US = 1152
UP_SZ = 4 * US
L_MISC = L_UP + 3 * UP_SZ
M_CNT1 = L_MISC
M_CNT2 = L_MISC + 4
M_SCALE = L_MISC + 16
M_PAIR = L_MISC + 96
M_KEYS = L_MISC + 32
M_GKEY = L_MISC + 64
M_P2 = L_MISC + 384
M_P1 = L_MISC + 1024
LDS_TOTAL = L_MISC + 3072
CS = 4224
CP_SZ = 4 * CS
L_RED = 3 * CP_SZ
L_Y2 = 0

VX = 200
VT = 206
VW = 168
GA = 152
VU = 160

def gen(a):
    a.L.append(f'.globl {KNAME}')
    a.L.append('.p2align 8')
    a.L.append(f'.type {KNAME},@function')
    a.label(KNAME)
    end = 'L_end'
    stamp_init(a)
    stamp(a, 0)
    a(f'''
    s_cmp_ge_u32 s2, 256
    s_cbranch_scc1 {end}x
    s_load_dwordx8 s[4:11], s[0:1], 0
    s_load_dwordx4 s[12:15], s[0:1], 32
    s_load_dwordx2 s[16:17], s[0:1], 48    ; D
    s_load_dwordx2 s[18:19], s[0:1], 112   ; ws
    s_load_dwordx8 s[64:71], s[0:1], 64
    s_load_dwordx4 s[72:75], s[0:1], 96
    v_lshrrev_b32 v1, 6, v0
    v_and_b32 v2, 63, v0                   ; lane
    v_readfirstlane_b32 s20, v1            ; wave
    s_and_b32 s21, s2, 7
    s_lshl_b32 s21, s21, 5
    s_lshr_b32 s22, s2, 3
    s_add_u32 s21, s21, s22                ; rb
    s_lshl_b32 s22, s21, 3
    s_add_u32 s22, s22, s20                ; row
    s_mul_i32 s23, s22, 1280
    v_lshlrev_b32 v3, 4, v2                ; lane*16
    v_lshlrev_b32 v4, 2, v2                ; lane*4
    s_and_b32 s60, s2, 7
    s_lshl_b32 s60, s60, 4
    s_lshr_b32 s61, s2, 4
    s_add_u32 s60, s60, s61
    s_mul_i32 s60, s60, 5
    s_bfe_u32 s61, s2, 0x10003             ; odd
    s_mul_i32 s62, s61, 3
    s_add_u32 s62, s62, s60                ; chA
    s_add_u32 s63, s60, 2                  ; chS
    s_lshr_b32 s56, s20, 1
    s_add_u32 s57, s62, s56
    s_cmp_eq_u32 s56, 2
    s_cselect_b32 s57, s63, s57
    ''')
    if CODEPF:
        lcp = a.newlabel('cp')
        a(f'''
        s_cmp_lg_u32 s20, 6
        s_cbranch_scc1 {lcp}
        s_getpc_b64 s[24:25]
        s_lshr_b32 s26, s2, 3
        s_lshl_b32 s26, s26, 10
        v_add_u32 v5, s26, v3
        s_cmp_lt_u32 s26, CODE_BYTES
        s_cbranch_scc0 {lcp}
        global_load_dwordx4 v[240:243], v5, s[24:25]
        ''')
        a.label(lcp)
    a(f'''
    s_waitcnt lgkmcnt(0)
    ''')
    srd(a, 24, 4, 5, 2621440)
    srd(a, 32, 18, 19, WS_SIZE)
    srd(a, 28, 16, 17, 1280)
    lnz = a.newlabel('nz')
    a(f'''
    s_lshl_b32 s17, s2, 3
    s_add_u32 s17, s17, s20
    s_cmp_lg_u32 s17, 7
    s_cbranch_scc1 {lnz}
    v_mov_b32 v8, 0
    v_mov_b32 v9, 0
    v_mov_b32 v10, 0
    v_mov_b32 v11, 0
    s_mov_b32 s4, {WS_FLAG1}
    buffer_store_dwordx4 v[8:11], v3, s[32:35], s4 offen sc1
    buffer_store_dwordx4 v[8:11], v3, s[32:35], s4 offen offset:1024 sc1
    buffer_store_dwordx4 v[8:11], v3, s[32:35], s4 offen offset:2048 sc1
    buffer_store_dwordx4 v[8:11], v3, s[32:35], s4 offen offset:3072 sc1
    v_lshlrev_b32 v12, 12, v2
    s_mov_b32 s4, {WS_GO + 256}
    s_mov_b64 exec, {(1<<NREP)-1:#x}
    buffer_store_dword v8, v12, s[32:35], s4 offen sc1
    s_mov_b64 exec, -1
    s_nop 1
    ''')
    a.label(lnz)
    a('''
    buffer_load_dwordx4 v[8:11], v3, s[24:27], s23 offen
    buffer_load_dword v12, v4, s[24:27], s23 offen offset:1024
    ''')
    srd(a, 36, 6, 7, 163840)
    srd(a, 40, 8, 9, 163840)
    srd(a, 44, 10, 11, 163840)
    srd(a, 48, 12, 13, 163840)
    srd(a, 52, 14, 15, 1280)
    a('''
    buffer_load_dwordx4 v[14:17], v3, s[28:31], 0 offen
    buffer_load_dword v18, v4, s[28:31], 0 offen offset:1024
    s_lshl_b32 s58, s57, 8
    s_and_b32 s59, s20, 1
    s_lshl_b32 s59, s59, 7
    s_add_u32 s59, s59, s58
    v_lshlrev_b32 v5, 1, v2
    s_lshl_b32 s16, s57, 1
    v_mov_b32 v6, 0
    buffer_load_ushort v20, v5, s[36:39], s59 offen
    buffer_load_ushort v21, v5, s[40:43], s59 offen
    buffer_load_ushort v22, v5, s[44:47], s59 offen
    buffer_load_ushort v23, v5, s[48:51], s59 offen
    buffer_load_dword v24, v4, s[44:47], s58 offen
    buffer_load_dword v25, v4, s[48:51], s58 offen
    buffer_load_ushort v26, v6, s[52:55], s16 offen
    ''')
    def prefetch(PD=216):
        srd(a, 36, 66, 67, 640 * 3456)
        srd(a, 40, 68, 69, 640 * 3456)
        srd(a, 44, 70, 71, 1728 * 1280)
        a(f'''
        s_and_b32 s4, s2, 7
        s_lshr_b32 s5, s2, 3
        s_mul_i32 s6, s4, 432
        s_mul_i32 s7, s5, {20*3456}
        s_add_u32 s6, s6, s7
        v_lshrrev_b32 v5, 5, v2
        v_mul_u32_u24 v5, 3456, v5
        v_and_b32 v6, 31, v2
        v_lshl_add_u32 v5, v6, 4, v5
        v_mov_b32 v7, {OOB:#x}
        v_cmp_gt_u32 vcc, 27, v6
        s_cmp_eq_u32 s20, 6
        s_cselect_b32 s36, s36, s40
        v_cndmask_b32 v5, v7, v5, vcc
        s_cselect_b32 s37, s37, s41
        ''')
        for i in range(10):
            a(f's_add_u32 s7, s6, {2*i*3456}')
            a(f'buffer_load_dwordx4 v[{PD+4*(i%2)}:{PD+3+4*(i%2)}], v5, s[36:39], s7 offen')
        a(f'''
        s_mul_i32 s6, s4, 160
        s_mul_i32 s7, s5, {54*1280}
        s_add_u32 s6, s6, s7
        s_sub_u32 s7, s20, 6
        s_mul_i32 s7, s7, {27*1280}
        s_add_u32 s6, s6, s7
        v_mul_u32_u24 v5, 205, v2
        v_lshrrev_b32 v5, 11, v5             ; lane/10
        v_mul_u32_u24 v6, 10, v5
        v_sub_u32 v6, v2, v6
        v_mul_u32_u24 v5, 1280, v5
        v_lshl_add_u32 v5, v6, 4, v5
        v_cmp_gt_u32 vcc, 60, v2
        s_nop 1
        v_cndmask_b32 v5, v7, v5, vcc
        ''')
        for i in range(5):
            a(f's_add_u32 s7, s6, {6*i*1280}')
            a(f'buffer_load_dwordx4 v[{PD+4*(i%2)}:{PD+3+4*(i%2)}], v5, s[44:47], s7 offen')
    if PF == 'start':
        lns = a.newlabel('ns')
        a(f'''
        s_cmp_lt_u32 s20, 6
        s_cbranch_scc1 {lns}
        ''')
        prefetch()
        a.label(lns)
    if WARM:
        lnw = a.newlabel('nw')
        a(f'''
        s_cmp_ge_u32 s20, 6
        s_cbranch_scc1 {lnw}
        v_lshlrev_b32 v27, {WSH}, v2
        s_mov_b32 s8, 0
        s_mov_b32 s4, s18
        s_mov_b32 s5, s19
        s_mov_b32 s6, {WS_SIZE // 2}
        s_cmp_eq_u32 s20, 1
        s_cselect_b32 s4, s72, s4
        s_cselect_b32 s5, s73, s5
        s_cselect_b32 s6, 2621440, s6
        s_cmp_eq_u32 s20, 2
        s_cselect_b32 s4, s74, s4
        s_cselect_b32 s5, s75, s5
        s_cselect_b32 s6, 256, s6
        s_cmp_eq_u32 s20, 3
        s_cselect_b32 s4, s64, s4
        s_cselect_b32 s5, s65, s5
        s_cselect_b32 s6, 1280, s6
        s_cmp_eq_u32 s20, 4
        s_cselect_b32 s4, s66, s4
        s_cselect_b32 s5, s67, s5
        s_cselect_b32 s6, {640*3456}, s6
        s_cmp_eq_u32 s20, 5
        s_cselect_b32 s8, {64 << WSH}, s8
        s_and_b32 s5, s5, 0xffff
        s_mov_b32 s7, 0x00020000
        buffer_load_dword v244, v27, s[4:7], s8 offen
        ''')
        a.label(lnw)
    lnr = a.newlabel('nr')
    a(f'''
    s_cmp_lg_u32 s17, 7
    s_cbranch_scc1 {lnr}
    ''')
    srd(a, 4, 74, 75, 256)
    a(f'''
    v_mov_b32 v27, 0
    v_mov_b32 v28, 1
    s_waitcnt vmcnt({26 if PF == 'start' else 11})
    s_mov_b64 exec, 1
    buffer_store_dword v28, v27, s[4:7], 0 offen sc1      ; READY
    s_mov_b64 exec, -1
    ''')
    a.label(lnr)
    a(f'''
    v_mov_b32 v27, 0
    v_lshrrev_b32 v28, 5, v0
    v_mul_u32_u24 v28, {US}, v28
    v_and_b32 v29, 31, v0
    v_lshl_add_u32 v28, v29, 2, v28
    v_add_u32 v28, {L_UP}, v28
    v_cmp_gt_u32 vcc, 384, v0
    s_and_saveexec_b64 s[4:5], vcc
    ds_write_b32 v28, v27
    s_mov_b64 exec, s[4:5]
    v_lshrrev_b32 v28, 2, v0
    v_mul_u32_u24 v28, {KC_SZ}, v28
    v_and_b32 v29, 3, v0
    v_lshl_add_u32 v28, v29, 2, v28
    v_add_u32 v28, {L_KC}, v28
    v_lshlrev_b32 v29, 2, v0
    v_add_u32 v29, {L_MISC}, v29
    v_cmp_gt_u32 vcc, 12, v0
    s_and_saveexec_b64 s[4:5], vcc
    ds_write_b32 v28, v27
    ds_write_b32 v29, v27
    ds_write_b32 v29, v27 offset:96
    s_mov_b64 exec, s[4:5]
    ''')
    a('v_lshlrev_b32 v5, 2, v0')
    a(f'v_mov_b32 v27, {L_KC}')
    for d in range(7):
        a(f'''
        v_add_u32 v31, {d-3}, v5
        v_cvt_f32_i32 v32, v31
        v_cvt_pk_bf16_f32 v32, v32, v32
        v_and_b32 v32, 0xffff, v32
        v_subrev_u32 v32, {(134<<7)-128}, v32
        v_cmp_gt_i32 vcc, 256, v31
        s_nop 1
        v_cndmask_b32 v32, v32, v31, vcc
        v_lshl_add_u32 v32, v32, 1, v27
        v_add_u32 v32, 16, v32
        v_cmp_gt_i32 vcc, 0, v31
        s_nop 1
        v_cndmask_b32 v{GA+d}, v32, v27, vcc
        ''')
    a(f'''
    v_lshrrev_b32 v31, 3, v0
    v_mul_u32_u24 v31, {CS}, v31
    v_and_b32 v32, 7, v0
    v_lshl_add_u32 v{VU+4}, v32, 2, v31
    ''')
    for e in range(2):
        vi, vr, vk, va, vl = 31, 32, 33, VU + 2 * e, VU + 2 * e + 1
        a(f'''
        v_add_u32 v{vi}, {512*e}, v0
        v_mul_u32_u24 v{vr}, 43691, v{vi}
        v_lshrrev_b32 v{vr}, 17, v{vr}
        v_mul_u32_u24 v{vk}, 3, v{vr}
        v_sub_u32 v{vk}, v{vi}, v{vk}
        v_mul_u32_u24 v{va}, 10240, v{vr}
        v_lshl_add_u32 v{va}, v{vk}, 4, v{va}
        s_lshl_b32 s5, s61, 1
        v_add_u32 v{vk}, s5, v{vk}
        v_subrev_u32 v{vl}, 3, v{vk}
        v_cmp_gt_u32 vcc, 3, v{vk}
        s_nop 1
        v_cndmask_b32 v{vk}, v{vl}, v{vk}, vcc
        v_mul_u32_u24 v{vl}, {UP_SZ}, v{vk}
        v_lshl_add_u32 v{vl}, v{vr}, 2, v{vl}
        v_add_u32 v{vl}, {L_UP + 128}, v{vl}
        ''')
    a(f'''
    v_mov_b32 v31, {OOB:#x}
    v_cmp_gt_u32 vcc, 256, v0
    s_nop 1
    v_cndmask_b32 v{VU+2}, v31, v{VU+2}, vcc
    ''')
    a(f'''
    v_mov_b32 v36, 0
    v_mov_b32 v37, 0
    v_mov_b32 v38, 0
    v_mov_b32 v39, 0
    v_lshlrev_b32 v35, 4, v0
    s_lshl_b32 s4, s62, 12
    s_add_u32 s4, s4, {WS_YT}
    buffer_store_dwordx4 v[36:39], v35, s[32:35], s4 offen sc1
    v_lshrrev_b32 v32, 5, v0
    v_mov_b32 v33, 0x8f
    v_mov_b32 v34, 0x70
    s_cmp_eq_u32 s61, 0
    s_cselect_b64 vcc, -1, 0
    v_cndmask_b32 v33, v34, v33, vcc
    v_lshrrev_b32 v33, v32, v33
    v_and_b32 v33, 1, v33
    v_cmp_ne_u32 vcc, 0, v33
    v_mov_b32 v33, {OOB:#x}
    s_lshl_b32 s4, s63, 12
    s_add_u32 s4, s4, {WS_YT}
    v_cndmask_b32 v35, v33, v35, vcc
    buffer_store_dwordx4 v[36:39], v35, s[32:35], s4 offen sc1
    ''')
    X = 30
    def wait2(n):
        if PF == 'start':
            l1 = a.newlabel('w'); l2 = a.newlabel('w')
            a(f'''
            s_cmp_ge_u32 s20, 6
            s_cbranch_scc1 {l1}
            s_waitcnt vmcnt({n})
            s_branch {l2}
            ''')
            a.label(l1)
            a(f's_waitcnt vmcnt({n+15})')
            a.label(l2)
        else:
            a(f's_waitcnt vmcnt({n})')
    wait2(11)
    srd(a, 24, 74, 75, 256)
    for i in range(4):
        unpack(a, 8 + i, X + 2 * i, X + 2 * i + 1)
        a(f'v_mov_b32 v{VX+i}, v{8+i}')
    unpack(a, 12, X + 8, X + 9)
    a(f'v_mov_b32 v{VX+4}, v12')
    ln_stats(a, X, 44, 40, 43, 41, 42, 54, 4, 5, 6)
    wait2(9)
    for i in range(4):
        unpack(a, 14 + i, 54 + 2 * i, 55 + 2 * i)
    unpack(a, 18, 62, 63)
    for p in range(5):
        x0, x1 = X + 2 * p, X + 2 * p + 1
        a(f'''
        v_sub_f32 v{x0}, v{x0}, v41
        v_sub_f32 v{x1}, v{x1}, v41
        v_cvt_pk_bf16_f32 v44, v{x0}, v{x1}
        v_lshlrev_b32 v{x0}, 16, v44
        v_and_b32 v{x1}, 0xffff0000, v44
        v_mul_f32 v{x0}, v{x0}, v42
        v_mul_f32 v{x1}, v{x1}, v42
        v_cvt_pk_bf16_f32 v44, v{x0}, v{x1}
        v_lshlrev_b32 v{x0}, 16, v44
        v_and_b32 v{x1}, 0xffff0000, v44
        v_cvt_pk_f16_f32 v{64+p}, v{x0}, v{x1}
        ''')
    a(f'''
    s_and_b32 s4, s20, 3
    s_lshl_b32 s4, s4, 1
    s_lshr_b32 s5, s20, 2
    s_or_b32 s4, s4, s5
    s_mul_i32 s4, s4, {TS}
    s_add_u32 s4, s4, {L_TILE}
    v_add_u32 v44, s4, v3
    v_add_u32 v45, s4, v4
    ds_write_b128 v44, v[64:67]
    ds_write_b32 v45, v68 offset:1024
    ''')
    for p in range(5):
        x0, x1 = X + 2 * p, X + 2 * p + 1
        a(f'''
        v_mul_f32 v{x0}, v{x0}, v{54+2*p}
        v_mul_f32 v{x1}, v{x1}, v{55+2*p}
        v_cvt_pk_bf16_f32 v{VT+p}, v{x0}, v{x1}
        ''')
    l67 = a.newlabel('w67')
    a(f'''
    v_lshrrev_b32 v44, 2, v2
    v_and_b32 v44, 3, v44
    v_mul_u32_u24 v44, {TS}, v44
    v_lshrrev_b32 v45, 4, v2
    v_lshlrev_b32 v45, 5, v45
    v_add_u32 v44, v44, v45
    v_and_b32 v45, 3, v2
    v_lshlrev_b32 v45, 3, v45
    v_add_u32 v44, v44, v45
    s_lshl_b32 s4, s20, 7
    s_add_u32 s4, s4, {L_TILE}
    v_add_u32 v44, s4, v44
    s_mul_i32 s4, s21, 10240
    s_lshl_b32 s5, s20, 10
    s_add_u32 s4, s4, s5
    s_add_u32 s4, s4, {WS_U}
    v_mov_b32 v46, 0
    buffer_load_dword v49, v46, s[24:27], 0 offen sc1
    s_waitcnt lgkmcnt(0)
    s_barrier
    ds_read_b64_tr_b16 v[64:65], v44
    ds_read_b64_tr_b16 v[66:67], v44 offset:{4*TS}
    s_cmp_lt_u32 s20, 6
    s_cbranch_scc1 {l67}
    ds_read_b64_tr_b16 v[68:69], v44 offset:256
    ds_read_b64_tr_b16 v[70:71], v44 offset:{4*TS+256}
    s_waitcnt lgkmcnt(0)
    buffer_store_dwordx4 v[68:71], v3, s[32:35], s4 offen offset:2048 sc1
    ''')
    a.label(l67)
    a('''
    s_waitcnt lgkmcnt(0)
    buffer_store_dwordx4 v[64:67], v3, s[32:35], s4 offen sc1
    ''')
    if not TAILST: stamp(a, 2)
    def zero_mailboxes():
        lz = a.newlabel('zero')
        a(f'''
        v_mov_b32 v46, 0
        v_mov_b32 v47, 0
        v_lshlrev_b32 v48, 3, v0
        s_mul_i32 s5, s2, 5120
        s_add_u32 s5, s5, {WS_CAND}
        buffer_store_dwordx2 v[46:47], v48, s[32:35], s5 offen sc1
        s_cmp_ge_u32 s20, 2
        s_cbranch_scc1 {lz}
        s_add_u32 s5, s5, 4096
        buffer_store_dwordx2 v[46:47], v48, s[32:35], s5 offen sc1
        s_cmp_ge_u32 s20, 1
        s_cbranch_scc1 {lz}
        s_mov_b64 exec, 0x3
        v_lshlrev_b32 v48, 12, v0
        s_lshl_b32 s5, s2, 4
        s_add_u32 s5, s5, {WS_KEY}
        buffer_store_dword v46, v48, s[32:35], s5 offen sc1
        v_lshlrev_b32 v48, 7, v0
        s_and_b32 s5, s2, {NREP-1}
        s_lshl_b32 s5, s5, 12
        s_add_u32 s5, s5, {WS_GO}
        s_cmp_lt_u32 s2, {NREP}
        s_cselect_b32 s5, s5, 0x40000000
        buffer_store_dword v46, v48, s[32:35], s5 offen sc1
        s_mov_b64 exec, -1
        ''')
        a.label(lz)
        lz2 = a.newlabel('zero2'); lz3 = a.newlabel('zero3')
        a(f'''
        s_cmp_ge_u32 s2, 216
        s_cbranch_scc1 {lz2}
        s_cmp_lt_u32 s20, 3
        s_cbranch_scc1 {lz3}
        s_mul_i32 s5, s2, 2560
        s_add_u32 s5, s5, {WS_YP - 3*512}
        v_lshlrev_b32 v48, 3, v0
        buffer_store_dwordx2 v[46:47], v48, s[32:35], s5 offen sc1
        s_branch {lz2}
        ''')
        a.label(lz3)
        a(f'''
        s_cmp_eq_u32 s20, 0
        s_cbranch_scc1 {lz2}
        s_lshl_b32 s5, s53, 1
        s_add_u32 s5, s5, s20
        s_mul_i32 s5, s5, 6912
        s_lshl_b32 s6, s52, 8
        s_add_u32 s5, s5, s6
        s_add_u32 s5, s5, {WS_PART - 6912}
        buffer_store_dword v46, v4, s[32:35], s5 offen sc1
        ''')
        a.label(lz2)
    def spin(body, slp=0):
        lsp = a.newlabel('spin'); lso = a.newlabel('spinout')
        a('s_mov_b32 s4, 0')
        a.label(lsp)
        a(body)
        a(f'''
        s_add_u32 s4, s4, 1
        s_cmp_ge_u32 s4, {SPIN_MAX}
        s_cbranch_scc1 {lso}
        s_cmp_eq_u64 vcc, exec
        s_cbranch_scc1 {lso}
        ''')
        if slp: a(f's_sleep {slp}')
        a(f's_branch {lsp}')
        a.label(lso)
    def signal(cnt_addr, which, lgkm=False, vm=0):
        ls = a.newlabel('sig')
        a(f'''
        s_waitcnt vmcnt({vm})
        v_mov_b32 v46, {cnt_addr}
        v_mov_b32 v47, 1
        s_mov_b64 exec, 1
        ds_add_rtn_u32 v48, v46, v47
        s_waitcnt lgkmcnt(0)
        v_readfirstlane_b32 s4, v48
        s_lshl_b32 s5, s2, 4
        s_add_u32 s5, s5, {WS_FLAG1 if which == 1 else WS_FLAG2}
        s_cmp_lg_u32 s4, 7
        s_cbranch_scc1 {ls}
        v_mov_b32 v46, 0
        ''')
        if which == 1:
            lrd = a.newlabel('rdy')
            a(f'''
            v_cmp_ne_u32 vcc, 0, v49
            s_cbranch_vccnz {lrd}
            ''')
            spin('''
            buffer_load_dword v48, v46, s[24:27], 0 offen sc1
            s_waitcnt vmcnt(0)
            v_cmp_ne_u32 vcc, 0, v48
            ''')
            a.label(lrd)
        a('buffer_store_dword v47, v46, s[32:35], s5 offen sc1')
        a.label(ls)
        a('s_mov_b64 exec, -1')
    def gather_flags(base, r):
        a(f'''
        s_mov_b32 s5, {base}
        s_mov_b32 s6, {base + 2048}
        ''')
        spin(f'''
        buffer_load_dword v{r}, v3, s[32:35], s5 offen sc1
        buffer_load_dword v{r+1}, v3, s[32:35], s5 offen offset:1024 sc1
        buffer_load_dword v{r+2}, v3, s[32:35], s6 offen sc1
        buffer_load_dword v{r+3}, v3, s[32:35], s6 offen offset:1024 sc1
        s_waitcnt vmcnt(0)
        v_min_u32 v{r+4}, v{r}, v{r+1}
        v_min3_u32 v{r+4}, v{r+4}, v{r+2}, v{r+3}
        v_cmp_ne_u32 vcc, 0, v{r+4}
        ''')
    def bcast(goaddr, vval, vt):
        a(f'''
        v_lshlrev_b32 v{vt}, 12, v2
        s_mov_b32 s5, {goaddr}
        s_mov_b64 exec, {(1<<NREP)-1:#x}
        buffer_store_dword v{vval}, v{vt}, s[32:35], s5 offen sc1
        s_mov_b64 exec, -1
        ''')
    def slave(goaddr, vr=47):
        a(f'''
        s_and_b32 s5, s2, {NREP-1}
        s_lshl_b32 s5, s5, 12
        s_add_u32 s5, s5, {goaddr}
        v_mov_b32 v46, 0
        ''')
        spin(f'''
        buffer_load_dword v{vr}, v46, s[32:35], s5 offen sc1
        s_waitcnt vmcnt(0)
        v_cmp_ne_u32 vcc, 0, v{vr}
        ''')
    def master1():
        gather_flags(WS_FLAG1, 44)
        a('v_mov_b32 v47, 1')
        bcast(WS_GO + 256, 47, 46)
    def sync2():
        lsl = a.newlabel('sl'); ld = a.newlabel('sd')
        a(f'''
        s_cmp_lg_u32 s2, 0
        s_cbranch_scc1 {lsl}
        ''')
        gather_flags(WS_FLAG2, 44)
        a('v_mov_b32 v47, 1')
        bcast(WS_GO, 47, 46)
        a(f's_branch {ld}')
        a.label(lsl)
        slave(WS_GO)
        a.label(ld)
    lmf = a.newlabel('kmfma'); lpf = a.newlabel('pf')
    a(f'''
    s_cmp_ge_u32 s20, 6
    s_cbranch_scc1 {lpf}
    s_mov_b32 s8, {fbits(LOG2E_HI):#x}
    s_mov_b32 s9, {fbits(LOG2E_LO):#x}
    s_mov_b32 s10, {fbits(LN2):#x}
    s_mov_b32 s11, {fbits(INV2PI):#x}
    s_waitcnt vmcnt({5 if WARM else 4})
    v_lshlrev_b32 v20, 16, v20
    v_lshlrev_b32 v21, 16, v21
    v_lshlrev_b32 v22, 16, v22
    v_lshlrev_b32 v23, 16, v23
    v_lshlrev_b32 v26, 16, v26
    v_and_b32 v24, 0x7f807f80, v24
    v_and_b32 v25, 0x7f807f80, v25
    v_pk_max_u16 v24, v24, v25
    v_lshrrev_b32 v25, 16, v24
    v_and_b32 v24, 0xffff, v24
    v_max_u32 v24, v24, v25
    ''')
    wave_reduce(a, 'v_max_u32', 24)
    exp_bf16(a, 20, 27, 28, 8, 9, 10)
    exp_bf16(a, 26, 27, 28, 8, 9, 10)
    a(f'''
    v_readlane_b32 s12, v24, 63
    s_lshr_b32 s12, s12, 7
    s_min_u32 s12, s12, 252
    s_sub_u32 s13, 253, s12
    s_lshl_b32 s13, s13, 23
    s_add_u32 s14, s12, 2
    s_lshl_b32 s14, s14, 23
    v_mul_f32 v20, v20, v26
    v_mul_f32 v21, v21, v26
    v_mul_f32 v20, s8, v20
    v_sub_f32 v20, 0, v20
    v_mul_f32 v21, s11, v21
    v_mul_f32 v22, s13, v22
    v_mul_f32 v23, s13, v23
    v_mul_f32 v26, s14, v26
    s_lshl_b32 s15, s56, 2
    s_add_u32 s15, s15, {M_SCALE}
    v_mov_b32 v27, s15
    s_mov_b64 exec, 1
    ds_write_b32 v27, v26
    s_mov_b64 exec, -1
    s_mul_i32 s15, s56, {KT_SZ}
    s_and_b32 s16, s20, 1
    s_lshl_b32 s16, s16, 8
    s_add_u32 s15, s15, s16
    v_add_u32 v27, s15, v4
    ''')
    def cmul(r, x, y, t=28):
        a(f'v_pk_mul_f32 v[{t}:{t+1}], v[{x}:{x+1}], v[{y}:{y+1}] op_sel:[1,1] op_sel_hi:[1,0]')
        a(f'v_pk_fma_f32 v[{r}:{r+1}], v[{x}:{x+1}], v[{y}:{y+1}], v[{t}:{t+1}] op_sel:[0,0,0] op_sel_hi:[0,1,1] neg_lo:[0,0,1]')
    pk = [0]
    def putG(row, x):
        r = 76 + (pk[0] % 8); pk[0] += 1
        a(f'v_cvt_pk_f16_f32 v{r}, v{x}, -v{x+1}')
        a(f'ds_write_b32 v27, v{r} offset:{row*KT_RS}')
    def putE(b, x):
        r = 76 + (pk[0] % 8); pk[0] += 1
        a(f'v_cvt_pk_f16_f32 v{r}, v{x}, v{x+1}')
        a(f'ds_write_b32 v27, v{r} offset:{(KT_E0+b)*KT_RS}')
    def direct(dst, p):
        a(f'''
        v_mul_f32 v28, {fbits(float(p)):#x}, v20
        v_mul_f32 v29, {fbits(float(p)):#x}, v21
        v_exp_f32 v28, v28
        v_fract_f32 v29, v29
        v_cos_f32 v{dst}, v29
        v_sin_f32 v{dst+1}, v29
        s_nop 0
        v_mul_f32 v{dst}, v{dst}, v28
        v_mul_f32 v{dst+1}, v{dst+1}, v28
        ''')
    def ES(c): return 30 + 2 * c
    direct(ES(1), 1)
    direct(50, 128)
    direct(52, 8)
    cmul(ES(2), ES(1), ES(1))
    cmul(ES(3), ES(2), ES(1))
    cmul(ES(4), ES(2), ES(2))
    cmul(ES(5), ES(4), ES(1))
    cmul(ES(6), ES(4), ES(2))
    cmul(ES(7), ES(4), ES(3))
    a('v_mov_b32 v62, 0x00003c00')
    a(f'ds_write_b32 v27, v62 offset:{KT_E0*KT_RS}')
    putE(1, 52)
    E = 52
    ereg = [58, 60]
    for b in range(2, 16):
        ne = ereg[b % 2]
        cmul(ne, E, 52)
        putE(b, ne)
        E = ne
    H = 22
    tmp = [58, 60, 62, 64]
    ti = [0]
    def prodG(row, h, e):
        t = tmp[ti[0] % 4]; ti[0] += 1
        cmul(t, h, e)
        putG(row, t)
    hreg = [54, 56]
    for aa in range(17):
        if aa < 2:
            putG(8 * aa, H)
            for c in range(1, 8):
                prodG(8 * aa + c, H, ES(c))
        elif aa < 4:
            base = 16 + 4 * (aa - 2)
            putG(base, H)
            for c in range(1, 4):
                prodG(base + c, H, ES(2 * c))
        elif aa < 8:
            base = 24 + 2 * (aa - 4)
            putG(base, H)
            prodG(base + 1, H, ES(4))
        else:
            putG(32 + (aa - 8), H)
        if aa < 16:
            nh = hreg[aa % 2]
            cmul(nh, H, 50)
            H = nh
        if aa == SIGPOS:
            signal(M_CNT1, 1, lgkm=True)
            if not TAILST: stamp(a, 4)
    a(f'''
    s_lshl_b32 s4, s56, 2
    s_add_u32 s4, s4, {M_PAIR}
    v_mov_b32 v46, s4
    v_mov_b32 v47, 1
    s_waitcnt lgkmcnt(0)
    s_mov_b64 exec, 1
    ds_add_u32 v46, v47
    ''')
    spin('''
    ds_read_b32 v48, v46
    s_waitcnt lgkmcnt(0)
    v_cmp_le_u32 vcc, 2, v48
    ''')
    a('s_mov_b64 exec, -1')
    a(f's_branch {lmf}')
    a.label(lpf)
    signal(M_CNT1, 1)
    if not TAILST: stamp(a, 4)
    lnm = a.newlabel('notmaster')
    a(f'''
    s_cmp_lg_u32 s2, 0
    s_cbranch_scc1 {lnm}
    s_cmp_lg_u32 s20, 7
    s_cbranch_scc1 {lnm}
    ''')
    master1()
    a.label(lnm)
    if PF == 'late':
        prefetch()
    lk2 = a.newlabel('kdone')
    a(f's_branch {lk2}')
    a.label(lmf)
    a(f'''
    v_and_b32 v44, 15, v2
    v_lshrrev_b32 v45, 4, v2
    v_mul_u32_u24 v46, {KT_RS}, v44
    v_lshl_add_u32 v46, v45, 4, v46
    s_and_b32 s4, s20, 1
    s_mov_b32 s5, s56
    ''')
    ltask = a.newlabel('task')
    a.label(ltask)
    a(f'''
    s_mov_b32 s6, s4                       ; tile
    s_mul_i32 s8, s5, {KT_SZ}
    s_mul_i32 s9, s6, {16*KT_RS}
    s_add_u32 s9, s9, s8
    s_add_u32 s8, s8, {KT_E0*KT_RS}
    v_add_u32 v47, s9, v46
    v_add_u32 v48, s8, v46
    ''')
    for ks in range(8):
        a(f'ds_read_b128 v[{64+8*ks}:{67+8*ks}], v47 offset:{64*ks}')
        a(f'ds_read_b128 v[{68+8*ks}:{71+8*ks}], v48 offset:{64*ks}')
    lt2 = a.newlabel('t2'); lt1 = a.newlabel('t1'); lnext = a.newlabel('next')
    a(f'''
    s_mul_i32 s8, s5, {KC_SZ}
    s_add_u32 s8, s8, {L_KC + 16}
    s_cmp_eq_u32 s6, 2
    s_cbranch_scc1 {lt2}
    ''')
    for ks in range(8):
        a(f's_waitcnt lgkmcnt({14-2*ks})')
        c = '0' if ks == 0 else 'v[56:59]'
        a(f'v_mfma_f32_16x16x32_f16 v[56:59], v[{64+8*ks}:{67+8*ks}], v[{68+8*ks}:{71+8*ks}], {c}')
    a(f'''
    s_cmp_eq_u32 s6, 1
    s_cbranch_scc1 {lt1}
    v_lshrrev_b32 v49, 1, v45
    v_lshlrev_b32 v49, 8, v49
    v_lshl_add_u32 v49, v44, 4, v49
    v_and_b32 v50, 1, v45
    v_lshl_add_u32 v49, v50, 3, v49
    v_add_u32 v49, s8, v49
    s_nop 4
    v_cvt_pk_f16_f32 v60, v56, v57
    v_cvt_pk_f16_f32 v61, v58, v59
    ds_write_b64 v49, v[60:61]
    s_branch {lnext}
    ''')
    a.label(lt1)
    a(f'''
    v_lshlrev_b32 v49, 7, v45
    v_add_u32 v49, s8, v49
    v_lshl_add_u32 v50, v44, 3, v49
    v_add_u32 v50, 512, v50
    v_add_u32 v51, 4, v50
    v_lshl_add_u32 v52, v44, 2, v49
    v_add_u32 v52, 512, v52
    v_add_u32 v53, 64, v52
    v_cmp_gt_u32 vcc, 2, v45
    s_nop 1
    v_cndmask_b32 v50, v52, v50, vcc
    v_cndmask_b32 v51, v53, v51, vcc
    v_cvt_pk_f16_f32 v60, v56, v57
    v_cvt_pk_f16_f32 v61, v58, v59
    ds_write_b32 v50, v60
    ds_write_b32 v51, v61
    s_branch {lnext}
    ''')
    a.label(lt2)
    for ks in range(8):
        a(f's_waitcnt lgkmcnt({14-2*ks})')
        c = '0' if ks == 0 else 'v[56:59]'
        a(f'v_mfma_f32_16x16x32_f16 v[56:59], v[{68+8*ks}:{71+8*ks}], v[{64+8*ks}:{67+8*ks}], {c}')
    a(f'''
    v_lshlrev_b32 v49, 5, v44
    v_lshl_add_u32 v49, v45, 3, v49
    v_add_u32 v49, 1024, v49
    v_add_u32 v49, s8, v49
    v_cmp_gt_u32 vcc, 9, v44
    s_nop 4
    v_cvt_pk_f16_f32 v60, v56, v57
    v_cvt_pk_f16_f32 v61, v58, v59
    s_and_saveexec_b64 s[10:11], vcc
    ds_write_b64 v49, v[60:61]
    s_mov_b64 exec, s[10:11]
    ''')
    a.label(lnext)
    a(f'''
    s_cmp_lg_u32 s4, 0
    s_cbranch_scc1 {lk2}
    s_mov_b32 s4, 2
    s_branch {ltask}
    ''')
    a.label(lk2)
    srd(a, 44, 70, 71, 1728 * 1280)
    a(f'''
    s_mul_i32 s53, s2, 2428
    s_lshr_b32 s53, s53, 16                ; kg = b/27
    s_mul_i32 s52, s53, 27
    s_sub_u32 s52, s2, s52                 ; cg
    s_cmp_lt_u32 s20, 4
    s_cselect_b32 s40, s66, s68
    s_cselect_b32 s41, s67, s69
    s_and_b32 s41, s41, 0xffff
    s_mov_b32 s42, {640*3456}
    s_mov_b32 s43, 0x00020000
    s_mul_i32 s54, s53, 80
    s_and_b32 s55, s20, 3
    s_mul_i32 s55, s55, 20
    s_add_u32 s54, s54, s55
    s_mul_i32 s12, s54, 3456
    s_lshl_b32 s55, s52, 7
    s_add_u32 s12, s12, s55
    s_mul_i32 s15, s2, {8*1280}
    s_lshl_b32 s55, s20, 8
    s_add_u32 s15, s15, s55
    s_cmp_lt_u32 s20, 5
    s_cselect_b32 s15, s15, 0x40000000
    s_cmp_lt_u32 s2, 216
    s_cselect_b32 s12, s12, 0x40000000
    s_cselect_b32 s15, s15, 0x40000000
    s_add_u32 s13, s12, {8*3456}
    s_add_u32 s14, s12, {16*3456}
    s_add_u32 s16, s15, {3*1280}
    s_add_u32 s17, s15, {6*1280}
    v_lshrrev_b32 v16, 3, v2
    v_mul_u32_u24 v16, 3456, v16
    v_and_b32 v17, 7, v2
    v_lshl_add_u32 v16, v17, 4, v16
    v_mov_b32 v17, {OOB:#x}
    v_cmp_gt_u32 vcc, 32, v2
    s_nop 1
    v_cndmask_b32 v17, v17, v16, vcc
    ''')
    WL = [f'buffer_load_dwordx4 v[{VW+4*e}:{VW+4*e+3}], v{17 if e == 2 else 16}, s[40:43], s{12+e} offen' for e in range(3)]
    WL += [f'buffer_load_dword v{VW+12+r}, v4, s[44:47], s{15 + r//3} offen offset:{1280*(r%3)}' for r in range(8)]
    lp1 = a.newlabel('p1'); lp0 = a.newlabel('p0')
    a(f'''
    s_cmp_eq_u32 s20, 0
    s_cbranch_scc1 {lp0}
    ''')
    if WPOS == 'B':
        for ins in WL:
            a(ins)
    a(f's_branch {lp1}')
    a.label(lp0)
    slave(WS_GO + 256)
    a.label(lp1)
    a(f'''
    v_lshlrev_b32 v6, 3, v0
    v_mov_b32 v18, 0
    s_lshl_b32 s4, s61, 1
    s_add_u32 s4, s4, s60
    s_lshl_b32 s4, s4, 4
    s_add_u32 s4, s4, {WS_U}
    s_waitcnt lgkmcnt(0)
    s_barrier
    buffer_load_dwordx4 v[8:11], v{VU}, s[32:35], s4 offen sc1
    buffer_load_dwordx4 v[12:15], v{VU+2}, s[32:35], s4 offen sc1
    ''')
    if not TAILST: stamp(a, 6)
    if PF == 'ug':
        srd(a, 36, 66, 67, 640 * 3456)
        a(f'''
        s_cmp_lt_u32 s20, 4
        s_cselect_b32 s36, s66, s68
        s_cselect_b32 s37, s67, s69
        s_and_b32 s37, s37, 0xffff
        s_and_b32 s4, s2, 7
        s_lshr_b32 s5, s2, 3
        s_mul_i32 s6, s4, 432
        s_mul_i32 s7, s5, {20*3456}
        s_add_u32 s6, s6, s7
        s_and_b32 s7, s20, 3
        s_mul_i32 s7, s7, {5*3456}
        s_add_u32 s6, s6, s7
        v_lshrrev_b32 v19, 5, v2
        v_mul_u32_u24 v19, 3456, v19
        v_and_b32 v20, 31, v2
        v_lshl_add_u32 v19, v20, 4, v19
        v_mov_b32 v21, {OOB:#x}
        v_cmp_gt_u32 vcc, 27, v20
        s_add_u32 s7, s6, {2*3456}
        s_add_u32 s8, s6, {4*3456}
        v_cndmask_b32 v19, v21, v19, vcc
        buffer_load_dwordx4 v[196:199], v19, s[36:39], s6 offen
        buffer_load_dwordx4 v[196:199], v19, s[36:39], s7 offen
        v_cmp_gt_u32 vcc, 27, v2
        s_mul_i32 s6, s4, 160
        s_mul_i32 s7, s5, {54*1280}
        v_cndmask_b32 v19, v21, v19, vcc
        buffer_load_dwordx4 v[196:199], v19, s[36:39], s8 offen
        s_add_u32 s6, s6, s7
        s_mul_i32 s7, s20, {7*1280}
        s_add_u32 s6, s6, s7
        v_mul_u32_u24 v19, 29, v2
        v_lshrrev_b32 v19, 8, v19
        v_mul_u32_u24 v20, 9, v19
        v_sub_u32 v20, v2, v20
        v_mul_u32_u24 v19, 1280, v19
        v_lshl_add_u32 v19, v20, 4, v19
        v_mul_u32_u24 v22, 20, v20
        v_lshrrev_b32 v22, 4, v22
        v_cmp_gt_u32 vcc, 63, v2
        s_nop 1
        v_cndmask_b32 v19, v21, v19, vcc
        buffer_load_dwordx4 v[196:199], v19, s[44:47], s6 offen
        ''')
    for c in range(3):
        r = 32 + 16 * c
        for dd in range(7):
            a(f'ds_read_u16 v{r+dd}, v{GA+dd} offset:{c*KC_SZ}')
    a('''
    v_cmp_gt_u32 vcc, 96, v0
    s_and_saveexec_b64 s[4:5], vcc
    ds_write_b32 v164, v18
    s_mov_b64 exec, s[4:5]
    ''')
    for c in range(3):
        r = 32 + 16 * c
        a(f's_waitcnt lgkmcnt({min(15, 7*(2-c) + 4*c)})')
        for i in range(6):
            a(f'v_lshl_or_b32 v{r+8+i}, v{r+i+1}, 16, v{r+i}')
        for s_ in range(4):
            off = c * CP_SZ + s_ * CS + 32
            a(f'v_add_u32 v7, {off}, v6')
            a(f'ds_write2_b32 v7, v{r+8+3-s_}, v{r+8+5-s_} offset0:0 offset1:1')
    a(f'''
    v_cmp_gt_u32 vcc, 256, v0
    s_waitcnt vmcnt({5 if PF == 'ug' else 1})
    ds_write_b32 v{VU+1}, v8
    ds_write_b32 v{VU+1}, v9 offset:{US}
    ds_write_b32 v{VU+1}, v10 offset:{2*US}
    ds_write_b32 v{VU+1}, v11 offset:{3*US}
    s_waitcnt vmcnt({4 if PF == 'ug' else 0})
    s_and_saveexec_b64 s[4:5], vcc
    ds_write_b32 v{VU+3}, v12
    ds_write_b32 v{VU+3}, v13 offset:{US}
    ds_write_b32 v{VU+3}, v14 offset:{2*US}
    ds_write_b32 v{VU+3}, v15 offset:{3*US}
    s_mov_b64 exec, s[4:5]
    ''')
    if WPOS == 'B':
        lw0 = a.newlabel('w0')
        a(f'''
        s_cmp_lg_u32 s20, 0
        s_cbranch_scc1 {lw0}
        ''')
        for ins in WL:
            a(ins)
        a.label(lw0)
    if WPOS == 'U':
        for ins in WL:
            a(ins)
    zero_mailboxes()
    srd(a, 28, 64, 65, 1280)
    a('''
    buffer_load_dwordx4 v[160:163], v3, s[28:31], 0 offen
    buffer_load_dword v164, v4, s[28:31], 0 offen offset:1024
    ''')
    a(f'''
    v_lshrrev_b32 v8, 4, v2
    v_mul_u32_u24 v9, {CS}, v8
    v_bfe_u32 v10, v2, 2, 2
    v_and_b32 v11, 3, v2
    v_sub_u32 v10, v11, v10
    v_lshl_add_u32 v9, v10, 3, v9
    v_add_u32 v9, 32, v9
    v_mul_u32_u24 v10, {US}, v8
    v_and_b32 v11, 15, v2
    v_lshl_add_u32 v10, v11, 3, v10
    v_add_u32 v10, {L_UP+8}, v10
    v_lshlrev_b32 v12, 5, v11
    v_lshl_add_u32 v12, v8, 3, v12
    v_lshlrev_b32 v13, 4, v2
    v_mov_b32 v5, {M_SCALE}
    ds_read_b96 v[20:22], v5
    ''')
    ACC = 24
    for i in range(8, 32):
        a(f'v_mov_b32 v{ACC+i}, 0')
    a('''
    s_waitcnt lgkmcnt(0)
    s_barrier
    ''')
    for i in range(8):
        a(f'v_mov_b32 v{ACC+i}, 0')
    a('''
    v_readfirstlane_b32 s48, v20
    v_readfirstlane_b32 s49, v21
    v_readfirstlane_b32 s50, v22
    ''')
    stamp(a, 8)
    if PF == 'conv':
        lnp = a.newlabel('np')
        a(f'''
        s_cmp_lt_u32 s20, 6
        s_cbranch_scc1 {lnp}
        s_mov_b32 s8, s40
        s_mov_b32 s9, s41
        s_mov_b32 s10, s42
        ''')
        prefetch(152)
        a('''
        s_mov_b32 s40, s8
        s_mov_b32 s41, s9
        s_mov_b32 s42, s10
        ''')
        a.label(lnp)
    FR = [56, 112]
    def loads(setbase, tiles_mx, cls_idx):
        out = []
        for m in range(tiles_mx + 1):
            fa, fb = setbase[0] + 4 * m, setbase[1] + 4 * m
            oa = 512 * m + 64 * (3 - cls_idx)
            ob = 128 * m + 16 * cls_idx
            out.append(f'ds_read_b64_tr_b16 v[{fa}:{fa+1}], v14 offset:{oa+32}')
            out.append(f'ds_read_b64_tr_b16 v[{fa+2}:{fa+3}], v14 offset:{oa}')
            out.append(f'ds_read_b64 v[{fb}:{fb+1}], v15 offset:{ob}')
            out.append(f'ds_read_b64 v[{fb+2}:{fb+3}], v15 offset:{ob+8}')
        return out
    SETS = [(56, 88), (120, 216)]
    def conv(tiles, ncls):
        mx = max(tiles)
        for ins in loads(SETS[0], mx, 0):
            a(ins)
        for ci in range(ncls):
            st = SETS[ci % 2]
            nxt = loads(SETS[(ci + 1) % 2], mx, ci + 1) if ci + 1 < ncls else []
            mf = []
            for s in range(mx + 1):
                grp = []
                for (m, aa) in [(s, i) for i in range(s + 1)] + [(i, s) for i in range(s)]:
                    c = m + aa
                    if c in tiles:
                        grp.append(f'v_mfma_f32_16x16x32_f16 v[{ACC+4*c}:{ACC+4*c+3}], v[{st[0]+4*m}:{st[0]+4*m+3}], v[{st[1]+4*aa}:{st[1]+4*aa+3}], v[{ACC+4*c}:{ACC+4*c+3}]')
                mf.append(grp)
            nload = 4 * (mx + 1)
            k = 0
            nm = 0
            wq = WL[ci * len(WL) // ncls:(ci + 1) * len(WL) // ncls] if WPOS == 'conv' else []
            wstep = max(1, sum(len(g) for g in mf) // (len(wq) + 1))
            for s_ in range(mx + 1):
                allowed = nload - 4 * (s_ + 1) + k
                if mf[s_]:
                    a(f's_waitcnt lgkmcnt({min(15, allowed)})')
                for ins in mf[s_]:
                    a(ins)
                    nm += 1
                    if wq and nm % wstep == 0:
                        a(wq.pop(0))
                    if (ci > 0 or s_ >= 2) and k < len(nxt):
                        a(nxt[k]); k += 1
                        if len(tiles) < 8 and k < len(nxt):
                            a(nxt[k]); k += 1
            while k < len(nxt):
                a(nxt[k]); k += 1
            for ins in wq: a(ins)
        a('s_nop 7')
        a('s_nop 1')
        stamp(a, 7)
    def epilogue(c, sreg_scale, sreg_out):
        r = ACC + 4 * c
        a(f'''
        v_fma_f32 v{r}, s{sreg_scale}, v{r}, 0
        v_fma_f32 v{r+1}, s{sreg_scale}, v{r+1}, 0
        v_fma_f32 v{r+2}, s{sreg_scale}, v{r+2}, 0
        v_fma_f32 v{r+3}, s{sreg_scale}, v{r+3}, 0
        v_cvt_pk_bf16_f32 v{r}, v{r}, v{r+1}
        v_cvt_pk_bf16_f32 v{r+1}, v{r+2}, v{r+3}
        v_xor_b32 v{r}, 0x80008000, v{r}
        v_xor_b32 v{r+1}, 0x80008000, v{r+1}
        buffer_store_dwordx2 v[{r}:{r+1}], v12, s[32:35], s{sreg_out} offen offset:{512*c} sc1
        ''')
    lS = a.newlabel('shared'); lcd = a.newlabel('convdone')
    FA = 56
    a(f'''
    s_cmp_ge_u32 s20, 4
    s_cbranch_scc1 {lS}
    s_lshr_b32 s4, s20, 1                  ; slot 0/1
    s_and_b32 s5, s20, 1
    s_lshl_b32 s6, s5, 2
    s_mul_i32 s7, s4, {CP_SZ}
    s_sub_u32 s8, 4, s6                    ; 7-(first+3)
    s_lshl_b32 s8, s8, 6
    s_add_u32 s7, s7, s8
    v_add_u32 v14, s7, v9
    s_mul_i32 s7, s4, {UP_SZ}
    s_lshl_b32 s8, s6, 4
    s_add_u32 s7, s7, s8
    v_add_u32 v15, s7, v10
    s_cmp_eq_u32 s4, 0
    s_cselect_b32 s9, s48, s49
    s_add_u32 s10, s62, s4
    s_lshl_b32 s10, s10, 12
    s_add_u32 s10, s10, {WS_YT}
    s_lshl_b32 s11, s4, 13
    s_add_u32 s11, s11, {L_RED}
    v_add_u32 v13, s11, v13
    ''')
    conv(list(range(8)), 4)
    lodd = a.newlabel('odd')
    a(f'''
    s_cmp_eq_u32 s5, 1
    s_cbranch_scc1 {lodd}
    ''')
    for par in range(2):
        keep = [0, 1, 2, 3] if par == 0 else [4, 5, 6, 7]
        give = [4, 5, 6, 7] if par == 0 else [0, 1, 2, 3]
        if par == 1:
            a.label(lodd)
        for c in give:
            a(f'ds_write_b128 v13, v[{ACC+4*c}:{ACC+4*c+3}] offset:{1024*c}')
        a('s_waitcnt vmcnt(11) lgkmcnt(0)' if WPOS == 'conv' else 's_waitcnt vmcnt(0) lgkmcnt(0)')
        a('s_barrier')
        for i, c in enumerate(keep):
            a(f'ds_read_b128 v[{FA+4*i}:{FA+4*i+3}], v13 offset:{1024*c}')
        for i, c in enumerate(keep):
            a(f's_waitcnt lgkmcnt({3-i})')
            for e in range(4):
                a(f'v_add_f32 v{ACC+4*c+e}, v{ACC+4*c+e}, v{FA+4*i+e}')
            epilogue(c, 9, 10)
        a(f's_branch {lcd}')
    a.label(lS)
    lSo = a.newlabel('sharedodd')
    a(f'''
    s_sub_u32 s5, s20, 4                   ; ww
    s_lshl_b32 s6, s5, 1
    s_sub_u32 s8, 4, s6
    s_lshl_b32 s8, s8, 6
    s_add_u32 s7, s8, {2*CP_SZ}
    v_add_u32 v14, s7, v9
    s_lshl_b32 s8, s6, 4
    s_add_u32 s7, s8, {2*UP_SZ}
    v_add_u32 v15, s7, v10
    s_lshl_b32 s10, s63, 12
    s_add_u32 s10, s10, {WS_YT}
    v_add_u32 v13, {L_RED + 16384}, v13
    s_cmp_eq_u32 s61, 1
    s_cbranch_scc1 {lSo}
    ''')
    for par in range(2):
        tiles = [0, 1, 2, 3, 7] if par == 0 else [4, 5, 6]
        if par == 1:
            a.label(lSo)
        conv(tiles, 2)
        a('s_lshl_b32 s11, s5, 10')
        a('v_add_u32 v14, s11, v13')
        for i, c in enumerate(tiles):
            a(f'ds_write_b128 v14, v[{ACC+4*c}:{ACC+4*c+3}] offset:{4096*i}')
        a('s_waitcnt vmcnt(11) lgkmcnt(0)' if WPOS == 'conv' else 's_waitcnt vmcnt(0) lgkmcnt(0)')
        a('s_barrier')
        for ww in range(4):
            lnx = a.newlabel('nx')
            a(f's_cmp_lg_u32 s5, {ww}')
            a(f's_cbranch_scc1 {lnx}')
            for i, c in enumerate(tiles):
                if i % 4 != ww: continue
                for k in range(4):
                    a(f'ds_read_b128 v[{FA+4*k}:{FA+4*k+3}], v13 offset:{4096*i + 1024*k}')
                a('s_waitcnt lgkmcnt(0)')
                for e in range(4):
                    a(f'v_add_f32 v{FA+e}, v{FA+e}, v{FA+4+e}')
                    a(f'v_add_f32 v{FA+8+e}, v{FA+8+e}, v{FA+12+e}')
                    a(f'v_add_f32 v{ACC+4*c+e}, v{FA+e}, v{FA+8+e}')
                epilogue(c, 50, 10)
            a(f's_branch {lcd}')
            a.label(lnx)
        a(f's_branch {lcd}')
    a.label(lcd)
    stamp(a, 9)
    srd(a, 36, 72, 73, 2621440)
    lg = a.newlabel('g'); lg1 = a.newlabel('g1'); lg2 = a.newlabel('g2'); lgo = a.newlabel('go')
    a(f'''
    v_lshlrev_b32 v5, 12, v0
    v_lshlrev_b32 v6, 2, v0
    s_lshl_b32 s48, s21, 4
    s_add_u32 s48, s48, {WS_YT}
    s_add_u32 s49, s48, {512*4096}
    v_cmp_gt_u32 vcc, 128, v0
    s_mov_b64 s[6:7], -1
    s_mov_b64 s[8:9], vcc
    s_mov_b32 s4, 0
    ''')
    a.label(lg)
    a(f'''
    s_mov_b64 exec, s[6:7]
    s_cbranch_execz {lg1}
    buffer_load_dwordx4 v[8:11], v5, s[32:35], s48 offen sc1
    ''')
    a.label(lg1)
    a(f'''
    s_mov_b64 exec, s[8:9]
    s_cbranch_execz {lg2}
    buffer_load_dwordx4 v[12:15], v5, s[32:35], s49 offen sc1
    ''')
    a.label(lg2)
    a(f'''
    s_mov_b64 exec, -1
    s_add_u32 s4, s4, 1
    s_waitcnt vmcnt(0)
    v_min_u32 v36, v8, v9
    v_min3_u32 v36, v36, v10, v11
    v_min_u32 v37, v12, v13
    v_min3_u32 v37, v37, v14, v15
    v_cmp_eq_u32 vcc, 0, v36
    v_cmp_eq_u32 s[10:11], 0, v37
    s_and_b64 s[6:7], s[6:7], vcc
    s_and_b64 s[8:9], s[8:9], s[10:11]
    s_cmp_ge_u32 s4, {SPIN_MAX}
    s_cbranch_scc1 {lgo}
    s_or_b64 s[10:11], s[6:7], s[8:9]
    s_cbranch_scc1 {lg}
    ''')
    a.label(lgo)
    stamp(a, 3)
    if STAMPS:
        a('s_mov_b32 s78, s4')
    for i in range(8, 16):
        a(f'v_xor_b32 v{i}, 0x80008000, v{i}')
    a(f'''
    v_cmp_gt_u32 vcc, 128, v0
    ds_write2st64_b32 v6, v8, v9 offset0:0 offset1:10
    ds_write2st64_b32 v6, v10, v11 offset0:20 offset1:30
    s_and_saveexec_b64 s[42:43], vcc
    ds_write2st64_b32 v6, v12, v13 offset0:8 offset1:18
    ds_write2st64_b32 v6, v14, v15 offset0:28 offset1:38
    s_mov_b64 exec, s[42:43]
    s_lshr_b32 s44, s20, 1
    s_mul_i32 s44, s44, 2560
    v_lshlrev_b32 v7, 5, v2
    v_add_u32 v7, s44, v7
    v_lshlrev_b32 v33, 3, v2
    v_add_u32 v33, s44, v33
    s_and_b32 s45, s20, 1
    s_lshl_b32 s45, s45, 4
    ''')
    XR = 40; T = 50; W = 60; H = 70
    for i in range(4):
        unpack(a, VX + i, XR + 2 * i, XR + 2 * i + 1)
        unpack(a, VT + i, T + 2 * i, T + 2 * i + 1)
        unpack(a, 160 + i, W + 2 * i, W + 2 * i + 1)
    unpack(a, VX + 4, XR + 8, XR + 9)
    unpack(a, VT + 4, T + 8, T + 9)
    unpack(a, 164, W + 8, W + 9)
    a(f'''
    s_waitcnt lgkmcnt(0)
    s_barrier
    ds_read_b128 v[8:11], v7
    ds_read_b128 v[12:15], v7 offset:16
    ds_read_b64 v[34:35], v33 offset:2048
    ''')
    stamp(a, 10)
    X = XR
    a('s_waitcnt lgkmcnt(0)')
    ysrc = list(range(8, 16)) + [34, 35]
    for i in range(10):
        a(f'v_lshrrev_b32 v{ysrc[i]}, s45, v{ysrc[i]}')
        a(f'v_lshlrev_b32 v{ysrc[i]}, 16, v{ysrc[i]}')
    for p in range(5):
        i0, i1 = 2 * p, 2 * p + 1
        a(f'''
        v_add_f32 v{T+i0}, v{ysrc[i0]}, v{T+i0}
        v_add_f32 v{T+i1}, v{ysrc[i1]}, v{T+i1}
        v_cvt_pk_bf16_f32 v36, v{T+i0}, v{T+i1}
        v_lshlrev_b32 v{T+i0}, 16, v36
        v_and_b32 v{T+i1}, 0xffff0000, v36
        v_add_f32 v{T+i0}, v{X+i0}, v{T+i0}
        v_add_f32 v{T+i1}, v{X+i1}, v{T+i1}
        v_cvt_pk_bf16_f32 v36, v{T+i0}, v{T+i1}
        v_lshlrev_b32 v{H+i0}, 16, v36
        v_and_b32 v{H+i1}, 0xffff0000, v36
        ''')
    ln_stats(a, H, X, 36, 21, 37, 38, 39, 46, 47, 48)
    a('v_mov_b32 v36, 0')
    a('v_mov_b32 v21, 0')
    for p in range(5):
        i0, i1 = 2 * p, 2 * p + 1
        a(f'''
        v_sub_f32 v{X+i0}, v{H+i0}, v37
        v_sub_f32 v{X+i1}, v{H+i1}, v37
        v_cvt_pk_bf16_f32 v39, v{X+i0}, v{X+i1}
        v_lshlrev_b32 v{X+i0}, 16, v39
        v_and_b32 v{X+i1}, 0xffff0000, v39
        v_mul_f32 v{X+i0}, v{X+i0}, v38
        v_mul_f32 v{X+i1}, v{X+i1}, v38
        v_cvt_pk_bf16_f32 v39, v{X+i0}, v{X+i1}
        v_lshlrev_b32 v{X+i0}, 16, v39
        v_and_b32 v{X+i1}, 0xffff0000, v39
        v_fmac_f32 v36, v{X+i0}, v{W+i0}
        v_fmac_f32 v21, v{X+i1}, v{W+i1}
        ''')
    a('v_add_f32 v36, v36, v21')
    wave_reduce(a, 'v_add_f32', 36)
    a(f'''
    v_cvt_pk_bf16_f32 v36, v36, v36
    v_and_b32 v36, 0xffff, v36
    v_xor_b32 v37, 0xffff, v36
    v_or_b32 v38, 0x8000, v36
    v_cmp_lt_u32 vcc, 0x7fff, v36
    s_sub_u32 s46, 4095, s22
    s_lshl_b32 s49, s20, 2
    v_cndmask_b32 v36, v38, v37, vcc
    v_lshl_or_b32 v36, v36, 16, s46
    s_add_u32 s49, s49, {M_KEYS}
    v_mov_b32 v37, s49
    v_readlane_b32 s48, v36, 63
    s_nop 1
    v_mov_b32 v38, s48
    ds_write_b32 v37, v38
    ''')
    for p in range(5):
        i0, i1 = 2 * p, 2 * p + 1
        a(f'''
        v_add_f32 v{T+i0}, v{H+i0}, v{X+i0}
        v_add_f32 v{T+i1}, v{H+i1}, v{X+i1}
        v_cvt_pk_bf16_f32 v{92+p}, v{T+i0}, v{T+i1}
        ''')
    lnb = a.newlabel('notbest'); lpoll = a.newlabel('poll'); lb2 = a.newlabel('b2')
    a(f'''
    v_and_b32 v37, 7, v2
    v_lshlrev_b32 v37, 2, v37
    v_add_u32 v37, {M_KEYS}, v37
    s_waitcnt lgkmcnt(0)
    s_barrier
    ds_read_b32 v38, v37
    s_waitcnt lgkmcnt(0)
    s_nop 1
    v_max_u32_dpp v38, v38, v38 quad_perm:[1,0,3,2] row_mask:0xf bank_mask:0xf
    s_nop 1
    v_max_u32_dpp v38, v38, v38 quad_perm:[2,3,0,1] row_mask:0xf bank_mask:0xf
    s_nop 1
    v_max_u32_dpp v38, v38, v38 row_half_mirror row_mask:0xf bank_mask:0xf
    s_nop 0
    v_readfirstlane_b32 s50, v38
    s_cmp_lg_u32 s50, s48
    s_cbranch_scc1 {lnb}
    s_lshl_b32 s51, s21, 4
    s_add_u32 s51, s51, {WS_KEY}
    v_mov_b32 v37, 0
    s_mov_b64 exec, 1
    buffer_store_dword v38, v37, s[32:35], s51 offen sc1
    s_mov_b64 exec, -1
    ''')
    for i in range(10):
        a(f'v_or_b32 v{X+i}, 1, v{X+i}')
        a(f'v_or_b32 v{H+i}, 1, v{H+i}')
    a(f'''
    s_mul_i32 s51, s21, 5120
    s_add_u32 s51, s51, {WS_CAND}
    v_lshlrev_b32 v37, 5, v2
    v_lshlrev_b32 v39, 3, v2
    buffer_store_dwordx4 v[{X}:{X+3}], v37, s[32:35], s51 offen sc1
    buffer_store_dwordx4 v[{X+4}:{X+7}], v37, s[32:35], s51 offen offset:16 sc1
    buffer_store_dwordx2 v[{X+8}:{X+9}], v39, s[32:35], s51 offen offset:2048 sc1
    s_add_u32 s51, s51, 2560
    buffer_store_dwordx4 v[{H}:{H+3}], v37, s[32:35], s51 offen sc1
    buffer_store_dwordx4 v[{H+4}:{H+7}], v37, s[32:35], s51 offen offset:16 sc1
    buffer_store_dwordx2 v[{H+8}:{H+9}], v39, s[32:35], s51 offen offset:2048 sc1
    s_branch {lpoll}
    ''')
    a.label(lnb)
    a('''
    buffer_store_dwordx4 v[92:95], v3, s[36:39], s23 offen
    buffer_store_dword v96, v4, s[36:39], s23 offen offset:1024
    ''')
    a.label(lpoll)
    if TAILST: stamp(a, 2)
    UW = 100
    lks = a.newlabel('kslave'); lkd = a.newlabel('kd'); lu3 = a.newlabel('u3')
    for i in range(20):
        unpack(a, VW + i, UW + 2 * i, UW + 2 * i + 1)
    a(f'''
    s_cmp_lg_u32 s20, 0
    s_cbranch_scc1 {lb2}
    s_cmp_lg_u32 s2, 0
    s_cbranch_scc1 {lks}
    ''')
    gather_flags(WS_KEY, 8)
    a('''
    v_max_u32 v8, v8, v9
    v_max3_u32 v8, v8, v10, v11
    ''')
    wave_reduce(a, 'v_max_u32', 8)
    a('''
    s_nop 0
    v_readlane_b32 s6, v8, 63
    s_nop 1
    v_mov_b32 v8, s6
    ''')
    bcast(WS_GO + 128, 8, 9)
    a(f's_branch {lkd}')
    a.label(lks)
    slave(WS_GO + 128, 8)
    a.label(lkd)
    a(f'''
    v_mov_b32 v9, {M_GKEY}
    s_mov_b64 exec, 1
    ds_write_b32 v9, v8
    s_mov_b64 exec, -1
    s_waitcnt lgkmcnt(0)
    ''')
    a.label(lb2)
    lw = a.newlabel('iswin'); ldown = a.newlabel('down')
    a(f'''
    s_barrier
    v_mov_b32 v9, {M_GKEY}
    ds_read_b32 v8, v9
    s_waitcnt lgkmcnt(0)
    v_readfirstlane_b32 s44, v8
    s_cmp_lg_u32 s50, s48
    s_cbranch_scc1 {lw}
    s_cmp_eq_u32 s44, s48
    s_cbranch_scc1 {lw}
    buffer_store_dwordx4 v[92:95], v3, s[36:39], s23 offen
    buffer_store_dword v96, v4, s[36:39], s23 offen offset:1024
    ''')
    a.label(lw)
    if TAILST: stamp(a, 4)
    a(f'''
    s_and_b32 s45, s44, 0x7ff
    s_sub_u32 s45, 2047, s45
    s_lshr_b32 s46, s45, 3
    s_mul_i32 s46, s46, 5120
    s_add_u32 s46, s46, {WS_CAND}
    s_cmp_ge_u32 s2, 216
    s_cbranch_scc1 {ldown}
    ; ---- G task ----
    s_lshl_b32 s47, s54, 2
    s_add_u32 s47, s47, s46
    v_lshrrev_b32 v5, 3, v2
    v_lshlrev_b32 v5, 2, v5
    v_add_u32 v6, 64, v5
    v_mov_b32 v7, {OOB:#x}
    v_cmp_gt_u32 vcc, 32, v2
    v_mov_b32 v8, 1
    s_nop 0
    v_cndmask_b32 v6, v7, v6, vcc
    v_cndmask_b32 v7, v8, 0, vcc
    ''')
    spin('''
    buffer_load_dword v12, v5, s[32:35], s47 offen sc1
    buffer_load_dword v13, v5, s[32:35], s47 offen offset:32 sc1
    buffer_load_dword v14, v6, s[32:35], s47 offen sc1
    s_waitcnt vmcnt(0)
    v_or_b32 v15, v14, v7
    v_and_b32 v15, v15, v12
    v_and_b32 v15, v15, v13
    v_and_b32 v15, 1, v15
    v_cmp_ne_u32 vcc, 0, v15
    ''')
    if TAILST: stamp(a, 6)
    a('''
    v_and_b32 v12, 0xffff0000, v12
    v_and_b32 v13, 0xffff0000, v13
    v_and_b32 v14, 0xffff0000, v14
    ''')
    R = 40
    for e in range(3):
        for i in range(8):
            op = 'v_mul_f32' if e == 0 else 'v_fmac_f32'
            a(f'{op} v{R+i}, v{12+e}, v{UW+8*e+i}')
    a('s_nop 1')
    for j in range(4):
        a(f'v_permlane32_swap_b32 v{R+j}, v{R+j+4}')
    for j in range(4):
        a(f'v_add_f32 v{R+j}, v{R+j}, v{R+j+4}')
    a('s_nop 1')
    for j in range(2):
        a(f'v_permlane16_swap_b32 v{R+j}, v{R+j+2}')
    for j in range(2):
        a(f'v_add_f32 v{R+j}, v{R+j}, v{R+j+2}')
    a('s_nop 0')
    for j in range(2):
        a(f'v_add_f32_dpp v{R+j}, v{R+j}, v{R+j} row_ror:8 row_mask:0xf bank_mask:0xf')
    lg5 = a.newlabel('g5')
    a(f'''
    v_and_b32 v6, 7, v2
    v_lshlrev_b32 v6, 5, v6
    v_lshrrev_b32 v7, 4, v2
    v_lshl_add_u32 v6, v7, 3, v6
    s_lshl_b32 s47, s20, 8
    s_add_u32 s47, s47, {M_P1}
    v_add_u32 v6, s47, v6
    s_mov_b32 exec_lo, 0x00ff00ff
    s_mov_b32 exec_hi, 0x00ff00ff
    ds_write_b64 v6, v[{R}:{R+1}]
    s_mov_b64 exec, -1
    s_waitcnt lgkmcnt(0)
    s_barrier
    s_cmp_ge_u32 s20, 5
    s_cbranch_scc1 {end}
    s_cmp_ge_u32 s20, 2
    s_cbranch_scc1 {lg5}
    s_lshl_b32 s47, s20, 10
    s_add_u32 s47, s47, {M_P1}
    v_add_u32 v6, s47, v4
    ds_read_b32 v8, v6
    ds_read_b32 v9, v6 offset:256
    ds_read_b32 v10, v6 offset:512
    ds_read_b32 v11, v6 offset:768
    s_lshl_b32 s47, s53, 1
    s_add_u32 s47, s47, s20
    s_mul_i32 s47, s47, 6912
    s_lshl_b32 s48, s52, 8
    s_add_u32 s47, s47, s48
    s_add_u32 s47, s47, {WS_PART}
    s_waitcnt lgkmcnt(0)
    v_add_f32 v8, v8, v9
    v_add_f32 v10, v10, v11
    v_add_f32 v8, v8, v10
    v_or_b32 v8, 1, v8
    buffer_store_dword v8, v4, s[32:35], s47 offen sc1
    ''')
    a.label(lg5)
    stamp(a, 5)
    ld1 = a.newlabel('d1')
    a(f'''
    s_cmp_lg_u32 s20, 0
    s_cbranch_scc1 {ld1}
    v_lshrrev_b32 v5, 3, v2
    v_mul_u32_u24 v5, 13824, v5
    v_and_b32 v6, 7, v2
    v_lshl_add_u32 v5, v6, 2, v5
    s_lshl_b32 s47, s2, 5
    s_add_u32 s47, s47, {WS_PART}
    s_add_u32 s48, s47, 6912
    ''')
    spin('''
    buffer_load_dword v8, v5, s[32:35], s47 offen sc1
    buffer_load_dword v9, v5, s[32:35], s48 offen sc1
    s_waitcnt vmcnt(0)
    v_and_b32 v10, v8, v9
    v_and_b32 v10, 1, v10
    v_cmp_ne_u32 vcc, 0, v10
    ''')
    a('''
    s_nop 1
    v_permlane32_swap_b32 v8, v9
    v_add_f32 v8, v8, v9
    v_mov_b32 v9, v8
    s_nop 1
    v_permlane16_swap_b32 v8, v9
    v_add_f32 v8, v8, v9
    s_nop 1
    v_add_f32_dpp v8, v8, v8 row_ror:8 row_mask:0xf bank_mask:0xf
    v_mov_b32 v12, v8
    s_nop 1
    v_permlane32_swap_b32 v8, v12
    ''')
    round_bf16(a, 8, 9)
    round_bf16(a, 12, 9)
    a(f'''
    v_mul_f32 v9, {fbits(-LOG2E):#x}, v8
    v_exp_f32 v9, v9
    s_nop 0
    v_add_f32 v9, 1.0, v9
    v_rcp_f32 v9, v9
    s_nop 0
    v_mul_f32 v8, v8, v9
    ''')
    round_bf16(a, 8, 9)
    a('v_mul_f32 v8, v8, v12')
    round_bf16(a, 8, 9)
    a(f'''
    v_add_u32 v9, {M_P2}, v4
    s_mov_b64 exec, 0xff
    ds_write_b32 v9, v8
    s_mov_b64 exec, -1
    s_waitcnt lgkmcnt(0)
    ''')
    a.label(ld1)
    a(f'''
    s_barrier
    v_mov_b32 v9, {M_P2}
    ds_read_b128 v[12:15], v9
    ds_read_b128 v[16:19], v9 offset:16
    s_mul_i32 s47, s2, 2560
    s_lshl_b32 s48, s20, 9
    s_add_u32 s47, s47, s48
    s_add_u32 s47, s47, {WS_YP}
    v_lshlrev_b32 v5, 3, v2
    s_waitcnt lgkmcnt(0)
    ''')
    for r in range(8):
        op = 'v_mul_f32' if r == 0 else 'v_fmac_f32'
        a(f'{op} v10, v{12+r}, v{UW+24+2*r}')
        a(f'{op} v11, v{12+r}, v{UW+25+2*r}')
    a(f'''
    v_or_b32 v10, 1, v10
    v_or_b32 v11, 1, v11
    buffer_store_dwordx2 v[10:11], v5, s[32:35], s47 offen sc1
    s_branch {end}
    ''')
    a.label(ldown)
    a(f'''
    s_sub_u32 s53, s2, 216
    v_lshrrev_b32 v5, 2, v0
    v_mul_u32_u24 v5, 2560, v5
    v_and_b32 v6, 3, v0
    v_lshl_add_u32 v5, v6, 4, v5
    v_mov_b32 v7, {OOB:#x}
    v_cmp_gt_u32 vcc, 352, v0
    v_mov_b32 v8, 1
    s_lshl_b32 s47, s53, 6
    v_cndmask_b32 v6, v7, v5, vcc
    v_cndmask_b32 v7, v8, 0, vcc
    s_add_u32 s55, s47, s46
    s_add_u32 s47, s47, {WS_YP}
    s_add_u32 s48, s47, {128*2560}
    v_and_b32 v22, 15, v2
    v_lshlrev_b32 v22, 2, v22
    ''')
    spin('''
    buffer_load_dwordx4 v[8:11], v5, s[32:35], s47 offen sc1
    buffer_load_dwordx4 v[12:15], v6, s[32:35], s48 offen sc1
    buffer_load_dword v20, v22, s[32:35], s55 offen sc1
    buffer_load_dword v21, v22, s[32:35], s55 offen offset:2560 sc1
    s_waitcnt vmcnt(0)
    v_and_b32 v16, v12, v13
    v_and_b32 v17, v14, v15
    v_and_b32 v16, v16, v17
    v_or_b32 v16, v16, v7
    v_and_b32 v17, v8, v9
    v_and_b32 v18, v10, v11
    v_and_b32 v16, v16, v17
    v_and_b32 v16, v16, v18
    v_and_b32 v16, v16, v20
    v_and_b32 v16, v16, v21
    v_and_b32 v16, 1, v16
    v_cmp_ne_u32 vcc, 0, v16
    ''')
    a(f'''
    v_add_f32 v8, v8, v12
    v_add_f32 v9, v9, v13
    v_add_f32 v10, v10, v14
    v_add_f32 v11, v11, v15
    v_and_b32 v20, 0xffff0000, v20
    v_and_b32 v21, 0xffff0000, v21
    v_permlane32_swap_b32 v8, v10
    v_permlane32_swap_b32 v9, v11
    v_add_f32 v8, v8, v10
    v_add_f32 v9, v9, v11
    s_nop 1
    v_permlane16_swap_b32 v8, v9
    v_add_f32 v8, v8, v9
    s_nop 1
    v_add_f32_dpp v8, v8, v8 row_ror:4 row_mask:0xf bank_mask:0xf
    s_nop 1
    v_add_f32_dpp v8, v8, v8 row_ror:8 row_mask:0xf bank_mask:0xf
    v_and_b32 v7, 3, v2
    v_lshlrev_b32 v7, 4, v7
    v_lshrrev_b32 v9, 4, v2
    v_lshl_add_u32 v7, v9, 2, v7
    s_lshl_b32 s47, s20, 6
    s_add_u32 s47, s47, {M_P2}
    v_add_u32 v7, s47, v7
    s_mov_b32 exec_lo, 0x000f000f
    s_mov_b32 exec_hi, 0x000f000f
    ds_write_b32 v7, v8
    s_mov_b64 exec, -1
    s_waitcnt lgkmcnt(0)
    s_barrier
    s_cmp_lg_u32 s20, 0
    s_cbranch_scc1 {end}
    v_add_u32 v6, {M_P2}, v22
    ds_read_b32 v8, v6
    ds_read_b32 v9, v6 offset:64
    ds_read_b32 v10, v6 offset:128
    ds_read_b32 v11, v6 offset:192
    ds_read_b32 v12, v6 offset:256
    ds_read_b32 v13, v6 offset:320
    ds_read_b32 v14, v6 offset:384
    ds_read_b32 v15, v6 offset:448
    s_lshr_b32 s48, s44, 16
    s_xor_b32 s49, s48, 0xffff
    s_and_b32 s50, s48, 0x7fff
    s_cmp_ge_u32 s48, 0x8000
    s_cselect_b32 s48, s50, s49
    s_lshl_b32 s48, s48, 16
    v_mov_b32 v18, s48
    v_mul_f32 v18, {fbits(-LOG2E):#x}, v18
    v_exp_f32 v18, v18
    s_nop 0
    v_add_f32 v18, 1.0, v18
    v_rcp_f32 v18, v18
    s_waitcnt lgkmcnt(0)
    v_add_f32 v8, v8, v9
    v_add_f32 v10, v10, v11
    v_add_f32 v12, v12, v13
    v_add_f32 v14, v14, v15
    v_add_f32 v8, v8, v10
    v_add_f32 v12, v12, v14
    v_add_f32 v8, v8, v12
    ''')
    round_bf16(a, 8, 9)
    round_bf16(a, 18, 9)
    a('v_mul_f32 v8, v8, v18')
    round_bf16(a, 8, 9)
    a('v_add_f32 v8, v20, v8')
    round_bf16(a, 8, 9)
    a(f'''
    v_add_f32 v8, v21, v8
    v_cvt_pk_bf16_f32 v8, v8, v8
    s_mul_i32 s45, s45, 1280
    s_lshl_b32 s47, s53, 5
    s_add_u32 s45, s45, s47
    v_lshlrev_b32 v7, 1, v2
    s_mov_b64 exec, 0xffff
    buffer_store_short v8, v7, s[36:39], s45 offen
    s_mov_b64 exec, -1
    ''')
    a.label(end)
    stamp_flush(a)
    a.label(end + 'x')
    a('s_endpgm')

def main():
    global STAMPS
    global PF
    if len(sys.argv) > 2 and sys.argv[2] == 'stamps': STAMPS = True
    global WPOS, TAILST
    if len(sys.argv) > 4: TAILST = True
    if len(sys.argv) > 3: WPOS = sys.argv[3]
    a = A()
    gen(a)
    hdr = f'; @launch grid=(256,1,1) block=(512,1,1) lds={LDS_TOTAL}\n'
    hdr += '.amdgcn_target "amdgcn-amd-amdhsa--gfx950"\n.text\n.set CODE_BYTES, 18432\n'
    out = hdr + a.text() + f'''.section .rodata,"a"
.p2align 6
.amdhsa_kernel {KNAME}
  .amdhsa_next_free_vgpr 248
  .amdhsa_next_free_sgpr 102
  .amdhsa_accum_offset 248
  .amdhsa_group_segment_fixed_size 0
  .amdhsa_kernarg_size 120
  .amdhsa_user_sgpr_count 2
  .amdhsa_user_sgpr_kernarg_segment_ptr 1
  .amdhsa_system_sgpr_workgroup_id_x 1
.end_amdhsa_kernel
'''
    path = sys.argv[1] if len(sys.argv) > 1 else f'cdna_kernels/{NAME}.s'
    open(path, 'w').write(out)
    print('wrote', path, len(out))

if __name__ == '__main__':
    main()
```

```python
import struct, sys

NAME = 'sequential_preLN__ssm_conv_s4d__moe_arch_mod__prompt'
KNAME = NAME + '_kernel'

WS_U = 0x000000
WS_YT = 0x280000
WS_CAND = 0x520000
WS_KEY = 0x500000
WS_FLAG2 = 0x501000
WS_FLAG1 = 0x502000
WS_GO = 0x508000
WS_PART = 0x6A0000
WS_YP = 0x6C0000
WS_ACT = 0x504000
WS_STAMP = 0xE00000
WS_SIZE = 0x1000000
NREP = 8
SPIN_MAX = 1 << 18
OOB = 0x7ffffff0
STAMPS = False
TAILST = False
WARM = True
PF = 'none'
SIGPOS = 2
WPOS = 'conv'
CODEPF = True
OUTF = ''
WSH = 21
PRIO = 0

def fbits(x):
    return struct.unpack('<I', struct.pack('<f', x))[0]

LOG2E = 1.4426950408889634
LOG2E_HI = struct.unpack('<f', struct.pack('<f', LOG2E))[0]
LOG2E_LO = LOG2E - LOG2E_HI
LN2 = 0.6931471805599453
INV2PI = 0.15915494309189535

class A:
    def __init__(self):
        self.L = []
        self.uid = 0
    def __call__(self, s):
        for line in s.strip('\n').split('\n'):
            if line.strip():
                self.L.append('    ' + line.strip())
    def label(self, s):
        self.L.append(s + ':')
    def newlabel(self, base):
        self.uid += 1
        return f'L_{base}_{self.uid}'
    def text(self):
        return '\n'.join(self.L) + '\n'

NSTAMP = 12
def stamp(a, i):
    if STAMPS:
        a(f's_memrealtime s[{76+2*i}:{77+2*i}]')
def cstamp(a, i):
    if STAMPS:
        a(f's_memtime s[{76+2*i}:{77+2*i}]')
def stamp_init(a):
    if STAMPS:
        for i in range(NSTAMP):
            a(f's_mov_b32 s{76+2*i}, 0')
def stamp_flush(a):
    if STAMPS:
        a('s_mov_b64 exec, -1')
        a(f's_memrealtime s[{76+2*(NSTAMP-1)}:{77+2*(NSTAMP-1)}]')
        a('s_waitcnt lgkmcnt(0)')
        for i in range(NSTAMP):
            a(f'v_mov_b32 v{8+i}, s{76+2*i}')
        a(f'''
        s_lshl_b32 s76, s2, 3
        s_add_u32 s76, s76, s20
        s_lshl_b32 s76, s76, 6
        s_add_u32 s76, s76, {WS_STAMP}
        v_mov_b32 v24, 0
        s_mov_b64 exec, 1
        buffer_store_dwordx4 v[8:11], v24, s[32:35], s76 offen
        buffer_store_dwordx4 v[12:15], v24, s[32:35], s76 offen offset:16
        buffer_store_dwordx4 v[16:19], v24, s[32:35], s76 offen offset:32
        ''')

def srd(a, s, lo, hi, size):
    a(f's_mov_b32 s{s}, s{lo}')
    a(f's_and_b32 s{s+1}, s{hi}, 0xffff')
    a(f's_mov_b32 s{s+2}, {size}')
    a(f's_mov_b32 s{s+3}, 0x00020000')

def wave_reduce(a, op, v):
    for m in ['quad_perm:[1,0,3,2] row_mask:0xf bank_mask:0xf',
              'quad_perm:[2,3,0,1] row_mask:0xf bank_mask:0xf',
              'row_half_mirror row_mask:0xf bank_mask:0xf',
              'row_mirror row_mask:0xf bank_mask:0xf',
              'row_bcast:15 row_mask:0xa bank_mask:0xf',
              'row_bcast:31 row_mask:0xc bank_mask:0xf']:
        a('s_nop 1')
        a(f'{op}_dpp v{v}, v{v}, v{v} {m}')

def round_bf16(a, v, t):
    a(f'v_cvt_pk_bf16_f32 v{t}, v{v}, v{v}')
    a(f'v_lshlrev_b32 v{v}, 16, v{t}')

def unpack(a, src, lo, hi):
    a(f'v_lshlrev_b32 v{lo}, 16, v{src}')
    a(f'v_and_b32 v{hi}, 0xffff0000, v{src}')

def exp_bf16(a, v, t0, t1, s_l2e, s_l2elo, s_ln2):
    a(f'v_mul_f32 v{t0}, s{s_l2e}, v{v}')
    a(f'v_fma_f32 v{t1}, v{v}, s{s_l2e}, -v{t0}')
    a(f'v_fmac_f32 v{t1}, s{s_l2elo}, v{v}')
    a(f'v_exp_f32 v{t0}, v{t0}')
    a(f'v_mul_f32 v{t1}, s{s_ln2}, v{t1}')
    a(f'v_fma_f32 v{v}, v{t0}, v{t1}, v{t0}')
    round_bf16(a, v, t0)

def ln_stats(a, src, tmp, vs1, vs2, vmean, vrs, vt, s0, s1, s2_):
    a(f'v_readfirstlane_b32 s{s2_}, v{src}')
    a('s_nop 1')
    for i in range(10):
        a(f'v_subrev_f32 v{tmp+i}, s{s2_}, v{src+i}')
    a(f'''
    v_add_f32 v{vs1}, v{tmp}, v{tmp+1}
    v_mul_f32 v{vs2}, v{tmp}, v{tmp}
    v_add_f32 v{vmean}, v{tmp+2}, v{tmp+3}
    v_mul_f32 v{vrs}, v{tmp+1}, v{tmp+1}
    ''')
    for i in range(4, 10, 2):
        a(f'v_add_f32 v{vs1}, v{vs1}, v{tmp+i}')
        a(f'v_add_f32 v{vmean}, v{vmean}, v{tmp+i+1}')
    for i in range(2, 10, 2):
        a(f'v_fmac_f32 v{vs2}, v{tmp+i}, v{tmp+i}')
        a(f'v_fmac_f32 v{vrs}, v{tmp+i+1}, v{tmp+i+1}')
    a(f'v_add_f32 v{vs1}, v{vs1}, v{vmean}')
    a(f'v_add_f32 v{vs2}, v{vs2}, v{vrs}')
    for m in ['quad_perm:[1,0,3,2] row_mask:0xf bank_mask:0xf',
              'quad_perm:[2,3,0,1] row_mask:0xf bank_mask:0xf',
              'row_half_mirror row_mask:0xf bank_mask:0xf',
              'row_mirror row_mask:0xf bank_mask:0xf',
              'row_bcast:15 row_mask:0xa bank_mask:0xf',
              'row_bcast:31 row_mask:0xc bank_mask:0xf']:
        a('s_nop 0')
        a(f'v_add_f32_dpp v{vs1}, v{vs1}, v{vs1} {m}')
        a(f'v_add_f32_dpp v{vs2}, v{vs2}, v{vs2} {m}')
    a(f'''
    v_mov_b32 v{vt}, {fbits(1.0/640):#x}
    v_readlane_b32 s{s0}, v{vs1}, 63
    v_readlane_b32 s{s1}, v{vs2}, 63
    s_nop 0
    v_mul_f32 v{vmean}, s{s0}, v{vt}
    v_mul_f32 v{vrs}, s{s1}, v{vt}
    v_fma_f32 v{vrs}, -v{vmean}, v{vmean}, v{vrs}
    v_add_f32 v{vmean}, s{s2_}, v{vmean}
    v_max_f32 v{vrs}, 0, v{vrs}
    ''')
    round_bf16(a, vrs, vt)
    a(f'v_add_f32 v{vrs}, {fbits(1e-5):#x}, v{vrs}')
    round_bf16(a, vrs, vt)
    a(f'v_sqrt_f32 v{vrs}, v{vrs}')
    a('s_nop 0')
    round_bf16(a, vrs, vt)
    a(f'v_rcp_f32 v{vrs}, v{vrs}')
    round_bf16(a, vmean, vt)

def reduceN(a, R, n):
    h = n // 2; qn = n // 4
    a('s_nop 1')
    for j in range(h):
        a(f'v_permlane32_swap_b32 v{R+j}, v{R+j+h}')
    for j in range(h):
        a(f'v_add_f32 v{R+j}, v{R+j}, v{R+j+h}')
    a('s_nop 1')
    for j in range(qn):
        a(f'v_permlane16_swap_b32 v{R+j}, v{R+j+qn}')
    for j in range(qn):
        a(f'v_add_f32 v{R+j}, v{R+j}, v{R+j+qn}')
    for m in ['quad_perm:[1,0,3,2]', 'quad_perm:[2,3,0,1]', 'row_half_mirror', 'row_mirror']:
        a('s_nop 0')
        for j in range(qn):
            a(f'v_add_f32_dpp v{R+j}, v{R+j}, v{R+j} {m} row_mask:0xf bank_mask:0xf')

KT_RS = 544
KT_E0 = 41
KT_SZ = 57 * KT_RS
L_TILE = 3 * KT_SZ
TS = 1344
L_KC = L_TILE + 8 * TS
KC_SZ = 1344
L_UP = L_KC + 3 * KC_SZ
US = 1152
UP_SZ = 4 * US
L_MISC = L_UP + 3 * UP_SZ
M_CNT1 = L_MISC
M_CNT2 = L_MISC + 4
M_SCALE = L_MISC + 16
M_PAIR = L_MISC + 96
M_KEYS = L_MISC + 32
M_GKEY = L_MISC + 64
M_P2 = L_MISC + 384
M_P1 = L_MISC + 1024
LDS_TOTAL = L_MISC + 3072
CS = 4224
CP_SZ = 4 * CS
L_RED = 3 * CP_SZ
L_Y2 = 0

VX = 200
VT = 206
VW = 168
GA = 152
VU = 160

def gen(a):
    a.L.append(f'.globl {KNAME}')
    a.L.append('.p2align 8')
    a.L.append(f'.type {KNAME},@function')
    a.label(KNAME)
    end = 'L_end'
    stamp_init(a)
    stamp(a, 0)
    a(f'''
    s_cmp_ge_u32 s2, 256
    s_cbranch_scc1 {end}x
    s_load_dwordx8 s[4:11], s[0:1], 0
    s_load_dwordx4 s[12:15], s[0:1], 32
    s_load_dwordx2 s[16:17], s[0:1], 48    ; D
    s_load_dwordx2 s[18:19], s[0:1], 112   ; ws
    s_load_dwordx8 s[64:71], s[0:1], 64
    s_load_dwordx4 s[72:75], s[0:1], 96
    v_lshrrev_b32 v1, 6, v0
    v_and_b32 v2, 63, v0                   ; lane
    v_readfirstlane_b32 s20, v1            ; wave
    s_and_b32 s21, s2, 7
    s_lshl_b32 s21, s21, 5
    s_lshr_b32 s22, s2, 3
    s_add_u32 s21, s21, s22                ; rb
    s_lshl_b32 s22, s21, 3
    s_add_u32 s22, s22, s20                ; row
    s_mul_i32 s23, s22, 1280
    v_lshlrev_b32 v3, 4, v2                ; lane*16
    v_lshlrev_b32 v4, 2, v2                ; lane*4
    s_and_b32 s60, s2, 7
    s_lshl_b32 s60, s60, 4
    s_lshr_b32 s61, s2, 4
    s_add_u32 s60, s60, s61
    s_mul_i32 s60, s60, 5
    s_bfe_u32 s61, s2, 0x10003             ; odd
    s_mul_i32 s62, s61, 3
    s_add_u32 s62, s62, s60                ; chA
    s_add_u32 s63, s60, 2                  ; chS
    s_lshr_b32 s56, s20, 1
    s_add_u32 s57, s62, s56
    s_cmp_eq_u32 s56, 2
    s_cselect_b32 s57, s63, s57
    ''')
    if CODEPF:
        lcp = a.newlabel('cp')
        a(f'''
        s_cmp_lg_u32 s20, 6
        s_cbranch_scc1 {lcp}
        s_getpc_b64 s[24:25]
        s_lshr_b32 s26, s2, 3
        s_lshl_b32 s26, s26, 10
        v_add_u32 v5, s26, v3
        s_cmp_lt_u32 s26, CODE_BYTES
        s_cbranch_scc0 {lcp}
        global_load_dwordx4 v[240:243], v5, s[24:25]
        ''')
        a.label(lcp)
    a(f'''
    s_waitcnt lgkmcnt(0)
    ''')
    srd(a, 24, 4, 5, 2621440)
    srd(a, 32, 18, 19, WS_SIZE)
    srd(a, 28, 16, 17, 1280)
    lnz = a.newlabel('nz')
    a(f'''
    s_lshl_b32 s17, s2, 3
    s_add_u32 s17, s17, s20
    s_cmp_lg_u32 s17, 7
    s_cbranch_scc1 {lnz}
    v_mov_b32 v8, 0
    v_mov_b32 v9, 0
    v_mov_b32 v10, 0
    v_mov_b32 v11, 0
    s_mov_b32 s4, {WS_FLAG1}
    buffer_store_dwordx4 v[8:11], v3, s[32:35], s4 offen sc1
    buffer_store_dwordx4 v[8:11], v3, s[32:35], s4 offen offset:1024 sc1
    buffer_store_dwordx4 v[8:11], v3, s[32:35], s4 offen offset:2048 sc1
    buffer_store_dwordx4 v[8:11], v3, s[32:35], s4 offen offset:3072 sc1
    v_lshlrev_b32 v12, 12, v2
    s_mov_b32 s4, {WS_GO + 256}
    s_mov_b64 exec, {(1<<NREP)-1:#x}
    buffer_store_dword v8, v12, s[32:35], s4 offen sc1
    s_mov_b64 exec, -1
    s_nop 1
    ''')
    a.label(lnz)
    a('''
    buffer_load_dwordx4 v[8:11], v3, s[24:27], s23 offen
    buffer_load_dword v12, v4, s[24:27], s23 offen offset:1024
    ''')
    srd(a, 36, 6, 7, 163840)
    srd(a, 40, 8, 9, 163840)
    srd(a, 44, 10, 11, 163840)
    srd(a, 48, 12, 13, 163840)
    srd(a, 52, 14, 15, 1280)
    a('''
    buffer_load_dwordx4 v[14:17], v3, s[28:31], 0 offen
    buffer_load_dword v18, v4, s[28:31], 0 offen offset:1024
    s_lshl_b32 s58, s57, 8
    s_and_b32 s59, s20, 1
    s_lshl_b32 s59, s59, 7
    s_add_u32 s59, s59, s58
    v_lshlrev_b32 v5, 1, v2
    s_lshl_b32 s16, s57, 1
    v_mov_b32 v6, 0
    buffer_load_ushort v20, v5, s[36:39], s59 offen
    buffer_load_ushort v21, v5, s[40:43], s59 offen
    buffer_load_ushort v22, v5, s[44:47], s59 offen
    buffer_load_ushort v23, v5, s[48:51], s59 offen
    buffer_load_dword v24, v4, s[44:47], s58 offen
    buffer_load_dword v25, v4, s[48:51], s58 offen
    buffer_load_ushort v26, v6, s[52:55], s16 offen
    ''')
    def prefetch(PD=216):
        srd(a, 36, 66, 67, 640 * 3456)
        srd(a, 40, 68, 69, 640 * 3456)
        srd(a, 44, 70, 71, 1728 * 1280)
        a(f'''
        s_and_b32 s4, s2, 7
        s_lshr_b32 s5, s2, 3
        s_mul_i32 s6, s4, 432
        s_mul_i32 s7, s5, {20*3456}
        s_add_u32 s6, s6, s7
        v_lshrrev_b32 v5, 5, v2
        v_mul_u32_u24 v5, 3456, v5
        v_and_b32 v6, 31, v2
        v_lshl_add_u32 v5, v6, 4, v5
        v_mov_b32 v7, {OOB:#x}
        v_cmp_gt_u32 vcc, 27, v6
        s_cmp_eq_u32 s20, 6
        s_cselect_b32 s36, s36, s40
        v_cndmask_b32 v5, v7, v5, vcc
        s_cselect_b32 s37, s37, s41
        ''')
        for i in range(10):
            a(f's_add_u32 s7, s6, {2*i*3456}')
            a(f'buffer_load_dwordx4 v[{PD+4*(i%2)}:{PD+3+4*(i%2)}], v5, s[36:39], s7 offen')
        a(f'''
        s_mul_i32 s6, s4, 160
        s_mul_i32 s7, s5, {54*1280}
        s_add_u32 s6, s6, s7
        s_sub_u32 s7, s20, 6
        s_mul_i32 s7, s7, {27*1280}
        s_add_u32 s6, s6, s7
        v_mul_u32_u24 v5, 205, v2
        v_lshrrev_b32 v5, 11, v5             ; lane/10
        v_mul_u32_u24 v6, 10, v5
        v_sub_u32 v6, v2, v6
        v_mul_u32_u24 v5, 1280, v5
        v_lshl_add_u32 v5, v6, 4, v5
        v_cmp_gt_u32 vcc, 60, v2
        s_nop 1
        v_cndmask_b32 v5, v7, v5, vcc
        ''')
        for i in range(5):
            a(f's_add_u32 s7, s6, {6*i*1280}')
            a(f'buffer_load_dwordx4 v[{PD+4*(i%2)}:{PD+3+4*(i%2)}], v5, s[44:47], s7 offen')
    if PF == 'start':
        lns = a.newlabel('ns')
        a(f'''
        s_cmp_lt_u32 s20, 6
        s_cbranch_scc1 {lns}
        ''')
        prefetch()
        a.label(lns)
    if WARM:
        lnw = a.newlabel('nw')
        a(f'''
        s_cmp_ge_u32 s20, 6
        s_cbranch_scc1 {lnw}
        v_lshlrev_b32 v27, {WSH}, v2
        s_mov_b32 s8, 0
        s_mov_b32 s4, s18
        s_mov_b32 s5, s19
        s_mov_b32 s6, {WS_SIZE // 2}
        s_cmp_eq_u32 s20, 1
        s_cselect_b32 s4, s72, s4
        s_cselect_b32 s5, s73, s5
        s_cselect_b32 s6, 2621440, s6
        s_cmp_eq_u32 s20, 2
        s_cselect_b32 s4, s74, s4
        s_cselect_b32 s5, s75, s5
        s_cselect_b32 s6, 256, s6
        s_cmp_eq_u32 s20, 3
        s_cselect_b32 s4, s64, s4
        s_cselect_b32 s5, s65, s5
        s_cselect_b32 s6, 1280, s6
        s_cmp_eq_u32 s20, 4
        s_cselect_b32 s4, s66, s4
        s_cselect_b32 s5, s67, s5
        s_cselect_b32 s6, {640*3456}, s6
        s_cmp_eq_u32 s20, 5
        s_cselect_b32 s8, {64 << WSH}, s8
        s_and_b32 s5, s5, 0xffff
        s_mov_b32 s7, 0x00020000
        buffer_load_dword v244, v27, s[4:7], s8 offen
        ''')
        a.label(lnw)
    lnr = a.newlabel('nr')
    a(f'''
    s_cmp_lg_u32 s17, 7
    s_cbranch_scc1 {lnr}
    ''')
    srd(a, 4, 74, 75, 256)
    a(f'''
    v_mov_b32 v27, 0
    v_mov_b32 v28, 1
    s_waitcnt vmcnt({26 if PF == 'start' else 11})
    s_mov_b64 exec, 1
    buffer_store_dword v28, v27, s[4:7], 0 offen sc1      ; READY
    s_mov_b64 exec, -1
    ''')
    a.label(lnr)
    a(f'''
    v_mov_b32 v27, 0
    v_lshrrev_b32 v28, 5, v0
    v_mul_u32_u24 v28, {US}, v28
    v_and_b32 v29, 31, v0
    v_lshl_add_u32 v28, v29, 2, v28
    v_add_u32 v28, {L_UP}, v28
    v_cmp_gt_u32 vcc, 384, v0
    s_and_saveexec_b64 s[4:5], vcc
    ds_write_b32 v28, v27
    s_mov_b64 exec, s[4:5]
    v_lshrrev_b32 v28, 2, v0
    v_mul_u32_u24 v28, {KC_SZ}, v28
    v_and_b32 v29, 3, v0
    v_lshl_add_u32 v28, v29, 2, v28
    v_add_u32 v28, {L_KC}, v28
    v_lshlrev_b32 v29, 2, v0
    v_add_u32 v29, {L_MISC}, v29
    v_cmp_gt_u32 vcc, 12, v0
    s_and_saveexec_b64 s[4:5], vcc
    ds_write_b32 v28, v27
    ds_write_b32 v29, v27
    ds_write_b32 v29, v27 offset:96
    s_mov_b64 exec, s[4:5]
    ''')
    a('v_lshlrev_b32 v5, 2, v0')
    a(f'v_mov_b32 v27, {L_KC}')
    for d in range(7):
        a(f'''
        v_add_u32 v31, {d-3}, v5
        v_cvt_f32_i32 v32, v31
        v_cvt_pk_bf16_f32 v32, v32, v32
        v_and_b32 v32, 0xffff, v32
        v_subrev_u32 v32, {(134<<7)-128}, v32
        v_cmp_gt_i32 vcc, 256, v31
        s_nop 1
        v_cndmask_b32 v32, v32, v31, vcc
        v_lshl_add_u32 v32, v32, 1, v27
        v_add_u32 v32, 16, v32
        v_cmp_gt_i32 vcc, 0, v31
        s_nop 1
        v_cndmask_b32 v{GA+d}, v32, v27, vcc
        ''')
    a(f'''
    v_lshrrev_b32 v31, 3, v0
    v_mul_u32_u24 v31, {CS}, v31
    v_and_b32 v32, 7, v0
    v_lshl_add_u32 v{VU+4}, v32, 2, v31
    ''')
    for e in range(2):
        vi, vr, vk, va, vl = 31, 32, 33, VU + 2 * e, VU + 2 * e + 1
        a(f'''
        v_add_u32 v{vi}, {512*e}, v0
        v_mul_u32_u24 v{vr}, 43691, v{vi}
        v_lshrrev_b32 v{vr}, 17, v{vr}
        v_mul_u32_u24 v{vk}, 3, v{vr}
        v_sub_u32 v{vk}, v{vi}, v{vk}
        v_mul_u32_u24 v{va}, 10240, v{vr}
        v_lshl_add_u32 v{va}, v{vk}, 4, v{va}
        s_lshl_b32 s5, s61, 1
        v_add_u32 v{vk}, s5, v{vk}
        v_subrev_u32 v{vl}, 3, v{vk}
        v_cmp_gt_u32 vcc, 3, v{vk}
        s_nop 1
        v_cndmask_b32 v{vk}, v{vl}, v{vk}, vcc
        v_mul_u32_u24 v{vl}, {UP_SZ}, v{vk}
        v_lshl_add_u32 v{vl}, v{vr}, 2, v{vl}
        v_add_u32 v{vl}, {L_UP + 128}, v{vl}
        ''')
    a(f'''
    v_mov_b32 v31, {OOB:#x}
    v_cmp_gt_u32 vcc, 256, v0
    s_nop 1
    v_cndmask_b32 v{VU+2}, v31, v{VU+2}, vcc
    ''')
    a(f'''
    v_mov_b32 v36, 0
    v_mov_b32 v37, 0
    v_mov_b32 v38, 0
    v_mov_b32 v39, 0
    v_lshlrev_b32 v35, 4, v0
    s_lshl_b32 s4, s62, 12
    s_add_u32 s4, s4, {WS_YT}
    buffer_store_dwordx4 v[36:39], v35, s[32:35], s4 offen sc1
    v_lshrrev_b32 v32, 5, v0
    v_mov_b32 v33, 0x8f
    v_mov_b32 v34, 0x70
    s_cmp_eq_u32 s61, 0
    s_cselect_b64 vcc, -1, 0
    v_cndmask_b32 v33, v34, v33, vcc
    v_lshrrev_b32 v33, v32, v33
    v_and_b32 v33, 1, v33
    v_cmp_ne_u32 vcc, 0, v33
    v_mov_b32 v33, {OOB:#x}
    s_lshl_b32 s4, s63, 12
    s_add_u32 s4, s4, {WS_YT}
    v_cndmask_b32 v35, v33, v35, vcc
    buffer_store_dwordx4 v[36:39], v35, s[32:35], s4 offen sc1
    ''')
    X = 30
    def wait2(n):
        if PF == 'start':
            l1 = a.newlabel('w'); l2 = a.newlabel('w')
            a(f'''
            s_cmp_ge_u32 s20, 6
            s_cbranch_scc1 {l1}
            s_waitcnt vmcnt({n})
            s_branch {l2}
            ''')
            a.label(l1)
            a(f's_waitcnt vmcnt({n+15})')
            a.label(l2)
        else:
            a(f's_waitcnt vmcnt({n})')
    wait2(11)
    srd(a, 24, 74, 75, 256)
    for i in range(4):
        unpack(a, 8 + i, X + 2 * i, X + 2 * i + 1)
        a(f'v_mov_b32 v{VX+i}, v{8+i}')
    unpack(a, 12, X + 8, X + 9)
    a(f'v_mov_b32 v{VX+4}, v12')
    ln_stats(a, X, 44, 40, 43, 41, 42, 54, 4, 5, 6)
    wait2(9)
    for i in range(4):
        unpack(a, 14 + i, 54 + 2 * i, 55 + 2 * i)
    unpack(a, 18, 62, 63)
    for p in range(5):
        x0, x1 = X + 2 * p, X + 2 * p + 1
        a(f'''
        v_sub_f32 v{x0}, v{x0}, v41
        v_sub_f32 v{x1}, v{x1}, v41
        v_cvt_pk_bf16_f32 v44, v{x0}, v{x1}
        v_lshlrev_b32 v{x0}, 16, v44
        v_and_b32 v{x1}, 0xffff0000, v44
        v_mul_f32 v{x0}, v{x0}, v42
        v_mul_f32 v{x1}, v{x1}, v42
        v_cvt_pk_bf16_f32 v44, v{x0}, v{x1}
        v_lshlrev_b32 v{x0}, 16, v44
        v_and_b32 v{x1}, 0xffff0000, v44
        v_cvt_pk_f16_f32 v{64+p}, v{x0}, v{x1}
        ''')
    a(f'''
    s_and_b32 s4, s20, 3
    s_lshl_b32 s4, s4, 1
    s_lshr_b32 s5, s20, 2
    s_or_b32 s4, s4, s5
    s_mul_i32 s4, s4, {TS}
    s_add_u32 s4, s4, {L_TILE}
    v_add_u32 v44, s4, v3
    v_add_u32 v45, s4, v4
    ds_write_b128 v44, v[64:67]
    ds_write_b32 v45, v68 offset:1024
    ''')
    for p in range(5):
        x0, x1 = X + 2 * p, X + 2 * p + 1
        a(f'''
        v_mul_f32 v{x0}, v{x0}, v{54+2*p}
        v_mul_f32 v{x1}, v{x1}, v{55+2*p}
        v_cvt_pk_bf16_f32 v{VT+p}, v{x0}, v{x1}
        ''')
    l67 = a.newlabel('w67'); l45 = a.newlabel('w45')
    a(f'''
    v_lshrrev_b32 v44, 2, v2
    v_and_b32 v44, 3, v44
    v_mul_u32_u24 v44, {TS}, v44
    v_lshrrev_b32 v45, 4, v2
    v_lshlrev_b32 v45, 5, v45
    v_add_u32 v44, v44, v45
    v_and_b32 v45, 3, v2
    v_lshlrev_b32 v45, 3, v45
    v_add_u32 v44, v44, v45
    s_sub_u32 s6, s20, 2
    s_cmp_lt_u32 s20, 6
    s_cselect_b32 s6, s20, s6
    s_lshl_b32 s4, s6, 7
    s_add_u32 s4, s4, {L_TILE}
    v_add_u32 v44, s4, v44
    s_mul_i32 s4, s21, 10240
    s_lshl_b32 s5, s6, 10
    s_add_u32 s4, s4, s5
    s_add_u32 s4, s4, {WS_U}
    v_mov_b32 v46, 0
    buffer_load_dword v49, v46, s[24:27], 0 offen sc1
    s_waitcnt lgkmcnt(0)
    s_barrier
    s_lshr_b32 s5, s20, 1
    s_cmp_eq_u32 s5, 2
    s_cbranch_scc1 {l45}
    ds_read_b64_tr_b16 v[64:65], v44
    ds_read_b64_tr_b16 v[66:67], v44 offset:{4*TS}
    s_cmp_lt_u32 s20, 6
    s_cbranch_scc1 {l67}
    ds_read_b64_tr_b16 v[68:69], v44 offset:256
    ds_read_b64_tr_b16 v[70:71], v44 offset:{4*TS+256}
    ds_read_b64_tr_b16 v[72:73], v44 offset:512
    ds_read_b64_tr_b16 v[74:75], v44 offset:{4*TS+512}
    s_add_u32 s5, s4, 4096
    s_waitcnt lgkmcnt(2)
    buffer_store_dwordx4 v[68:71], v3, s[32:35], s4 offen offset:2048 sc1
    s_waitcnt lgkmcnt(0)
    buffer_store_dwordx4 v[72:75], v3, s[32:35], s5 offen sc1
    ''')
    a.label(l67)
    a('''
    s_waitcnt lgkmcnt(0)
    buffer_store_dwordx4 v[64:67], v3, s[32:35], s4 offen sc1
    ''')
    a.label(l45)
    if not TAILST: stamp(a, 2)
    def zero_mailboxes():
        lz = a.newlabel('zero')
        a(f'''
        v_mov_b32 v46, 0
        v_mov_b32 v47, 0
        v_lshlrev_b32 v48, 3, v0
        s_mul_i32 s5, s2, 5120
        s_add_u32 s5, s5, {WS_CAND}
        buffer_store_dwordx2 v[46:47], v48, s[32:35], s5 offen sc1
        s_cmp_ge_u32 s20, 2
        s_cbranch_scc1 {lz}
        s_add_u32 s5, s5, 4096
        buffer_store_dwordx2 v[46:47], v48, s[32:35], s5 offen sc1
        s_cmp_ge_u32 s20, 1
        s_cbranch_scc1 {lz}
        s_mov_b64 exec, 0x3
        v_lshlrev_b32 v48, 12, v0
        s_lshl_b32 s5, s2, 4
        s_add_u32 s5, s5, {WS_KEY}
        buffer_store_dword v46, v48, s[32:35], s5 offen sc1
        v_lshlrev_b32 v48, 7, v0
        s_and_b32 s5, s2, {NREP-1}
        s_lshl_b32 s5, s5, 12
        s_add_u32 s5, s5, {WS_GO}
        s_cmp_lt_u32 s2, {NREP}
        s_cselect_b32 s5, s5, 0x40000000
        buffer_store_dword v46, v48, s[32:35], s5 offen sc1
        s_mov_b64 exec, -1
        ''')
        a.label(lz)
        lz2 = a.newlabel('zero2'); lz3 = a.newlabel('zero3')
        a(f'''
        s_cmp_ge_u32 s2, 216
        s_cbranch_scc1 {lz2}
        s_cmp_lt_u32 s20, 3
        s_cbranch_scc1 {lz3}
        s_mul_i32 s5, s2, 2560
        s_add_u32 s5, s5, {WS_YP - 3*512}
        v_lshlrev_b32 v48, 3, v0
        buffer_store_dwordx2 v[46:47], v48, s[32:35], s5 offen sc1
        s_branch {lz2}
        ''')
        a.label(lz3)
        a(f'''
        s_cmp_eq_u32 s20, 0
        s_cbranch_scc1 {lz2}
        s_lshl_b32 s5, s53, 1
        s_add_u32 s5, s5, s20
        s_mul_i32 s5, s5, 6912
        s_lshl_b32 s6, s52, 8
        s_add_u32 s5, s5, s6
        s_add_u32 s5, s5, {WS_PART - 6912}
        buffer_store_dword v46, v4, s[32:35], s5 offen sc1
        ''')
        a.label(lz2)
    def spin(body, slp=0):
        lsp = a.newlabel('spin'); lso = a.newlabel('spinout')
        a('s_mov_b32 s4, 0')
        a.label(lsp)
        a(body)
        a(f'''
        s_add_u32 s4, s4, 1
        s_cmp_ge_u32 s4, {SPIN_MAX}
        s_cbranch_scc1 {lso}
        s_cmp_eq_u64 vcc, exec
        s_cbranch_scc1 {lso}
        ''')
        if slp: a(f's_sleep {slp}')
        a(f's_branch {lsp}')
        a.label(lso)
    def signal(cnt_addr, which, lgkm=False, vm=0):
        ls = a.newlabel('sig')
        a(f'''
        s_waitcnt vmcnt({vm})
        v_mov_b32 v46, {cnt_addr}
        v_mov_b32 v47, 1
        s_mov_b64 exec, 1
        ds_add_rtn_u32 v48, v46, v47
        s_waitcnt lgkmcnt(0)
        v_readfirstlane_b32 s4, v48
        s_lshl_b32 s5, s2, 4
        s_add_u32 s5, s5, {WS_FLAG1 if which == 1 else WS_FLAG2}
        s_cmp_lg_u32 s4, 7
        s_cbranch_scc1 {ls}
        v_mov_b32 v46, 0
        ''')
        if which == 1:
            lrd = a.newlabel('rdy')
            a(f'''
            v_cmp_ne_u32 vcc, 0, v49
            s_cbranch_vccnz {lrd}
            ''')
            spin('''
            buffer_load_dword v48, v46, s[24:27], 0 offen sc1
            s_waitcnt vmcnt(0)
            v_cmp_ne_u32 vcc, 0, v48
            ''')
            a.label(lrd)
        a('buffer_store_dword v47, v46, s[32:35], s5 offen sc1')
        a.label(ls)
        a('s_mov_b64 exec, -1')
    def gather_flags(base, r):
        a(f'''
        s_mov_b32 s5, {base}
        s_mov_b32 s6, {base + 2048}
        ''')
        spin(f'''
        buffer_load_dword v{r}, v3, s[32:35], s5 offen sc1
        buffer_load_dword v{r+1}, v3, s[32:35], s5 offen offset:1024 sc1
        buffer_load_dword v{r+2}, v3, s[32:35], s6 offen sc1
        buffer_load_dword v{r+3}, v3, s[32:35], s6 offen offset:1024 sc1
        s_waitcnt vmcnt(0)
        v_min_u32 v{r+4}, v{r}, v{r+1}
        v_min3_u32 v{r+4}, v{r+4}, v{r+2}, v{r+3}
        v_cmp_ne_u32 vcc, 0, v{r+4}
        ''')
    def bcast(goaddr, vval, vt):
        a(f'''
        v_lshlrev_b32 v{vt}, 12, v2
        s_mov_b32 s5, {goaddr}
        s_mov_b64 exec, {(1<<NREP)-1:#x}
        buffer_store_dword v{vval}, v{vt}, s[32:35], s5 offen sc1
        s_mov_b64 exec, -1
        ''')
    def slave(goaddr, vr=47):
        a(f'''
        s_and_b32 s5, s2, {NREP-1}
        s_lshl_b32 s5, s5, 12
        s_add_u32 s5, s5, {goaddr}
        v_mov_b32 v46, 0
        ''')
        spin(f'''
        buffer_load_dword v{vr}, v46, s[32:35], s5 offen sc1
        s_waitcnt vmcnt(0)
        v_cmp_ne_u32 vcc, 0, v{vr}
        ''')
    def master1():
        gather_flags(WS_FLAG1, 44)
        a('v_mov_b32 v47, 1')
        bcast(WS_GO + 256, 47, 46)
    def sync2():
        lsl = a.newlabel('sl'); ld = a.newlabel('sd')
        a(f'''
        s_cmp_lg_u32 s2, 0
        s_cbranch_scc1 {lsl}
        ''')
        gather_flags(WS_FLAG2, 44)
        a('v_mov_b32 v47, 1')
        bcast(WS_GO, 47, 46)
        a(f's_branch {ld}')
        a.label(lsl)
        slave(WS_GO)
        a.label(ld)
    lmf = a.newlabel('kmfma'); lpf = a.newlabel('pf')
    a(f'''
    s_cmp_ge_u32 s20, 6
    s_cbranch_scc1 {lpf}
    s_mov_b32 s8, {fbits(LOG2E_HI):#x}
    s_mov_b32 s9, {fbits(LOG2E_LO):#x}
    s_mov_b32 s10, {fbits(LN2):#x}
    s_mov_b32 s11, {fbits(INV2PI):#x}
    s_waitcnt vmcnt({4 if WARM else 3})
    v_lshlrev_b32 v20, 16, v20
    v_lshlrev_b32 v21, 16, v21
    v_lshlrev_b32 v22, 16, v22
    v_lshlrev_b32 v23, 16, v23
    v_lshlrev_b32 v26, 16, v26
    v_and_b32 v24, 0x7f807f80, v24
    v_and_b32 v25, 0x7f807f80, v25
    v_pk_max_u16 v24, v24, v25
    v_lshrrev_b32 v25, 16, v24
    v_and_b32 v24, 0xffff, v24
    v_max_u32 v24, v24, v25
    ''')
    wave_reduce(a, 'v_max_u32', 24)
    lsk4 = a.newlabel('sk4')
    a(f'''
    s_cmp_lt_u32 s20, 4
    s_cbranch_scc1 {lsk4}
    ''')
    signal(M_CNT1, 1)
    a.label(lsk4)
    exp_bf16(a, 20, 27, 28, 8, 9, 10)
    exp_bf16(a, 26, 27, 28, 8, 9, 10)
    a(f'''
    v_readlane_b32 s12, v24, 63
    s_lshr_b32 s12, s12, 7
    s_min_u32 s12, s12, 252
    s_sub_u32 s13, 253, s12
    s_lshl_b32 s13, s13, 23
    s_add_u32 s14, s12, 2
    s_lshl_b32 s14, s14, 23
    v_mul_f32 v20, v20, v26
    v_mul_f32 v21, v21, v26
    v_mul_f32 v20, s8, v20
    v_sub_f32 v20, 0, v20
    v_mul_f32 v21, s11, v21
    v_mul_f32 v22, s13, v22
    v_mul_f32 v23, s13, v23
    v_mul_f32 v26, s14, v26
    s_lshl_b32 s15, s56, 2
    s_add_u32 s15, s15, {M_SCALE}
    v_mov_b32 v27, s15
    s_mov_b64 exec, 1
    ds_write_b32 v27, v26
    s_mov_b64 exec, -1
    s_mul_i32 s15, s56, {KT_SZ}
    s_and_b32 s16, s20, 1
    s_lshl_b32 s16, s16, 8
    s_add_u32 s15, s15, s16
    v_add_u32 v27, s15, v4
    ''')
    def cmul(r, x, y, t=28):
        a(f'v_pk_mul_f32 v[{t}:{t+1}], v[{x}:{x+1}], v[{y}:{y+1}] op_sel:[1,1] op_sel_hi:[1,0]')
        a(f'v_pk_fma_f32 v[{r}:{r+1}], v[{x}:{x+1}], v[{y}:{y+1}], v[{t}:{t+1}] op_sel:[0,0,0] op_sel_hi:[0,1,1] neg_lo:[0,0,1]')
    pk = [0]
    def putG(row, x):
        r = 76 + (pk[0] % 8); pk[0] += 1
        a(f'v_cvt_pk_f16_f32 v{r}, v{x}, -v{x+1}')
        a(f'ds_write_b32 v27, v{r} offset:{row*KT_RS}')
    def putE(b, x):
        r = 76 + (pk[0] % 8); pk[0] += 1
        a(f'v_cvt_pk_f16_f32 v{r}, v{x}, v{x+1}')
        a(f'ds_write_b32 v27, v{r} offset:{(KT_E0+b)*KT_RS}')
    def direct(dst, p):
        a(f'''
        v_mul_f32 v28, {fbits(float(p)):#x}, v20
        v_mul_f32 v29, {fbits(float(p)):#x}, v21
        v_exp_f32 v28, v28
        v_fract_f32 v29, v29
        v_cos_f32 v{dst}, v29
        v_sin_f32 v{dst+1}, v29
        s_nop 0
        v_mul_f32 v{dst}, v{dst}, v28
        v_mul_f32 v{dst+1}, v{dst+1}, v28
        ''')
    def ES(c): return 30 + 2 * c
    direct(ES(1), 1)
    direct(50, 128)
    direct(52, 8)
    cmul(ES(2), ES(1), ES(1))
    cmul(ES(3), ES(2), ES(1))
    cmul(ES(4), ES(2), ES(2))
    cmul(ES(5), ES(4), ES(1))
    cmul(ES(6), ES(4), ES(2))
    cmul(ES(7), ES(4), ES(3))
    a('v_mov_b32 v62, 0x00003c00')
    a(f'ds_write_b32 v27, v62 offset:{KT_E0*KT_RS}')
    putE(1, 52)
    E = 52
    ereg = [58, 60]
    for b in range(2, 16):
        ne = ereg[b % 2]
        cmul(ne, E, 52)
        putE(b, ne)
        E = ne
    H = 22
    tmp = [58, 60, 62, 64]
    ti = [0]
    def prodG(row, h, e):
        t = tmp[ti[0] % 4]; ti[0] += 1
        cmul(t, h, e)
        putG(row, t)
    hreg = [54, 56]
    for aa in range(17):
        if aa < 2:
            putG(8 * aa, H)
            for c in range(1, 8):
                prodG(8 * aa + c, H, ES(c))
        elif aa < 4:
            base = 16 + 4 * (aa - 2)
            putG(base, H)
            for c in range(1, 4):
                prodG(base + c, H, ES(2 * c))
        elif aa < 8:
            base = 24 + 2 * (aa - 4)
            putG(base, H)
            prodG(base + 1, H, ES(4))
        else:
            putG(32 + (aa - 8), H)
        if aa < 16:
            nh = hreg[aa % 2]
            cmul(nh, H, 50)
            H = nh
        if aa == SIGPOS:
            lsk = a.newlabel('sk')
            a(f'''
            s_cmp_ge_u32 s20, 4
            s_cbranch_scc1 {lsk}
            ''')
            signal(M_CNT1, 1, lgkm=True)
            a.label(lsk)
            if not TAILST: stamp(a, 4)
    a(f'''
    s_lshl_b32 s4, s56, 2
    s_add_u32 s4, s4, {M_PAIR}
    v_mov_b32 v46, s4
    v_mov_b32 v47, 1
    s_waitcnt lgkmcnt(0)
    s_mov_b64 exec, 1
    ds_add_u32 v46, v47
    ''')
    spin('''
    ds_read_b32 v48, v46
    s_waitcnt lgkmcnt(0)
    v_cmp_le_u32 vcc, 2, v48
    ''')
    a('s_mov_b64 exec, -1')
    a(f's_branch {lmf}')
    a.label(lpf)
    signal(M_CNT1, 1)
    if not TAILST: stamp(a, 4)
    lnm = a.newlabel('notmaster')
    a(f'''
    s_cmp_lg_u32 s2, 0
    s_cbranch_scc1 {lnm}
    s_cmp_lg_u32 s20, 7
    s_cbranch_scc1 {lnm}
    ''')
    master1()
    a.label(lnm)
    if PF == 'late':
        prefetch()
    lk2 = a.newlabel('kdone')
    a(f's_branch {lk2}')
    a.label(lmf)
    a(f'''
    v_and_b32 v44, 15, v2
    v_lshrrev_b32 v45, 4, v2
    v_mul_u32_u24 v46, {KT_RS}, v44
    v_lshl_add_u32 v46, v45, 4, v46
    s_and_b32 s4, s20, 1
    s_mov_b32 s5, s56
    ''')
    ltask = a.newlabel('task')
    a.label(ltask)
    a(f'''
    s_mov_b32 s6, s4                       ; tile
    s_mul_i32 s8, s5, {KT_SZ}
    s_mul_i32 s9, s6, {16*KT_RS}
    s_add_u32 s9, s9, s8
    s_add_u32 s8, s8, {KT_E0*KT_RS}
    v_add_u32 v47, s9, v46
    v_add_u32 v48, s8, v46
    ''')
    for ks in range(8):
        a(f'ds_read_b128 v[{64+8*ks}:{67+8*ks}], v47 offset:{64*ks}')
        a(f'ds_read_b128 v[{68+8*ks}:{71+8*ks}], v48 offset:{64*ks}')
    lt2 = a.newlabel('t2'); lt1 = a.newlabel('t1'); lnext = a.newlabel('next')
    a(f'''
    s_mul_i32 s8, s5, {KC_SZ}
    s_add_u32 s8, s8, {L_KC + 16}
    s_cmp_eq_u32 s6, 2
    s_cbranch_scc1 {lt2}
    ''')
    for ks in range(8):
        a(f's_waitcnt lgkmcnt({14-2*ks})')
        c = '0' if ks == 0 else 'v[56:59]'
        a(f'v_mfma_f32_16x16x32_f16 v[56:59], v[{64+8*ks}:{67+8*ks}], v[{68+8*ks}:{71+8*ks}], {c}')
    a(f'''
    s_cmp_eq_u32 s6, 1
    s_cbranch_scc1 {lt1}
    v_lshrrev_b32 v49, 1, v45
    v_lshlrev_b32 v49, 8, v49
    v_lshl_add_u32 v49, v44, 4, v49
    v_and_b32 v50, 1, v45
    v_lshl_add_u32 v49, v50, 3, v49
    v_add_u32 v49, s8, v49
    s_nop 4
    v_cvt_pk_f16_f32 v60, v56, v57
    v_cvt_pk_f16_f32 v61, v58, v59
    ds_write_b64 v49, v[60:61]
    s_branch {lnext}
    ''')
    a.label(lt1)
    a(f'''
    v_lshlrev_b32 v49, 7, v45
    v_add_u32 v49, s8, v49
    v_lshl_add_u32 v50, v44, 3, v49
    v_add_u32 v50, 512, v50
    v_add_u32 v51, 4, v50
    v_lshl_add_u32 v52, v44, 2, v49
    v_add_u32 v52, 512, v52
    v_add_u32 v53, 64, v52
    v_cmp_gt_u32 vcc, 2, v45
    s_nop 1
    v_cndmask_b32 v50, v52, v50, vcc
    v_cndmask_b32 v51, v53, v51, vcc
    v_cvt_pk_f16_f32 v60, v56, v57
    v_cvt_pk_f16_f32 v61, v58, v59
    ds_write_b32 v50, v60
    ds_write_b32 v51, v61
    s_branch {lnext}
    ''')
    a.label(lt2)
    for ks in range(8):
        a(f's_waitcnt lgkmcnt({14-2*ks})')
        c = '0' if ks == 0 else 'v[56:59]'
        a(f'v_mfma_f32_16x16x32_f16 v[56:59], v[{68+8*ks}:{71+8*ks}], v[{64+8*ks}:{67+8*ks}], {c}')
    a(f'''
    v_lshlrev_b32 v49, 5, v44
    v_lshl_add_u32 v49, v45, 3, v49
    v_add_u32 v49, 1024, v49
    v_add_u32 v49, s8, v49
    v_cmp_gt_u32 vcc, 9, v44
    s_nop 4
    v_cvt_pk_f16_f32 v60, v56, v57
    v_cvt_pk_f16_f32 v61, v58, v59
    s_and_saveexec_b64 s[10:11], vcc
    ds_write_b64 v49, v[60:61]
    s_mov_b64 exec, s[10:11]
    ''')
    a.label(lnext)
    a(f'''
    s_cmp_lg_u32 s4, 0
    s_cbranch_scc1 {lk2}
    s_mov_b32 s4, 2
    s_branch {ltask}
    ''')
    a.label(lk2)
    srd(a, 44, 70, 71, 1728 * 1280)
    a(f'''
    s_mul_i32 s53, s2, 2428
    s_lshr_b32 s53, s53, 16                ; kg = b/27
    s_mul_i32 s52, s53, 27
    s_sub_u32 s52, s2, s52                 ; cg
    s_cmp_lt_u32 s20, 4
    s_cselect_b32 s40, s66, s68
    s_cselect_b32 s41, s67, s69
    s_and_b32 s41, s41, 0xffff
    s_mov_b32 s42, {640*3456}
    s_mov_b32 s43, 0x00020000
    s_mul_i32 s54, s53, 80
    s_and_b32 s55, s20, 3
    s_mul_i32 s55, s55, 20
    s_add_u32 s54, s54, s55
    s_mul_i32 s12, s54, 3456
    s_lshl_b32 s55, s52, 7
    s_add_u32 s12, s12, s55
    s_mul_i32 s15, s2, {8*1280}
    s_lshl_b32 s55, s20, 8
    s_add_u32 s15, s15, s55
    s_cmp_lt_u32 s20, 5
    s_cselect_b32 s15, s15, 0x40000000
    s_cmp_lt_u32 s2, 216
    s_cselect_b32 s12, s12, 0x40000000
    s_cselect_b32 s15, s15, 0x40000000
    s_add_u32 s13, s12, {8*3456}
    s_add_u32 s14, s12, {16*3456}
    s_add_u32 s16, s15, {3*1280}
    s_add_u32 s17, s15, {6*1280}
    v_lshrrev_b32 v16, 3, v2
    v_mul_u32_u24 v16, 3456, v16
    v_and_b32 v17, 7, v2
    v_lshl_add_u32 v16, v17, 4, v16
    v_mov_b32 v17, {OOB:#x}
    v_cmp_gt_u32 vcc, 32, v2
    s_nop 1
    v_cndmask_b32 v17, v17, v16, vcc
    ''')
    WL = [f'buffer_load_dwordx4 v[{VW+4*e}:{VW+4*e+3}], v{17 if e == 2 else 16}, s[40:43], s{12+e} offen' for e in range(3)]
    WL += [f'buffer_load_dword v{VW+12+r}, v4, s[44:47], s{15 + r//3} offen offset:{1280*(r%3)}' for r in range(8)]
    lp1 = a.newlabel('p1'); lp0 = a.newlabel('p0')
    a(f'''
    s_cmp_eq_u32 s20, 6
    s_cbranch_scc1 {lp0}
    ''')
    if WPOS == 'B':
        for ins in WL:
            a(ins)
    a(f's_branch {lp1}')
    a.label(lp0)
    slave(WS_GO + 256)
    a.label(lp1)
    a(f'''
    v_lshlrev_b32 v6, 3, v0
    v_mov_b32 v18, 0
    s_lshl_b32 s4, s61, 1
    s_add_u32 s4, s4, s60
    s_lshl_b32 s4, s4, 4
    s_add_u32 s4, s4, {WS_U}
    s_waitcnt lgkmcnt(0)
    s_barrier
    buffer_load_dwordx4 v[8:11], v{VU}, s[32:35], s4 offen sc1
    buffer_load_dwordx4 v[12:15], v{VU+2}, s[32:35], s4 offen sc1
    ''')
    if not TAILST: stamp(a, 6)
    if PF == 'ug':
        srd(a, 36, 66, 67, 640 * 3456)
        a(f'''
        s_cmp_lt_u32 s20, 4
        s_cselect_b32 s36, s66, s68
        s_cselect_b32 s37, s67, s69
        s_and_b32 s37, s37, 0xffff
        s_and_b32 s4, s2, 7
        s_lshr_b32 s5, s2, 3
        s_mul_i32 s6, s4, 432
        s_mul_i32 s7, s5, {20*3456}
        s_add_u32 s6, s6, s7
        s_and_b32 s7, s20, 3
        s_mul_i32 s7, s7, {5*3456}
        s_add_u32 s6, s6, s7
        v_lshrrev_b32 v19, 5, v2
        v_mul_u32_u24 v19, 3456, v19
        v_and_b32 v20, 31, v2
        v_lshl_add_u32 v19, v20, 4, v19
        v_mov_b32 v21, {OOB:#x}
        v_cmp_gt_u32 vcc, 27, v20
        s_add_u32 s7, s6, {2*3456}
        s_add_u32 s8, s6, {4*3456}
        v_cndmask_b32 v19, v21, v19, vcc
        buffer_load_dwordx4 v[196:199], v19, s[36:39], s6 offen
        buffer_load_dwordx4 v[196:199], v19, s[36:39], s7 offen
        v_cmp_gt_u32 vcc, 27, v2
        s_mul_i32 s6, s4, 160
        s_mul_i32 s7, s5, {54*1280}
        v_cndmask_b32 v19, v21, v19, vcc
        buffer_load_dwordx4 v[196:199], v19, s[36:39], s8 offen
        s_add_u32 s6, s6, s7
        s_mul_i32 s7, s20, {7*1280}
        s_add_u32 s6, s6, s7
        v_mul_u32_u24 v19, 29, v2
        v_lshrrev_b32 v19, 8, v19
        v_mul_u32_u24 v20, 9, v19
        v_sub_u32 v20, v2, v20
        v_mul_u32_u24 v19, 1280, v19
        v_lshl_add_u32 v19, v20, 4, v19
        v_mul_u32_u24 v22, 20, v20
        v_lshrrev_b32 v22, 4, v22
        v_cmp_gt_u32 vcc, 63, v2
        s_nop 1
        v_cndmask_b32 v19, v21, v19, vcc
        buffer_load_dwordx4 v[196:199], v19, s[44:47], s6 offen
        ''')
    for c in range(3):
        r = 32 + 16 * c
        for dd in range(7):
            a(f'ds_read_u16 v{r+dd}, v{GA+dd} offset:{c*KC_SZ}')
    a('''
    v_cmp_gt_u32 vcc, 96, v0
    s_and_saveexec_b64 s[4:5], vcc
    ds_write_b32 v164, v18
    s_mov_b64 exec, s[4:5]
    ''')
    for c in range(3):
        r = 32 + 16 * c
        a(f's_waitcnt lgkmcnt({min(15, 7*(2-c) + 4*c)})')
        for i in range(6):
            a(f'v_lshl_or_b32 v{r+8+i}, v{r+i+1}, 16, v{r+i}')
        for s_ in range(4):
            off = c * CP_SZ + s_ * CS + 32
            a(f'v_add_u32 v7, {off}, v6')
            a(f'ds_write2_b32 v7, v{r+8+3-s_}, v{r+8+5-s_} offset0:0 offset1:1')
    a(f'''
    v_cmp_gt_u32 vcc, 256, v0
    s_waitcnt vmcnt({5 if PF == 'ug' else 1})
    ds_write_b32 v{VU+1}, v8
    ds_write_b32 v{VU+1}, v9 offset:{US}
    ds_write_b32 v{VU+1}, v10 offset:{2*US}
    ds_write_b32 v{VU+1}, v11 offset:{3*US}
    s_waitcnt vmcnt({4 if PF == 'ug' else 0})
    s_and_saveexec_b64 s[4:5], vcc
    ds_write_b32 v{VU+3}, v12
    ds_write_b32 v{VU+3}, v13 offset:{US}
    ds_write_b32 v{VU+3}, v14 offset:{2*US}
    ds_write_b32 v{VU+3}, v15 offset:{3*US}
    s_mov_b64 exec, s[4:5]
    ''')
    if WPOS == 'B':
        lw0 = a.newlabel('w0')
        a(f'''
        s_cmp_lg_u32 s20, 0
        s_cbranch_scc1 {lw0}
        ''')
        for ins in WL:
            a(ins)
        a.label(lw0)
    if WPOS == 'U':
        for ins in WL:
            a(ins)
    zero_mailboxes()
    srd(a, 28, 64, 65, 1280)
    a('''
    buffer_load_dwordx4 v[160:163], v3, s[28:31], 0 offen
    buffer_load_dword v164, v4, s[28:31], 0 offen offset:1024
    ''')
    a(f'''
    v_lshrrev_b32 v8, 4, v2
    v_mul_u32_u24 v9, {CS}, v8
    v_bfe_u32 v10, v2, 2, 2
    v_and_b32 v11, 3, v2
    v_sub_u32 v10, v11, v10
    v_lshl_add_u32 v9, v10, 3, v9
    v_add_u32 v9, 32, v9
    v_mul_u32_u24 v10, {US}, v8
    v_and_b32 v11, 15, v2
    v_lshl_add_u32 v10, v11, 3, v10
    v_add_u32 v10, {L_UP+8}, v10
    v_lshlrev_b32 v12, 5, v11
    v_lshl_add_u32 v12, v8, 3, v12
    v_lshlrev_b32 v13, 4, v2
    v_mov_b32 v5, {M_SCALE}
    ds_read_b96 v[20:22], v5
    ''')
    ACC = 24
    for i in range(8, 32):
        a(f'v_mov_b32 v{ACC+i}, 0')
    a('''
    s_waitcnt lgkmcnt(0)
    s_barrier
    ''')
    for i in range(8):
        a(f'v_mov_b32 v{ACC+i}, 0')
    a('''
    v_readfirstlane_b32 s48, v20
    v_readfirstlane_b32 s49, v21
    v_readfirstlane_b32 s50, v22
    ''')
    stamp(a, 8)
    if PF == 'conv':
        lnp = a.newlabel('np')
        a(f'''
        s_cmp_lt_u32 s20, 6
        s_cbranch_scc1 {lnp}
        s_mov_b32 s8, s40
        s_mov_b32 s9, s41
        s_mov_b32 s10, s42
        ''')
        prefetch(152)
        a('''
        s_mov_b32 s40, s8
        s_mov_b32 s41, s9
        s_mov_b32 s42, s10
        ''')
        a.label(lnp)
    FR = [56, 112]
    def loads(setbase, tiles_mx, cls_idx):
        out = []
        for m in range(tiles_mx + 1):
            fa, fb = setbase[0] + 4 * m, setbase[1] + 4 * m
            oa = 512 * m + 64 * (3 - cls_idx)
            ob = 128 * m + 16 * cls_idx
            out.append(f'ds_read_b64_tr_b16 v[{fa}:{fa+1}], v14 offset:{oa+32}')
            out.append(f'ds_read_b64_tr_b16 v[{fa+2}:{fa+3}], v14 offset:{oa}')
            out.append(f'ds_read_b64 v[{fb}:{fb+1}], v15 offset:{ob}')
            out.append(f'ds_read_b64 v[{fb+2}:{fb+3}], v15 offset:{ob+8}')
        return out
    SETS = [(56, 88), (120, 216)]
    def conv(tiles, ncls):
        mx = max(tiles)
        for ins in loads(SETS[0], mx, 0):
            a(ins)
        for ci in range(ncls):
            st = SETS[ci % 2]
            nxt = loads(SETS[(ci + 1) % 2], mx, ci + 1) if ci + 1 < ncls else []
            mf = []
            for s in range(mx + 1):
                grp = []
                for (m, aa) in [(s, i) for i in range(s + 1)] + [(i, s) for i in range(s)]:
                    c = m + aa
                    if c in tiles:
                        grp.append(f'v_mfma_f32_16x16x32_f16 v[{ACC+4*c}:{ACC+4*c+3}], v[{st[0]+4*m}:{st[0]+4*m+3}], v[{st[1]+4*aa}:{st[1]+4*aa+3}], v[{ACC+4*c}:{ACC+4*c+3}]')
                mf.append(grp)
            nload = 4 * (mx + 1)
            k = 0
            nm = 0
            nw = max(1, ncls // 2)
            wq = WL[ci * len(WL) // nw:(ci + 1) * len(WL) // nw] if (WPOS == 'conv' and ci < nw) else []
            wstep = max(1, sum(len(g) for g in mf) // (len(wq) + 1))
            for s_ in range(mx + 1):
                allowed = nload - 4 * (s_ + 1) + k
                if mf[s_]:
                    a(f's_waitcnt lgkmcnt({min(15, allowed)})')
                for ins in mf[s_]:
                    a(ins)
                    nm += 1
                    if wq and nm % wstep == 0:
                        a(wq.pop(0))
                    if (ci > 0 or s_ >= 2) and k < len(nxt):
                        a(nxt[k]); k += 1
                        if len(tiles) < 8 and k < len(nxt):
                            a(nxt[k]); k += 1
            while k < len(nxt):
                a(nxt[k]); k += 1
            for ins in wq: a(ins)
        a('s_nop 7')
        a('s_nop 1')
        stamp(a, 7)
    def epilogue(c, sreg_scale, sreg_out):
        r = ACC + 4 * c
        a(f'''
        v_fma_f32 v{r}, s{sreg_scale}, v{r}, 0
        v_fma_f32 v{r+1}, s{sreg_scale}, v{r+1}, 0
        v_fma_f32 v{r+2}, s{sreg_scale}, v{r+2}, 0
        v_fma_f32 v{r+3}, s{sreg_scale}, v{r+3}, 0
        v_cvt_pk_bf16_f32 v{r}, v{r}, v{r+1}
        v_cvt_pk_bf16_f32 v{r+1}, v{r+2}, v{r+3}
        v_xor_b32 v{r}, 0x80008000, v{r}
        v_xor_b32 v{r+1}, 0x80008000, v{r+1}
        buffer_store_dwordx2 v[{r}:{r+1}], v12, s[32:35], s{sreg_out} offen offset:{512*c} sc1
        ''')
    lS = a.newlabel('shared'); lcd = a.newlabel('convdone')
    FA = 56
    a(f'''
    s_cmp_ge_u32 s20, 4
    s_cbranch_scc1 {lS}
    s_lshr_b32 s4, s20, 1                  ; slot 0/1
    s_and_b32 s5, s20, 1
    s_lshl_b32 s6, s5, 2
    s_mul_i32 s7, s4, {CP_SZ}
    s_sub_u32 s8, 4, s6                    ; 7-(first+3)
    s_lshl_b32 s8, s8, 6
    s_add_u32 s7, s7, s8
    v_add_u32 v14, s7, v9
    s_mul_i32 s7, s4, {UP_SZ}
    s_lshl_b32 s8, s6, 4
    s_add_u32 s7, s7, s8
    v_add_u32 v15, s7, v10
    s_cmp_eq_u32 s4, 0
    s_cselect_b32 s9, s48, s49
    s_add_u32 s10, s62, s4
    s_lshl_b32 s10, s10, 12
    s_add_u32 s10, s10, {WS_YT}
    s_lshl_b32 s11, s4, 13
    s_add_u32 s11, s11, {L_RED}
    v_add_u32 v13, s11, v13
    ''')
    conv(list(range(8)), 4)
    lodd = a.newlabel('odd')
    a(f'''
    s_cmp_eq_u32 s5, 1
    s_cbranch_scc1 {lodd}
    ''')
    for par in range(2):
        keep = [0, 1, 2, 3] if par == 0 else [4, 5, 6, 7]
        give = [4, 5, 6, 7] if par == 0 else [0, 1, 2, 3]
        if par == 1:
            a.label(lodd)
        for c in give:
            a(f'ds_write_b128 v13, v[{ACC+4*c}:{ACC+4*c+3}] offset:{1024*c}')
        a('s_waitcnt vmcnt(11) lgkmcnt(0)' if WPOS == 'conv' else 's_waitcnt vmcnt(0) lgkmcnt(0)')
        a('s_barrier')
        for i, c in enumerate(keep):
            a(f'ds_read_b128 v[{FA+4*i}:{FA+4*i+3}], v13 offset:{1024*c}')
        for i, c in enumerate(keep):
            a(f's_waitcnt lgkmcnt({3-i})')
            for e in range(4):
                a(f'v_add_f32 v{ACC+4*c+e}, v{ACC+4*c+e}, v{FA+4*i+e}')
            epilogue(c, 9, 10)
        a(f's_branch {lcd}')
    a.label(lS)
    lSo = a.newlabel('sharedodd')
    a(f'''
    s_sub_u32 s5, s20, 4                   ; ww
    s_lshl_b32 s6, s5, 1
    s_sub_u32 s8, 4, s6
    s_lshl_b32 s8, s8, 6
    s_add_u32 s7, s8, {2*CP_SZ}
    v_add_u32 v14, s7, v9
    s_lshl_b32 s8, s6, 4
    s_add_u32 s7, s8, {2*UP_SZ}
    v_add_u32 v15, s7, v10
    s_lshl_b32 s10, s63, 12
    s_add_u32 s10, s10, {WS_YT}
    v_add_u32 v13, {L_RED + 16384}, v13
    s_cmp_eq_u32 s61, 1
    s_cbranch_scc1 {lSo}
    ''')
    for par in range(2):
        tiles = [0, 1, 2, 3, 7] if par == 0 else [4, 5, 6]
        if par == 1:
            a.label(lSo)
        conv(tiles, 2)
        a('s_lshl_b32 s11, s5, 10')
        a('v_add_u32 v14, s11, v13')
        for i, c in enumerate(tiles):
            a(f'ds_write_b128 v14, v[{ACC+4*c}:{ACC+4*c+3}] offset:{4096*i}')
        a('s_waitcnt vmcnt(11) lgkmcnt(0)' if WPOS == 'conv' else 's_waitcnt vmcnt(0) lgkmcnt(0)')
        a('s_barrier')
        for ww in range(4):
            lnx = a.newlabel('nx')
            a(f's_cmp_lg_u32 s5, {ww}')
            a(f's_cbranch_scc1 {lnx}')
            for i, c in enumerate(tiles):
                if i % 4 != ww: continue
                for k in range(4):
                    a(f'ds_read_b128 v[{FA+4*k}:{FA+4*k+3}], v13 offset:{4096*i + 1024*k}')
                a('s_waitcnt lgkmcnt(0)')
                for e in range(4):
                    a(f'v_add_f32 v{FA+e}, v{FA+e}, v{FA+4+e}')
                    a(f'v_add_f32 v{FA+8+e}, v{FA+8+e}, v{FA+12+e}')
                    a(f'v_add_f32 v{ACC+4*c+e}, v{FA+e}, v{FA+8+e}')
                epilogue(c, 50, 10)
            a(f's_branch {lcd}')
            a.label(lnx)
        a(f's_branch {lcd}')
    a.label(lcd)
    stamp(a, 9)
    srd(a, 36, 72, 73, 2621440)
    lg = a.newlabel('g'); lg1 = a.newlabel('g1'); lg2 = a.newlabel('g2'); lgo = a.newlabel('go')
    a(f'''
    v_lshlrev_b32 v5, 12, v0
    v_lshlrev_b32 v6, 2, v0
    s_lshl_b32 s48, s21, 4
    s_add_u32 s48, s48, {WS_YT}
    s_add_u32 s49, s48, {512*4096}
    v_cmp_gt_u32 vcc, 128, v0
    s_mov_b64 s[6:7], -1
    s_mov_b64 s[8:9], vcc
    s_mov_b32 s4, 0
    ''')
    a.label(lg)
    a(f'''
    s_mov_b64 exec, s[6:7]
    s_cbranch_execz {lg1}
    buffer_load_dwordx4 v[8:11], v5, s[32:35], s48 offen sc1
    ''')
    a.label(lg1)
    a(f'''
    s_mov_b64 exec, s[8:9]
    s_cbranch_execz {lg2}
    buffer_load_dwordx4 v[12:15], v5, s[32:35], s49 offen sc1
    ''')
    a.label(lg2)
    a(f'''
    s_mov_b64 exec, -1
    s_add_u32 s4, s4, 1
    s_waitcnt vmcnt(0)
    v_min_u32 v36, v8, v9
    v_min3_u32 v36, v36, v10, v11
    v_min_u32 v37, v12, v13
    v_min3_u32 v37, v37, v14, v15
    v_cmp_eq_u32 vcc, 0, v36
    v_cmp_eq_u32 s[10:11], 0, v37
    s_and_b64 s[6:7], s[6:7], vcc
    s_and_b64 s[8:9], s[8:9], s[10:11]
    s_cmp_ge_u32 s4, {SPIN_MAX}
    s_cbranch_scc1 {lgo}
    s_or_b64 s[10:11], s[6:7], s[8:9]
    s_cbranch_scc1 {lg}
    ''')
    a.label(lgo)
    stamp(a, 3)
    if STAMPS:
        a('s_mov_b32 s78, s4')
    for i in range(8, 16):
        a(f'v_xor_b32 v{i}, 0x80008000, v{i}')
    a(f'''
    v_cmp_gt_u32 vcc, 128, v0
    ds_write2st64_b32 v6, v8, v9 offset0:0 offset1:10
    ds_write2st64_b32 v6, v10, v11 offset0:20 offset1:30
    s_and_saveexec_b64 s[42:43], vcc
    ds_write2st64_b32 v6, v12, v13 offset0:8 offset1:18
    ds_write2st64_b32 v6, v14, v15 offset0:28 offset1:38
    s_mov_b64 exec, s[42:43]
    s_lshr_b32 s44, s20, 1
    s_mul_i32 s44, s44, 2560
    v_lshlrev_b32 v7, 5, v2
    v_add_u32 v7, s44, v7
    v_lshlrev_b32 v33, 3, v2
    v_add_u32 v33, s44, v33
    s_and_b32 s45, s20, 1
    s_lshl_b32 s45, s45, 4
    ''')
    XR = 40; T = 50; W = 60; H = 70
    for i in range(4):
        unpack(a, VX + i, XR + 2 * i, XR + 2 * i + 1)
        unpack(a, VT + i, T + 2 * i, T + 2 * i + 1)
        unpack(a, 160 + i, W + 2 * i, W + 2 * i + 1)
    unpack(a, VX + 4, XR + 8, XR + 9)
    unpack(a, VT + 4, T + 8, T + 9)
    unpack(a, 164, W + 8, W + 9)
    a(f'''
    s_waitcnt lgkmcnt(0)
    s_barrier
    ds_read_b128 v[8:11], v7
    ds_read_b128 v[12:15], v7 offset:16
    ds_read_b64 v[34:35], v33 offset:2048
    ''')
    stamp(a, 10)
    X = XR
    a('s_waitcnt lgkmcnt(0)')
    ysrc = list(range(8, 16)) + [34, 35]
    for i in range(10):
        a(f'v_lshrrev_b32 v{ysrc[i]}, s45, v{ysrc[i]}')
        a(f'v_lshlrev_b32 v{ysrc[i]}, 16, v{ysrc[i]}')
    for p in range(5):
        i0, i1 = 2 * p, 2 * p + 1
        a(f'''
        v_add_f32 v{T+i0}, v{ysrc[i0]}, v{T+i0}
        v_add_f32 v{T+i1}, v{ysrc[i1]}, v{T+i1}
        v_cvt_pk_bf16_f32 v36, v{T+i0}, v{T+i1}
        v_lshlrev_b32 v{T+i0}, 16, v36
        v_and_b32 v{T+i1}, 0xffff0000, v36
        v_add_f32 v{T+i0}, v{X+i0}, v{T+i0}
        v_add_f32 v{T+i1}, v{X+i1}, v{T+i1}
        v_cvt_pk_bf16_f32 v36, v{T+i0}, v{T+i1}
        v_lshlrev_b32 v{H+i0}, 16, v36
        v_and_b32 v{H+i1}, 0xffff0000, v36
        ''')
    ln_stats(a, H, X, 36, 21, 37, 38, 39, 46, 47, 48)
    a('v_mov_b32 v36, 0')
    a('v_mov_b32 v21, 0')
    for p in range(5):
        i0, i1 = 2 * p, 2 * p + 1
        a(f'''
        v_sub_f32 v{X+i0}, v{H+i0}, v37
        v_sub_f32 v{X+i1}, v{H+i1}, v37
        v_cvt_pk_bf16_f32 v39, v{X+i0}, v{X+i1}
        v_lshlrev_b32 v{X+i0}, 16, v39
        v_and_b32 v{X+i1}, 0xffff0000, v39
        v_mul_f32 v{X+i0}, v{X+i0}, v38
        v_mul_f32 v{X+i1}, v{X+i1}, v38
        v_cvt_pk_bf16_f32 v39, v{X+i0}, v{X+i1}
        v_lshlrev_b32 v{X+i0}, 16, v39
        v_and_b32 v{X+i1}, 0xffff0000, v39
        v_fmac_f32 v36, v{X+i0}, v{W+i0}
        v_fmac_f32 v21, v{X+i1}, v{W+i1}
        ''')
    a('v_add_f32 v36, v36, v21')
    wave_reduce(a, 'v_add_f32', 36)
    a(f'''
    v_cvt_pk_bf16_f32 v36, v36, v36
    v_and_b32 v36, 0xffff, v36
    v_xor_b32 v37, 0xffff, v36
    v_or_b32 v38, 0x8000, v36
    v_cmp_lt_u32 vcc, 0x7fff, v36
    s_sub_u32 s46, 4095, s22
    s_lshl_b32 s49, s20, 2
    v_cndmask_b32 v36, v38, v37, vcc
    v_lshl_or_b32 v36, v36, 16, s46
    s_add_u32 s49, s49, {M_KEYS}
    v_mov_b32 v37, s49
    v_readlane_b32 s48, v36, 63
    s_nop 1
    v_mov_b32 v38, s48
    ds_write_b32 v37, v38
    ''')
    for p in range(5):
        i0, i1 = 2 * p, 2 * p + 1
        a(f'''
        v_add_f32 v{T+i0}, v{H+i0}, v{X+i0}
        v_add_f32 v{T+i1}, v{H+i1}, v{X+i1}
        v_cvt_pk_bf16_f32 v{92+p}, v{T+i0}, v{T+i1}
        ''')
    lnb = a.newlabel('notbest'); lpoll = a.newlabel('poll'); lb2 = a.newlabel('b2')
    a(f'''
    v_and_b32 v37, 7, v2
    v_lshlrev_b32 v37, 2, v37
    v_add_u32 v37, {M_KEYS}, v37
    s_waitcnt lgkmcnt(0)
    s_barrier
    ds_read_b32 v38, v37
    s_waitcnt lgkmcnt(0)
    s_nop 1
    v_max_u32_dpp v38, v38, v38 quad_perm:[1,0,3,2] row_mask:0xf bank_mask:0xf
    s_nop 1
    v_max_u32_dpp v38, v38, v38 quad_perm:[2,3,0,1] row_mask:0xf bank_mask:0xf
    s_nop 1
    v_max_u32_dpp v38, v38, v38 row_half_mirror row_mask:0xf bank_mask:0xf
    s_nop 0
    v_readfirstlane_b32 s50, v38
    s_cmp_lg_u32 s50, s48
    s_cbranch_scc1 {lnb}
    s_lshl_b32 s51, s21, 4
    s_add_u32 s51, s51, {WS_KEY}
    v_mov_b32 v37, 0
    s_mov_b64 exec, 1
    buffer_store_dword v38, v37, s[32:35], s51 offen sc1
    s_mov_b64 exec, -1
    ''')
    for i in range(10):
        a(f'v_or_b32 v{X+i}, 1, v{X+i}')
        a(f'v_or_b32 v{H+i}, 1, v{H+i}')
    a(f'''
    s_mul_i32 s51, s21, 5120
    s_add_u32 s51, s51, {WS_CAND}
    v_lshlrev_b32 v37, 5, v2
    v_lshlrev_b32 v39, 3, v2
    buffer_store_dwordx4 v[{X}:{X+3}], v37, s[32:35], s51 offen sc1
    buffer_store_dwordx4 v[{X+4}:{X+7}], v37, s[32:35], s51 offen offset:16 sc1
    buffer_store_dwordx2 v[{X+8}:{X+9}], v39, s[32:35], s51 offen offset:2048 sc1
    s_add_u32 s51, s51, 2560
    buffer_store_dwordx4 v[{H}:{H+3}], v37, s[32:35], s51 offen sc1
    buffer_store_dwordx4 v[{H+4}:{H+7}], v37, s[32:35], s51 offen offset:16 sc1
    buffer_store_dwordx2 v[{H+8}:{H+9}], v39, s[32:35], s51 offen offset:2048 sc1
    s_branch {lpoll}
    ''')
    a.label(lnb)
    a('''
    buffer_store_dwordx4 v[92:95], v3, s[36:39], s23 offen OUTFLAG
    buffer_store_dword v96, v4, s[36:39], s23 offen offset:1024 OUTFLAG
    ''')
    a.label(lpoll)
    if TAILST: stamp(a, 2)
    UW = 100
    lks = a.newlabel('kslave'); lkd = a.newlabel('kd'); lu3 = a.newlabel('u3')
    for i in range(20):
        unpack(a, VW + i, UW + 2 * i, UW + 2 * i + 1)
    a(f'''
    s_cmp_lg_u32 s20, 0
    s_cbranch_scc1 {lb2}
    s_cmp_lg_u32 s2, 0
    s_cbranch_scc1 {lks}
    ''')
    gather_flags(WS_KEY, 8)
    a('''
    v_max_u32 v8, v8, v9
    v_max3_u32 v8, v8, v10, v11
    ''')
    wave_reduce(a, 'v_max_u32', 8)
    a('''
    s_nop 0
    v_readlane_b32 s6, v8, 63
    s_nop 1
    v_mov_b32 v8, s6
    ''')
    bcast(WS_GO + 128, 8, 9)
    a(f's_branch {lkd}')
    a.label(lks)
    slave(WS_GO + 128, 8)
    a.label(lkd)
    a(f'''
    v_mov_b32 v9, {M_GKEY}
    s_mov_b64 exec, 1
    ds_write_b32 v9, v8
    s_mov_b64 exec, -1
    s_waitcnt lgkmcnt(0)
    ''')
    a.label(lb2)
    lw = a.newlabel('iswin'); ldown = a.newlabel('down')
    a(f'''
    s_barrier
    v_mov_b32 v9, {M_GKEY}
    ds_read_b32 v8, v9
    s_waitcnt lgkmcnt(0)
    v_readfirstlane_b32 s44, v8
    s_cmp_lg_u32 s50, s48
    s_cbranch_scc1 {lw}
    s_cmp_eq_u32 s44, s48
    s_cbranch_scc1 {lw}
    buffer_store_dwordx4 v[92:95], v3, s[36:39], s23 offen OUTFLAG
    buffer_store_dword v96, v4, s[36:39], s23 offen offset:1024 OUTFLAG
    ''')
    a.label(lw)
    if TAILST: stamp(a, 4)
    a(f'''
    s_and_b32 s45, s44, 0x7ff
    s_sub_u32 s45, 2047, s45
    s_lshr_b32 s46, s45, 3
    s_mul_i32 s46, s46, 5120
    s_add_u32 s46, s46, {WS_CAND}
    s_cmp_ge_u32 s2, 216
    s_cbranch_scc1 {ldown}
    ; ---- G task ----
    s_lshl_b32 s47, s54, 2
    s_add_u32 s47, s47, s46
    v_lshrrev_b32 v5, 3, v2
    v_lshlrev_b32 v5, 2, v5
    v_add_u32 v6, 64, v5
    v_mov_b32 v7, {OOB:#x}
    v_cmp_gt_u32 vcc, 32, v2
    v_mov_b32 v8, 1
    s_nop 0
    v_cndmask_b32 v6, v7, v6, vcc
    v_cndmask_b32 v7, v8, 0, vcc
    ''')
    spin('''
    buffer_load_dword v12, v5, s[32:35], s47 offen sc1
    buffer_load_dword v13, v5, s[32:35], s47 offen offset:32 sc1
    buffer_load_dword v14, v6, s[32:35], s47 offen sc1
    s_waitcnt vmcnt(0)
    v_or_b32 v15, v14, v7
    v_and_b32 v15, v15, v12
    v_and_b32 v15, v15, v13
    v_and_b32 v15, 1, v15
    v_cmp_ne_u32 vcc, 0, v15
    ''')
    if TAILST: stamp(a, 6)
    a('''
    v_and_b32 v12, 0xffff0000, v12
    v_and_b32 v13, 0xffff0000, v13
    v_and_b32 v14, 0xffff0000, v14
    ''')
    R = 40
    for e in range(3):
        for i in range(8):
            op = 'v_mul_f32' if e == 0 else 'v_fmac_f32'
            a(f'{op} v{R+i}, v{12+e}, v{UW+8*e+i}')
    a('s_nop 1')
    for j in range(4):
        a(f'v_permlane32_swap_b32 v{R+j}, v{R+j+4}')
    for j in range(4):
        a(f'v_add_f32 v{R+j}, v{R+j}, v{R+j+4}')
    a('s_nop 1')
    for j in range(2):
        a(f'v_permlane16_swap_b32 v{R+j}, v{R+j+2}')
    for j in range(2):
        a(f'v_add_f32 v{R+j}, v{R+j}, v{R+j+2}')
    a('s_nop 0')
    for j in range(2):
        a(f'v_add_f32_dpp v{R+j}, v{R+j}, v{R+j} row_ror:8 row_mask:0xf bank_mask:0xf')
    lg5 = a.newlabel('g5')
    a(f'''
    v_and_b32 v6, 7, v2
    v_lshlrev_b32 v6, 5, v6
    v_lshrrev_b32 v7, 4, v2
    v_lshl_add_u32 v6, v7, 3, v6
    s_lshl_b32 s47, s20, 8
    s_add_u32 s47, s47, {M_P1}
    v_add_u32 v6, s47, v6
    s_mov_b32 exec_lo, 0x00ff00ff
    s_mov_b32 exec_hi, 0x00ff00ff
    ds_write_b64 v6, v[{R}:{R+1}]
    s_mov_b64 exec, -1
    s_waitcnt lgkmcnt(0)
    s_barrier
    s_cmp_ge_u32 s20, 5
    s_cbranch_scc1 {end}
    s_cmp_ge_u32 s20, 2
    s_cbranch_scc1 {lg5}
    s_lshl_b32 s47, s20, 10
    s_add_u32 s47, s47, {M_P1}
    v_add_u32 v6, s47, v4
    ds_read_b32 v8, v6
    ds_read_b32 v9, v6 offset:256
    ds_read_b32 v10, v6 offset:512
    ds_read_b32 v11, v6 offset:768
    s_lshl_b32 s47, s53, 1
    s_add_u32 s47, s47, s20
    s_mul_i32 s47, s47, 6912
    s_lshl_b32 s48, s52, 8
    s_add_u32 s47, s47, s48
    s_add_u32 s47, s47, {WS_PART}
    s_waitcnt lgkmcnt(0)
    v_add_f32 v8, v8, v9
    v_add_f32 v10, v10, v11
    v_add_f32 v8, v8, v10
    v_or_b32 v8, 1, v8
    buffer_store_dword v8, v4, s[32:35], s47 offen sc1
    ''')
    a.label(lg5)
    stamp(a, 5)
    ld1 = a.newlabel('d1')
    a(f'''
    s_cmp_lg_u32 s20, 0
    s_cbranch_scc1 {ld1}
    v_lshrrev_b32 v5, 3, v2
    v_mul_u32_u24 v5, 13824, v5
    v_and_b32 v6, 7, v2
    v_lshl_add_u32 v5, v6, 2, v5
    s_lshl_b32 s47, s2, 5
    s_add_u32 s47, s47, {WS_PART}
    s_add_u32 s48, s47, 6912
    ''')
    spin('''
    buffer_load_dword v8, v5, s[32:35], s47 offen sc1
    buffer_load_dword v9, v5, s[32:35], s48 offen sc1
    s_waitcnt vmcnt(0)
    v_and_b32 v10, v8, v9
    v_and_b32 v10, 1, v10
    v_cmp_ne_u32 vcc, 0, v10
    ''')
    a('''
    s_nop 1
    v_permlane32_swap_b32 v8, v9
    v_add_f32 v8, v8, v9
    v_mov_b32 v9, v8
    s_nop 1
    v_permlane16_swap_b32 v8, v9
    v_add_f32 v8, v8, v9
    s_nop 1
    v_add_f32_dpp v8, v8, v8 row_ror:8 row_mask:0xf bank_mask:0xf
    v_mov_b32 v12, v8
    s_nop 1
    v_permlane32_swap_b32 v8, v12
    ''')
    round_bf16(a, 8, 9)
    round_bf16(a, 12, 9)
    a(f'''
    v_mul_f32 v9, {fbits(-LOG2E):#x}, v8
    v_exp_f32 v9, v9
    s_nop 0
    v_add_f32 v9, 1.0, v9
    v_rcp_f32 v9, v9
    s_nop 0
    v_mul_f32 v8, v8, v9
    ''')
    round_bf16(a, 8, 9)
    a('v_mul_f32 v8, v8, v12')
    round_bf16(a, 8, 9)
    a(f'''
    v_add_u32 v9, {M_P2}, v4
    s_mov_b64 exec, 0xff
    ds_write_b32 v9, v8
    s_mov_b64 exec, -1
    s_waitcnt lgkmcnt(0)
    ''')
    a.label(ld1)
    a(f'''
    s_barrier
    v_mov_b32 v9, {M_P2}
    ds_read_b128 v[12:15], v9
    ds_read_b128 v[16:19], v9 offset:16
    s_mul_i32 s47, s2, 2560
    s_lshl_b32 s48, s20, 9
    s_add_u32 s47, s47, s48
    s_add_u32 s47, s47, {WS_YP}
    v_lshlrev_b32 v5, 3, v2
    s_waitcnt lgkmcnt(0)
    ''')
    for r in range(8):
        op = 'v_mul_f32' if r == 0 else 'v_fmac_f32'
        a(f'{op} v10, v{12+r}, v{UW+24+2*r}')
        a(f'{op} v11, v{12+r}, v{UW+25+2*r}')
    a(f'''
    v_or_b32 v10, 1, v10
    v_or_b32 v11, 1, v11
    buffer_store_dwordx2 v[10:11], v5, s[32:35], s47 offen sc1
    s_branch {end}
    ''')
    a.label(ldown)
    a(f'''
    s_sub_u32 s53, s2, 216
    v_lshrrev_b32 v5, 2, v0
    v_mul_u32_u24 v5, 2560, v5
    v_and_b32 v6, 3, v0
    v_lshl_add_u32 v5, v6, 4, v5
    v_mov_b32 v7, {OOB:#x}
    v_cmp_gt_u32 vcc, 352, v0
    v_mov_b32 v8, 1
    s_lshl_b32 s47, s53, 6
    v_cndmask_b32 v6, v7, v5, vcc
    v_cndmask_b32 v7, v8, 0, vcc
    s_add_u32 s55, s47, s46
    s_add_u32 s47, s47, {WS_YP}
    s_add_u32 s48, s47, {128*2560}
    v_and_b32 v22, 15, v2
    v_lshlrev_b32 v22, 2, v22
    ''')
    spin('''
    buffer_load_dwordx4 v[8:11], v5, s[32:35], s47 offen sc1
    buffer_load_dwordx4 v[12:15], v6, s[32:35], s48 offen sc1
    buffer_load_dword v20, v22, s[32:35], s55 offen sc1
    buffer_load_dword v21, v22, s[32:35], s55 offen offset:2560 sc1
    s_waitcnt vmcnt(0)
    v_and_b32 v16, v12, v13
    v_and_b32 v17, v14, v15
    v_and_b32 v16, v16, v17
    v_or_b32 v16, v16, v7
    v_and_b32 v17, v8, v9
    v_and_b32 v18, v10, v11
    v_and_b32 v16, v16, v17
    v_and_b32 v16, v16, v18
    v_and_b32 v16, v16, v20
    v_and_b32 v16, v16, v21
    v_and_b32 v16, 1, v16
    v_cmp_ne_u32 vcc, 0, v16
    ''')
    a(f'''
    v_add_f32 v8, v8, v12
    v_add_f32 v9, v9, v13
    v_add_f32 v10, v10, v14
    v_add_f32 v11, v11, v15
    v_and_b32 v20, 0xffff0000, v20
    v_and_b32 v21, 0xffff0000, v21
    v_permlane32_swap_b32 v8, v10
    v_permlane32_swap_b32 v9, v11
    v_add_f32 v8, v8, v10
    v_add_f32 v9, v9, v11
    s_nop 1
    v_permlane16_swap_b32 v8, v9
    v_add_f32 v8, v8, v9
    s_nop 1
    v_add_f32_dpp v8, v8, v8 row_ror:4 row_mask:0xf bank_mask:0xf
    s_nop 1
    v_add_f32_dpp v8, v8, v8 row_ror:8 row_mask:0xf bank_mask:0xf
    v_and_b32 v7, 3, v2
    v_lshlrev_b32 v7, 4, v7
    v_lshrrev_b32 v9, 4, v2
    v_lshl_add_u32 v7, v9, 2, v7
    s_lshl_b32 s47, s20, 6
    s_add_u32 s47, s47, {M_P2}
    v_add_u32 v7, s47, v7
    s_mov_b32 exec_lo, 0x000f000f
    s_mov_b32 exec_hi, 0x000f000f
    ds_write_b32 v7, v8
    s_mov_b64 exec, -1
    s_waitcnt lgkmcnt(0)
    s_barrier
    s_cmp_lg_u32 s20, 0
    s_cbranch_scc1 {end}
    v_add_u32 v6, {M_P2}, v22
    ds_read_b32 v8, v6
    ds_read_b32 v9, v6 offset:64
    ds_read_b32 v10, v6 offset:128
    ds_read_b32 v11, v6 offset:192
    ds_read_b32 v12, v6 offset:256
    ds_read_b32 v13, v6 offset:320
    ds_read_b32 v14, v6 offset:384
    ds_read_b32 v15, v6 offset:448
    s_lshr_b32 s48, s44, 16
    s_xor_b32 s49, s48, 0xffff
    s_and_b32 s50, s48, 0x7fff
    s_cmp_ge_u32 s48, 0x8000
    s_cselect_b32 s48, s50, s49
    s_lshl_b32 s48, s48, 16
    v_mov_b32 v18, s48
    v_mul_f32 v18, {fbits(-LOG2E):#x}, v18
    v_exp_f32 v18, v18
    s_nop 0
    v_add_f32 v18, 1.0, v18
    v_rcp_f32 v18, v18
    s_waitcnt lgkmcnt(0)
    v_add_f32 v8, v8, v9
    v_add_f32 v10, v10, v11
    v_add_f32 v12, v12, v13
    v_add_f32 v14, v14, v15
    v_add_f32 v8, v8, v10
    v_add_f32 v12, v12, v14
    v_add_f32 v8, v8, v12
    ''')
    round_bf16(a, 8, 9)
    round_bf16(a, 18, 9)
    a('v_mul_f32 v8, v8, v18')
    round_bf16(a, 8, 9)
    a('v_add_f32 v8, v20, v8')
    round_bf16(a, 8, 9)
    a(f'''
    v_add_f32 v8, v21, v8
    v_cvt_pk_bf16_f32 v8, v8, v8
    s_mul_i32 s45, s45, 1280
    s_lshl_b32 s47, s53, 5
    s_add_u32 s45, s45, s47
    v_lshlrev_b32 v7, 1, v2
    s_mov_b64 exec, 0xffff
    buffer_store_short v8, v7, s[36:39], s45 offen
    s_mov_b64 exec, -1
    ''')
    a.label(end)
    stamp_flush(a)
    a.label(end + 'x')
    a('s_endpgm')

def main():
    global STAMPS
    global PF
    if len(sys.argv) > 2 and sys.argv[2] == 'stamps': STAMPS = True
    global WPOS, TAILST, OUTF
    import os
    OUTF = os.environ.get('OUTF', OUTF)
    if len(sys.argv) > 4: TAILST = True
    if len(sys.argv) > 3: WPOS = sys.argv[3]
    a = A()
    gen(a)
    hdr = f'; @launch grid=(256,1,1) block=(512,1,1) lds={LDS_TOTAL}\n'
    hdr += '.amdgcn_target "amdgcn-amd-amdhsa--gfx950"\n.text\n.set CODE_BYTES, 18432\n'
    out = hdr + a.text().replace('OUTFLAG', OUTF) + f'''.section .rodata,"a"
.p2align 6
.amdhsa_kernel {KNAME}
  .amdhsa_next_free_vgpr 248
  .amdhsa_next_free_sgpr 102
  .amdhsa_accum_offset 248
  .amdhsa_group_segment_fixed_size 0
  .amdhsa_kernarg_size 120
  .amdhsa_user_sgpr_count 2
  .amdhsa_user_sgpr_kernarg_segment_ptr 1
  .amdhsa_system_sgpr_workgroup_id_x 1
.end_amdhsa_kernel
'''
    path = sys.argv[1] if len(sys.argv) > 1 else f'cdna_kernels/{NAME}.s'
    open(path, 'w').write(out)
    print('wrote', path, len(out))

if __name__ == '__main__':
    main()
```

```python
import struct, sys

NAME = 'sequential_preLN__ssm_conv_s4d__moe_arch_mod__prompt'
KNAME = NAME + '_kernel'

WS_U = 0x000000
WS_YT = 0x280000
WS_CAND = 0x520000
WS_KEY = 0x500000
WS_FLAG2 = 0x501000
WS_FLAG1 = 0x502000
WS_GO = 0x508000
WS_PART = 0x6A0000
WS_YP = 0x6C0000
WS_ACT = 0x504000
WS_STAMP = 0xE00000
WS_SIZE = 0x1000000
NREP = 8
SPIN_MAX = 1 << 18
OOB = 0x7ffffff0
STAMPS = False
TAILST = False
WARM = True
PF = 'none'
SIGPOS = 2
WPOS = 'conv'
CODEPF = True
OUTF = 'nt'
WSH = 21
PRIO = 0

def fbits(x):
    return struct.unpack('<I', struct.pack('<f', x))[0]

LOG2E = 1.4426950408889634
LOG2E_HI = struct.unpack('<f', struct.pack('<f', LOG2E))[0]
LOG2E_LO = LOG2E - LOG2E_HI
LN2 = 0.6931471805599453
INV2PI = 0.15915494309189535

class A:
    def __init__(self):
        self.L = []
        self.uid = 0
    def __call__(self, s):
        for line in s.strip('\n').split('\n'):
            if line.strip():
                self.L.append('    ' + line.strip())
    def label(self, s):
        self.L.append(s + ':')
    def newlabel(self, base):
        self.uid += 1
        return f'L_{base}_{self.uid}'
    def text(self):
        return '\n'.join(self.L) + '\n'

NSTAMP = 12
def stamp(a, i):
    if STAMPS:
        a(f's_memrealtime s[{76+2*i}:{77+2*i}]')
def cstamp(a, i):
    if STAMPS:
        a(f's_memtime s[{76+2*i}:{77+2*i}]')
def stamp_init(a):
    if STAMPS:
        for i in range(NSTAMP):
            a(f's_mov_b32 s{76+2*i}, 0')
def stamp_flush(a):
    if STAMPS:
        a('s_mov_b64 exec, -1')
        a(f's_memrealtime s[{76+2*(NSTAMP-1)}:{77+2*(NSTAMP-1)}]')
        a('s_waitcnt lgkmcnt(0)')
        for i in range(NSTAMP):
            a(f'v_mov_b32 v{8+i}, s{76+2*i}')
        a(f'''
        s_lshl_b32 s76, s2, 3
        s_add_u32 s76, s76, s20
        s_lshl_b32 s76, s76, 6
        s_add_u32 s76, s76, {WS_STAMP}
        v_mov_b32 v24, 0
        s_mov_b64 exec, 1
        buffer_store_dwordx4 v[8:11], v24, s[32:35], s76 offen
        buffer_store_dwordx4 v[12:15], v24, s[32:35], s76 offen offset:16
        buffer_store_dwordx4 v[16:19], v24, s[32:35], s76 offen offset:32
        ''')

def srd(a, s, lo, hi, size):
    a(f's_mov_b32 s{s}, s{lo}')
    a(f's_and_b32 s{s+1}, s{hi}, 0xffff')
    a(f's_mov_b32 s{s+2}, {size}')
    a(f's_mov_b32 s{s+3}, 0x00020000')

def wave_reduce(a, op, v):
    for m in ['quad_perm:[1,0,3,2] row_mask:0xf bank_mask:0xf',
              'quad_perm:[2,3,0,1] row_mask:0xf bank_mask:0xf',
              'row_half_mirror row_mask:0xf bank_mask:0xf',
              'row_mirror row_mask:0xf bank_mask:0xf',
              'row_bcast:15 row_mask:0xa bank_mask:0xf',
              'row_bcast:31 row_mask:0xc bank_mask:0xf']:
        a('s_nop 1')
        a(f'{op}_dpp v{v}, v{v}, v{v} {m}')

def round_bf16(a, v, t):
    a(f'v_cvt_pk_bf16_f32 v{t}, v{v}, v{v}')
    a(f'v_lshlrev_b32 v{v}, 16, v{t}')

def unpack(a, src, lo, hi):
    a(f'v_lshlrev_b32 v{lo}, 16, v{src}')
    a(f'v_and_b32 v{hi}, 0xffff0000, v{src}')

def exp_bf16(a, v, t0, t1, s_l2e, s_l2elo, s_ln2):
    a(f'v_mul_f32 v{t0}, s{s_l2e}, v{v}')
    a(f'v_fma_f32 v{t1}, v{v}, s{s_l2e}, -v{t0}')
    a(f'v_fmac_f32 v{t1}, s{s_l2elo}, v{v}')
    a(f'v_exp_f32 v{t0}, v{t0}')
    a(f'v_mul_f32 v{t1}, s{s_ln2}, v{t1}')
    a(f'v_fma_f32 v{v}, v{t0}, v{t1}, v{t0}')
    round_bf16(a, v, t0)

def ln_stats(a, src, tmp, vs1, vs2, vmean, vrs, vt, s0, s1, s2_):
    a(f'v_readfirstlane_b32 s{s2_}, v{src}')
    a('s_nop 1')
    for i in range(10):
        a(f'v_subrev_f32 v{tmp+i}, s{s2_}, v{src+i}')
    a(f'''
    v_add_f32 v{vs1}, v{tmp}, v{tmp+1}
    v_mul_f32 v{vs2}, v{tmp}, v{tmp}
    v_add_f32 v{vmean}, v{tmp+2}, v{tmp+3}
    v_mul_f32 v{vrs}, v{tmp+1}, v{tmp+1}
    ''')
    for i in range(4, 10, 2):
        a(f'v_add_f32 v{vs1}, v{vs1}, v{tmp+i}')
        a(f'v_add_f32 v{vmean}, v{vmean}, v{tmp+i+1}')
    for i in range(2, 10, 2):
        a(f'v_fmac_f32 v{vs2}, v{tmp+i}, v{tmp+i}')
        a(f'v_fmac_f32 v{vrs}, v{tmp+i+1}, v{tmp+i+1}')
    a(f'v_add_f32 v{vs1}, v{vs1}, v{vmean}')
    a(f'v_add_f32 v{vs2}, v{vs2}, v{vrs}')
    for m in ['quad_perm:[1,0,3,2] row_mask:0xf bank_mask:0xf',
              'quad_perm:[2,3,0,1] row_mask:0xf bank_mask:0xf',
              'row_half_mirror row_mask:0xf bank_mask:0xf',
              'row_mirror row_mask:0xf bank_mask:0xf',
              'row_bcast:15 row_mask:0xa bank_mask:0xf',
              'row_bcast:31 row_mask:0xc bank_mask:0xf']:
        a('s_nop 0')
        a(f'v_add_f32_dpp v{vs1}, v{vs1}, v{vs1} {m}')
        a(f'v_add_f32_dpp v{vs2}, v{vs2}, v{vs2} {m}')
    a(f'''
    v_mov_b32 v{vt}, {fbits(1.0/640):#x}
    v_readlane_b32 s{s0}, v{vs1}, 63
    v_readlane_b32 s{s1}, v{vs2}, 63
    s_nop 0
    v_mul_f32 v{vmean}, s{s0}, v{vt}
    v_mul_f32 v{vrs}, s{s1}, v{vt}
    v_fma_f32 v{vrs}, -v{vmean}, v{vmean}, v{vrs}
    v_add_f32 v{vmean}, s{s2_}, v{vmean}
    v_max_f32 v{vrs}, 0, v{vrs}
    ''')
    round_bf16(a, vrs, vt)
    a(f'v_add_f32 v{vrs}, {fbits(1e-5):#x}, v{vrs}')
    round_bf16(a, vrs, vt)
    a(f'v_sqrt_f32 v{vrs}, v{vrs}')
    a('s_nop 0')
    round_bf16(a, vrs, vt)
    a(f'v_rcp_f32 v{vrs}, v{vrs}')
    round_bf16(a, vmean, vt)

def reduceN(a, R, n):
    h = n // 2; qn = n // 4
    a('s_nop 1')
    for j in range(h):
        a(f'v_permlane32_swap_b32 v{R+j}, v{R+j+h}')
    for j in range(h):
        a(f'v_add_f32 v{R+j}, v{R+j}, v{R+j+h}')
    a('s_nop 1')
    for j in range(qn):
        a(f'v_permlane16_swap_b32 v{R+j}, v{R+j+qn}')
    for j in range(qn):
        a(f'v_add_f32 v{R+j}, v{R+j}, v{R+j+qn}')
    for m in ['quad_perm:[1,0,3,2]', 'quad_perm:[2,3,0,1]', 'row_half_mirror', 'row_mirror']:
        a('s_nop 0')
        for j in range(qn):
            a(f'v_add_f32_dpp v{R+j}, v{R+j}, v{R+j} {m} row_mask:0xf bank_mask:0xf')

KT_RS = 544
KT_E0 = 41
KT_SZ = 57 * KT_RS
L_TILE = 3 * KT_SZ
TS = 1344
L_KC = L_TILE + 8 * TS
KC_SZ = 1344
L_UP = L_KC + 3 * KC_SZ
US = 1152
UP_SZ = 4 * US
L_MISC = L_UP + 3 * UP_SZ
M_CNT1 = L_MISC
M_CNT2 = L_MISC + 4
M_SCALE = L_MISC + 16
M_PAIR = L_MISC + 96
M_KEYS = L_MISC + 32
M_GKEY = L_MISC + 64
M_P2 = L_MISC + 384
M_P1 = L_MISC + 1024
LDS_TOTAL = L_MISC + 3072
CS = 4224
CP_SZ = 4 * CS
L_RED = 3 * CP_SZ
L_Y2 = 0

VX = 200
VT = 206
VW = 168
GA = 152
VU = 160

def gen(a):
    a.L.append(f'.globl {KNAME}')
    a.L.append('.p2align 8')
    a.L.append(f'.type {KNAME},@function')
    a.label(KNAME)
    end = 'L_end'
    stamp_init(a)
    stamp(a, 0)
    a(f'''
    s_cmp_ge_u32 s2, 256
    s_cbranch_scc1 {end}x
    s_load_dwordx8 s[4:11], s[0:1], 0
    s_load_dwordx4 s[12:15], s[0:1], 32
    s_load_dwordx2 s[16:17], s[0:1], 48    ; D
    s_load_dwordx2 s[18:19], s[0:1], 112   ; ws
    s_load_dwordx8 s[64:71], s[0:1], 64
    s_load_dwordx4 s[72:75], s[0:1], 96
    v_lshrrev_b32 v1, 6, v0
    v_and_b32 v2, 63, v0                   ; lane
    v_readfirstlane_b32 s20, v1            ; wave
    s_and_b32 s21, s2, 7
    s_lshl_b32 s21, s21, 5
    s_lshr_b32 s22, s2, 3
    s_add_u32 s21, s21, s22                ; rb
    s_lshl_b32 s22, s21, 3
    s_add_u32 s22, s22, s20                ; row
    s_mul_i32 s23, s22, 1280
    v_lshlrev_b32 v3, 4, v2                ; lane*16
    v_lshlrev_b32 v4, 2, v2                ; lane*4
    s_and_b32 s60, s2, 7
    s_lshl_b32 s60, s60, 4
    s_lshr_b32 s61, s2, 4
    s_add_u32 s60, s60, s61
    s_mul_i32 s60, s60, 5
    s_bfe_u32 s61, s2, 0x10003             ; odd
    s_mul_i32 s62, s61, 3
    s_add_u32 s62, s62, s60                ; chA
    s_add_u32 s63, s60, 2                  ; chS
    s_lshr_b32 s56, s20, 1
    s_add_u32 s57, s62, s56
    s_cmp_eq_u32 s56, 2
    s_cselect_b32 s57, s63, s57
    ''')
    if CODEPF:
        lcp = a.newlabel('cp')
        a(f'''
        s_cmp_lg_u32 s20, 6
        s_cbranch_scc1 {lcp}
        s_getpc_b64 s[24:25]
        s_lshr_b32 s26, s2, 3
        s_lshl_b32 s26, s26, 10
        v_add_u32 v5, s26, v3
        s_cmp_lt_u32 s26, CODE_BYTES
        s_cbranch_scc0 {lcp}
        global_load_dwordx4 v[240:243], v5, s[24:25]
        ''')
        a.label(lcp)
    a(f'''
    s_waitcnt lgkmcnt(0)
    ''')
    srd(a, 24, 4, 5, 2621440)
    srd(a, 32, 18, 19, WS_SIZE)
    srd(a, 28, 16, 17, 1280)
    lnz = a.newlabel('nz')
    a(f'''
    s_lshl_b32 s17, s2, 3
    s_add_u32 s17, s17, s20
    s_cmp_lg_u32 s17, 7
    s_cbranch_scc1 {lnz}
    v_mov_b32 v8, 0
    v_mov_b32 v9, 0
    v_mov_b32 v10, 0
    v_mov_b32 v11, 0
    s_mov_b32 s4, {WS_FLAG1}
    buffer_store_dwordx4 v[8:11], v3, s[32:35], s4 offen sc1
    buffer_store_dwordx4 v[8:11], v3, s[32:35], s4 offen offset:1024 sc1
    buffer_store_dwordx4 v[8:11], v3, s[32:35], s4 offen offset:2048 sc1
    buffer_store_dwordx4 v[8:11], v3, s[32:35], s4 offen offset:3072 sc1
    v_lshlrev_b32 v12, 12, v2
    s_mov_b32 s4, {WS_GO + 256}
    s_mov_b64 exec, {(1<<NREP)-1:#x}
    buffer_store_dword v8, v12, s[32:35], s4 offen sc1
    s_mov_b64 exec, -1
    s_nop 1
    ''')
    a.label(lnz)
    a('''
    buffer_load_dwordx4 v[8:11], v3, s[24:27], s23 offen
    buffer_load_dword v12, v4, s[24:27], s23 offen offset:1024
    ''')
    srd(a, 36, 6, 7, 163840)
    srd(a, 40, 8, 9, 163840)
    srd(a, 44, 10, 11, 163840)
    srd(a, 48, 12, 13, 163840)
    srd(a, 52, 14, 15, 1280)
    a('''
    buffer_load_dwordx4 v[14:17], v3, s[28:31], 0 offen
    buffer_load_dword v18, v4, s[28:31], 0 offen offset:1024
    s_lshl_b32 s58, s57, 8
    s_and_b32 s59, s20, 1
    s_lshl_b32 s59, s59, 7
    s_add_u32 s59, s59, s58
    v_lshlrev_b32 v5, 1, v2
    s_lshl_b32 s16, s57, 1
    v_mov_b32 v6, 0
    buffer_load_ushort v20, v5, s[36:39], s59 offen
    buffer_load_ushort v21, v5, s[40:43], s59 offen
    buffer_load_ushort v22, v5, s[44:47], s59 offen
    buffer_load_ushort v23, v5, s[48:51], s59 offen
    buffer_load_dword v24, v4, s[44:47], s58 offen
    buffer_load_dword v25, v4, s[48:51], s58 offen
    buffer_load_ushort v26, v6, s[52:55], s16 offen
    ''')
    def prefetch(PD=216):
        srd(a, 36, 66, 67, 640 * 3456)
        srd(a, 40, 68, 69, 640 * 3456)
        srd(a, 44, 70, 71, 1728 * 1280)
        a(f'''
        s_and_b32 s4, s2, 7
        s_lshr_b32 s5, s2, 3
        s_mul_i32 s6, s4, 432
        s_mul_i32 s7, s5, {20*3456}
        s_add_u32 s6, s6, s7
        v_lshrrev_b32 v5, 5, v2
        v_mul_u32_u24 v5, 3456, v5
        v_and_b32 v6, 31, v2
        v_lshl_add_u32 v5, v6, 4, v5
        v_mov_b32 v7, {OOB:#x}
        v_cmp_gt_u32 vcc, 27, v6
        s_cmp_eq_u32 s20, 6
        s_cselect_b32 s36, s36, s40
        v_cndmask_b32 v5, v7, v5, vcc
        s_cselect_b32 s37, s37, s41
        ''')
        for i in range(10):
            a(f's_add_u32 s7, s6, {2*i*3456}')
            a(f'buffer_load_dwordx4 v[{PD+4*(i%2)}:{PD+3+4*(i%2)}], v5, s[36:39], s7 offen')
        a(f'''
        s_mul_i32 s6, s4, 160
        s_mul_i32 s7, s5, {54*1280}
        s_add_u32 s6, s6, s7
        s_sub_u32 s7, s20, 6
        s_mul_i32 s7, s7, {27*1280}
        s_add_u32 s6, s6, s7
        v_mul_u32_u24 v5, 205, v2
        v_lshrrev_b32 v5, 11, v5             ; lane/10
        v_mul_u32_u24 v6, 10, v5
        v_sub_u32 v6, v2, v6
        v_mul_u32_u24 v5, 1280, v5
        v_lshl_add_u32 v5, v6, 4, v5
        v_cmp_gt_u32 vcc, 60, v2
        s_nop 1
        v_cndmask_b32 v5, v7, v5, vcc
        ''')
        for i in range(5):
            a(f's_add_u32 s7, s6, {6*i*1280}')
            a(f'buffer_load_dwordx4 v[{PD+4*(i%2)}:{PD+3+4*(i%2)}], v5, s[44:47], s7 offen')
    if PF == 'start':
        lns = a.newlabel('ns')
        a(f'''
        s_cmp_lt_u32 s20, 6
        s_cbranch_scc1 {lns}
        ''')
        prefetch()
        a.label(lns)
    if WARM:
        lnw = a.newlabel('nw')
        a(f'''
        s_cmp_ge_u32 s20, 6
        s_cbranch_scc1 {lnw}
        v_lshlrev_b32 v27, {WSH}, v2
        s_mov_b32 s8, 0
        s_mov_b32 s4, s18
        s_mov_b32 s5, s19
        s_mov_b32 s6, {WS_SIZE // 2}
        s_cmp_eq_u32 s20, 1
        s_cselect_b32 s4, s72, s4
        s_cselect_b32 s5, s73, s5
        s_cselect_b32 s6, 2621440, s6
        s_cmp_eq_u32 s20, 2
        s_cselect_b32 s4, s74, s4
        s_cselect_b32 s5, s75, s5
        s_cselect_b32 s6, 256, s6
        s_cmp_eq_u32 s20, 3
        s_cselect_b32 s4, s64, s4
        s_cselect_b32 s5, s65, s5
        s_cselect_b32 s6, 1280, s6
        s_cmp_eq_u32 s20, 4
        s_cselect_b32 s4, s66, s4
        s_cselect_b32 s5, s67, s5
        s_cselect_b32 s6, {640*3456}, s6
        s_cmp_eq_u32 s20, 5
        s_cselect_b32 s8, {64 << WSH}, s8
        s_and_b32 s5, s5, 0xffff
        s_mov_b32 s7, 0x00020000
        buffer_load_dword v244, v27, s[4:7], s8 offen
        ''')
        a.label(lnw)
    lnr = a.newlabel('nr')
    a(f'''
    s_cmp_lg_u32 s17, 7
    s_cbranch_scc1 {lnr}
    ''')
    srd(a, 4, 74, 75, 256)
    a(f'''
    v_mov_b32 v27, 0
    v_mov_b32 v28, 1
    s_waitcnt vmcnt({26 if PF == 'start' else 11})
    s_mov_b64 exec, 1
    buffer_store_dword v28, v27, s[4:7], 0 offen sc1      ; READY
    s_mov_b64 exec, -1
    ''')
    a.label(lnr)
    a(f'''
    v_mov_b32 v27, 0
    v_lshrrev_b32 v28, 5, v0
    v_mul_u32_u24 v28, {US}, v28
    v_and_b32 v29, 31, v0
    v_lshl_add_u32 v28, v29, 2, v28
    v_add_u32 v28, {L_UP}, v28
    v_cmp_gt_u32 vcc, 384, v0
    s_and_saveexec_b64 s[4:5], vcc
    ds_write_b32 v28, v27
    s_mov_b64 exec, s[4:5]
    v_lshrrev_b32 v28, 2, v0
    v_mul_u32_u24 v28, {KC_SZ}, v28
    v_and_b32 v29, 3, v0
    v_lshl_add_u32 v28, v29, 2, v28
    v_add_u32 v28, {L_KC}, v28
    v_lshlrev_b32 v29, 2, v0
    v_add_u32 v29, {L_MISC}, v29
    v_cmp_gt_u32 vcc, 12, v0
    s_and_saveexec_b64 s[4:5], vcc
    ds_write_b32 v28, v27
    ds_write_b32 v29, v27
    ds_write_b32 v29, v27 offset:96
    s_mov_b64 exec, s[4:5]
    ''')
    a('v_lshlrev_b32 v5, 2, v0')
    a(f'v_mov_b32 v27, {L_KC}')
    for d in range(7):
        a(f'''
        v_add_u32 v31, {d-3}, v5
        v_cvt_f32_i32 v32, v31
        v_cvt_pk_bf16_f32 v32, v32, v32
        v_and_b32 v32, 0xffff, v32
        v_subrev_u32 v32, {(134<<7)-128}, v32
        v_cmp_gt_i32 vcc, 256, v31
        s_nop 1
        v_cndmask_b32 v32, v32, v31, vcc
        v_lshl_add_u32 v32, v32, 1, v27
        v_add_u32 v32, 16, v32
        v_cmp_gt_i32 vcc, 0, v31
        s_nop 1
        v_cndmask_b32 v{GA+d}, v32, v27, vcc
        ''')
    a(f'''
    v_lshrrev_b32 v31, 3, v0
    v_mul_u32_u24 v31, {CS}, v31
    v_and_b32 v32, 7, v0
    v_lshl_add_u32 v{VU+4}, v32, 2, v31
    ''')
    for e in range(2):
        vi, vr, vk, va, vl = 31, 32, 33, VU + 2 * e, VU + 2 * e + 1
        a(f'''
        v_add_u32 v{vi}, {512*e}, v0
        v_mul_u32_u24 v{vr}, 43691, v{vi}
        v_lshrrev_b32 v{vr}, 17, v{vr}
        v_mul_u32_u24 v{vk}, 3, v{vr}
        v_sub_u32 v{vk}, v{vi}, v{vk}
        v_mul_u32_u24 v{va}, 10240, v{vr}
        v_lshl_add_u32 v{va}, v{vk}, 4, v{va}
        s_lshl_b32 s5, s61, 1
        v_add_u32 v{vk}, s5, v{vk}
        v_subrev_u32 v{vl}, 3, v{vk}
        v_cmp_gt_u32 vcc, 3, v{vk}
        s_nop 1
        v_cndmask_b32 v{vk}, v{vl}, v{vk}, vcc
        v_mul_u32_u24 v{vl}, {UP_SZ}, v{vk}
        v_lshl_add_u32 v{vl}, v{vr}, 2, v{vl}
        v_add_u32 v{vl}, {L_UP + 128}, v{vl}
        ''')
    a(f'''
    v_mov_b32 v31, {OOB:#x}
    v_cmp_gt_u32 vcc, 256, v0
    s_nop 1
    v_cndmask_b32 v{VU+2}, v31, v{VU+2}, vcc
    ''')
    a(f'''
    v_mov_b32 v36, 0
    v_mov_b32 v37, 0
    v_mov_b32 v38, 0
    v_mov_b32 v39, 0
    v_lshlrev_b32 v35, 4, v0
    s_lshl_b32 s4, s62, 12
    s_add_u32 s4, s4, {WS_YT}
    buffer_store_dwordx4 v[36:39], v35, s[32:35], s4 offen sc1
    v_lshrrev_b32 v32, 5, v0
    v_mov_b32 v33, 0x8f
    v_mov_b32 v34, 0x70
    s_cmp_eq_u32 s61, 0
    s_cselect_b64 vcc, -1, 0
    v_cndmask_b32 v33, v34, v33, vcc
    v_lshrrev_b32 v33, v32, v33
    v_and_b32 v33, 1, v33
    v_cmp_ne_u32 vcc, 0, v33
    v_mov_b32 v33, {OOB:#x}
    s_lshl_b32 s4, s63, 12
    s_add_u32 s4, s4, {WS_YT}
    v_cndmask_b32 v35, v33, v35, vcc
    buffer_store_dwordx4 v[36:39], v35, s[32:35], s4 offen sc1
    ''')
    X = 30
    def wait2(n):
        if PF == 'start':
            l1 = a.newlabel('w'); l2 = a.newlabel('w')
            a(f'''
            s_cmp_ge_u32 s20, 6
            s_cbranch_scc1 {l1}
            s_waitcnt vmcnt({n})
            s_branch {l2}
            ''')
            a.label(l1)
            a(f's_waitcnt vmcnt({n+15})')
            a.label(l2)
        else:
            a(f's_waitcnt vmcnt({n})')
    wait2(11)
    srd(a, 24, 74, 75, 256)
    for i in range(4):
        unpack(a, 8 + i, X + 2 * i, X + 2 * i + 1)
        a(f'v_mov_b32 v{VX+i}, v{8+i}')
    unpack(a, 12, X + 8, X + 9)
    a(f'v_mov_b32 v{VX+4}, v12')
    ln_stats(a, X, 44, 40, 43, 41, 42, 54, 4, 5, 6)
    wait2(9)
    for i in range(4):
        unpack(a, 14 + i, 54 + 2 * i, 55 + 2 * i)
    unpack(a, 18, 62, 63)
    for p in range(5):
        x0, x1 = X + 2 * p, X + 2 * p + 1
        a(f'''
        v_sub_f32 v{x0}, v{x0}, v41
        v_sub_f32 v{x1}, v{x1}, v41
        v_cvt_pk_bf16_f32 v44, v{x0}, v{x1}
        v_lshlrev_b32 v{x0}, 16, v44
        v_and_b32 v{x1}, 0xffff0000, v44
        v_mul_f32 v{x0}, v{x0}, v42
        v_mul_f32 v{x1}, v{x1}, v42
        v_cvt_pk_bf16_f32 v44, v{x0}, v{x1}
        v_lshlrev_b32 v{x0}, 16, v44
        v_and_b32 v{x1}, 0xffff0000, v44
        v_cvt_pk_f16_f32 v{64+p}, v{x0}, v{x1}
        ''')
    a(f'''
    s_and_b32 s4, s20, 3
    s_lshl_b32 s4, s4, 1
    s_lshr_b32 s5, s20, 2
    s_or_b32 s4, s4, s5
    s_mul_i32 s4, s4, {TS}
    s_add_u32 s4, s4, {L_TILE}
    v_add_u32 v44, s4, v3
    v_add_u32 v45, s4, v4
    ds_write_b128 v44, v[64:67]
    ds_write_b32 v45, v68 offset:1024
    ''')
    for p in range(5):
        x0, x1 = X + 2 * p, X + 2 * p + 1
        a(f'''
        v_mul_f32 v{x0}, v{x0}, v{54+2*p}
        v_mul_f32 v{x1}, v{x1}, v{55+2*p}
        v_cvt_pk_bf16_f32 v{VT+p}, v{x0}, v{x1}
        ''')
    l67 = a.newlabel('w67'); l45 = a.newlabel('w45')
    a(f'''
    v_lshrrev_b32 v44, 2, v2
    v_and_b32 v44, 3, v44
    v_mul_u32_u24 v44, {TS}, v44
    v_lshrrev_b32 v45, 4, v2
    v_lshlrev_b32 v45, 5, v45
    v_add_u32 v44, v44, v45
    v_and_b32 v45, 3, v2
    v_lshlrev_b32 v45, 3, v45
    v_add_u32 v44, v44, v45
    s_sub_u32 s6, s20, 2
    s_cmp_lt_u32 s20, 6
    s_cselect_b32 s6, s20, s6
    s_lshl_b32 s4, s6, 7
    s_add_u32 s4, s4, {L_TILE}
    v_add_u32 v44, s4, v44
    s_mul_i32 s4, s21, 10240
    s_lshl_b32 s5, s6, 10
    s_add_u32 s4, s4, s5
    s_add_u32 s4, s4, {WS_U}
    v_mov_b32 v46, 0
    buffer_load_dword v49, v46, s[24:27], 0 offen sc1
    s_waitcnt lgkmcnt(0)
    s_barrier
    s_lshr_b32 s5, s20, 1
    s_cmp_eq_u32 s5, 2
    s_cbranch_scc1 {l45}
    ds_read_b64_tr_b16 v[64:65], v44
    ds_read_b64_tr_b16 v[66:67], v44 offset:{4*TS}
    s_cmp_lt_u32 s20, 6
    s_cbranch_scc1 {l67}
    ds_read_b64_tr_b16 v[68:69], v44 offset:256
    ds_read_b64_tr_b16 v[70:71], v44 offset:{4*TS+256}
    ds_read_b64_tr_b16 v[72:73], v44 offset:512
    ds_read_b64_tr_b16 v[74:75], v44 offset:{4*TS+512}
    s_add_u32 s5, s4, 4096
    s_waitcnt lgkmcnt(2)
    buffer_store_dwordx4 v[68:71], v3, s[32:35], s4 offen offset:2048 sc1
    s_waitcnt lgkmcnt(0)
    buffer_store_dwordx4 v[72:75], v3, s[32:35], s5 offen sc1
    ''')
    a.label(l67)
    a('''
    s_waitcnt lgkmcnt(0)
    buffer_store_dwordx4 v[64:67], v3, s[32:35], s4 offen sc1
    ''')
    a.label(l45)
    if not TAILST: stamp(a, 2)
    def zero_mailboxes():
        lz = a.newlabel('zero')
        a(f'''
        v_mov_b32 v46, 0
        v_mov_b32 v47, 0
        v_lshlrev_b32 v48, 3, v0
        s_mul_i32 s5, s2, 5120
        s_add_u32 s5, s5, {WS_CAND}
        buffer_store_dwordx2 v[46:47], v48, s[32:35], s5 offen sc1
        s_cmp_ge_u32 s20, 2
        s_cbranch_scc1 {lz}
        s_add_u32 s5, s5, 4096
        buffer_store_dwordx2 v[46:47], v48, s[32:35], s5 offen sc1
        s_cmp_ge_u32 s20, 1
        s_cbranch_scc1 {lz}
        s_mov_b64 exec, 0x3
        v_lshlrev_b32 v48, 12, v0
        s_lshl_b32 s5, s2, 4
        s_add_u32 s5, s5, {WS_KEY}
        buffer_store_dword v46, v48, s[32:35], s5 offen sc1
        v_lshlrev_b32 v48, 7, v0
        s_and_b32 s5, s2, {NREP-1}
        s_lshl_b32 s5, s5, 12
        s_add_u32 s5, s5, {WS_GO}
        s_cmp_lt_u32 s2, {NREP}
        s_cselect_b32 s5, s5, 0x40000000
        buffer_store_dword v46, v48, s[32:35], s5 offen sc1
        s_mov_b64 exec, -1
        ''')
        a.label(lz)
        lz2 = a.newlabel('zero2'); lz3 = a.newlabel('zero3')
        a(f'''
        s_cmp_ge_u32 s2, 216
        s_cbranch_scc1 {lz2}
        s_cmp_lt_u32 s20, 3
        s_cbranch_scc1 {lz3}
        s_mul_i32 s5, s2, 2560
        s_add_u32 s5, s5, {WS_YP - 3*512}
        v_lshlrev_b32 v48, 3, v0
        buffer_store_dwordx2 v[46:47], v48, s[32:35], s5 offen sc1
        s_branch {lz2}
        ''')
        a.label(lz3)
        a(f'''
        s_cmp_eq_u32 s20, 0
        s_cbranch_scc1 {lz2}
        s_lshl_b32 s5, s53, 1
        s_add_u32 s5, s5, s20
        s_mul_i32 s5, s5, 6912
        s_lshl_b32 s6, s52, 8
        s_add_u32 s5, s5, s6
        s_add_u32 s5, s5, {WS_PART - 6912}
        buffer_store_dword v46, v4, s[32:35], s5 offen sc1
        ''')
        a.label(lz2)
    def spin(body, slp=0):
        lsp = a.newlabel('spin'); lso = a.newlabel('spinout')
        a('s_mov_b32 s4, 0')
        a.label(lsp)
        a(body)
        a(f'''
        s_add_u32 s4, s4, 1
        s_cmp_ge_u32 s4, {SPIN_MAX}
        s_cbranch_scc1 {lso}
        s_cmp_eq_u64 vcc, exec
        s_cbranch_scc1 {lso}
        ''')
        if slp: a(f's_sleep {slp}')
        a(f's_branch {lsp}')
        a.label(lso)
    def signal(cnt_addr, which, lgkm=False, vm=0):
        ls = a.newlabel('sig')
        a(f'''
        s_waitcnt vmcnt({vm})
        v_mov_b32 v46, {cnt_addr}
        v_mov_b32 v47, 1
        s_mov_b64 exec, 1
        ds_add_rtn_u32 v48, v46, v47
        s_waitcnt lgkmcnt(0)
        v_readfirstlane_b32 s4, v48
        s_lshl_b32 s5, s2, 4
        s_add_u32 s5, s5, {WS_FLAG1 if which == 1 else WS_FLAG2}
        s_cmp_lg_u32 s4, 7
        s_cbranch_scc1 {ls}
        v_mov_b32 v46, 0
        ''')
        if which == 1:
            lrd = a.newlabel('rdy')
            a(f'''
            v_cmp_ne_u32 vcc, 0, v49
            s_cbranch_vccnz {lrd}
            ''')
            spin('''
            buffer_load_dword v48, v46, s[24:27], 0 offen sc1
            s_waitcnt vmcnt(0)
            v_cmp_ne_u32 vcc, 0, v48
            ''')
            a.label(lrd)
        a('buffer_store_dword v47, v46, s[32:35], s5 offen sc1')
        a.label(ls)
        a('s_mov_b64 exec, -1')
    def gather_flags(base, r):
        a(f'''
        s_mov_b32 s5, {base}
        s_mov_b32 s6, {base + 2048}
        ''')
        spin(f'''
        buffer_load_dword v{r}, v3, s[32:35], s5 offen sc1
        buffer_load_dword v{r+1}, v3, s[32:35], s5 offen offset:1024 sc1
        buffer_load_dword v{r+2}, v3, s[32:35], s6 offen sc1
        buffer_load_dword v{r+3}, v3, s[32:35], s6 offen offset:1024 sc1
        s_waitcnt vmcnt(0)
        v_min_u32 v{r+4}, v{r}, v{r+1}
        v_min3_u32 v{r+4}, v{r+4}, v{r+2}, v{r+3}
        v_cmp_ne_u32 vcc, 0, v{r+4}
        ''')
    def bcast(goaddr, vval, vt):
        a(f'''
        v_lshlrev_b32 v{vt}, 12, v2
        s_mov_b32 s5, {goaddr}
        s_mov_b64 exec, {(1<<NREP)-1:#x}
        buffer_store_dword v{vval}, v{vt}, s[32:35], s5 offen sc1
        s_mov_b64 exec, -1
        ''')
    def slave(goaddr, vr=47):
        a(f'''
        s_and_b32 s5, s2, {NREP-1}
        s_lshl_b32 s5, s5, 12
        s_add_u32 s5, s5, {goaddr}
        v_mov_b32 v46, 0
        ''')
        spin(f'''
        buffer_load_dword v{vr}, v46, s[32:35], s5 offen sc1
        s_waitcnt vmcnt(0)
        v_cmp_ne_u32 vcc, 0, v{vr}
        ''')
    def master1():
        gather_flags(WS_FLAG1, 44)
        a('v_mov_b32 v47, 1')
        bcast(WS_GO + 256, 47, 46)
    def sync2():
        lsl = a.newlabel('sl'); ld = a.newlabel('sd')
        a(f'''
        s_cmp_lg_u32 s2, 0
        s_cbranch_scc1 {lsl}
        ''')
        gather_flags(WS_FLAG2, 44)
        a('v_mov_b32 v47, 1')
        bcast(WS_GO, 47, 46)
        a(f's_branch {ld}')
        a.label(lsl)
        slave(WS_GO)
        a.label(ld)
    lmf = a.newlabel('kmfma'); lpf = a.newlabel('pf')
    a(f'''
    s_cmp_ge_u32 s20, 6
    s_cbranch_scc1 {lpf}
    s_mov_b32 s8, {fbits(LOG2E_HI):#x}
    s_mov_b32 s9, {fbits(LOG2E_LO):#x}
    s_mov_b32 s10, {fbits(LN2):#x}
    s_mov_b32 s11, {fbits(INV2PI):#x}
    s_waitcnt vmcnt({4 if WARM else 3})
    v_lshlrev_b32 v20, 16, v20
    v_lshlrev_b32 v21, 16, v21
    v_lshlrev_b32 v22, 16, v22
    v_lshlrev_b32 v23, 16, v23
    v_lshlrev_b32 v26, 16, v26
    v_and_b32 v24, 0x7f807f80, v24
    v_and_b32 v25, 0x7f807f80, v25
    v_pk_max_u16 v24, v24, v25
    v_lshrrev_b32 v25, 16, v24
    v_and_b32 v24, 0xffff, v24
    v_max_u32 v24, v24, v25
    ''')
    wave_reduce(a, 'v_max_u32', 24)
    lsk4 = a.newlabel('sk4')
    a(f'''
    s_cmp_lt_u32 s20, 4
    s_cbranch_scc1 {lsk4}
    ''')
    signal(M_CNT1, 1)
    a.label(lsk4)
    exp_bf16(a, 20, 27, 28, 8, 9, 10)
    exp_bf16(a, 26, 27, 28, 8, 9, 10)
    a(f'''
    v_readlane_b32 s12, v24, 63
    s_lshr_b32 s12, s12, 7
    s_min_u32 s12, s12, 252
    s_sub_u32 s13, 253, s12
    s_lshl_b32 s13, s13, 23
    s_add_u32 s14, s12, 2
    s_lshl_b32 s14, s14, 23
    v_mul_f32 v20, v20, v26
    v_mul_f32 v21, v21, v26
    v_mul_f32 v20, s8, v20
    v_sub_f32 v20, 0, v20
    v_mul_f32 v21, s11, v21
    v_mul_f32 v22, s13, v22
    v_mul_f32 v23, s13, v23
    v_mul_f32 v26, s14, v26
    s_lshl_b32 s15, s56, 2
    s_add_u32 s15, s15, {M_SCALE}
    v_mov_b32 v27, s15
    s_mov_b64 exec, 1
    ds_write_b32 v27, v26
    s_mov_b64 exec, -1
    s_mul_i32 s15, s56, {KT_SZ}
    s_and_b32 s16, s20, 1
    s_lshl_b32 s16, s16, 8
    s_add_u32 s15, s15, s16
    v_add_u32 v27, s15, v4
    ''')
    def cmul(r, x, y, t=28):
        a(f'v_pk_mul_f32 v[{t}:{t+1}], v[{x}:{x+1}], v[{y}:{y+1}] op_sel:[1,1] op_sel_hi:[1,0]')
        a(f'v_pk_fma_f32 v[{r}:{r+1}], v[{x}:{x+1}], v[{y}:{y+1}], v[{t}:{t+1}] op_sel:[0,0,0] op_sel_hi:[0,1,1] neg_lo:[0,0,1]')
    pk = [0]
    def putG(row, x):
        r = 76 + (pk[0] % 8); pk[0] += 1
        a(f'v_cvt_pk_f16_f32 v{r}, v{x}, -v{x+1}')
        a(f'ds_write_b32 v27, v{r} offset:{row*KT_RS}')
    def putE(b, x):
        r = 76 + (pk[0] % 8); pk[0] += 1
        a(f'v_cvt_pk_f16_f32 v{r}, v{x}, v{x+1}')
        a(f'ds_write_b32 v27, v{r} offset:{(KT_E0+b)*KT_RS}')
    def direct(dst, p):
        a(f'''
        v_mul_f32 v28, {fbits(float(p)):#x}, v20
        v_mul_f32 v29, {fbits(float(p)):#x}, v21
        v_exp_f32 v28, v28
        v_fract_f32 v29, v29
        v_cos_f32 v{dst}, v29
        v_sin_f32 v{dst+1}, v29
        s_nop 0
        v_mul_f32 v{dst}, v{dst}, v28
        v_mul_f32 v{dst+1}, v{dst+1}, v28
        ''')
    def ES(c): return 30 + 2 * c
    direct(ES(1), 1)
    direct(50, 128)
    direct(52, 8)
    cmul(ES(2), ES(1), ES(1))
    cmul(ES(3), ES(2), ES(1))
    cmul(ES(4), ES(2), ES(2))
    cmul(ES(5), ES(4), ES(1))
    cmul(ES(6), ES(4), ES(2))
    cmul(ES(7), ES(4), ES(3))
    a('v_mov_b32 v62, 0x00003c00')
    a(f'ds_write_b32 v27, v62 offset:{KT_E0*KT_RS}')
    putE(1, 52)
    E = 52
    ereg = [58, 60]
    for b in range(2, 16):
        ne = ereg[b % 2]
        cmul(ne, E, 52)
        putE(b, ne)
        E = ne
    H = 22
    tmp = [58, 60, 62, 64]
    ti = [0]
    def prodG(row, h, e):
        t = tmp[ti[0] % 4]; ti[0] += 1
        cmul(t, h, e)
        putG(row, t)
    hreg = [54, 56]
    for aa in range(17):
        if aa < 2:
            putG(8 * aa, H)
            for c in range(1, 8):
                prodG(8 * aa + c, H, ES(c))
        elif aa < 4:
            base = 16 + 4 * (aa - 2)
            putG(base, H)
            for c in range(1, 4):
                prodG(base + c, H, ES(2 * c))
        elif aa < 8:
            base = 24 + 2 * (aa - 4)
            putG(base, H)
            prodG(base + 1, H, ES(4))
        else:
            putG(32 + (aa - 8), H)
        if aa < 16:
            nh = hreg[aa % 2]
            cmul(nh, H, 50)
            H = nh
        if aa == SIGPOS:
            lsk = a.newlabel('sk')
            a(f'''
            s_cmp_ge_u32 s20, 4
            s_cbranch_scc1 {lsk}
            ''')
            signal(M_CNT1, 1, lgkm=True)
            a.label(lsk)
            if not TAILST: stamp(a, 4)
    a(f'''
    s_lshl_b32 s4, s56, 2
    s_add_u32 s4, s4, {M_PAIR}
    v_mov_b32 v46, s4
    v_mov_b32 v47, 1
    s_waitcnt lgkmcnt(0)
    s_mov_b64 exec, 1
    ds_add_u32 v46, v47
    ''')
    spin('''
    ds_read_b32 v48, v46
    s_waitcnt lgkmcnt(0)
    v_cmp_le_u32 vcc, 2, v48
    ''')
    a('s_mov_b64 exec, -1')
    a('s_and_b32 s30, s20, 1')
    a(f's_branch {lmf}')
    a.label(lpf)
    signal(M_CNT1, 1)
    if not TAILST: stamp(a, 4)
    lnm = a.newlabel('notmaster')
    a(f'''
    s_cmp_lg_u32 s2, 0
    s_cbranch_scc1 {lnm}
    s_cmp_lg_u32 s20, 7
    s_cbranch_scc1 {lnm}
    ''')
    master1()
    a.label(lnm)
    if PF == 'late':
        prefetch()
    lk2 = a.newlabel('kdone'); lt67 = a.newlabel('t67')
    a('s_sub_u32 s5, s20, 6')
    a.label(lt67)
    a(f'''
    s_lshl_b32 s4, s5, 2
    s_add_u32 s4, s4, {M_PAIR}
    v_mov_b32 v46, s4
    s_mov_b32 s7, s5
    s_mov_b64 exec, 1
    ''')
    spin('''
    ds_read_b32 v48, v46
    s_waitcnt lgkmcnt(0)
    v_cmp_le_u32 vcc, 2, v48
    ''', slp=1)
    a('''
    s_mov_b64 exec, -1
    s_mov_b32 s56, s7
    s_mov_b32 s30, 2
    ''')
    a.label(lmf)
    a(f'''
    v_and_b32 v44, 15, v2
    v_lshrrev_b32 v45, 4, v2
    v_mul_u32_u24 v46, {KT_RS}, v44
    v_lshl_add_u32 v46, v45, 4, v46
    s_mov_b32 s4, s30
    s_mov_b32 s5, s56
    ''')
    ltask = a.newlabel('task')
    a.label(ltask)
    a(f'''
    s_mov_b32 s6, s4                       ; tile
    s_mul_i32 s8, s5, {KT_SZ}
    s_mul_i32 s9, s6, {16*KT_RS}
    s_add_u32 s9, s9, s8
    s_add_u32 s8, s8, {KT_E0*KT_RS}
    v_add_u32 v47, s9, v46
    v_add_u32 v48, s8, v46
    ''')
    for ks in range(8):
        a(f'ds_read_b128 v[{64+8*ks}:{67+8*ks}], v47 offset:{64*ks}')
        a(f'ds_read_b128 v[{68+8*ks}:{71+8*ks}], v48 offset:{64*ks}')
    lt2 = a.newlabel('t2'); lt1 = a.newlabel('t1'); lnext = a.newlabel('next')
    a(f'''
    s_mul_i32 s8, s5, {KC_SZ}
    s_add_u32 s8, s8, {L_KC + 16}
    s_cmp_eq_u32 s6, 2
    s_cbranch_scc1 {lt2}
    ''')
    for ks in range(8):
        a(f's_waitcnt lgkmcnt({14-2*ks})')
        c = '0' if ks == 0 else 'v[56:59]'
        a(f'v_mfma_f32_16x16x32_f16 v[56:59], v[{64+8*ks}:{67+8*ks}], v[{68+8*ks}:{71+8*ks}], {c}')
    a(f'''
    s_cmp_eq_u32 s6, 1
    s_cbranch_scc1 {lt1}
    v_lshrrev_b32 v49, 1, v45
    v_lshlrev_b32 v49, 8, v49
    v_lshl_add_u32 v49, v44, 4, v49
    v_and_b32 v50, 1, v45
    v_lshl_add_u32 v49, v50, 3, v49
    v_add_u32 v49, s8, v49
    s_nop 4
    v_cvt_pk_f16_f32 v60, v56, v57
    v_cvt_pk_f16_f32 v61, v58, v59
    ds_write_b64 v49, v[60:61]
    s_branch {lnext}
    ''')
    a.label(lt1)
    a(f'''
    v_lshlrev_b32 v49, 7, v45
    v_add_u32 v49, s8, v49
    v_lshl_add_u32 v50, v44, 3, v49
    v_add_u32 v50, 512, v50
    v_add_u32 v51, 4, v50
    v_lshl_add_u32 v52, v44, 2, v49
    v_add_u32 v52, 512, v52
    v_add_u32 v53, 64, v52
    v_cmp_gt_u32 vcc, 2, v45
    s_nop 1
    v_cndmask_b32 v50, v52, v50, vcc
    v_cndmask_b32 v51, v53, v51, vcc
    v_cvt_pk_f16_f32 v60, v56, v57
    v_cvt_pk_f16_f32 v61, v58, v59
    ds_write_b32 v50, v60
    ds_write_b32 v51, v61
    s_branch {lnext}
    ''')
    a.label(lt2)
    for ks in range(8):
        a(f's_waitcnt lgkmcnt({14-2*ks})')
        c = '0' if ks == 0 else 'v[56:59]'
        a(f'v_mfma_f32_16x16x32_f16 v[56:59], v[{68+8*ks}:{71+8*ks}], v[{64+8*ks}:{67+8*ks}], {c}')
    a(f'''
    v_lshlrev_b32 v49, 5, v44
    v_lshl_add_u32 v49, v45, 3, v49
    v_add_u32 v49, 1024, v49
    v_add_u32 v49, s8, v49
    v_cmp_gt_u32 vcc, 9, v44
    s_nop 4
    v_cvt_pk_f16_f32 v60, v56, v57
    v_cvt_pk_f16_f32 v61, v58, v59
    s_and_saveexec_b64 s[10:11], vcc
    ds_write_b64 v49, v[60:61]
    s_mov_b64 exec, s[10:11]
    ''')
    a.label(lnext)
    a(f'''
    s_cmp_lg_u32 s20, 6
    s_cbranch_scc1 {lk2}
    s_cmp_lg_u32 s5, 0
    s_cbranch_scc1 {lk2}
    s_mov_b32 s5, 2
    s_branch {lt67}
    ''')
    a.label(lk2)
    srd(a, 44, 70, 71, 1728 * 1280)
    a(f'''
    s_mul_i32 s53, s2, 2428
    s_lshr_b32 s53, s53, 16                ; kg = b/27
    s_mul_i32 s52, s53, 27
    s_sub_u32 s52, s2, s52                 ; cg
    s_cmp_lt_u32 s20, 4
    s_cselect_b32 s40, s66, s68
    s_cselect_b32 s41, s67, s69
    s_and_b32 s41, s41, 0xffff
    s_mov_b32 s42, {640*3456}
    s_mov_b32 s43, 0x00020000
    s_mul_i32 s54, s53, 80
    s_and_b32 s55, s20, 3
    s_mul_i32 s55, s55, 20
    s_add_u32 s54, s54, s55
    s_mul_i32 s12, s54, 3456
    s_lshl_b32 s55, s52, 7
    s_add_u32 s12, s12, s55
    s_mul_i32 s15, s2, {8*1280}
    s_lshl_b32 s55, s20, 8
    s_add_u32 s15, s15, s55
    s_cmp_lt_u32 s20, 5
    s_cselect_b32 s15, s15, 0x40000000
    s_cmp_lt_u32 s2, 216
    s_cselect_b32 s12, s12, 0x40000000
    s_cselect_b32 s15, s15, 0x40000000
    s_add_u32 s13, s12, {8*3456}
    s_add_u32 s14, s12, {16*3456}
    s_add_u32 s16, s15, {3*1280}
    s_add_u32 s17, s15, {6*1280}
    v_lshrrev_b32 v16, 3, v2
    v_mul_u32_u24 v16, 3456, v16
    v_and_b32 v17, 7, v2
    v_lshl_add_u32 v16, v17, 4, v16
    v_mov_b32 v17, {OOB:#x}
    v_cmp_gt_u32 vcc, 32, v2
    s_nop 1
    v_cndmask_b32 v17, v17, v16, vcc
    ''')
    WL = [f'buffer_load_dwordx4 v[{VW+4*e}:{VW+4*e+3}], v{17 if e == 2 else 16}, s[40:43], s{12+e} offen' for e in range(3)]
    WL += [f'buffer_load_dword v{VW+12+r}, v4, s[44:47], s{15 + r//3} offen offset:{1280*(r%3)}' for r in range(8)]
    lp1 = a.newlabel('p1'); lp0 = a.newlabel('p0')
    a(f'''
    s_cmp_eq_u32 s20, 7
    s_cbranch_scc1 {lp0}
    ''')
    if WPOS == 'B':
        for ins in WL:
            a(ins)
    a(f's_branch {lp1}')
    a.label(lp0)
    slave(WS_GO + 256)
    a.label(lp1)
    a(f'''
    v_lshlrev_b32 v6, 3, v0
    v_mov_b32 v18, 0
    s_lshl_b32 s4, s61, 1
    s_add_u32 s4, s4, s60
    s_lshl_b32 s4, s4, 4
    s_add_u32 s4, s4, {WS_U}
    s_waitcnt lgkmcnt(0)
    s_barrier
    buffer_load_dwordx4 v[8:11], v{VU}, s[32:35], s4 offen sc1
    buffer_load_dwordx4 v[12:15], v{VU+2}, s[32:35], s4 offen sc1
    ''')
    if not TAILST: stamp(a, 6)
    if PF == 'ug':
        srd(a, 36, 66, 67, 640 * 3456)
        a(f'''
        s_cmp_lt_u32 s20, 4
        s_cselect_b32 s36, s66, s68
        s_cselect_b32 s37, s67, s69
        s_and_b32 s37, s37, 0xffff
        s_and_b32 s4, s2, 7
        s_lshr_b32 s5, s2, 3
        s_mul_i32 s6, s4, 432
        s_mul_i32 s7, s5, {20*3456}
        s_add_u32 s6, s6, s7
        s_and_b32 s7, s20, 3
        s_mul_i32 s7, s7, {5*3456}
        s_add_u32 s6, s6, s7
        v_lshrrev_b32 v19, 5, v2
        v_mul_u32_u24 v19, 3456, v19
        v_and_b32 v20, 31, v2
        v_lshl_add_u32 v19, v20, 4, v19
        v_mov_b32 v21, {OOB:#x}
        v_cmp_gt_u32 vcc, 27, v20
        s_add_u32 s7, s6, {2*3456}
        s_add_u32 s8, s6, {4*3456}
        v_cndmask_b32 v19, v21, v19, vcc
        buffer_load_dwordx4 v[196:199], v19, s[36:39], s6 offen
        buffer_load_dwordx4 v[196:199], v19, s[36:39], s7 offen
        v_cmp_gt_u32 vcc, 27, v2
        s_mul_i32 s6, s4, 160
        s_mul_i32 s7, s5, {54*1280}
        v_cndmask_b32 v19, v21, v19, vcc
        buffer_load_dwordx4 v[196:199], v19, s[36:39], s8 offen
        s_add_u32 s6, s6, s7
        s_mul_i32 s7, s20, {7*1280}
        s_add_u32 s6, s6, s7
        v_mul_u32_u24 v19, 29, v2
        v_lshrrev_b32 v19, 8, v19
        v_mul_u32_u24 v20, 9, v19
        v_sub_u32 v20, v2, v20
        v_mul_u32_u24 v19, 1280, v19
        v_lshl_add_u32 v19, v20, 4, v19
        v_mul_u32_u24 v22, 20, v20
        v_lshrrev_b32 v22, 4, v22
        v_cmp_gt_u32 vcc, 63, v2
        s_nop 1
        v_cndmask_b32 v19, v21, v19, vcc
        buffer_load_dwordx4 v[196:199], v19, s[44:47], s6 offen
        ''')
    for c in range(3):
        r = 32 + 16 * c
        for dd in range(7):
            a(f'ds_read_u16 v{r+dd}, v{GA+dd} offset:{c*KC_SZ}')
    a('''
    v_cmp_gt_u32 vcc, 96, v0
    s_and_saveexec_b64 s[4:5], vcc
    ds_write_b32 v164, v18
    s_mov_b64 exec, s[4:5]
    ''')
    for c in range(3):
        r = 32 + 16 * c
        a(f's_waitcnt lgkmcnt({min(15, 7*(2-c) + 4*c)})')
        for i in range(6):
            a(f'v_lshl_or_b32 v{r+8+i}, v{r+i+1}, 16, v{r+i}')
        for s_ in range(4):
            off = c * CP_SZ + s_ * CS + 32
            a(f'v_add_u32 v7, {off}, v6')
            a(f'ds_write2_b32 v7, v{r+8+3-s_}, v{r+8+5-s_} offset0:0 offset1:1')
    a(f'''
    v_cmp_gt_u32 vcc, 256, v0
    s_waitcnt vmcnt({5 if PF == 'ug' else 1})
    ds_write_b32 v{VU+1}, v8
    ds_write_b32 v{VU+1}, v9 offset:{US}
    ds_write_b32 v{VU+1}, v10 offset:{2*US}
    ds_write_b32 v{VU+1}, v11 offset:{3*US}
    s_waitcnt vmcnt({4 if PF == 'ug' else 0})
    s_and_saveexec_b64 s[4:5], vcc
    ds_write_b32 v{VU+3}, v12
    ds_write_b32 v{VU+3}, v13 offset:{US}
    ds_write_b32 v{VU+3}, v14 offset:{2*US}
    ds_write_b32 v{VU+3}, v15 offset:{3*US}
    s_mov_b64 exec, s[4:5]
    ''')
    if WPOS == 'B':
        lw0 = a.newlabel('w0')
        a(f'''
        s_cmp_lg_u32 s20, 0
        s_cbranch_scc1 {lw0}
        ''')
        for ins in WL:
            a(ins)
        a.label(lw0)
    if WPOS == 'U':
        for ins in WL:
            a(ins)
    zero_mailboxes()
    srd(a, 28, 64, 65, 1280)
    a('''
    buffer_load_dwordx4 v[160:163], v3, s[28:31], 0 offen
    buffer_load_dword v164, v4, s[28:31], 0 offen offset:1024
    ''')
    a(f'''
    v_lshrrev_b32 v8, 4, v2
    v_mul_u32_u24 v9, {CS}, v8
    v_bfe_u32 v10, v2, 2, 2
    v_and_b32 v11, 3, v2
    v_sub_u32 v10, v11, v10
    v_lshl_add_u32 v9, v10, 3, v9
    v_add_u32 v9, 32, v9
    v_mul_u32_u24 v10, {US}, v8
    v_and_b32 v11, 15, v2
    v_lshl_add_u32 v10, v11, 3, v10
    v_add_u32 v10, {L_UP+8}, v10
    v_lshlrev_b32 v12, 5, v11
    v_lshl_add_u32 v12, v8, 3, v12
    v_lshlrev_b32 v13, 4, v2
    v_mov_b32 v5, {M_SCALE}
    ds_read_b96 v[20:22], v5
    ''')
    ACC = 24
    for i in range(8, 32):
        a(f'v_mov_b32 v{ACC+i}, 0')
    a('''
    s_waitcnt lgkmcnt(0)
    s_barrier
    ''')
    for i in range(8):
        a(f'v_mov_b32 v{ACC+i}, 0')
    a('''
    v_readfirstlane_b32 s48, v20
    v_readfirstlane_b32 s49, v21
    v_readfirstlane_b32 s50, v22
    ''')
    stamp(a, 8)
    if PF == 'conv':
        lnp = a.newlabel('np')
        a(f'''
        s_cmp_lt_u32 s20, 6
        s_cbranch_scc1 {lnp}
        s_mov_b32 s8, s40
        s_mov_b32 s9, s41
        s_mov_b32 s10, s42
        ''')
        prefetch(152)
        a('''
        s_mov_b32 s40, s8
        s_mov_b32 s41, s9
        s_mov_b32 s42, s10
        ''')
        a.label(lnp)
    FR = [56, 112]
    def loads(setbase, tiles_mx, cls_idx):
        out = []
        for m in range(tiles_mx + 1):
            fa, fb = setbase[0] + 4 * m, setbase[1] + 4 * m
            oa = 512 * m + 64 * (3 - cls_idx)
            ob = 128 * m + 16 * cls_idx
            out.append(f'ds_read_b64_tr_b16 v[{fa}:{fa+1}], v14 offset:{oa+32}')
            out.append(f'ds_read_b64_tr_b16 v[{fa+2}:{fa+3}], v14 offset:{oa}')
            out.append(f'ds_read_b64 v[{fb}:{fb+1}], v15 offset:{ob}')
            out.append(f'ds_read_b64 v[{fb+2}:{fb+3}], v15 offset:{ob+8}')
        return out
    SETS = [(56, 88), (120, 216)]
    def conv(tiles, ncls):
        mx = max(tiles)
        for ins in loads(SETS[0], mx, 0):
            a(ins)
        for ci in range(ncls):
            st = SETS[ci % 2]
            nxt = loads(SETS[(ci + 1) % 2], mx, ci + 1) if ci + 1 < ncls else []
            mf = []
            for s in range(mx + 1):
                grp = []
                for (m, aa) in [(s, i) for i in range(s + 1)] + [(i, s) for i in range(s)]:
                    c = m + aa
                    if c in tiles:
                        grp.append(f'v_mfma_f32_16x16x32_f16 v[{ACC+4*c}:{ACC+4*c+3}], v[{st[0]+4*m}:{st[0]+4*m+3}], v[{st[1]+4*aa}:{st[1]+4*aa+3}], v[{ACC+4*c}:{ACC+4*c+3}]')
                mf.append(grp)
            nload = 4 * (mx + 1)
            k = 0
            nm = 0
            nw = max(1, ncls // 2)
            wq = WL[ci * len(WL) // nw:(ci + 1) * len(WL) // nw] if (WPOS == 'conv' and ci < nw) else []
            wstep = max(1, sum(len(g) for g in mf) // (len(wq) + 1))
            for s_ in range(mx + 1):
                allowed = nload - 4 * (s_ + 1) + k
                if mf[s_]:
                    a(f's_waitcnt lgkmcnt({min(15, allowed)})')
                for ins in mf[s_]:
                    a(ins)
                    nm += 1
                    if wq and nm % wstep == 0:
                        a(wq.pop(0))
                    if (ci > 0 or s_ >= 2) and k < len(nxt):
                        a(nxt[k]); k += 1
                        if len(tiles) < 8 and k < len(nxt):
                            a(nxt[k]); k += 1
            while k < len(nxt):
                a(nxt[k]); k += 1
            for ins in wq: a(ins)
        a('s_nop 7')
        a('s_nop 1')
        stamp(a, 7)
    def epilogue(c, sreg_scale, sreg_out):
        r = ACC + 4 * c
        a(f'''
        v_fma_f32 v{r}, s{sreg_scale}, v{r}, 0
        v_fma_f32 v{r+1}, s{sreg_scale}, v{r+1}, 0
        v_fma_f32 v{r+2}, s{sreg_scale}, v{r+2}, 0
        v_fma_f32 v{r+3}, s{sreg_scale}, v{r+3}, 0
        v_cvt_pk_bf16_f32 v{r}, v{r}, v{r+1}
        v_cvt_pk_bf16_f32 v{r+1}, v{r+2}, v{r+3}
        v_xor_b32 v{r}, 0x80008000, v{r}
        v_xor_b32 v{r+1}, 0x80008000, v{r+1}
        buffer_store_dwordx2 v[{r}:{r+1}], v12, s[32:35], s{sreg_out} offen offset:{512*c} sc1
        ''')
    lS = a.newlabel('shared'); lcd = a.newlabel('convdone')
    FA = 56
    a(f'''
    s_cmp_ge_u32 s20, 4
    s_cbranch_scc1 {lS}
    s_lshr_b32 s4, s20, 1                  ; slot 0/1
    s_and_b32 s5, s20, 1
    s_lshl_b32 s6, s5, 2
    s_mul_i32 s7, s4, {CP_SZ}
    s_sub_u32 s8, 4, s6                    ; 7-(first+3)
    s_lshl_b32 s8, s8, 6
    s_add_u32 s7, s7, s8
    v_add_u32 v14, s7, v9
    s_mul_i32 s7, s4, {UP_SZ}
    s_lshl_b32 s8, s6, 4
    s_add_u32 s7, s7, s8
    v_add_u32 v15, s7, v10
    s_cmp_eq_u32 s4, 0
    s_cselect_b32 s9, s48, s49
    s_add_u32 s10, s62, s4
    s_lshl_b32 s10, s10, 12
    s_add_u32 s10, s10, {WS_YT}
    s_lshl_b32 s11, s4, 13
    s_add_u32 s11, s11, {L_RED}
    v_add_u32 v13, s11, v13
    ''')
    conv(list(range(8)), 4)
    lodd = a.newlabel('odd')
    a(f'''
    s_cmp_eq_u32 s5, 1
    s_cbranch_scc1 {lodd}
    ''')
    for par in range(2):
        keep = [0, 1, 2, 3] if par == 0 else [4, 5, 6, 7]
        give = [4, 5, 6, 7] if par == 0 else [0, 1, 2, 3]
        if par == 1:
            a.label(lodd)
        for c in give:
            a(f'ds_write_b128 v13, v[{ACC+4*c}:{ACC+4*c+3}] offset:{1024*c}')
        a('s_waitcnt vmcnt(11) lgkmcnt(0)' if WPOS == 'conv' else 's_waitcnt vmcnt(0) lgkmcnt(0)')
        a('s_barrier')
        for i, c in enumerate(keep):
            a(f'ds_read_b128 v[{FA+4*i}:{FA+4*i+3}], v13 offset:{1024*c}')
        for i, c in enumerate(keep):
            a(f's_waitcnt lgkmcnt({3-i})')
            for e in range(4):
                a(f'v_add_f32 v{ACC+4*c+e}, v{ACC+4*c+e}, v{FA+4*i+e}')
            epilogue(c, 9, 10)
        a(f's_branch {lcd}')
    a.label(lS)
    if PRIO: a(f's_setprio {PRIO}')
    lSo = a.newlabel('sharedodd')
    a(f'''
    s_sub_u32 s5, s20, 4                   ; ww
    s_lshl_b32 s6, s5, 1
    s_sub_u32 s8, 4, s6
    s_lshl_b32 s8, s8, 6
    s_add_u32 s7, s8, {2*CP_SZ}
    v_add_u32 v14, s7, v9
    s_lshl_b32 s8, s6, 4
    s_add_u32 s7, s8, {2*UP_SZ}
    v_add_u32 v15, s7, v10
    s_lshl_b32 s10, s63, 12
    s_add_u32 s10, s10, {WS_YT}
    v_add_u32 v13, {L_RED + 16384}, v13
    s_cmp_eq_u32 s61, 1
    s_cbranch_scc1 {lSo}
    ''')
    for par in range(2):
        tiles = [0, 1, 2, 3, 7] if par == 0 else [4, 5, 6]
        if par == 1:
            a.label(lSo)
        conv(tiles, 2)
        a('s_lshl_b32 s11, s5, 10')
        a('v_add_u32 v14, s11, v13')
        for i, c in enumerate(tiles):
            a(f'ds_write_b128 v14, v[{ACC+4*c}:{ACC+4*c+3}] offset:{4096*i}')
        a('s_waitcnt vmcnt(11) lgkmcnt(0)' if WPOS == 'conv' else 's_waitcnt vmcnt(0) lgkmcnt(0)')
        a('s_barrier')
        for ww in range(4):
            lnx = a.newlabel('nx')
            a(f's_cmp_lg_u32 s5, {ww}')
            a(f's_cbranch_scc1 {lnx}')
            for i, c in enumerate(tiles):
                if i % 4 != ww: continue
                for k in range(4):
                    a(f'ds_read_b128 v[{FA+4*k}:{FA+4*k+3}], v13 offset:{4096*i + 1024*k}')
                a('s_waitcnt lgkmcnt(0)')
                for e in range(4):
                    a(f'v_add_f32 v{FA+e}, v{FA+e}, v{FA+4+e}')
                    a(f'v_add_f32 v{FA+8+e}, v{FA+8+e}, v{FA+12+e}')
                    a(f'v_add_f32 v{ACC+4*c+e}, v{FA+e}, v{FA+8+e}')
                epilogue(c, 50, 10)
            a(f's_branch {lcd}')
            a.label(lnx)
        a(f's_branch {lcd}')
    a.label(lcd)
    if PRIO: a('s_setprio 0')
    stamp(a, 9)
    srd(a, 36, 72, 73, 2621440)
    lg = a.newlabel('g'); lg1 = a.newlabel('g1'); lg2 = a.newlabel('g2'); lgo = a.newlabel('go')
    a(f'''
    v_lshlrev_b32 v5, 12, v0
    v_lshlrev_b32 v6, 2, v0
    s_lshl_b32 s48, s21, 4
    s_add_u32 s48, s48, {WS_YT}
    s_add_u32 s49, s48, {512*4096}
    v_cmp_gt_u32 vcc, 128, v0
    s_mov_b64 s[6:7], -1
    s_mov_b64 s[8:9], vcc
    s_mov_b32 s4, 0
    ''')
    a.label(lg)
    a(f'''
    s_mov_b64 exec, s[6:7]
    s_cbranch_execz {lg1}
    buffer_load_dwordx4 v[8:11], v5, s[32:35], s48 offen sc1
    ''')
    a.label(lg1)
    a(f'''
    s_mov_b64 exec, s[8:9]
    s_cbranch_execz {lg2}
    buffer_load_dwordx4 v[12:15], v5, s[32:35], s49 offen sc1
    ''')
    a.label(lg2)
    a(f'''
    s_mov_b64 exec, -1
    s_add_u32 s4, s4, 1
    s_waitcnt vmcnt(0)
    v_min_u32 v36, v8, v9
    v_min3_u32 v36, v36, v10, v11
    v_min_u32 v37, v12, v13
    v_min3_u32 v37, v37, v14, v15
    v_cmp_eq_u32 vcc, 0, v36
    v_cmp_eq_u32 s[10:11], 0, v37
    s_and_b64 s[6:7], s[6:7], vcc
    s_and_b64 s[8:9], s[8:9], s[10:11]
    s_cmp_ge_u32 s4, {SPIN_MAX}
    s_cbranch_scc1 {lgo}
    s_or_b64 s[10:11], s[6:7], s[8:9]
    s_cbranch_scc1 {lg}
    ''')
    a.label(lgo)
    stamp(a, 3)
    if STAMPS:
        a('s_mov_b32 s78, s4')
    a(f'''
    v_cmp_gt_u32 vcc, 128, v0
    ds_write2st64_b32 v6, v8, v9 offset0:0 offset1:10
    ds_write2st64_b32 v6, v10, v11 offset0:20 offset1:30
    s_and_saveexec_b64 s[42:43], vcc
    ds_write2st64_b32 v6, v12, v13 offset0:8 offset1:18
    ds_write2st64_b32 v6, v14, v15 offset0:28 offset1:38
    s_mov_b64 exec, s[42:43]
    s_lshr_b32 s44, s20, 1
    s_mul_i32 s44, s44, 2560
    v_lshlrev_b32 v7, 5, v2
    v_add_u32 v7, s44, v7
    v_lshlrev_b32 v33, 3, v2
    v_add_u32 v33, s44, v33
    s_and_b32 s45, s20, 1
    s_mul_i32 s45, s45, 0x02020000
    s_add_u32 s45, s45, 0x01000c0c
    ''')
    XR = 40; T = 50; W = 60; H = 70
    for i in range(4):
        unpack(a, VX + i, XR + 2 * i, XR + 2 * i + 1)
        unpack(a, VT + i, T + 2 * i, T + 2 * i + 1)
        unpack(a, 160 + i, W + 2 * i, W + 2 * i + 1)
    unpack(a, VX + 4, XR + 8, XR + 9)
    unpack(a, VT + 4, T + 8, T + 9)
    unpack(a, 164, W + 8, W + 9)
    a(f'''
    s_waitcnt lgkmcnt(0)
    s_barrier
    ds_read_b128 v[8:11], v7
    ds_read_b128 v[12:15], v7 offset:16
    ds_read_b64 v[34:35], v33 offset:2048
    ''')
    stamp(a, 10)
    X = XR
    a('s_waitcnt lgkmcnt(0)')
    ysrc = list(range(8, 16)) + [34, 35]
    for i in range(10):
        a(f'v_perm_b32 v{ysrc[i]}, v{ysrc[i]}, v{ysrc[i]}, s45')
    for p in range(5):
        i0, i1 = 2 * p, 2 * p + 1
        a(f'''
        v_sub_f32 v{T+i0}, v{T+i0}, v{ysrc[i0]}
        v_sub_f32 v{T+i1}, v{T+i1}, v{ysrc[i1]}
        v_cvt_pk_bf16_f32 v36, v{T+i0}, v{T+i1}
        v_lshlrev_b32 v{T+i0}, 16, v36
        v_and_b32 v{T+i1}, 0xffff0000, v36
        v_add_f32 v{T+i0}, v{X+i0}, v{T+i0}
        v_add_f32 v{T+i1}, v{X+i1}, v{T+i1}
        v_cvt_pk_bf16_f32 v36, v{T+i0}, v{T+i1}
        v_lshlrev_b32 v{H+i0}, 16, v36
        v_and_b32 v{H+i1}, 0xffff0000, v36
        ''')
    ln_stats(a, H, X, 36, 21, 37, 38, 39, 46, 47, 48)
    a('v_mov_b32 v36, 0')
    a('v_mov_b32 v21, 0')
    for p in range(5):
        i0, i1 = 2 * p, 2 * p + 1
        a(f'''
        v_sub_f32 v{X+i0}, v{H+i0}, v37
        v_sub_f32 v{X+i1}, v{H+i1}, v37
        v_cvt_pk_bf16_f32 v39, v{X+i0}, v{X+i1}
        v_lshlrev_b32 v{X+i0}, 16, v39
        v_and_b32 v{X+i1}, 0xffff0000, v39
        v_mul_f32 v{X+i0}, v{X+i0}, v38
        v_mul_f32 v{X+i1}, v{X+i1}, v38
        v_cvt_pk_bf16_f32 v39, v{X+i0}, v{X+i1}
        v_lshlrev_b32 v{X+i0}, 16, v39
        v_and_b32 v{X+i1}, 0xffff0000, v39
        v_fmac_f32 v36, v{X+i0}, v{W+i0}
        v_fmac_f32 v21, v{X+i1}, v{W+i1}
        ''')
    a('v_add_f32 v36, v36, v21')
    wave_reduce(a, 'v_add_f32', 36)
    a(f'''
    v_cvt_pk_bf16_f32 v36, v36, v36
    v_and_b32 v36, 0xffff, v36
    v_xor_b32 v37, 0xffff, v36
    v_or_b32 v38, 0x8000, v36
    v_cmp_lt_u32 vcc, 0x7fff, v36
    s_sub_u32 s46, 4095, s22
    s_lshl_b32 s49, s20, 2
    v_cndmask_b32 v36, v38, v37, vcc
    v_lshl_or_b32 v36, v36, 16, s46
    s_add_u32 s49, s49, {M_KEYS}
    v_mov_b32 v37, s49
    v_readlane_b32 s48, v36, 63
    s_nop 1
    v_mov_b32 v38, s48
    ds_write_b32 v37, v38
    ''')
    for p in range(5):
        i0, i1 = 2 * p, 2 * p + 1
        a(f'''
        v_add_f32 v{T+i0}, v{H+i0}, v{X+i0}
        v_add_f32 v{T+i1}, v{H+i1}, v{X+i1}
        v_cvt_pk_bf16_f32 v{92+p}, v{T+i0}, v{T+i1}
        ''')
    lnb = a.newlabel('notbest'); lpoll = a.newlabel('poll'); lb2 = a.newlabel('b2')
    a(f'''
    v_and_b32 v37, 7, v2
    v_lshlrev_b32 v37, 2, v37
    v_add_u32 v37, {M_KEYS}, v37
    s_waitcnt lgkmcnt(0)
    s_barrier
    ds_read_b32 v38, v37
    s_waitcnt lgkmcnt(0)
    s_nop 1
    v_max_u32_dpp v38, v38, v38 quad_perm:[1,0,3,2] row_mask:0xf bank_mask:0xf
    s_nop 1
    v_max_u32_dpp v38, v38, v38 quad_perm:[2,3,0,1] row_mask:0xf bank_mask:0xf
    s_nop 1
    v_max_u32_dpp v38, v38, v38 row_half_mirror row_mask:0xf bank_mask:0xf
    s_nop 0
    v_readfirstlane_b32 s50, v38
    s_cmp_lg_u32 s50, s48
    s_cbranch_scc1 {lnb}
    s_lshl_b32 s51, s21, 4
    s_add_u32 s51, s51, {WS_KEY}
    v_mov_b32 v37, 0
    s_mov_b64 exec, 1
    buffer_store_dword v38, v37, s[32:35], s51 offen sc1
    s_mov_b64 exec, -1
    ''')
    for i in range(10):
        a(f'v_or_b32 v{X+i}, 1, v{X+i}')
        a(f'v_or_b32 v{H+i}, 1, v{H+i}')
    a(f'''
    s_mul_i32 s51, s21, 5120
    s_add_u32 s51, s51, {WS_CAND}
    v_lshlrev_b32 v37, 5, v2
    v_lshlrev_b32 v39, 3, v2
    buffer_store_dwordx4 v[{X}:{X+3}], v37, s[32:35], s51 offen sc1
    buffer_store_dwordx4 v[{X+4}:{X+7}], v37, s[32:35], s51 offen offset:16 sc1
    buffer_store_dwordx2 v[{X+8}:{X+9}], v39, s[32:35], s51 offen offset:2048 sc1
    s_add_u32 s51, s51, 2560
    buffer_store_dwordx4 v[{H}:{H+3}], v37, s[32:35], s51 offen sc1
    buffer_store_dwordx4 v[{H+4}:{H+7}], v37, s[32:35], s51 offen offset:16 sc1
    buffer_store_dwordx2 v[{H+8}:{H+9}], v39, s[32:35], s51 offen offset:2048 sc1
    s_branch {lpoll}
    ''')
    a.label(lnb)
    a('''
    buffer_store_dwordx4 v[92:95], v3, s[36:39], s23 offen OUTFLAG
    buffer_store_dword v96, v4, s[36:39], s23 offen offset:1024 OUTFLAG
    ''')
    a.label(lpoll)
    if TAILST: stamp(a, 2)
    UW = 100
    lks = a.newlabel('kslave'); lkd = a.newlabel('kd'); lu3 = a.newlabel('u3')
    for i in range(20):
        unpack(a, VW + i, UW + 2 * i, UW + 2 * i + 1)
    a(f'''
    s_cmp_lg_u32 s20, 0
    s_cbranch_scc1 {lb2}
    s_cmp_lg_u32 s2, 0
    s_cbranch_scc1 {lks}
    ''')
    gather_flags(WS_KEY, 8)
    a('''
    v_max_u32 v8, v8, v9
    v_max3_u32 v8, v8, v10, v11
    ''')
    wave_reduce(a, 'v_max_u32', 8)
    a('''
    s_nop 0
    v_readlane_b32 s6, v8, 63
    s_nop 1
    v_mov_b32 v8, s6
    ''')
    bcast(WS_GO + 128, 8, 9)
    a(f's_branch {lkd}')
    a.label(lks)
    slave(WS_GO + 128, 8)
    a.label(lkd)
    a(f'''
    v_mov_b32 v9, {M_GKEY}
    s_mov_b64 exec, 1
    ds_write_b32 v9, v8
    s_mov_b64 exec, -1
    s_waitcnt lgkmcnt(0)
    ''')
    a.label(lb2)
    lw = a.newlabel('iswin'); ldown = a.newlabel('down')
    a(f'''
    s_barrier
    v_mov_b32 v9, {M_GKEY}
    ds_read_b32 v8, v9
    s_waitcnt lgkmcnt(0)
    v_readfirstlane_b32 s44, v8
    s_cmp_lg_u32 s50, s48
    s_cbranch_scc1 {lw}
    s_cmp_eq_u32 s44, s48
    s_cbranch_scc1 {lw}
    buffer_store_dwordx4 v[92:95], v3, s[36:39], s23 offen OUTFLAG
    buffer_store_dword v96, v4, s[36:39], s23 offen offset:1024 OUTFLAG
    ''')
    a.label(lw)
    if TAILST: stamp(a, 4)
    a(f'''
    s_and_b32 s45, s44, 0x7ff
    s_sub_u32 s45, 2047, s45
    s_lshr_b32 s46, s45, 3
    s_mul_i32 s46, s46, 5120
    s_add_u32 s46, s46, {WS_CAND}
    s_cmp_ge_u32 s2, 216
    s_cbranch_scc1 {ldown}
    ; ---- G task ----
    s_lshl_b32 s47, s54, 2
    s_add_u32 s47, s47, s46
    v_lshrrev_b32 v5, 3, v2
    v_lshlrev_b32 v5, 2, v5
    v_add_u32 v6, 64, v5
    v_mov_b32 v7, {OOB:#x}
    v_cmp_gt_u32 vcc, 32, v2
    v_mov_b32 v8, 1
    s_nop 0
    v_cndmask_b32 v6, v7, v6, vcc
    v_cndmask_b32 v7, v8, 0, vcc
    ''')
    spin('''
    buffer_load_dword v12, v5, s[32:35], s47 offen sc1
    buffer_load_dword v13, v5, s[32:35], s47 offen offset:32 sc1
    buffer_load_dword v14, v6, s[32:35], s47 offen sc1
    s_waitcnt vmcnt(0)
    v_or_b32 v15, v14, v7
    v_and_b32 v15, v15, v12
    v_and_b32 v15, v15, v13
    v_and_b32 v15, 1, v15
    v_cmp_ne_u32 vcc, 0, v15
    ''')
    if TAILST: stamp(a, 6)
    a('''
    v_and_b32 v12, 0xffff0000, v12
    v_and_b32 v13, 0xffff0000, v13
    v_and_b32 v14, 0xffff0000, v14
    ''')
    R = 40
    for e in range(3):
        for i in range(8):
            op = 'v_mul_f32' if e == 0 else 'v_fmac_f32'
            a(f'{op} v{R+i}, v{12+e}, v{UW+8*e+i}')
    a('s_nop 1')
    for j in range(4):
        a(f'v_permlane32_swap_b32 v{R+j}, v{R+j+4}')
    for j in range(4):
        a(f'v_add_f32 v{R+j}, v{R+j}, v{R+j+4}')
    a('s_nop 1')
    for j in range(2):
        a(f'v_permlane16_swap_b32 v{R+j}, v{R+j+2}')
    for j in range(2):
        a(f'v_add_f32 v{R+j}, v{R+j}, v{R+j+2}')
    a('s_nop 0')
    for j in range(2):
        a(f'v_add_f32_dpp v{R+j}, v{R+j}, v{R+j} row_ror:8 row_mask:0xf bank_mask:0xf')
    lg5 = a.newlabel('g5')
    a(f'''
    v_and_b32 v6, 7, v2
    v_lshlrev_b32 v6, 5, v6
    v_lshrrev_b32 v7, 4, v2
    v_lshl_add_u32 v6, v7, 3, v6
    s_lshl_b32 s47, s20, 8
    s_add_u32 s47, s47, {M_P1}
    v_add_u32 v6, s47, v6
    s_mov_b32 exec_lo, 0x00ff00ff
    s_mov_b32 exec_hi, 0x00ff00ff
    ds_write_b64 v6, v[{R}:{R+1}]
    s_mov_b64 exec, -1
    s_waitcnt lgkmcnt(0)
    s_barrier
    s_cmp_ge_u32 s20, 5
    s_cbranch_scc1 {end}
    s_cmp_ge_u32 s20, 2
    s_cbranch_scc1 {lg5}
    s_lshl_b32 s47, s20, 10
    s_add_u32 s47, s47, {M_P1}
    v_add_u32 v6, s47, v4
    ds_read_b32 v8, v6
    ds_read_b32 v9, v6 offset:256
    ds_read_b32 v10, v6 offset:512
    ds_read_b32 v11, v6 offset:768
    s_lshl_b32 s47, s53, 1
    s_add_u32 s47, s47, s20
    s_mul_i32 s47, s47, 6912
    s_lshl_b32 s48, s52, 8
    s_add_u32 s47, s47, s48
    s_add_u32 s47, s47, {WS_PART}
    s_waitcnt lgkmcnt(0)
    v_add_f32 v8, v8, v9
    v_add_f32 v10, v10, v11
    v_add_f32 v8, v8, v10
    v_or_b32 v8, 1, v8
    buffer_store_dword v8, v4, s[32:35], s47 offen sc1
    ''')
    a.label(lg5)
    stamp(a, 5)
    ld1 = a.newlabel('d1')
    a(f'''
    s_cmp_lg_u32 s20, 0
    s_cbranch_scc1 {ld1}
    v_lshrrev_b32 v5, 3, v2
    v_mul_u32_u24 v5, 13824, v5
    v_and_b32 v6, 7, v2
    v_lshl_add_u32 v5, v6, 2, v5
    s_lshl_b32 s47, s2, 5
    s_add_u32 s47, s47, {WS_PART}
    s_add_u32 s48, s47, 6912
    ''')
    spin('''
    buffer_load_dword v8, v5, s[32:35], s47 offen sc1
    buffer_load_dword v9, v5, s[32:35], s48 offen sc1
    s_waitcnt vmcnt(0)
    v_and_b32 v10, v8, v9
    v_and_b32 v10, 1, v10
    v_cmp_ne_u32 vcc, 0, v10
    ''')
    a('''
    s_nop 1
    v_permlane32_swap_b32 v8, v9
    v_add_f32 v8, v8, v9
    v_mov_b32 v9, v8
    s_nop 1
    v_permlane16_swap_b32 v8, v9
    v_add_f32 v8, v8, v9
    s_nop 1
    v_add_f32_dpp v8, v8, v8 row_ror:8 row_mask:0xf bank_mask:0xf
    v_mov_b32 v12, v8
    s_nop 1
    v_permlane32_swap_b32 v8, v12
    ''')
    round_bf16(a, 8, 9)
    round_bf16(a, 12, 9)
    a(f'''
    v_mul_f32 v9, {fbits(-LOG2E):#x}, v8
    v_exp_f32 v9, v9
    s_nop 0
    v_add_f32 v9, 1.0, v9
    v_rcp_f32 v9, v9
    s_nop 0
    v_mul_f32 v8, v8, v9
    ''')
    round_bf16(a, 8, 9)
    a('v_mul_f32 v8, v8, v12')
    round_bf16(a, 8, 9)
    a(f'''
    v_add_u32 v9, {M_P2}, v4
    s_mov_b64 exec, 0xff
    ds_write_b32 v9, v8
    s_mov_b64 exec, -1
    s_waitcnt lgkmcnt(0)
    ''')
    a.label(ld1)
    a(f'''
    s_barrier
    v_mov_b32 v9, {M_P2}
    ds_read_b128 v[12:15], v9
    ds_read_b128 v[16:19], v9 offset:16
    s_mul_i32 s47, s2, 2560
    s_lshl_b32 s48, s20, 9
    s_add_u32 s47, s47, s48
    s_add_u32 s47, s47, {WS_YP}
    v_lshlrev_b32 v5, 3, v2
    s_waitcnt lgkmcnt(0)
    ''')
    for r in range(8):
        op = 'v_mul_f32' if r == 0 else 'v_fmac_f32'
        a(f'{op} v10, v{12+r}, v{UW+24+2*r}')
        a(f'{op} v11, v{12+r}, v{UW+25+2*r}')
    a(f'''
    v_or_b32 v10, 1, v10
    v_or_b32 v11, 1, v11
    buffer_store_dwordx2 v[10:11], v5, s[32:35], s47 offen sc1
    s_branch {end}
    ''')
    a.label(ldown)
    a(f'''
    s_sub_u32 s53, s2, 216
    v_lshrrev_b32 v5, 2, v0
    v_mul_u32_u24 v5, 2560, v5
    v_and_b32 v6, 3, v0
    v_lshl_add_u32 v5, v6, 4, v5
    v_mov_b32 v7, {OOB:#x}
    v_cmp_gt_u32 vcc, 352, v0
    v_mov_b32 v8, 1
    s_lshl_b32 s47, s53, 6
    v_cndmask_b32 v6, v7, v5, vcc
    v_cndmask_b32 v7, v8, 0, vcc
    s_add_u32 s55, s47, s46
    s_add_u32 s47, s47, {WS_YP}
    s_add_u32 s48, s47, {128*2560}
    v_and_b32 v22, 15, v2
    v_lshlrev_b32 v22, 2, v22
    ''')
    spin('''
    buffer_load_dwordx4 v[8:11], v5, s[32:35], s47 offen sc1
    buffer_load_dwordx4 v[12:15], v6, s[32:35], s48 offen sc1
    buffer_load_dword v20, v22, s[32:35], s55 offen sc1
    buffer_load_dword v21, v22, s[32:35], s55 offen offset:2560 sc1
    s_waitcnt vmcnt(0)
    v_and_b32 v16, v12, v13
    v_and_b32 v17, v14, v15
    v_and_b32 v16, v16, v17
    v_or_b32 v16, v16, v7
    v_and_b32 v17, v8, v9
    v_and_b32 v18, v10, v11
    v_and_b32 v16, v16, v17
    v_and_b32 v16, v16, v18
    v_and_b32 v16, v16, v20
    v_and_b32 v16, v16, v21
    v_and_b32 v16, 1, v16
    v_cmp_ne_u32 vcc, 0, v16
    ''')
    a(f'''
    v_add_f32 v8, v8, v12
    v_add_f32 v9, v9, v13
    v_add_f32 v10, v10, v14
    v_add_f32 v11, v11, v15
    v_and_b32 v20, 0xffff0000, v20
    v_and_b32 v21, 0xffff0000, v21
    v_permlane32_swap_b32 v8, v10
    v_permlane32_swap_b32 v9, v11
    v_add_f32 v8, v8, v10
    v_add_f32 v9, v9, v11
    s_nop 1
    v_permlane16_swap_b32 v8, v9
    v_add_f32 v8, v8, v9
    s_nop 1
    v_add_f32_dpp v8, v8, v8 row_ror:4 row_mask:0xf bank_mask:0xf
    s_nop 1
    v_add_f32_dpp v8, v8, v8 row_ror:8 row_mask:0xf bank_mask:0xf
    v_and_b32 v7, 3, v2
    v_lshlrev_b32 v7, 4, v7
    v_lshrrev_b32 v9, 4, v2
    v_lshl_add_u32 v7, v9, 2, v7
    s_lshl_b32 s47, s20, 6
    s_add_u32 s47, s47, {M_P2}
    v_add_u32 v7, s47, v7
    s_mov_b32 exec_lo, 0x000f000f
    s_mov_b32 exec_hi, 0x000f000f
    ds_write_b32 v7, v8
    s_mov_b64 exec, -1
    s_waitcnt lgkmcnt(0)
    s_barrier
    s_cmp_lg_u32 s20, 0
    s_cbranch_scc1 {end}
    v_add_u32 v6, {M_P2}, v22
    ds_read_b32 v8, v6
    ds_read_b32 v9, v6 offset:64
    ds_read_b32 v10, v6 offset:128
    ds_read_b32 v11, v6 offset:192
    ds_read_b32 v12, v6 offset:256
    ds_read_b32 v13, v6 offset:320
    ds_read_b32 v14, v6 offset:384
    ds_read_b32 v15, v6 offset:448
    s_lshr_b32 s48, s44, 16
    s_xor_b32 s49, s48, 0xffff
    s_and_b32 s50, s48, 0x7fff
    s_cmp_ge_u32 s48, 0x8000
    s_cselect_b32 s48, s50, s49
    s_lshl_b32 s48, s48, 16
    v_mov_b32 v18, s48
    v_mul_f32 v18, {fbits(-LOG2E):#x}, v18
    v_exp_f32 v18, v18
    s_nop 0
    v_add_f32 v18, 1.0, v18
    v_rcp_f32 v18, v18
    s_waitcnt lgkmcnt(0)
    v_add_f32 v8, v8, v9
    v_add_f32 v10, v10, v11
    v_add_f32 v12, v12, v13
    v_add_f32 v14, v14, v15
    v_add_f32 v8, v8, v10
    v_add_f32 v12, v12, v14
    v_add_f32 v8, v8, v12
    ''')
    round_bf16(a, 8, 9)
    round_bf16(a, 18, 9)
    a('v_mul_f32 v8, v8, v18')
    round_bf16(a, 8, 9)
    a('v_add_f32 v8, v20, v8')
    round_bf16(a, 8, 9)
    a(f'''
    v_add_f32 v8, v21, v8
    v_cvt_pk_bf16_f32 v8, v8, v8
    s_mul_i32 s45, s45, 1280
    s_lshl_b32 s47, s53, 5
    s_add_u32 s45, s45, s47
    v_lshlrev_b32 v7, 1, v2
    s_mov_b64 exec, 0xffff
    buffer_store_short v8, v7, s[36:39], s45 offen
    s_mov_b64 exec, -1
    ''')
    a.label(end)
    stamp_flush(a)
    a.label(end + 'x')
    a('s_endpgm')

def main():
    global STAMPS
    global PF
    if len(sys.argv) > 2 and sys.argv[2] == 'stamps': STAMPS = True
    global WPOS, TAILST, OUTF
    import os
    OUTF = os.environ.get('OUTF', OUTF)
    global PRIO
    PRIO = int(os.environ.get('PRIO', PRIO))
    if len(sys.argv) > 4: TAILST = True
    if len(sys.argv) > 3: WPOS = sys.argv[3]
    a = A()
    gen(a)
    hdr = f'; @launch grid=(256,1,1) block=(512,1,1) lds={LDS_TOTAL}\n'
    hdr += '.amdgcn_target "amdgcn-amd-amdhsa--gfx950"\n.text\n.set CODE_BYTES, 18432\n'
    out = hdr + a.text().replace('OUTFLAG', OUTF) + f'''.section .rodata,"a"
.p2align 6
.amdhsa_kernel {KNAME}
  .amdhsa_next_free_vgpr 248
  .amdhsa_next_free_sgpr 102
  .amdhsa_accum_offset 248
  .amdhsa_group_segment_fixed_size 0
  .amdhsa_kernarg_size 120
  .amdhsa_user_sgpr_count 2
  .amdhsa_user_sgpr_kernarg_segment_ptr 1
  .amdhsa_system_sgpr_workgroup_id_x 1
.end_amdhsa_kernel
'''
    path = sys.argv[1] if len(sys.argv) > 1 else f'cdna_kernels/{NAME}.s'
    open(path, 'w').write(out)
    print('wrote', path, len(out))

if __name__ == '__main__':
    main()
```

```python
import struct, sys

NAME = 'sequential_preLN__ssm_conv_s4d__moe_arch_mod__prompt'
KNAME = NAME + '_kernel'

WS_U = 0x000000
WS_YS = 0x480000
WS_YT = 0x280000
WS_CAND = 0x520000
WS_KEY = 0x500000
WS_FLAG2 = 0x501000
WS_FLAG1 = 0x502000
WS_GO = 0x508000
WS_PART = 0x6A0000
WS_YP = 0x6C0000
WS_ACT = 0x504000
WS_STAMP = 0xE00000
WS_SIZE = 0x1000000
NREP = 8
SPIN_MAX = 1 << 18
OOB = 0x7ffffff0
STAMPS = False
TAILST = False
CONVST = False
REDST = False
WARM = True
PF = 'none'
SIGPOS = 2
WPOS = 'conv'
CODEPF = True
SPEC_TH = 176
SET1 = 0x100000
OUTF = 'nt'
WSH = 21
PRIO = 0

def fbits(x):
    return struct.unpack('<I', struct.pack('<f', x))[0]

LOG2E = 1.4426950408889634
LOG2E_HI = struct.unpack('<f', struct.pack('<f', LOG2E))[0]
LOG2E_LO = LOG2E - LOG2E_HI
LN2 = 0.6931471805599453
INV2PI = 0.15915494309189535

class A:
    def __init__(self):
        self.L = []
        self.uid = 0
    def __call__(self, s):
        for line in s.strip('\n').split('\n'):
            if line.strip():
                self.L.append('    ' + line.strip())
    def label(self, s):
        self.L.append(s + ':')
    def newlabel(self, base):
        self.uid += 1
        return f'L_{base}_{self.uid}'
    def text(self):
        return '\n'.join(self.L) + '\n'

NSTAMP = 12
def stamp(a, i):
    if STAMPS:
        a(f's_memrealtime s[{76+2*i}:{77+2*i}]')
def cstamp(a, i):
    if STAMPS:
        a(f's_memtime s[{76+2*i}:{77+2*i}]')
def stamp_init(a):
    if STAMPS:
        for i in range(NSTAMP):
            a(f's_mov_b32 s{76+2*i}, 0')
def stamp_flush(a):
    if STAMPS:
        a('s_mov_b64 exec, -1')
        a(f's_memrealtime s[{76+2*(NSTAMP-1)}:{77+2*(NSTAMP-1)}]')
        a('s_waitcnt lgkmcnt(0)')
        for i in range(NSTAMP):
            a(f'v_mov_b32 v{8+i}, s{76+2*i}')
        a(f'''
        s_lshl_b32 s76, s2, 3
        s_add_u32 s76, s76, s20
        s_lshl_b32 s76, s76, 6
        s_add_u32 s76, s76, {WS_STAMP}
        v_mov_b32 v24, 0
        s_mov_b64 exec, 1
        buffer_store_dwordx4 v[8:11], v24, s[32:35], s76 offen
        buffer_store_dwordx4 v[12:15], v24, s[32:35], s76 offen offset:16
        buffer_store_dwordx4 v[16:19], v24, s[32:35], s76 offen offset:32
        ''')

def srd(a, s, lo, hi, size):
    a(f's_mov_b32 s{s}, s{lo}')
    a(f's_and_b32 s{s+1}, s{hi}, 0xffff')
    a(f's_mov_b32 s{s+2}, {size}')
    a(f's_mov_b32 s{s+3}, 0x00020000')

def wave_reduce(a, op, v):
    for m in ['quad_perm:[1,0,3,2] row_mask:0xf bank_mask:0xf',
              'quad_perm:[2,3,0,1] row_mask:0xf bank_mask:0xf',
              'row_half_mirror row_mask:0xf bank_mask:0xf',
              'row_mirror row_mask:0xf bank_mask:0xf',
              'row_bcast:15 row_mask:0xa bank_mask:0xf',
              'row_bcast:31 row_mask:0xc bank_mask:0xf']:
        a('s_nop 1')
        a(f'{op}_dpp v{v}, v{v}, v{v} {m}')

def round_bf16(a, v, t):
    a(f'v_cvt_pk_bf16_f32 v{t}, v{v}, v{v}')
    a(f'v_lshlrev_b32 v{v}, 16, v{t}')

def unpack(a, src, lo, hi):
    a(f'v_lshlrev_b32 v{lo}, 16, v{src}')
    a(f'v_and_b32 v{hi}, 0xffff0000, v{src}')

def exp_bf16(a, v, t0, t1, s_l2e, s_l2elo, s_ln2):
    a(f'v_mul_f32 v{t0}, s{s_l2e}, v{v}')
    a(f'v_fma_f32 v{t1}, v{v}, s{s_l2e}, -v{t0}')
    a(f'v_fmac_f32 v{t1}, s{s_l2elo}, v{v}')
    a(f'v_exp_f32 v{t0}, v{t0}')
    a(f'v_mul_f32 v{t1}, s{s_ln2}, v{t1}')
    a(f'v_fma_f32 v{v}, v{t0}, v{t1}, v{t0}')
    round_bf16(a, v, t0)

def ln_stats(a, src, tmp, vs1, vs2, vmean, vrs, vt, s0, s1, s2_):
    a(f'v_readfirstlane_b32 s{s2_}, v{src}')
    a('s_nop 1')
    for i in range(10):
        a(f'v_subrev_f32 v{tmp+i}, s{s2_}, v{src+i}')
    a(f'''
    v_add_f32 v{vs1}, v{tmp}, v{tmp+1}
    v_mul_f32 v{vs2}, v{tmp}, v{tmp}
    v_add_f32 v{vmean}, v{tmp+2}, v{tmp+3}
    v_mul_f32 v{vrs}, v{tmp+1}, v{tmp+1}
    ''')
    for i in range(4, 10, 2):
        a(f'v_add_f32 v{vs1}, v{vs1}, v{tmp+i}')
        a(f'v_add_f32 v{vmean}, v{vmean}, v{tmp+i+1}')
    for i in range(2, 10, 2):
        a(f'v_fmac_f32 v{vs2}, v{tmp+i}, v{tmp+i}')
        a(f'v_fmac_f32 v{vrs}, v{tmp+i+1}, v{tmp+i+1}')
    a(f'v_add_f32 v{vs1}, v{vs1}, v{vmean}')
    a(f'v_add_f32 v{vs2}, v{vs2}, v{vrs}')
    for m in ['quad_perm:[1,0,3,2] row_mask:0xf bank_mask:0xf',
              'quad_perm:[2,3,0,1] row_mask:0xf bank_mask:0xf',
              'row_half_mirror row_mask:0xf bank_mask:0xf',
              'row_mirror row_mask:0xf bank_mask:0xf',
              'row_bcast:15 row_mask:0xa bank_mask:0xf',
              'row_bcast:31 row_mask:0xc bank_mask:0xf']:
        a('s_nop 0')
        a(f'v_add_f32_dpp v{vs1}, v{vs1}, v{vs1} {m}')
        a(f'v_add_f32_dpp v{vs2}, v{vs2}, v{vs2} {m}')
    a(f'''
    v_mov_b32 v{vt}, {fbits(1.0/640):#x}
    v_readlane_b32 s{s0}, v{vs1}, 63
    v_readlane_b32 s{s1}, v{vs2}, 63
    s_nop 0
    v_mul_f32 v{vmean}, s{s0}, v{vt}
    v_mul_f32 v{vrs}, s{s1}, v{vt}
    v_fma_f32 v{vrs}, -v{vmean}, v{vmean}, v{vrs}
    v_add_f32 v{vmean}, s{s2_}, v{vmean}
    v_max_f32 v{vrs}, 0, v{vrs}
    ''')
    round_bf16(a, vrs, vt)
    a(f'v_add_f32 v{vrs}, {fbits(1e-5):#x}, v{vrs}')
    round_bf16(a, vrs, vt)
    a(f'v_sqrt_f32 v{vrs}, v{vrs}')
    a('s_nop 0')
    round_bf16(a, vrs, vt)
    a(f'v_rcp_f32 v{vrs}, v{vrs}')
    round_bf16(a, vmean, vt)

def reduceN(a, R, n):
    h = n // 2; qn = n // 4
    a('s_nop 1')
    for j in range(h):
        a(f'v_permlane32_swap_b32 v{R+j}, v{R+j+h}')
    for j in range(h):
        a(f'v_add_f32 v{R+j}, v{R+j}, v{R+j+h}')
    a('s_nop 1')
    for j in range(qn):
        a(f'v_permlane16_swap_b32 v{R+j}, v{R+j+qn}')
    for j in range(qn):
        a(f'v_add_f32 v{R+j}, v{R+j}, v{R+j+qn}')
    for m in ['quad_perm:[1,0,3,2]', 'quad_perm:[2,3,0,1]', 'row_half_mirror', 'row_mirror']:
        a('s_nop 0')
        for j in range(qn):
            a(f'v_add_f32_dpp v{R+j}, v{R+j}, v{R+j} {m} row_mask:0xf bank_mask:0xf')

KT_RS = 544
KT_E0 = 41
KT_SZ = 57 * KT_RS
L_TILE = 3 * KT_SZ
TS = 1344
L_KC = L_TILE + 8 * TS
KC_SZ = 1344
L_UP = L_KC + 3 * KC_SZ
US = 1152
UP_SZ = 4 * US
L_MISC = L_UP + 3 * UP_SZ
M_CNT1 = L_MISC
M_CNT2 = L_MISC + 4
M_SCALE = L_MISC + 16
M_PAIR = L_MISC + 96
M_KEYS = L_MISC + 32
M_GKEY = L_MISC + 64
M_P2 = L_MISC + 384
M_P1 = L_MISC + 1024
LDS_TOTAL = L_MISC + 3072
CS = 4224
CP_SZ = 4 * CS
L_RED = 3 * CP_SZ
L_Y2 = 0

VX = 200
VT = 206
VW = 168
GA = 152
VU = 160

def gen(a):
    a.L.append(f'.globl {KNAME}')
    a.L.append('.p2align 8')
    a.L.append(f'.type {KNAME},@function')
    a.label(KNAME)
    end = 'L_end'
    stamp_init(a)
    stamp(a, 0)
    a(f'''
    s_cmp_ge_u32 s2, 256
    s_cbranch_scc1 {end}x
    s_load_dwordx8 s[4:11], s[0:1], 0
    s_load_dwordx4 s[12:15], s[0:1], 32
    s_load_dwordx2 s[16:17], s[0:1], 48    ; D
    s_load_dwordx2 s[18:19], s[0:1], 112   ; ws
    s_load_dwordx8 s[64:71], s[0:1], 64
    s_load_dwordx4 s[72:75], s[0:1], 96
    v_lshrrev_b32 v1, 6, v0
    v_and_b32 v2, 63, v0                   ; lane
    v_readfirstlane_b32 s20, v1            ; wave
    s_and_b32 s21, s2, 7
    s_lshl_b32 s21, s21, 5
    s_lshr_b32 s22, s2, 3
    s_add_u32 s21, s21, s22                ; rb
    s_lshl_b32 s22, s21, 3
    s_add_u32 s22, s22, s20                ; row
    s_mul_i32 s23, s22, 1280
    v_lshlrev_b32 v3, 4, v2                ; lane*16
    v_lshlrev_b32 v4, 2, v2                ; lane*4
    s_and_b32 s60, s2, 7
    s_lshl_b32 s60, s60, 4
    s_lshr_b32 s61, s2, 4
    s_add_u32 s3, s60, s61                 ; p'
    s_mul_i32 s60, s3, 5
    s_bfe_u32 s61, s2, 0x10003             ; odd
    s_lshl_b32 s100, s3, 12
    s_add_u32 s100, s100, {WS_YS}
    s_lshl_b32 s3, s3, 1
    s_add_u32 s3, s3, s61
    s_lshl_b32 s3, s3, 13
    s_add_u32 s3, s3, {WS_YT}
    s_mul_i32 s62, s61, 3
    s_add_u32 s62, s62, s60                ; chA
    s_add_u32 s63, s60, 2                  ; chS
    s_lshr_b32 s56, s20, 1
    s_add_u32 s57, s62, s56
    s_cmp_eq_u32 s56, 2
    s_cselect_b32 s57, s63, s57
    ''')
    if CODEPF:
        lcp = a.newlabel('cp')
        a(f'''
        s_cmp_lg_u32 s20, 6
        s_cbranch_scc1 {lcp}
        s_getpc_b64 s[24:25]
        s_lshr_b32 s26, s2, 3
        s_lshl_b32 s26, s26, 10
        v_add_u32 v5, s26, v3
        s_cmp_lt_u32 s26, CODE_BYTES
        s_cbranch_scc0 {lcp}
        global_load_dwordx4 v[240:243], v5, s[24:25]
        ''')
        a.label(lcp)
    a(f'''
    s_waitcnt lgkmcnt(0)
    ''')
    srd(a, 24, 4, 5, 2621440)
    srd(a, 32, 18, 19, WS_SIZE)
    srd(a, 28, 16, 17, 1280)
    lnz = a.newlabel('nz')
    a(f'''
    s_lshl_b32 s17, s2, 3
    s_add_u32 s17, s17, s20
    s_cmp_lg_u32 s17, 7
    s_cbranch_scc1 {lnz}
    v_mov_b32 v8, 0
    v_mov_b32 v9, 0
    v_mov_b32 v10, 0
    v_mov_b32 v11, 0
    s_mov_b32 s4, {WS_FLAG1}
    buffer_store_dwordx4 v[8:11], v3, s[32:35], s4 offen sc1
    buffer_store_dwordx4 v[8:11], v3, s[32:35], s4 offen offset:1024 sc1
    buffer_store_dwordx4 v[8:11], v3, s[32:35], s4 offen offset:2048 sc1
    buffer_store_dwordx4 v[8:11], v3, s[32:35], s4 offen offset:3072 sc1
    v_lshlrev_b32 v12, 12, v2
    s_mov_b32 s4, {WS_GO + 256}
    s_mov_b64 exec, {(1<<NREP)-1:#x}
    buffer_store_dword v8, v12, s[32:35], s4 offen sc1
    s_mov_b64 exec, -1
    s_nop 1
    ''')
    a.label(lnz)
    a('''
    buffer_load_dwordx4 v[8:11], v3, s[24:27], s23 offen
    buffer_load_dword v12, v4, s[24:27], s23 offen offset:1024
    ''')
    srd(a, 36, 6, 7, 163840)
    srd(a, 40, 8, 9, 163840)
    srd(a, 44, 10, 11, 163840)
    srd(a, 48, 12, 13, 163840)
    srd(a, 52, 14, 15, 1280)
    a('''
    buffer_load_dwordx4 v[14:17], v3, s[28:31], 0 offen
    buffer_load_dword v18, v4, s[28:31], 0 offen offset:1024
    s_lshl_b32 s58, s57, 8
    s_and_b32 s59, s20, 1
    s_lshl_b32 s59, s59, 7
    s_add_u32 s59, s59, s58
    v_lshlrev_b32 v5, 1, v2
    s_lshl_b32 s16, s57, 1
    v_mov_b32 v6, 0
    buffer_load_ushort v20, v5, s[36:39], s59 offen
    buffer_load_ushort v21, v5, s[40:43], s59 offen
    buffer_load_ushort v22, v5, s[44:47], s59 offen
    buffer_load_ushort v23, v5, s[48:51], s59 offen
    buffer_load_dword v24, v4, s[44:47], s58 offen
    buffer_load_dword v25, v4, s[48:51], s58 offen
    buffer_load_ushort v26, v6, s[52:55], s16 offen
    ''')
    def prefetch(PD=216):
        srd(a, 36, 66, 67, 640 * 3456)
        srd(a, 40, 68, 69, 640 * 3456)
        srd(a, 44, 70, 71, 1728 * 1280)
        a(f'''
        s_and_b32 s4, s2, 7
        s_lshr_b32 s5, s2, 3
        s_mul_i32 s6, s4, 432
        s_mul_i32 s7, s5, {20*3456}
        s_add_u32 s6, s6, s7
        v_lshrrev_b32 v5, 5, v2
        v_mul_u32_u24 v5, 3456, v5
        v_and_b32 v6, 31, v2
        v_lshl_add_u32 v5, v6, 4, v5
        v_mov_b32 v7, {OOB:#x}
        v_cmp_gt_u32 vcc, 27, v6
        s_cmp_eq_u32 s20, 6
        s_cselect_b32 s36, s36, s40
        v_cndmask_b32 v5, v7, v5, vcc
        s_cselect_b32 s37, s37, s41
        ''')
        for i in range(10):
            a(f's_add_u32 s7, s6, {2*i*3456}')
            a(f'buffer_load_dwordx4 v[{PD+4*(i%2)}:{PD+3+4*(i%2)}], v5, s[36:39], s7 offen')
        a(f'''
        s_mul_i32 s6, s4, 160
        s_mul_i32 s7, s5, {54*1280}
        s_add_u32 s6, s6, s7
        s_sub_u32 s7, s20, 6
        s_mul_i32 s7, s7, {27*1280}
        s_add_u32 s6, s6, s7
        v_mul_u32_u24 v5, 205, v2
        v_lshrrev_b32 v5, 11, v5             ; lane/10
        v_mul_u32_u24 v6, 10, v5
        v_sub_u32 v6, v2, v6
        v_mul_u32_u24 v5, 1280, v5
        v_lshl_add_u32 v5, v6, 4, v5
        v_cmp_gt_u32 vcc, 60, v2
        s_nop 1
        v_cndmask_b32 v5, v7, v5, vcc
        ''')
        for i in range(5):
            a(f's_add_u32 s7, s6, {6*i*1280}')
            a(f'buffer_load_dwordx4 v[{PD+4*(i%2)}:{PD+3+4*(i%2)}], v5, s[44:47], s7 offen')
    if PF == 'start':
        lns = a.newlabel('ns')
        a(f'''
        s_cmp_lt_u32 s20, 6
        s_cbranch_scc1 {lns}
        ''')
        prefetch()
        a.label(lns)
    if WARM:
        lnw = a.newlabel('nw')
        a(f'''
        s_cmp_ge_u32 s20, 6
        s_cbranch_scc1 {lnw}
        v_lshlrev_b32 v27, {WSH}, v2
        s_mov_b32 s8, 0
        s_mov_b32 s4, s18
        s_mov_b32 s5, s19
        s_mov_b32 s6, {WS_SIZE // 2}
        s_cmp_eq_u32 s20, 1
        s_cselect_b32 s4, s72, s4
        s_cselect_b32 s5, s73, s5
        s_cselect_b32 s6, 2621440, s6
        s_cmp_eq_u32 s20, 2
        s_cselect_b32 s4, s74, s4
        s_cselect_b32 s5, s75, s5
        s_cselect_b32 s6, 256, s6
        s_cmp_eq_u32 s20, 3
        s_cselect_b32 s4, s64, s4
        s_cselect_b32 s5, s65, s5
        s_cselect_b32 s6, 1280, s6
        s_cmp_eq_u32 s20, 4
        s_cselect_b32 s4, s66, s4
        s_cselect_b32 s5, s67, s5
        s_cselect_b32 s6, {640*3456}, s6
        s_cmp_eq_u32 s20, 5
        s_cselect_b32 s8, {64 << WSH}, s8
        s_and_b32 s5, s5, 0xffff
        s_mov_b32 s7, 0x00020000
        buffer_load_dword v244, v27, s[4:7], s8 offen
        ''')
        a.label(lnw)
    lnr = a.newlabel('nr')
    a(f'''
    s_cmp_lg_u32 s17, 7
    s_cbranch_scc1 {lnr}
    ''')
    srd(a, 4, 74, 75, 256)
    a(f'''
    v_mov_b32 v27, 0
    v_mov_b32 v28, 1
    s_waitcnt vmcnt({26 if PF == 'start' else 11})
    s_mov_b64 exec, 1
    buffer_store_dword v28, v27, s[4:7], 0 offen sc1      ; READY
    s_mov_b64 exec, -1
    ''')
    a.label(lnr)
    a(f'''
    v_mov_b32 v27, 0
    v_lshrrev_b32 v28, 5, v0
    v_mul_u32_u24 v28, {US}, v28
    v_and_b32 v29, 31, v0
    v_lshl_add_u32 v28, v29, 2, v28
    v_add_u32 v28, {L_UP}, v28
    v_cmp_gt_u32 vcc, 384, v0
    s_and_saveexec_b64 s[4:5], vcc
    ds_write_b32 v28, v27
    s_mov_b64 exec, s[4:5]
    v_lshrrev_b32 v28, 2, v0
    v_mul_u32_u24 v28, {KC_SZ}, v28
    v_and_b32 v29, 3, v0
    v_lshl_add_u32 v28, v29, 2, v28
    v_add_u32 v28, {L_KC}, v28
    v_lshlrev_b32 v29, 2, v0
    v_add_u32 v29, {L_MISC}, v29
    v_cmp_gt_u32 vcc, 12, v0
    s_and_saveexec_b64 s[4:5], vcc
    ds_write_b32 v28, v27
    ds_write_b32 v29, v27
    ds_write_b32 v29, v27 offset:96
    s_mov_b64 exec, s[4:5]
    ''')
    a('v_lshlrev_b32 v5, 2, v0')
    a(f'v_mov_b32 v27, {L_KC}')
    for d in range(7):
        a(f'''
        v_add_u32 v31, {d-3}, v5
        v_cvt_f32_i32 v32, v31
        v_cvt_pk_bf16_f32 v32, v32, v32
        v_and_b32 v32, 0xffff, v32
        v_subrev_u32 v32, {(134<<7)-128}, v32
        v_cmp_gt_i32 vcc, 256, v31
        s_nop 1
        v_cndmask_b32 v32, v32, v31, vcc
        v_lshl_add_u32 v32, v32, 1, v27
        v_add_u32 v32, 16, v32
        v_cmp_gt_i32 vcc, 0, v31
        s_nop 1
        v_cndmask_b32 v{GA+d}, v32, v27, vcc
        ''')
    a(f'''
    v_lshrrev_b32 v31, 3, v0
    v_mul_u32_u24 v31, {CS}, v31
    v_and_b32 v32, 7, v0
    v_lshl_add_u32 v{VU+4}, v32, 2, v31
    ''')
    for e in range(2):
        vi, vr, vk, va, vl = 31, 32, 33, VU + 2 * e, VU + 2 * e + 1
        a(f'''
        v_add_u32 v{vi}, {512*e}, v0
        v_mul_u32_u24 v{vr}, 43691, v{vi}
        v_lshrrev_b32 v{vr}, 17, v{vr}
        v_mul_u32_u24 v{vk}, 3, v{vr}
        v_sub_u32 v{vk}, v{vi}, v{vk}
        v_mul_u32_u24 v{va}, 10240, v{vr}
        v_lshl_add_u32 v{va}, v{vk}, 4, v{va}
        s_lshl_b32 s5, s61, 1
        v_add_u32 v{vk}, s5, v{vk}
        v_subrev_u32 v{vl}, 3, v{vk}
        v_cmp_gt_u32 vcc, 3, v{vk}
        s_nop 1
        v_cndmask_b32 v{vk}, v{vl}, v{vk}, vcc
        v_mul_u32_u24 v{vl}, {UP_SZ}, v{vk}
        v_lshl_add_u32 v{vl}, v{vr}, 2, v{vl}
        v_add_u32 v{vl}, {L_UP + 128}, v{vl}
        ''')
    a(f'''
    v_mov_b32 v31, {OOB:#x}
    v_cmp_gt_u32 vcc, 256, v0
    s_nop 1
    v_cndmask_b32 v{VU+2}, v31, v{VU+2}, vcc
    ''')
    a(f'''
    v_mov_b32 v36, 0
    v_mov_b32 v37, 0
    v_mov_b32 v38, 0
    v_mov_b32 v39, 0
    v_lshlrev_b32 v35, 4, v0
    buffer_store_dwordx4 v[36:39], v35, s[32:35], s3 offen sc1
    v_lshrrev_b32 v32, 5, v0
    v_mov_b32 v33, 0x8f
    v_mov_b32 v34, 0x70
    s_cmp_eq_u32 s61, 0
    s_cselect_b64 vcc, -1, 0
    v_cndmask_b32 v33, v34, v33, vcc
    v_lshrrev_b32 v33, v32, v33
    v_and_b32 v33, 1, v33
    v_cmp_ne_u32 vcc, 0, v33
    v_mov_b32 v33, {OOB:#x}
    s_nop 0
    v_cndmask_b32 v35, v33, v35, vcc
    buffer_store_dwordx4 v[36:39], v35, s[32:35], s100 offen sc1
    ''')
    X = 30
    def wait2(n):
        if PF == 'start':
            l1 = a.newlabel('w'); l2 = a.newlabel('w')
            a(f'''
            s_cmp_ge_u32 s20, 6
            s_cbranch_scc1 {l1}
            s_waitcnt vmcnt({n})
            s_branch {l2}
            ''')
            a.label(l1)
            a(f's_waitcnt vmcnt({n+15})')
            a.label(l2)
        else:
            a(f's_waitcnt vmcnt({n})')
    wait2(11)
    srd(a, 24, 74, 75, 256)
    for i in range(4):
        unpack(a, 8 + i, X + 2 * i, X + 2 * i + 1)
        a(f'v_mov_b32 v{VX+i}, v{8+i}')
    unpack(a, 12, X + 8, X + 9)
    a(f'v_mov_b32 v{VX+4}, v12')
    ln_stats(a, X, 44, 40, 43, 41, 42, 54, 4, 5, 6)
    wait2(9)
    for i in range(4):
        unpack(a, 14 + i, 54 + 2 * i, 55 + 2 * i)
    unpack(a, 18, 62, 63)
    for p in range(5):
        x0, x1 = X + 2 * p, X + 2 * p + 1
        a(f'''
        v_sub_f32 v{x0}, v{x0}, v41
        v_sub_f32 v{x1}, v{x1}, v41
        v_cvt_pk_bf16_f32 v44, v{x0}, v{x1}
        v_lshlrev_b32 v{x0}, 16, v44
        v_and_b32 v{x1}, 0xffff0000, v44
        v_mul_f32 v{x0}, v{x0}, v42
        v_mul_f32 v{x1}, v{x1}, v42
        v_cvt_pk_bf16_f32 v44, v{x0}, v{x1}
        v_lshlrev_b32 v{x0}, 16, v44
        v_and_b32 v{x1}, 0xffff0000, v44
        v_cvt_pk_f16_f32 v{64+p}, v{x0}, v{x1}
        ''')
    a(f'''
    s_and_b32 s4, s20, 3
    s_lshl_b32 s4, s4, 1
    s_lshr_b32 s5, s20, 2
    s_or_b32 s4, s4, s5
    s_mul_i32 s4, s4, {TS}
    s_add_u32 s4, s4, {L_TILE}
    v_add_u32 v44, s4, v3
    v_add_u32 v45, s4, v4
    ds_write_b128 v44, v[64:67]
    ds_write_b32 v45, v68 offset:1024
    ''')
    for p in range(5):
        x0, x1 = X + 2 * p, X + 2 * p + 1
        a(f'''
        v_mul_f32 v{x0}, v{x0}, v{54+2*p}
        v_mul_f32 v{x1}, v{x1}, v{55+2*p}
        v_cvt_pk_bf16_f32 v{VT+p}, v{x0}, v{x1}
        ''')
    l67 = a.newlabel('w67'); l45 = a.newlabel('w45')
    a(f'''
    v_lshrrev_b32 v44, 2, v2
    v_and_b32 v44, 3, v44
    v_mul_u32_u24 v44, {TS}, v44
    v_lshrrev_b32 v45, 4, v2
    v_lshlrev_b32 v45, 5, v45
    v_add_u32 v44, v44, v45
    v_and_b32 v45, 3, v2
    v_lshlrev_b32 v45, 3, v45
    v_add_u32 v44, v44, v45
    s_sub_u32 s6, s20, 2
    s_cmp_lt_u32 s20, 6
    s_cselect_b32 s6, s20, s6
    s_lshl_b32 s4, s6, 7
    s_add_u32 s4, s4, {L_TILE}
    v_add_u32 v44, s4, v44
    s_mul_i32 s4, s21, 10240
    s_lshl_b32 s5, s6, 10
    s_add_u32 s4, s4, s5
    s_add_u32 s4, s4, {WS_U}
    v_mov_b32 v46, 0
    buffer_load_dword v49, v46, s[24:27], 0 offen sc1
    s_waitcnt lgkmcnt(0)
    s_barrier
    s_lshr_b32 s5, s20, 1
    s_cmp_eq_u32 s5, 2
    s_cbranch_scc1 {l45}
    ds_read_b64_tr_b16 v[64:65], v44
    ds_read_b64_tr_b16 v[66:67], v44 offset:{4*TS}
    s_cmp_lt_u32 s20, 6
    s_cbranch_scc1 {l67}
    ds_read_b64_tr_b16 v[68:69], v44 offset:256
    ds_read_b64_tr_b16 v[70:71], v44 offset:{4*TS+256}
    ds_read_b64_tr_b16 v[72:73], v44 offset:512
    ds_read_b64_tr_b16 v[74:75], v44 offset:{4*TS+512}
    s_add_u32 s5, s4, 4096
    s_waitcnt lgkmcnt(2)
    buffer_store_dwordx4 v[68:71], v3, s[32:35], s4 offen offset:2048 sc1
    s_waitcnt lgkmcnt(0)
    buffer_store_dwordx4 v[72:75], v3, s[32:35], s5 offen sc1
    ''')
    a.label(l67)
    a('''
    s_waitcnt lgkmcnt(0)
    buffer_store_dwordx4 v[64:67], v3, s[32:35], s4 offen sc1
    ''')
    a.label(l45)
    if not TAILST: stamp(a, 2)
    def zero_mailboxes():
        lz = a.newlabel('zero')
        a(f'''
        v_mov_b32 v46, 0
        v_mov_b32 v47, 0
        v_lshlrev_b32 v48, 3, v0
        s_mul_i32 s5, s2, 5120
        s_add_u32 s5, s5, {WS_CAND}
        buffer_store_dwordx2 v[46:47], v48, s[32:35], s5 offen sc1
        s_cmp_ge_u32 s20, 2
        s_cbranch_scc1 {lz}
        s_add_u32 s5, s5, 4096
        buffer_store_dwordx2 v[46:47], v48, s[32:35], s5 offen sc1
        s_cmp_ge_u32 s20, 1
        s_cbranch_scc1 {lz}
        s_mov_b64 exec, 0x3
        v_lshlrev_b32 v48, 12, v0
        s_lshl_b32 s5, s2, 4
        s_add_u32 s5, s5, {WS_KEY}
        buffer_store_dword v46, v48, s[32:35], s5 offen sc1
        v_lshlrev_b32 v48, 7, v0
        s_and_b32 s5, s2, {NREP-1}
        s_lshl_b32 s5, s5, 12
        s_add_u32 s5, s5, {WS_GO}
        s_cmp_lt_u32 s2, {NREP}
        s_cselect_b32 s5, s5, 0x40000000
        buffer_store_dwordx2 v[46:47], v48, s[32:35], s5 offen sc1
        s_mov_b64 exec, -1
        ''')
        a.label(lz)
        lz2 = a.newlabel('zero2'); lz3 = a.newlabel('zero3')
        a(f'''
        s_cmp_ge_u32 s2, 216
        s_cbranch_scc1 {lz2}
        s_cmp_lt_u32 s20, 3
        s_cbranch_scc1 {lz3}
        s_mul_i32 s5, s2, 2560
        s_add_u32 s5, s5, {WS_YP - 3*512}
        v_lshlrev_b32 v48, 3, v0
        buffer_store_dwordx2 v[46:47], v48, s[32:35], s5 offen sc1
        s_add_u32 s5, s5, {SET1}
        buffer_store_dwordx2 v[46:47], v48, s[32:35], s5 offen sc1
        s_branch {lz2}
        ''')
        a.label(lz3)
        a(f'''
        s_cmp_eq_u32 s20, 0
        s_cbranch_scc1 {lz2}
        s_lshl_b32 s5, s53, 1
        s_add_u32 s5, s5, s20
        s_mul_i32 s5, s5, 6912
        s_lshl_b32 s6, s52, 8
        s_add_u32 s5, s5, s6
        s_add_u32 s5, s5, {WS_PART - 6912}
        buffer_store_dword v46, v4, s[32:35], s5 offen sc1
        s_add_u32 s5, s5, {SET1}
        buffer_store_dword v46, v4, s[32:35], s5 offen sc1
        ''')
        a.label(lz2)
    def spin(body, slp=0):
        lsp = a.newlabel('spin'); lso = a.newlabel('spinout')
        a('s_mov_b32 s4, 0')
        a.label(lsp)
        a(body)
        a(f'''
        s_add_u32 s4, s4, 1
        s_cmp_ge_u32 s4, {SPIN_MAX}
        s_cbranch_scc1 {lso}
        s_cmp_eq_u64 vcc, exec
        s_cbranch_scc1 {lso}
        ''')
        if slp: a(f's_sleep {slp}')
        a(f's_branch {lsp}')
        a.label(lso)
    def signal(cnt_addr, which, lgkm=False, vm=0):
        ls = a.newlabel('sig')
        a(f'''
        s_waitcnt vmcnt({vm})
        v_mov_b32 v46, {cnt_addr}
        v_mov_b32 v47, 1
        s_mov_b64 exec, 1
        ds_add_rtn_u32 v48, v46, v47
        s_waitcnt lgkmcnt(0)
        v_readfirstlane_b32 s4, v48
        s_lshl_b32 s5, s2, 4
        s_add_u32 s5, s5, {WS_FLAG1 if which == 1 else WS_FLAG2}
        s_cmp_lg_u32 s4, 7
        s_cbranch_scc1 {ls}
        v_mov_b32 v46, 0
        ''')
        if which == 1:
            lrd = a.newlabel('rdy')
            a(f'''
            v_cmp_ne_u32 vcc, 0, v49
            s_cbranch_vccnz {lrd}
            ''')
            spin('''
            buffer_load_dword v48, v46, s[24:27], 0 offen sc1
            s_waitcnt vmcnt(0)
            v_cmp_ne_u32 vcc, 0, v48
            ''')
            a.label(lrd)
        a('buffer_store_dword v47, v46, s[32:35], s5 offen sc1')
        a.label(ls)
        a('s_mov_b64 exec, -1')
    def gather_flags(base, r):
        lsp = a.newlabel('gf'); lso = a.newlabel('gfo')
        a(f'''
        s_mov_b32 s5, {base}
        s_mov_b32 s6, {base + 2048}
        s_mov_b32 s4, 0
        ''')
        a.label(lsp)
        a(f'''
        buffer_load_dword v{r}, v3, s[32:35], s5 offen sc1
        buffer_load_dword v{r+1}, v3, s[32:35], s5 offen offset:1024 sc1
        buffer_load_dword v{r+2}, v3, s[32:35], s6 offen sc1
        buffer_load_dword v{r+3}, v3, s[32:35], s6 offen offset:1024 sc1
        s_add_u32 s4, s4, 1
        s_waitcnt vmcnt(0)
        v_min_u32 v{r+4}, v{r}, v{r+1}
        v_min3_u32 v{r+4}, v{r+4}, v{r+2}, v{r+3}
        v_cmp_eq_u32 vcc, 0, v{r+4}
        s_cmp_ge_u32 s4, {SPIN_MAX}
        s_cbranch_scc1 {lso}
        s_and_b64 exec, exec, vcc
        s_cbranch_execnz {lsp}
        ''')
        a.label(lso)
        a('s_mov_b64 exec, -1')
    def bcast(goaddr, vval, vt):
        a(f'''
        v_lshlrev_b32 v{vt}, 12, v2
        s_mov_b32 s5, {goaddr}
        s_mov_b64 exec, {(1<<NREP)-1:#x}
        buffer_store_dword v{vval}, v{vt}, s[32:35], s5 offen sc1
        s_mov_b64 exec, -1
        ''')
    def slave(goaddr, vr=47):
        a(f'''
        s_and_b32 s5, s2, {NREP-1}
        s_lshl_b32 s5, s5, 12
        s_add_u32 s5, s5, {goaddr}
        v_mov_b32 v46, 0
        ''')
        spin(f'''
        buffer_load_dword v{vr}, v46, s[32:35], s5 offen sc1
        s_waitcnt vmcnt(0)
        v_cmp_ne_u32 vcc, 0, v{vr}
        ''')
    def master1():
        gather_flags(WS_FLAG1, 44)
        a('v_mov_b32 v47, 1')
        bcast(WS_GO + 256, 47, 46)
    def sync2():
        lsl = a.newlabel('sl'); ld = a.newlabel('sd')
        a(f'''
        s_cmp_lg_u32 s2, 0
        s_cbranch_scc1 {lsl}
        ''')
        gather_flags(WS_FLAG2, 44)
        a('v_mov_b32 v47, 1')
        bcast(WS_GO, 47, 46)
        a(f's_branch {ld}')
        a.label(lsl)
        slave(WS_GO)
        a.label(ld)
    lmf = a.newlabel('kmfma'); lpf = a.newlabel('pf')
    a(f'''
    s_cmp_ge_u32 s20, 6
    s_cbranch_scc1 {lpf}
    s_mov_b32 s8, {fbits(LOG2E_HI):#x}
    s_mov_b32 s9, {fbits(LOG2E_LO):#x}
    s_mov_b32 s10, {fbits(LN2):#x}
    s_mov_b32 s11, {fbits(INV2PI):#x}
    s_waitcnt vmcnt({4 if WARM else 3})
    v_lshlrev_b32 v20, 16, v20
    v_lshlrev_b32 v21, 16, v21
    v_lshlrev_b32 v22, 16, v22
    v_lshlrev_b32 v23, 16, v23
    v_lshlrev_b32 v26, 16, v26
    v_and_b32 v24, 0x7f807f80, v24
    v_and_b32 v25, 0x7f807f80, v25
    v_pk_max_u16 v24, v24, v25
    v_lshrrev_b32 v25, 16, v24
    v_and_b32 v24, 0xffff, v24
    v_max_u32 v24, v24, v25
    ''')
    wave_reduce(a, 'v_max_u32', 24)
    lsk4 = a.newlabel('sk4')
    a(f'''
    s_cmp_lt_u32 s20, 4
    s_cbranch_scc1 {lsk4}
    ''')
    signal(M_CNT1, 1)
    a.label(lsk4)
    exp_bf16(a, 20, 27, 28, 8, 9, 10)
    exp_bf16(a, 26, 27, 28, 8, 9, 10)
    a(f'''
    v_readlane_b32 s12, v24, 63
    s_lshr_b32 s12, s12, 7
    s_min_u32 s12, s12, 252
    s_sub_u32 s13, 253, s12
    s_lshl_b32 s13, s13, 23
    s_add_u32 s14, s12, 2
    s_lshl_b32 s14, s14, 23
    v_mul_f32 v20, v20, v26
    v_mul_f32 v21, v21, v26
    v_mul_f32 v20, s8, v20
    v_sub_f32 v20, 0, v20
    v_mul_f32 v21, s11, v21
    v_mul_f32 v22, s13, v22
    v_mul_f32 v23, s13, v23
    v_mul_f32 v26, s14, v26
    s_lshl_b32 s15, s56, 2
    s_add_u32 s15, s15, {M_SCALE}
    v_mov_b32 v27, s15
    s_mov_b64 exec, 1
    ds_write_b32 v27, v26
    s_mov_b64 exec, -1
    s_mul_i32 s15, s56, {KT_SZ}
    s_and_b32 s16, s20, 1
    s_lshl_b32 s16, s16, 8
    s_add_u32 s15, s15, s16
    v_add_u32 v27, s15, v4
    ''')
    def cmul(r, x, y, t=28):
        a(f'v_pk_mul_f32 v[{t}:{t+1}], v[{x}:{x+1}], v[{y}:{y+1}] op_sel:[1,1] op_sel_hi:[1,0]')
        a(f'v_pk_fma_f32 v[{r}:{r+1}], v[{x}:{x+1}], v[{y}:{y+1}], v[{t}:{t+1}] op_sel:[0,0,0] op_sel_hi:[0,1,1] neg_lo:[0,0,1]')
    pk = [0]
    def putG(row, x):
        r = 76 + (pk[0] % 8); pk[0] += 1
        a(f'v_cvt_pk_f16_f32 v{r}, v{x}, -v{x+1}')
        a(f'ds_write_b32 v27, v{r} offset:{row*KT_RS}')
    def putE(b, x):
        r = 76 + (pk[0] % 8); pk[0] += 1
        a(f'v_cvt_pk_f16_f32 v{r}, v{x}, v{x+1}')
        a(f'ds_write_b32 v27, v{r} offset:{(KT_E0+b)*KT_RS}')
    def direct(dst, p):
        a(f'''
        v_mul_f32 v28, {fbits(float(p)):#x}, v20
        v_mul_f32 v29, {fbits(float(p)):#x}, v21
        v_exp_f32 v28, v28
        v_fract_f32 v29, v29
        v_cos_f32 v{dst}, v29
        v_sin_f32 v{dst+1}, v29
        s_nop 0
        v_mul_f32 v{dst}, v{dst}, v28
        v_mul_f32 v{dst+1}, v{dst+1}, v28
        ''')
    def ES(c): return 30 + 2 * c
    direct(ES(1), 1)
    direct(50, 128)
    direct(52, 8)
    cmul(ES(2), ES(1), ES(1))
    cmul(ES(3), ES(2), ES(1))
    cmul(ES(4), ES(2), ES(2))
    cmul(ES(5), ES(4), ES(1))
    cmul(ES(6), ES(4), ES(2))
    cmul(ES(7), ES(4), ES(3))
    a('v_mov_b32 v62, 0x00003c00')
    a(f'ds_write_b32 v27, v62 offset:{KT_E0*KT_RS}')
    putE(1, 52)
    E = 52
    ereg = [58, 60]
    for b in range(2, 16):
        ne = ereg[b % 2]
        cmul(ne, E, 52)
        putE(b, ne)
        E = ne
    H = 22
    tmp = [58, 60, 62, 64]
    ti = [0]
    def prodG(row, h, e):
        t = tmp[ti[0] % 4]; ti[0] += 1
        cmul(t, h, e)
        putG(row, t)
    hreg = [54, 56]
    for aa in range(17):
        if aa < 2:
            putG(8 * aa, H)
            for c in range(1, 8):
                prodG(8 * aa + c, H, ES(c))
        elif aa < 4:
            base = 16 + 4 * (aa - 2)
            putG(base, H)
            for c in range(1, 4):
                prodG(base + c, H, ES(2 * c))
        elif aa < 8:
            base = 24 + 2 * (aa - 4)
            putG(base, H)
            prodG(base + 1, H, ES(4))
        else:
            putG(32 + (aa - 8), H)
        if aa < 16:
            nh = hreg[aa % 2]
            cmul(nh, H, 50)
            H = nh
        if aa == SIGPOS:
            lsk = a.newlabel('sk')
            a(f'''
            s_cmp_ge_u32 s20, 4
            s_cbranch_scc1 {lsk}
            ''')
            signal(M_CNT1, 1, lgkm=True)
            a.label(lsk)
            if not TAILST: stamp(a, 4)
    a(f'''
    s_lshl_b32 s4, s56, 2
    s_add_u32 s4, s4, {M_PAIR}
    v_mov_b32 v46, s4
    v_mov_b32 v47, 1
    s_waitcnt lgkmcnt(0)
    s_mov_b64 exec, 1
    ds_add_u32 v46, v47
    ''')
    spin('''
    ds_read_b32 v48, v46
    s_waitcnt lgkmcnt(0)
    v_cmp_le_u32 vcc, 2, v48
    ''')
    a('s_mov_b64 exec, -1')
    a('s_and_b32 s30, s20, 1')
    a(f's_branch {lmf}')
    a.label(lpf)
    signal(M_CNT1, 1)
    if not TAILST: stamp(a, 4)
    lnm = a.newlabel('notmaster')
    a(f'''
    s_cmp_lg_u32 s2, 0
    s_cbranch_scc1 {lnm}
    s_cmp_lg_u32 s20, 7
    s_cbranch_scc1 {lnm}
    ''')
    master1()
    a.label(lnm)
    if PF == 'late':
        prefetch()
    lk2 = a.newlabel('kdone'); lt67 = a.newlabel('t67')
    a('s_sub_u32 s5, s20, 6')
    a.label(lt67)
    a(f'''
    s_lshl_b32 s4, s5, 2
    s_add_u32 s4, s4, {M_PAIR}
    v_mov_b32 v46, s4
    s_mov_b32 s7, s5
    s_mov_b64 exec, 1
    ''')
    spin('''
    ds_read_b32 v48, v46
    s_waitcnt lgkmcnt(0)
    v_cmp_le_u32 vcc, 2, v48
    ''', slp=1)
    a('''
    s_mov_b64 exec, -1
    s_mov_b32 s56, s7
    s_mov_b32 s30, 2
    ''')
    a.label(lmf)
    a(f'''
    v_and_b32 v44, 15, v2
    v_lshrrev_b32 v45, 4, v2
    v_mul_u32_u24 v46, {KT_RS}, v44
    v_lshl_add_u32 v46, v45, 4, v46
    s_mov_b32 s4, s30
    s_mov_b32 s5, s56
    ''')
    ltask = a.newlabel('task')
    a.label(ltask)
    a(f'''
    s_mov_b32 s6, s4                       ; tile
    s_mul_i32 s8, s5, {KT_SZ}
    s_mul_i32 s9, s6, {16*KT_RS}
    s_add_u32 s9, s9, s8
    s_add_u32 s8, s8, {KT_E0*KT_RS}
    v_add_u32 v47, s9, v46
    v_add_u32 v48, s8, v46
    ''')
    for ks in range(8):
        a(f'ds_read_b128 v[{64+8*ks}:{67+8*ks}], v47 offset:{64*ks}')
        a(f'ds_read_b128 v[{68+8*ks}:{71+8*ks}], v48 offset:{64*ks}')
    lt2 = a.newlabel('t2'); lt1 = a.newlabel('t1'); lnext = a.newlabel('next')
    a(f'''
    s_mul_i32 s8, s5, {KC_SZ}
    s_add_u32 s8, s8, {L_KC + 16}
    s_cmp_eq_u32 s6, 2
    s_cbranch_scc1 {lt2}
    ''')
    for ks in range(8):
        a(f's_waitcnt lgkmcnt({14-2*ks})')
        c = '0' if ks == 0 else 'v[56:59]'
        a(f'v_mfma_f32_16x16x32_f16 v[56:59], v[{64+8*ks}:{67+8*ks}], v[{68+8*ks}:{71+8*ks}], {c}')
    a(f'''
    s_cmp_eq_u32 s6, 1
    s_cbranch_scc1 {lt1}
    v_lshrrev_b32 v49, 1, v45
    v_lshlrev_b32 v49, 8, v49
    v_lshl_add_u32 v49, v44, 4, v49
    v_and_b32 v50, 1, v45
    v_lshl_add_u32 v49, v50, 3, v49
    v_add_u32 v49, s8, v49
    s_nop 4
    v_cvt_pk_f16_f32 v60, v56, v57
    v_cvt_pk_f16_f32 v61, v58, v59
    ds_write_b64 v49, v[60:61]
    s_branch {lnext}
    ''')
    a.label(lt1)
    a(f'''
    v_lshlrev_b32 v49, 7, v45
    v_add_u32 v49, s8, v49
    v_lshl_add_u32 v50, v44, 3, v49
    v_add_u32 v50, 512, v50
    v_add_u32 v51, 4, v50
    v_lshl_add_u32 v52, v44, 2, v49
    v_add_u32 v52, 512, v52
    v_add_u32 v53, 64, v52
    v_cmp_gt_u32 vcc, 2, v45
    s_nop 1
    v_cndmask_b32 v50, v52, v50, vcc
    v_cndmask_b32 v51, v53, v51, vcc
    v_cvt_pk_f16_f32 v60, v56, v57
    v_cvt_pk_f16_f32 v61, v58, v59
    ds_write_b32 v50, v60
    ds_write_b32 v51, v61
    s_branch {lnext}
    ''')
    a.label(lt2)
    for ks in range(8):
        a(f's_waitcnt lgkmcnt({14-2*ks})')
        c = '0' if ks == 0 else 'v[56:59]'
        a(f'v_mfma_f32_16x16x32_f16 v[56:59], v[{68+8*ks}:{71+8*ks}], v[{64+8*ks}:{67+8*ks}], {c}')
    a(f'''
    v_lshlrev_b32 v49, 5, v44
    v_lshl_add_u32 v49, v45, 3, v49
    v_add_u32 v49, 1024, v49
    v_add_u32 v49, s8, v49
    v_cmp_gt_u32 vcc, 9, v44
    s_nop 4
    v_cvt_pk_f16_f32 v60, v56, v57
    v_cvt_pk_f16_f32 v61, v58, v59
    s_and_saveexec_b64 s[10:11], vcc
    ds_write_b64 v49, v[60:61]
    s_mov_b64 exec, s[10:11]
    ''')
    a.label(lnext)
    a(f'''
    s_cmp_lg_u32 s20, 6
    s_cbranch_scc1 {lk2}
    s_cmp_lg_u32 s5, 0
    s_cbranch_scc1 {lk2}
    s_mov_b32 s5, 2
    s_branch {lt67}
    ''')
    a.label(lk2)
    srd(a, 44, 70, 71, 1728 * 1280)
    a(f'''
    s_mul_i32 s53, s2, 2428
    s_lshr_b32 s53, s53, 16                ; kg = b/27
    s_mul_i32 s52, s53, 27
    s_sub_u32 s52, s2, s52                 ; cg
    s_cmp_lt_u32 s20, 4
    s_cselect_b32 s40, s66, s68
    s_cselect_b32 s41, s67, s69
    s_and_b32 s41, s41, 0xffff
    s_mov_b32 s42, {640*3456}
    s_mov_b32 s43, 0x00020000
    s_mul_i32 s54, s53, 80
    s_and_b32 s55, s20, 3
    s_mul_i32 s55, s55, 20
    s_add_u32 s54, s54, s55
    s_mul_i32 s12, s54, 3456
    s_lshl_b32 s55, s52, 7
    s_add_u32 s12, s12, s55
    s_mul_i32 s15, s2, {8*1280}
    s_lshl_b32 s55, s20, 8
    s_add_u32 s15, s15, s55
    s_cmp_lt_u32 s20, 5
    s_cselect_b32 s15, s15, 0x40000000
    s_cmp_lt_u32 s2, 216
    s_cselect_b32 s12, s12, 0x40000000
    s_cselect_b32 s15, s15, 0x40000000
    s_add_u32 s13, s12, {8*3456}
    s_add_u32 s14, s12, {16*3456}
    s_add_u32 s16, s15, {3*1280}
    s_add_u32 s17, s15, {6*1280}
    v_lshrrev_b32 v16, 3, v2
    v_mul_u32_u24 v16, 3456, v16
    v_and_b32 v17, 7, v2
    v_lshl_add_u32 v16, v17, 4, v16
    v_mov_b32 v17, {OOB:#x}
    v_cmp_gt_u32 vcc, 32, v2
    s_nop 1
    v_cndmask_b32 v17, v17, v16, vcc
    ''')
    WL = [f'buffer_load_dwordx4 v[{VW+4*e}:{VW+4*e+3}], v{17 if e == 2 else 16}, s[40:43], s{12+e} offen' for e in range(3)]
    WL += [f'buffer_load_dword v{VW+12+r}, v4, s[44:47], s{15 + r//3} offen offset:{1280*(r%3)}' for r in range(8)]
    lp1 = a.newlabel('p1'); lp0 = a.newlabel('p0')
    a(f'''
    s_cmp_eq_u32 s20, 7
    s_cbranch_scc1 {lp0}
    ''')
    if WPOS == 'B':
        for ins in WL:
            a(ins)
    a(f's_branch {lp1}')
    a.label(lp0)
    slave(WS_GO + 256)
    a.label(lp1)
    a(f'''
    v_lshlrev_b32 v6, 3, v0
    v_mov_b32 v18, 0
    s_lshl_b32 s4, s61, 1
    s_add_u32 s4, s4, s60
    s_lshl_b32 s4, s4, 4
    s_add_u32 s4, s4, {WS_U}
    s_waitcnt lgkmcnt(0)
    s_barrier
    buffer_load_dwordx4 v[8:11], v{VU}, s[32:35], s4 offen sc1
    buffer_load_dwordx4 v[12:15], v{VU+2}, s[32:35], s4 offen sc1
    ''')
    if not TAILST: stamp(a, 6)
    if PF == 'ug':
        srd(a, 36, 66, 67, 640 * 3456)
        a(f'''
        s_cmp_lt_u32 s20, 4
        s_cselect_b32 s36, s66, s68
        s_cselect_b32 s37, s67, s69
        s_and_b32 s37, s37, 0xffff
        s_and_b32 s4, s2, 7
        s_lshr_b32 s5, s2, 3
        s_mul_i32 s6, s4, 432
        s_mul_i32 s7, s5, {20*3456}
        s_add_u32 s6, s6, s7
        s_and_b32 s7, s20, 3
        s_mul_i32 s7, s7, {5*3456}
        s_add_u32 s6, s6, s7
        v_lshrrev_b32 v19, 5, v2
        v_mul_u32_u24 v19, 3456, v19
        v_and_b32 v20, 31, v2
        v_lshl_add_u32 v19, v20, 4, v19
        v_mov_b32 v21, {OOB:#x}
        v_cmp_gt_u32 vcc, 27, v20
        s_add_u32 s7, s6, {2*3456}
        s_add_u32 s8, s6, {4*3456}
        v_cndmask_b32 v19, v21, v19, vcc
        buffer_load_dwordx4 v[196:199], v19, s[36:39], s6 offen
        buffer_load_dwordx4 v[196:199], v19, s[36:39], s7 offen
        v_cmp_gt_u32 vcc, 27, v2
        s_mul_i32 s6, s4, 160
        s_mul_i32 s7, s5, {54*1280}
        v_cndmask_b32 v19, v21, v19, vcc
        buffer_load_dwordx4 v[196:199], v19, s[36:39], s8 offen
        s_add_u32 s6, s6, s7
        s_mul_i32 s7, s20, {7*1280}
        s_add_u32 s6, s6, s7
        v_mul_u32_u24 v19, 29, v2
        v_lshrrev_b32 v19, 8, v19
        v_mul_u32_u24 v20, 9, v19
        v_sub_u32 v20, v2, v20
        v_mul_u32_u24 v19, 1280, v19
        v_lshl_add_u32 v19, v20, 4, v19
        v_mul_u32_u24 v22, 20, v20
        v_lshrrev_b32 v22, 4, v22
        v_cmp_gt_u32 vcc, 63, v2
        s_nop 1
        v_cndmask_b32 v19, v21, v19, vcc
        buffer_load_dwordx4 v[196:199], v19, s[44:47], s6 offen
        ''')
    for c in range(3):
        r = 32 + 16 * c
        for dd in range(7):
            a(f'ds_read_u16 v{r+dd}, v{GA+dd} offset:{c*KC_SZ}')
    a('''
    v_cmp_gt_u32 vcc, 96, v0
    s_and_saveexec_b64 s[4:5], vcc
    ds_write_b32 v164, v18
    s_mov_b64 exec, s[4:5]
    ''')
    for c in range(3):
        r = 32 + 16 * c
        a(f's_waitcnt lgkmcnt({min(15, 7*(2-c) + 4*c)})')
        for i in range(6):
            a(f'v_lshl_or_b32 v{r+8+i}, v{r+i+1}, 16, v{r+i}')
        for s_ in range(4):
            off = c * CP_SZ + s_ * CS + 32
            a(f'v_add_u32 v7, {off}, v6')
            a(f'ds_write2_b32 v7, v{r+8+3-s_}, v{r+8+5-s_} offset0:0 offset1:1')
    a(f'''
    v_cmp_gt_u32 vcc, 256, v0
    s_waitcnt vmcnt({5 if PF == 'ug' else 1})
    ds_write_b32 v{VU+1}, v8
    ds_write_b32 v{VU+1}, v9 offset:{US}
    ds_write_b32 v{VU+1}, v10 offset:{2*US}
    ds_write_b32 v{VU+1}, v11 offset:{3*US}
    s_waitcnt vmcnt({4 if PF == 'ug' else 0})
    s_and_saveexec_b64 s[4:5], vcc
    ds_write_b32 v{VU+3}, v12
    ds_write_b32 v{VU+3}, v13 offset:{US}
    ds_write_b32 v{VU+3}, v14 offset:{2*US}
    ds_write_b32 v{VU+3}, v15 offset:{3*US}
    s_mov_b64 exec, s[4:5]
    ''')
    if WPOS == 'B':
        lw0 = a.newlabel('w0')
        a(f'''
        s_cmp_lg_u32 s20, 0
        s_cbranch_scc1 {lw0}
        ''')
        for ins in WL:
            a(ins)
        a.label(lw0)
    if WPOS == 'U':
        for ins in WL:
            a(ins)
    zero_mailboxes()
    srd(a, 28, 64, 65, 1280)
    a('''
    buffer_load_dwordx4 v[160:163], v3, s[28:31], 0 offen
    buffer_load_dword v164, v4, s[28:31], 0 offen offset:1024
    ''')
    a(f'''
    v_lshrrev_b32 v8, 4, v2
    v_mul_u32_u24 v9, {CS}, v8
    v_bfe_u32 v10, v2, 2, 2
    v_and_b32 v11, 3, v2
    v_sub_u32 v10, v11, v10
    v_lshl_add_u32 v9, v10, 3, v9
    v_add_u32 v9, 32, v9
    v_mul_u32_u24 v10, {US}, v8
    v_and_b32 v11, 15, v2
    v_lshl_add_u32 v10, v11, 3, v10
    v_add_u32 v10, {L_UP+8}, v10
    v_lshlrev_b32 v12, 5, v11
    v_lshl_add_u32 v12, v8, 3, v12
    v_lshlrev_b32 v13, 4, v2
    v_mov_b32 v5, {M_SCALE}
    ds_read_b96 v[20:22], v5
    ''')
    ACC = 24
    for i in range(8, 32):
        a(f'v_mov_b32 v{ACC+i}, 0')
    a('''
    s_waitcnt lgkmcnt(0)
    s_barrier
    ''')
    for i in range(8):
        a(f'v_mov_b32 v{ACC+i}, 0')
    a('''
    v_readfirstlane_b32 s48, v20
    v_readfirstlane_b32 s49, v21
    v_readfirstlane_b32 s50, v22
    ''')
    stamp(a, 8)
    if CONVST: cstamp(a, 10)
    if PF == 'conv':
        lnp = a.newlabel('np')
        a(f'''
        s_cmp_lt_u32 s20, 6
        s_cbranch_scc1 {lnp}
        s_mov_b32 s8, s40
        s_mov_b32 s9, s41
        s_mov_b32 s10, s42
        ''')
        prefetch(152)
        a('''
        s_mov_b32 s40, s8
        s_mov_b32 s41, s9
        s_mov_b32 s42, s10
        ''')
        a.label(lnp)
    FR = [56, 112]
    def loads(setbase, tiles_mx, cls_idx):
        out = []
        for m in range(tiles_mx + 1):
            fa, fb = setbase[0] + 4 * m, setbase[1] + 4 * m
            oa = 512 * m + 64 * (3 - cls_idx)
            ob = 128 * m + 16 * cls_idx
            out.append(f'ds_read_b64_tr_b16 v[{fa}:{fa+1}], v14 offset:{oa+32}')
            out.append(f'ds_read_b64_tr_b16 v[{fa+2}:{fa+3}], v14 offset:{oa}')
            out.append(f'ds_read_b64 v[{fb}:{fb+1}], v15 offset:{ob}')
            out.append(f'ds_read_b64 v[{fb+2}:{fb+3}], v15 offset:{ob+8}')
        return out
    SETS = [(56, 88), (120, 216)]
    def conv(tiles, ncls):
        mx = max(tiles)
        for ins in loads(SETS[0], mx, 0):
            a(ins)
        for ci in range(ncls):
            st = SETS[ci % 2]
            nxt = loads(SETS[(ci + 1) % 2], mx, ci + 1) if ci + 1 < ncls else []
            mf = []
            for s in range(mx + 1):
                grp = []
                for (m, aa) in [(s, i) for i in range(s + 1)] + [(i, s) for i in range(s)]:
                    c = m + aa
                    if c in tiles:
                        grp.append(f'v_mfma_f32_16x16x32_f16 v[{ACC+4*c}:{ACC+4*c+3}], v[{st[0]+4*m}:{st[0]+4*m+3}], v[{st[1]+4*aa}:{st[1]+4*aa+3}], v[{ACC+4*c}:{ACC+4*c+3}]')
                mf.append(grp)
            nload = 4 * (mx + 1)
            k = 0
            nm = 0
            nw = max(1, ncls // 2)
            wq = WL[ci * len(WL) // nw:(ci + 1) * len(WL) // nw] if (WPOS == 'conv' and ci < nw) else []
            wstep = max(1, sum(len(g) for g in mf) // (len(wq) + 1))
            for s_ in range(mx + 1):
                allowed = nload - 4 * (s_ + 1) + k
                if mf[s_]:
                    a(f's_waitcnt lgkmcnt({min(15, allowed)})')
                for ins in mf[s_]:
                    a(ins)
                    nm += 1
                    if wq and nm % wstep == 0:
                        a(wq.pop(0))
                    if (ci > 0 or s_ >= 2) and k < len(nxt):
                        a(nxt[k]); k += 1
                        if len(tiles) < 8 and k < len(nxt):
                            a(nxt[k]); k += 1
            while k < len(nxt):
                a(nxt[k]); k += 1
            for ins in wq: a(ins)
            if CONVST: cstamp(a, [2, 4, 5, 6][ci])
        a('s_nop 7')
        a('s_nop 1')
        stamp(a, 7)
    def epilogue(c, sreg_scale, sreg_out):
        r = ACC + 4 * c
        a(f'''
        v_fma_f32 v{r}, s{sreg_scale}, v{r}, 0
        v_fma_f32 v{r+1}, s{sreg_scale}, v{r+1}, 0
        v_fma_f32 v{r+2}, s{sreg_scale}, v{r+2}, 0
        v_fma_f32 v{r+3}, s{sreg_scale}, v{r+3}, 0
        v_cvt_pk_bf16_f32 v{r}, v{r}, v{r+1}
        v_cvt_pk_bf16_f32 v{r+1}, v{r+2}, v{r+3}
        v_xor_b32 v{r}, 0x80008000, v{r}
        v_xor_b32 v{r+1}, 0x80008000, v{r+1}
        buffer_store_dwordx2 v[{r}:{r+1}], v12, s[32:35], s{sreg_out} offen offset:{512*c} sc1
        ''')
    lS = a.newlabel('shared'); lcd = a.newlabel('convdone')
    FA = 56
    a(f'''
    s_cmp_ge_u32 s20, 4
    s_cbranch_scc1 {lS}
    s_lshr_b32 s4, s20, 1                  ; slot 0/1
    s_and_b32 s5, s20, 1
    s_lshl_b32 s6, s5, 2
    s_mul_i32 s7, s4, {CP_SZ}
    s_sub_u32 s8, 4, s6                    ; 7-(first+3)
    s_lshl_b32 s8, s8, 6
    s_add_u32 s7, s7, s8
    v_add_u32 v14, s7, v9
    s_mul_i32 s7, s4, {UP_SZ}
    s_lshl_b32 s8, s6, 4
    s_add_u32 s7, s7, s8
    v_add_u32 v15, s7, v10
    s_lshl_b32 s10, s20, 11
    s_add_u32 s10, s10, s3
    v_add_u32 v13, {L_RED}, v13
    v_lshlrev_b32 v18, 6, v11
    v_lshl_add_u32 v18, v8, 4, v18         ; 64n + 16q
    ''')
    conv(list(range(8)), 4)
    lws = [a.newlabel(f'rw{w}') for w in range(4)]
    a(f'''
    s_cmp_eq_u32 s20, 1
    s_cbranch_scc1 {lws[1]}
    s_cmp_eq_u32 s20, 2
    s_cbranch_scc1 {lws[2]}
    s_cmp_eq_u32 s20, 3
    s_cbranch_scc1 {lws[3]}
    ''')
    for w in range(4):
        a.label(lws[w])
        for c in range(8):
            if c >> 1 != w:
                a(f'ds_write_b128 v13, v[{ACC+4*c}:{ACC+4*c+3}] offset:{8192*w + 1024*c}')
        a('s_waitcnt vmcnt(11) lgkmcnt(0)')
        a('s_barrier')
        if REDST: stamp(a, 5)
        others = [x for x in range(4) if x != w]
        partner = w ^ 1
        oth = [x for x in others if x != partner]
        for j in range(2):
            c = 2 * w + j
            for k, x in enumerate([partner] + oth):
                a(f'ds_read_b128 v[{FA+12*j+4*k}:{FA+12*j+4*k+3}], v13 offset:{8192*x + 1024*c}')
        for j in range(2):
            c = 2 * w + j
            own = ACC + 4 * c; f0 = FA + 12 * j
            a(f's_waitcnt lgkmcnt({3*(1-j)})')
            for e in range(4):
                a(f'v_add_f32 v{own+e}, v{own+e}, v{f0+e}')
                a(f'v_add_f32 v{f0+4+e}, v{f0+4+e}, v{f0+8+e}')
            ra, rb_ = (own, f0 + 4) if w < 2 else (f0 + 4, own)
            q = FA + 32 + 4 * j
            for e in range(4):
                a(f'v_fma_f32 v{ra+e}, s48, v{ra+e}, 0')
                a(f'v_fma_f32 v{rb_+e}, s49, v{rb_+e}, 0')
            a(f'''
            v_cvt_pk_bf16_f32 v{q}, v{ra}, v{ra+1}
            v_cvt_pk_bf16_f32 v{q+1}, v{ra+2}, v{ra+3}
            v_cvt_pk_bf16_f32 v{q+2}, v{rb_}, v{rb_+1}
            v_cvt_pk_bf16_f32 v{q+3}, v{rb_+2}, v{rb_+3}
            v_xor_b32 v{q}, 0x80008000, v{q}
            v_xor_b32 v{q+1}, 0x80008000, v{q+1}
            v_xor_b32 v{q+2}, 0x80008000, v{q+2}
            v_xor_b32 v{q+3}, 0x80008000, v{q+3}
            s_nop 0
            v_permlane16_swap_b32 v{q}, v{q+2}
            v_permlane16_swap_b32 v{q+1}, v{q+3}
            buffer_store_dwordx4 v[{q}:{q+3}], v18, s[32:35], s10 offen offset:{1024*j} sc1
            ''')
        a(f's_branch {lcd}')
    a.label(lS)
    if PRIO: a(f's_setprio {PRIO}')
    lSo = a.newlabel('sharedodd')
    a(f'''
    s_sub_u32 s5, s20, 4                   ; ww
    s_lshl_b32 s6, s5, 1
    s_sub_u32 s8, 4, s6
    s_lshl_b32 s8, s8, 6
    s_add_u32 s7, s8, {2*CP_SZ}
    v_add_u32 v14, s7, v9
    s_lshl_b32 s8, s6, 4
    s_add_u32 s7, s8, {2*UP_SZ}
    v_add_u32 v15, s7, v10
    s_mov_b32 s10, s100
    v_add_u32 v13, {L_RED + 32768}, v13
    s_cmp_eq_u32 s61, 1
    s_cbranch_scc1 {lSo}
    ''')
    for par in range(2):
        tiles = [0, 1, 2, 3, 7] if par == 0 else [4, 5, 6]
        if par == 1:
            a.label(lSo)
        conv(tiles, 2)
        a('s_lshl_b32 s11, s5, 10')
        a('v_add_u32 v14, s11, v13')
        for i, c in enumerate(tiles):
            a(f'ds_write_b128 v14, v[{ACC+4*c}:{ACC+4*c+3}] offset:{4096*i}')
        a('s_waitcnt vmcnt(11) lgkmcnt(0)' if WPOS == 'conv' else 's_waitcnt vmcnt(0) lgkmcnt(0)')
        a('s_barrier')
        if REDST: stamp(a, 5)
        for ww in range(4):
            lnx = a.newlabel('nx')
            a(f's_cmp_lg_u32 s5, {ww}')
            a(f's_cbranch_scc1 {lnx}')
            for i, c in enumerate(tiles):
                if i % 4 != ww: continue
                for k in range(4):
                    a(f'ds_read_b128 v[{FA+4*k}:{FA+4*k+3}], v13 offset:{4096*i + 1024*k}')
                a('s_waitcnt lgkmcnt(0)')
                for e in range(4):
                    a(f'v_add_f32 v{FA+e}, v{FA+e}, v{FA+4+e}')
                    a(f'v_add_f32 v{FA+8+e}, v{FA+8+e}, v{FA+12+e}')
                    a(f'v_add_f32 v{ACC+4*c+e}, v{FA+e}, v{FA+8+e}')
                epilogue(c, 50, 10)
            a(f's_branch {lcd}')
            a.label(lnx)
        a(f's_branch {lcd}')
    a.label(lcd)
    if PRIO: a('s_setprio 0')
    stamp(a, 9)
    srd(a, 36, 72, 73, 2621440)
    lg = a.newlabel('g'); lg1 = a.newlabel('g1'); lg2 = a.newlabel('g2'); lgo = a.newlabel('go')
    a(f'''
    v_lshrrev_b32 v7, 1, v0
    v_lshlrev_b32 v5, 13, v7
    v_and_b32 v6, 1, v0
    v_lshl_add_u32 v5, v6, 4, v5
    v_lshrrev_b32 v33, 2, v0
    v_mul_u32_u24 v33, 5, v33
    v_add_u32 v6, v6, v33
    v_and_b32 v7, 1, v7
    v_mul_u32_u24 v7, 3, v7
    v_add_u32 v6, v6, v7
    v_lshlrev_b32 v6, 2, v6
    v_lshlrev_b32 v7, 12, v0
    v_mul_u32_u24 v33, 20, v0
    v_add_u32 v33, 8, v33
    s_lshl_b32 s48, s21, 5
    s_add_u32 s48, s48, {WS_YT}
    s_lshl_b32 s49, s21, 4
    s_add_u32 s49, s49, {WS_YS}
    v_cmp_gt_u32 vcc, 128, v0
    s_mov_b64 s[6:7], -1
    s_mov_b64 s[8:9], vcc
    s_mov_b32 s4, 0
    ''')
    a.label(lg)
    a(f'''
    s_mov_b64 exec, s[6:7]
    s_cbranch_execz {lg1}
    buffer_load_dwordx4 v[8:11], v5, s[32:35], s48 offen sc1
    ''')
    a.label(lg1)
    a(f'''
    s_mov_b64 exec, s[8:9]
    s_cbranch_execz {lg2}
    buffer_load_dwordx4 v[12:15], v7, s[32:35], s49 offen sc1
    ''')
    a.label(lg2)
    a(f'''
    s_mov_b64 exec, -1
    s_add_u32 s4, s4, 1
    s_waitcnt vmcnt(0)
    v_min_u32 v36, v8, v9
    v_min3_u32 v36, v36, v10, v11
    v_min_u32 v37, v12, v13
    v_min3_u32 v37, v37, v14, v15
    v_cmp_eq_u32 vcc, 0, v36
    v_cmp_eq_u32 s[10:11], 0, v37
    s_and_b64 s[6:7], s[6:7], vcc
    s_and_b64 s[8:9], s[8:9], s[10:11]
    s_cmp_ge_u32 s4, {SPIN_MAX}
    s_cbranch_scc1 {lgo}
    s_or_b64 s[10:11], s[6:7], s[8:9]
    s_cbranch_scc1 {lg}
    ''')
    a.label(lgo)
    stamp(a, 3)
    if STAMPS:
        a('s_mov_b32 s78, s4')
    a(f'''
    v_cmp_gt_u32 vcc, 128, v0
    ds_write2st64_b32 v6, v8, v9 offset0:0 offset1:10
    ds_write2st64_b32 v6, v10, v11 offset0:20 offset1:30
    s_and_saveexec_b64 s[42:43], vcc
    ds_write2st64_b32 v33, v12, v13 offset0:0 offset1:10
    ds_write2st64_b32 v33, v14, v15 offset0:20 offset1:30
    s_mov_b64 exec, s[42:43]
    s_lshr_b32 s44, s20, 1
    s_mul_i32 s44, s44, 2560
    v_lshlrev_b32 v7, 5, v2
    v_add_u32 v7, s44, v7
    v_lshlrev_b32 v33, 3, v2
    v_add_u32 v33, s44, v33
    s_and_b32 s45, s20, 1
    s_mul_i32 s45, s45, 0x02020000
    s_add_u32 s45, s45, 0x01000c0c
    ''')
    XR = 40; T = 50; W = 60; H = 70
    for i in range(4):
        unpack(a, VX + i, XR + 2 * i, XR + 2 * i + 1)
        unpack(a, VT + i, T + 2 * i, T + 2 * i + 1)
        unpack(a, 160 + i, W + 2 * i, W + 2 * i + 1)
    unpack(a, VX + 4, XR + 8, XR + 9)
    unpack(a, VT + 4, T + 8, T + 9)
    unpack(a, 164, W + 8, W + 9)
    a(f'''
    s_waitcnt lgkmcnt(0)
    s_barrier
    ds_read_b128 v[8:11], v7
    ds_read_b128 v[12:15], v7 offset:16
    ds_read_b64 v[34:35], v33 offset:2048
    ''')
    if not CONVST: stamp(a, 10)
    X = XR
    a('s_waitcnt lgkmcnt(0)')
    ysrc = list(range(8, 16)) + [34, 35]
    for i in range(10):
        a(f'v_perm_b32 v{ysrc[i]}, v{ysrc[i]}, v{ysrc[i]}, s45')
    for p in range(5):
        i0, i1 = 2 * p, 2 * p + 1
        a(f'''
        v_sub_f32 v{T+i0}, v{T+i0}, v{ysrc[i0]}
        v_sub_f32 v{T+i1}, v{T+i1}, v{ysrc[i1]}
        v_cvt_pk_bf16_f32 v36, v{T+i0}, v{T+i1}
        v_lshlrev_b32 v{T+i0}, 16, v36
        v_and_b32 v{T+i1}, 0xffff0000, v36
        v_add_f32 v{T+i0}, v{X+i0}, v{T+i0}
        v_add_f32 v{T+i1}, v{X+i1}, v{T+i1}
        v_cvt_pk_bf16_f32 v36, v{T+i0}, v{T+i1}
        v_lshlrev_b32 v{H+i0}, 16, v36
        v_and_b32 v{H+i1}, 0xffff0000, v36
        ''')
    ln_stats(a, H, X, 36, 21, 37, 38, 39, 46, 47, 48)
    a('v_mov_b32 v36, 0')
    a('v_mov_b32 v21, 0')
    for p in range(5):
        i0, i1 = 2 * p, 2 * p + 1
        a(f'''
        v_sub_f32 v{X+i0}, v{H+i0}, v37
        v_sub_f32 v{X+i1}, v{H+i1}, v37
        v_cvt_pk_bf16_f32 v39, v{X+i0}, v{X+i1}
        v_lshlrev_b32 v{X+i0}, 16, v39
        v_and_b32 v{X+i1}, 0xffff0000, v39
        v_mul_f32 v{X+i0}, v{X+i0}, v38
        v_mul_f32 v{X+i1}, v{X+i1}, v38
        v_cvt_pk_bf16_f32 v39, v{X+i0}, v{X+i1}
        v_lshlrev_b32 v{X+i0}, 16, v39
        v_and_b32 v{X+i1}, 0xffff0000, v39
        v_fmac_f32 v36, v{X+i0}, v{W+i0}
        v_fmac_f32 v21, v{X+i1}, v{W+i1}
        ''')
    a('v_add_f32 v36, v36, v21')
    wave_reduce(a, 'v_add_f32', 36)
    a(f'''
    v_cvt_pk_bf16_f32 v36, v36, v36
    v_and_b32 v36, 0xffff, v36
    v_xor_b32 v37, 0xffff, v36
    v_or_b32 v38, 0x8000, v36
    v_cmp_lt_u32 vcc, 0x7fff, v36
    s_sub_u32 s46, 4095, s22
    s_lshl_b32 s49, s20, 2
    v_cndmask_b32 v36, v38, v37, vcc
    v_lshl_or_b32 v36, v36, 16, s46
    s_add_u32 s49, s49, {M_KEYS}
    v_mov_b32 v37, s49
    v_readlane_b32 s48, v36, 63
    s_nop 1
    v_mov_b32 v38, s48
    ds_write_b32 v37, v38
    ''')
    for p in range(5):
        i0, i1 = 2 * p, 2 * p + 1
        a(f'''
        v_add_f32 v{T+i0}, v{H+i0}, v{X+i0}
        v_add_f32 v{T+i1}, v{H+i1}, v{X+i1}
        v_cvt_pk_bf16_f32 v{92+p}, v{T+i0}, v{T+i1}
        ''')
    lnb = a.newlabel('notbest'); lpoll = a.newlabel('poll'); lb2 = a.newlabel('b2')
    a(f'''
    v_and_b32 v37, 7, v2
    v_lshlrev_b32 v37, 2, v37
    v_add_u32 v37, {M_KEYS}, v37
    s_waitcnt lgkmcnt(0)
    s_barrier
    ds_read_b32 v38, v37
    s_waitcnt lgkmcnt(0)
    s_nop 1
    v_max_u32_dpp v38, v38, v38 quad_perm:[1,0,3,2] row_mask:0xf bank_mask:0xf
    s_nop 1
    v_max_u32_dpp v38, v38, v38 quad_perm:[2,3,0,1] row_mask:0xf bank_mask:0xf
    s_nop 1
    v_max_u32_dpp v38, v38, v38 row_half_mirror row_mask:0xf bank_mask:0xf
    s_nop 0
    v_readfirstlane_b32 s50, v38
    s_cmp_lg_u32 s50, s48
    s_cbranch_scc1 {lnb}
    s_lshl_b32 s51, s21, 4
    s_add_u32 s51, s51, {WS_KEY}
    v_mov_b32 v37, 0
    s_mov_b64 exec, 1
    buffer_store_dword v38, v37, s[32:35], s51 offen sc1
    s_mov_b64 exec, -1
    ''')
    for i in range(10):
        a(f'v_or_b32 v{X+i}, 1, v{X+i}')
        a(f'v_or_b32 v{H+i}, 1, v{H+i}')
    a(f'''
    s_mul_i32 s51, s21, 5120
    s_add_u32 s51, s51, {WS_CAND}
    v_lshlrev_b32 v37, 5, v2
    v_lshlrev_b32 v39, 3, v2
    buffer_store_dwordx4 v[{X}:{X+3}], v37, s[32:35], s51 offen sc1
    buffer_store_dwordx4 v[{X+4}:{X+7}], v37, s[32:35], s51 offen offset:16 sc1
    buffer_store_dwordx2 v[{X+8}:{X+9}], v39, s[32:35], s51 offen offset:2048 sc1
    s_add_u32 s51, s51, 2560
    buffer_store_dwordx4 v[{H}:{H+3}], v37, s[32:35], s51 offen sc1
    buffer_store_dwordx4 v[{H+4}:{H+7}], v37, s[32:35], s51 offen offset:16 sc1
    buffer_store_dwordx2 v[{H+8}:{H+9}], v39, s[32:35], s51 offen offset:2048 sc1
    s_branch {lpoll}
    ''')
    a.label(lnb)
    a('''
    buffer_store_dwordx4 v[92:95], v3, s[36:39], s23 offen OUTFLAG
    buffer_store_dword v96, v4, s[36:39], s23 offen offset:1024 OUTFLAG
    ''')
    a.label(lpoll)
    if TAILST and not CONVST: stamp(a, 2)
    UW = 100
    lks = a.newlabel('kslave'); lkd = a.newlabel('kd'); lu3 = a.newlabel('u3')
    for i in range(20):
        unpack(a, VW + i, UW + 2 * i, UW + 2 * i + 1)
    latt = a.newlabel('attempt'); lpost = a.newlabel('post'); lrun = a.newlabel('run')
    a('''
    s_mov_b32 s58, s48
    s_mov_b32 s59, s50
    s_mov_b32 s56, 0
    ''')
    a.label(latt)
    a(f'''
    s_cmp_lg_u32 s20, 0
    s_cbranch_scc1 {lb2}
    s_cmp_lg_u32 s2, 255
    s_cbranch_scc1 {lks}
    ''')
    lm = a.newlabel('m'); lmo = a.newlabel('mo'); lmn = a.newlabel('mn')
    a(f'''
    s_mov_b32 s5, {WS_KEY}
    s_mov_b32 s6, {WS_KEY + 2048}
    s_mov_b32 s4, 0
    s_mov_b32 s7, 0
    v_lshlrev_b32 v14, 12, v2
    s_mov_b32 s9, {WS_GO + 128}
    ''')
    a.label(lm)
    a(f'''
    buffer_load_dword v8, v3, s[32:35], s5 offen sc1
    buffer_load_dword v9, v3, s[32:35], s5 offen offset:1024 sc1
    buffer_load_dword v10, v3, s[32:35], s6 offen sc1
    buffer_load_dword v11, v3, s[32:35], s6 offen offset:1024 sc1
    s_add_u32 s4, s4, 1
    s_waitcnt vmcnt(0)
    v_cmp_ne_u32 vcc, 0, v8
    v_cmp_ne_u32 s[10:11], 0, v9
    s_bcnt1_i32_b64 s8, vcc
    s_bcnt1_i32_b64 s12, s[10:11]
    v_cmp_ne_u32 vcc, 0, v10
    v_cmp_ne_u32 s[10:11], 0, v11
    s_add_u32 s8, s8, s12
    s_bcnt1_i32_b64 s12, vcc
    s_add_u32 s8, s8, s12
    s_bcnt1_i32_b64 s12, s[10:11]
    s_add_u32 s8, s8, s12
    s_cmp_ge_u32 s4, {SPIN_MAX}
    s_cselect_b32 s8, 256, s8
    s_cmp_lt_u32 s8, {SPEC_TH}
    s_cbranch_scc1 {lm}
    s_cmp_eq_u32 s8, 256
    s_cbranch_scc1 {lmn}
    s_cmp_lg_u32 s7, 0
    s_cbranch_scc1 {lm}
    ''')
    a.label(lmn)
    a('''
    v_max_u32 v12, v8, v9
    v_max3_u32 v12, v12, v10, v11
    ''')
    wave_reduce(a, 'v_max_u32', 12)
    a(f'''
    s_nop 0
    v_readlane_b32 s12, v12, 63
    s_cmp_eq_u32 s7, 0
    s_cselect_b32 s7, s12, s7
    s_cmp_eq_u32 s8, 256
    s_cselect_b32 s12, s12, 0
    v_mov_b32 v8, s7
    v_mov_b32 v9, s12
    s_mov_b64 exec, {(1<<NREP)-1:#x}
    buffer_store_dwordx2 v[8:9], v14, s[32:35], s9 offen sc1
    s_mov_b64 exec, -1
    s_cmp_eq_u32 s8, 256
    s_cbranch_scc0 {lm}
    s_branch {lkd}
    ''')
    a.label(lks)
    a(f'''
    s_and_b32 s5, s2, {NREP-1}
    s_lshl_b32 s5, s5, 12
    s_add_u32 s5, s5, {WS_GO + 128}
    v_mov_b32 v46, 0
    s_cmp_lt_u32 s2, 216
    s_cselect_b32 s6, -1, 0
    s_cmp_eq_u32 s56, 0
    s_cselect_b32 s6, s6, 0
    ''')
    spin('''
    buffer_load_dwordx2 v[8:9], v46, s[32:35], s5 offen sc1
    s_waitcnt vmcnt(0)
    v_and_b32 v10, s6, v8
    v_or_b32 v10, v10, v9
    v_cmp_ne_u32 vcc, 0, v10
    ''')
    a.label(lkd)
    a(f'''
    v_mov_b32 v10, {M_GKEY}
    s_mov_b64 exec, 1
    ds_write_b64 v10, v[8:9]
    s_mov_b64 exec, -1
    s_waitcnt lgkmcnt(0)
    ''')
    a.label(lb2)
    lw = a.newlabel('iswin'); ldown = a.newlabel('down')
    a(f'''
    s_barrier
    v_mov_b32 v10, {M_GKEY}
    ds_read_b64 v[8:9], v10
    s_waitcnt lgkmcnt(0)
    v_readfirstlane_b32 s57, v8            ; p
    v_readfirstlane_b32 s44, v9            ; f
    s_cmp_eq_u32 s44, 0
    s_cbranch_scc1 {lw}
    s_cmp_lg_u32 s59, s58
    s_cbranch_scc1 {lw}
    s_cmp_eq_u32 s44, s58
    s_cbranch_scc1 {lw}
    buffer_store_dwordx4 v[92:95], v3, s[36:39], s23 offen OUTFLAG
    buffer_store_dword v96, v4, s[36:39], s23 offen offset:1024 OUTFLAG
    ''')
    a.label(lw)
    if TAILST and not CONVST: stamp(a, 4)
    a(f'''
    s_mov_b32 s51, s44
    s_cmp_eq_u32 s44, 0
    s_cselect_b32 s44, s57, s44
    s_cmp_eq_u32 s44, s56
    s_cbranch_scc1 {end}
    s_mov_b32 s56, s44
    s_cmp_eq_u32 s44, s57
    s_cselect_b32 s19, 0, {SET1}
    s_and_b32 s45, s44, 0x7ff
    s_sub_u32 s45, 2047, s45
    s_lshr_b32 s46, s45, 3
    s_mul_i32 s46, s46, 5120
    s_add_u32 s46, s46, {WS_CAND}
    s_cmp_ge_u32 s2, 216
    s_cbranch_scc1 {ldown}
    ; ---- G task ----
    s_lshl_b32 s47, s54, 2
    s_add_u32 s47, s47, s46
    v_lshrrev_b32 v5, 3, v2
    v_lshlrev_b32 v5, 2, v5
    v_add_u32 v6, 64, v5
    v_mov_b32 v7, {OOB:#x}
    v_cmp_gt_u32 vcc, 32, v2
    v_mov_b32 v8, 1
    s_nop 0
    v_cndmask_b32 v6, v7, v6, vcc
    v_cndmask_b32 v7, v8, 0, vcc
    ''')
    spin('''
    buffer_load_dword v12, v5, s[32:35], s47 offen sc1
    buffer_load_dword v13, v5, s[32:35], s47 offen offset:32 sc1
    buffer_load_dword v14, v6, s[32:35], s47 offen sc1
    s_waitcnt vmcnt(0)
    v_or_b32 v15, v14, v7
    v_and_b32 v15, v15, v12
    v_and_b32 v15, v15, v13
    v_and_b32 v15, 1, v15
    v_cmp_ne_u32 vcc, 0, v15
    ''')
    if TAILST and not CONVST: stamp(a, 6)
    a('''
    v_and_b32 v12, 0xffff0000, v12
    v_and_b32 v13, 0xffff0000, v13
    v_and_b32 v14, 0xffff0000, v14
    ''')
    R = 40
    for e in range(3):
        for i in range(8):
            op = 'v_mul_f32' if e == 0 else 'v_fmac_f32'
            a(f'{op} v{R+i}, v{12+e}, v{UW+8*e+i}')
    a('s_nop 1')
    for j in range(4):
        a(f'v_permlane32_swap_b32 v{R+j}, v{R+j+4}')
    for j in range(4):
        a(f'v_add_f32 v{R+j}, v{R+j}, v{R+j+4}')
    a('s_nop 1')
    for j in range(2):
        a(f'v_permlane16_swap_b32 v{R+j}, v{R+j+2}')
    for j in range(2):
        a(f'v_add_f32 v{R+j}, v{R+j}, v{R+j+2}')
    a('s_nop 0')
    for j in range(2):
        a(f'v_add_f32_dpp v{R+j}, v{R+j}, v{R+j} row_ror:8 row_mask:0xf bank_mask:0xf')
    lg5 = a.newlabel('g5')
    a(f'''
    v_and_b32 v6, 7, v2
    v_lshlrev_b32 v6, 5, v6
    v_lshrrev_b32 v7, 4, v2
    v_lshl_add_u32 v6, v7, 3, v6
    s_lshl_b32 s47, s20, 8
    s_add_u32 s47, s47, {M_P1}
    v_add_u32 v6, s47, v6
    s_mov_b32 exec_lo, 0x00ff00ff
    s_mov_b32 exec_hi, 0x00ff00ff
    ds_write_b64 v6, v[{R}:{R+1}]
    s_mov_b64 exec, -1
    s_waitcnt lgkmcnt(0)
    s_barrier
    s_cmp_ge_u32 s20, 2
    s_cbranch_scc1 {lg5}
    s_lshl_b32 s47, s20, 10
    s_add_u32 s47, s47, {M_P1}
    v_add_u32 v6, s47, v4
    ds_read_b32 v8, v6
    ds_read_b32 v9, v6 offset:256
    ds_read_b32 v10, v6 offset:512
    ds_read_b32 v11, v6 offset:768
    s_lshl_b32 s47, s53, 1
    s_add_u32 s47, s47, s20
    s_mul_i32 s47, s47, 6912
    s_lshl_b32 s48, s52, 8
    s_add_u32 s47, s47, s48
    s_add_u32 s47, s47, {WS_PART}
    s_add_u32 s47, s47, s19
    s_waitcnt lgkmcnt(0)
    v_add_f32 v8, v8, v9
    v_add_f32 v10, v10, v11
    v_add_f32 v8, v8, v10
    v_or_b32 v8, 1, v8
    buffer_store_dword v8, v4, s[32:35], s47 offen sc1
    ''')
    a.label(lg5)
    if not CONVST and not REDST: stamp(a, 5)
    ld1 = a.newlabel('d1')
    a(f'''
    s_cmp_lg_u32 s20, 0
    s_cbranch_scc1 {ld1}
    v_lshrrev_b32 v5, 3, v2
    v_mul_u32_u24 v5, 13824, v5
    v_and_b32 v6, 7, v2
    v_lshl_add_u32 v5, v6, 2, v5
    s_lshl_b32 s47, s2, 5
    s_add_u32 s47, s47, {WS_PART}
    s_add_u32 s47, s47, s19
    s_add_u32 s48, s47, 6912
    s_and_b32 s5, s2, {NREP-1}
    s_lshl_b32 s5, s5, 12
    s_add_u32 s5, s5, {WS_GO + 132}
    v_mov_b32 v6, 0
    ''')
    spin('''
    buffer_load_dword v8, v5, s[32:35], s47 offen sc1
    buffer_load_dword v9, v5, s[32:35], s48 offen sc1
    buffer_load_dword v11, v6, s[32:35], s5 offen sc1
    s_waitcnt vmcnt(0)
    v_and_b32 v10, v8, v9
    v_and_b32 v10, 1, v10
    v_cmp_ne_u32 vcc, 0, v11
    v_cmp_ne_u32 s[6:7], s44, v11
    s_and_b64 s[6:7], s[6:7], vcc
    v_cmp_ne_u32 vcc, 0, v10
    s_or_b64 vcc, vcc, s[6:7]
    ''')
    a('''
    s_nop 1
    v_permlane32_swap_b32 v8, v9
    v_add_f32 v8, v8, v9
    v_mov_b32 v9, v8
    s_nop 1
    v_permlane16_swap_b32 v8, v9
    v_add_f32 v8, v8, v9
    s_nop 1
    v_add_f32_dpp v8, v8, v8 row_ror:8 row_mask:0xf bank_mask:0xf
    v_mov_b32 v12, v8
    s_nop 1
    v_permlane32_swap_b32 v8, v12
    ''')
    round_bf16(a, 8, 9)
    round_bf16(a, 12, 9)
    a(f'''
    v_mul_f32 v9, {fbits(-LOG2E):#x}, v8
    v_exp_f32 v9, v9
    s_nop 0
    v_add_f32 v9, 1.0, v9
    v_rcp_f32 v9, v9
    s_nop 0
    v_mul_f32 v8, v8, v9
    ''')
    round_bf16(a, 8, 9)
    a('v_mul_f32 v8, v8, v12')
    round_bf16(a, 8, 9)
    a(f'''
    v_add_u32 v9, {M_P2}, v4
    s_mov_b64 exec, 0xff
    ds_write_b32 v9, v8
    s_mov_b64 exec, -1
    s_waitcnt lgkmcnt(0)
    ''')
    a.label(ld1)
    a(f'''
    s_barrier
    s_cmp_ge_u32 s20, 5
    s_cbranch_scc1 {lpost}
    v_mov_b32 v9, {M_P2}
    ds_read_b128 v[12:15], v9
    ds_read_b128 v[16:19], v9 offset:16
    s_mul_i32 s47, s2, 2560
    s_lshl_b32 s48, s20, 9
    s_add_u32 s47, s47, s48
    s_add_u32 s47, s47, {WS_YP}
    s_add_u32 s47, s47, s19
    v_lshlrev_b32 v5, 3, v2
    s_waitcnt lgkmcnt(0)
    ''')
    for r in range(8):
        op = 'v_mul_f32' if r == 0 else 'v_fmac_f32'
        a(f'{op} v10, v{12+r}, v{UW+24+2*r}')
        a(f'{op} v11, v{12+r}, v{UW+25+2*r}')
    a(f'''
    v_or_b32 v10, 1, v10
    v_or_b32 v11, 1, v11
    buffer_store_dwordx2 v[10:11], v5, s[32:35], s47 offen sc1
    ''')
    a.label(lpost)
    a(f'''
    s_cmp_eq_u32 s51, 0
    s_cbranch_scc1 {latt}
    s_branch {end}
    ''')
    a.label(ldown)
    a(f'''
    s_sub_u32 s53, s2, 216
    v_lshrrev_b32 v5, 2, v0
    v_mul_u32_u24 v5, 2560, v5
    v_and_b32 v6, 3, v0
    v_lshl_add_u32 v5, v6, 4, v5
    v_mov_b32 v7, {OOB:#x}
    v_cmp_gt_u32 vcc, 352, v0
    v_mov_b32 v8, 1
    s_lshl_b32 s47, s53, 6
    v_cndmask_b32 v6, v7, v5, vcc
    v_cndmask_b32 v7, v8, 0, vcc
    s_add_u32 s55, s47, s46
    s_add_u32 s47, s47, {WS_YP}
    s_add_u32 s47, s47, s19
    s_add_u32 s48, s47, {128*2560}
    v_and_b32 v22, 15, v2
    v_lshlrev_b32 v22, 2, v22
    ''')
    spin('''
    buffer_load_dword v20, v22, s[32:35], s55 offen sc1
    buffer_load_dword v21, v22, s[32:35], s55 offen offset:2560 sc1
    s_waitcnt vmcnt(0)
    v_and_b32 v16, v20, v21
    v_and_b32 v16, 1, v16
    v_cmp_ne_u32 vcc, 0, v16
    ''')
    lf = a.newlabel('f'); lf1 = a.newlabel('f1'); lf2 = a.newlabel('f2'); lfo = a.newlabel('fo')
    a(f'''
    v_mov_b32 v12, 0
    v_mov_b32 v13, 0
    v_mov_b32 v14, 0
    v_mov_b32 v15, 0
    v_cmp_gt_u32 vcc, 352, v0
    s_mov_b64 s[6:7], -1
    s_mov_b64 s[8:9], vcc
    s_mov_b32 s4, 0
    ''')
    a.label(lf)
    a(f'''
    s_mov_b64 exec, s[6:7]
    s_cbranch_execz {lf1}
    buffer_load_dwordx4 v[8:11], v5, s[32:35], s47 offen sc1
    ''')
    a.label(lf1)
    a(f'''
    s_mov_b64 exec, s[8:9]
    s_cbranch_execz {lf2}
    buffer_load_dwordx4 v[12:15], v5, s[32:35], s48 offen sc1
    ''')
    a.label(lf2)
    a(f'''
    s_mov_b64 exec, -1
    s_add_u32 s4, s4, 1
    s_waitcnt vmcnt(0)
    v_and_b32 v16, v8, v9
    v_and_b32 v17, v10, v11
    v_and_b32 v18, v12, v13
    v_and_b32 v19, v14, v15
    v_and_b32 v16, v16, v17
    v_and_b32 v18, v18, v19
    v_and_b32 v16, 1, v16
    v_and_b32 v18, 1, v18
    v_cmp_eq_u32 vcc, 0, v16
    v_cmp_eq_u32 s[10:11], 0, v18
    s_and_b64 s[6:7], s[6:7], vcc
    s_and_b64 s[8:9], s[8:9], s[10:11]
    s_cmp_ge_u32 s4, {SPIN_MAX}
    s_cbranch_scc1 {lfo}
    s_or_b64 s[10:11], s[6:7], s[8:9]
    s_cbranch_scc1 {lf}
    ''')
    a.label(lfo)
    a(f'''
    v_add_f32 v8, v8, v12
    v_add_f32 v9, v9, v13
    v_add_f32 v10, v10, v14
    v_add_f32 v11, v11, v15
    v_and_b32 v20, 0xffff0000, v20
    v_and_b32 v21, 0xffff0000, v21
    v_permlane32_swap_b32 v8, v10
    v_permlane32_swap_b32 v9, v11
    v_add_f32 v8, v8, v10
    v_add_f32 v9, v9, v11
    s_nop 1
    v_permlane16_swap_b32 v8, v9
    v_add_f32 v8, v8, v9
    s_nop 1
    v_add_f32_dpp v8, v8, v8 row_ror:4 row_mask:0xf bank_mask:0xf
    s_nop 1
    v_add_f32_dpp v8, v8, v8 row_ror:8 row_mask:0xf bank_mask:0xf
    v_and_b32 v7, 3, v2
    v_lshlrev_b32 v7, 4, v7
    v_lshrrev_b32 v9, 4, v2
    v_lshl_add_u32 v7, v9, 2, v7
    s_lshl_b32 s47, s20, 6
    s_add_u32 s47, s47, {M_P2}
    v_add_u32 v7, s47, v7
    s_mov_b32 exec_lo, 0x000f000f
    s_mov_b32 exec_hi, 0x000f000f
    ds_write_b32 v7, v8
    s_mov_b64 exec, -1
    s_waitcnt lgkmcnt(0)
    s_barrier
    s_cmp_lg_u32 s20, 0
    s_cbranch_scc1 {end}
    v_add_u32 v6, {M_P2}, v22
    ds_read_b32 v8, v6
    ds_read_b32 v9, v6 offset:64
    ds_read_b32 v10, v6 offset:128
    ds_read_b32 v11, v6 offset:192
    ds_read_b32 v12, v6 offset:256
    ds_read_b32 v13, v6 offset:320
    ds_read_b32 v14, v6 offset:384
    ds_read_b32 v15, v6 offset:448
    s_lshr_b32 s48, s44, 16
    s_xor_b32 s49, s48, 0xffff
    s_and_b32 s50, s48, 0x7fff
    s_cmp_ge_u32 s48, 0x8000
    s_cselect_b32 s48, s50, s49
    s_lshl_b32 s48, s48, 16
    v_mov_b32 v18, s48
    v_mul_f32 v18, {fbits(-LOG2E):#x}, v18
    v_exp_f32 v18, v18
    s_nop 0
    v_add_f32 v18, 1.0, v18
    v_rcp_f32 v18, v18
    s_waitcnt lgkmcnt(0)
    v_add_f32 v8, v8, v9
    v_add_f32 v10, v10, v11
    v_add_f32 v12, v12, v13
    v_add_f32 v14, v14, v15
    v_add_f32 v8, v8, v10
    v_add_f32 v12, v12, v14
    v_add_f32 v8, v8, v12
    ''')
    round_bf16(a, 8, 9)
    round_bf16(a, 18, 9)
    a('v_mul_f32 v8, v8, v18')
    round_bf16(a, 8, 9)
    a('v_add_f32 v8, v20, v8')
    round_bf16(a, 8, 9)
    a(f'''
    v_add_f32 v8, v21, v8
    v_cvt_pk_bf16_f32 v8, v8, v8
    s_mul_i32 s45, s45, 1280
    s_lshl_b32 s47, s53, 5
    s_add_u32 s45, s45, s47
    v_lshlrev_b32 v7, 1, v2
    s_mov_b64 exec, 0xffff
    buffer_store_short v8, v7, s[36:39], s45 offen
    s_mov_b64 exec, -1
    ''')
    a.label(end)
    stamp_flush(a)
    a.label(end + 'x')
    a('s_endpgm')

def main():
    global STAMPS
    global PF
    if len(sys.argv) > 2 and sys.argv[2] == 'stamps': STAMPS = True
    global WPOS, TAILST, OUTF
    import os
    OUTF = os.environ.get('OUTF', OUTF)
    global PRIO, CONVST, SPEC_TH, REDST
    REDST = bool(os.environ.get('REDST'))
    SPEC_TH = int(os.environ.get('SPEC_TH', SPEC_TH))
    CONVST = bool(os.environ.get('CONVST'))
    PRIO = int(os.environ.get('PRIO', PRIO))
    if len(sys.argv) > 4: TAILST = True
    if len(sys.argv) > 3: WPOS = sys.argv[3]
    a = A()
    gen(a)
    hdr = f'; @launch grid=(256,1,1) block=(512,1,1) lds={LDS_TOTAL}\n'
    hdr += '.amdgcn_target "amdgcn-amd-amdhsa--gfx950"\n.text\n.set CODE_BYTES, 20480\n'
    out = hdr + a.text().replace('OUTFLAG', OUTF) + f'''.section .rodata,"a"
.p2align 6
.amdhsa_kernel {KNAME}
  .amdhsa_next_free_vgpr 248
  .amdhsa_next_free_sgpr 102
  .amdhsa_accum_offset 248
  .amdhsa_group_segment_fixed_size 0
  .amdhsa_kernarg_size 120
  .amdhsa_user_sgpr_count 2
  .amdhsa_user_sgpr_kernarg_segment_ptr 1
  .amdhsa_system_sgpr_workgroup_id_x 1
.end_amdhsa_kernel
'''
    path = sys.argv[1] if len(sys.argv) > 1 else f'cdna_kernels/{NAME}.s'
    open(path, 'w').write(out)
    print('wrote', path, len(out))

if __name__ == '__main__':
    main()
```

```python
import struct, sys

NAME = 'sequential_preLN__ssm_conv_s4d__moe_arch_mod__prompt'
KNAME = NAME + '_kernel'

WS_U = 0x000000
WS_YS = 0x480000
WS_YT = 0x280000
WS_CAND = 0x520000
WS_KEY = 0x500000
WS_FLAG2 = 0x501000
WS_FLAG1 = 0x502000
WS_GO = 0x508000
WS_PART = 0x6A0000
WS_YP = 0x6C0000
WS_ACT = 0x504000
WS_STAMP = 0xE00000
WS_SIZE = 0x1000000
NREP = 8
SPIN_MAX = 1 << 18
OOB = 0x7ffffff0
STAMPS = False
TAILST = False
CONVST = False
REDST = False
WARM = True
PF = 'late'
SIGPOS = 2
WPOS = 'conv'
CODEPF = True
SPEC_TH = 176
WLDPOS = 'B'
SET1 = 0x100000
OUTF = 'nt'
WSH = 21
PRIO = 0

def fbits(x):
    return struct.unpack('<I', struct.pack('<f', x))[0]

LOG2E = 1.4426950408889634
LOG2E_HI = struct.unpack('<f', struct.pack('<f', LOG2E))[0]
LOG2E_LO = LOG2E - LOG2E_HI
LN2 = 0.6931471805599453
INV2PI = 0.15915494309189535

class A:
    def __init__(self):
        self.L = []
        self.uid = 0
    def __call__(self, s):
        for line in s.strip('\n').split('\n'):
            if line.strip():
                self.L.append('    ' + line.strip())
    def label(self, s):
        self.L.append(s + ':')
    def newlabel(self, base):
        self.uid += 1
        return f'L_{base}_{self.uid}'
    def text(self):
        return '\n'.join(self.L) + '\n'

NSTAMP = 12
def stamp(a, i):
    if STAMPS:
        a(f's_memrealtime s[{76+2*i}:{77+2*i}]')
def cstamp(a, i):
    if STAMPS:
        a(f's_memtime s[{76+2*i}:{77+2*i}]')
def stamp_init(a):
    if STAMPS:
        for i in range(NSTAMP):
            a(f's_mov_b32 s{76+2*i}, 0')
def stamp_flush(a):
    if STAMPS:
        a('s_mov_b64 exec, -1')
        a(f's_memrealtime s[{76+2*(NSTAMP-1)}:{77+2*(NSTAMP-1)}]')
        a('s_waitcnt lgkmcnt(0)')
        for i in range(NSTAMP):
            a(f'v_mov_b32 v{8+i}, s{76+2*i}')
        a(f'''
        s_lshl_b32 s76, s2, 3
        s_add_u32 s76, s76, s20
        s_lshl_b32 s76, s76, 6
        s_add_u32 s76, s76, {WS_STAMP}
        v_mov_b32 v24, 0
        s_mov_b64 exec, 1
        buffer_store_dwordx4 v[8:11], v24, s[32:35], s76 offen
        buffer_store_dwordx4 v[12:15], v24, s[32:35], s76 offen offset:16
        buffer_store_dwordx4 v[16:19], v24, s[32:35], s76 offen offset:32
        ''')

def srd(a, s, lo, hi, size):
    a(f's_mov_b32 s{s}, s{lo}')
    a(f's_and_b32 s{s+1}, s{hi}, 0xffff')
    a(f's_mov_b32 s{s+2}, {size}')
    a(f's_mov_b32 s{s+3}, 0x00020000')

def wave_reduce(a, op, v):
    for m in ['quad_perm:[1,0,3,2] row_mask:0xf bank_mask:0xf',
              'quad_perm:[2,3,0,1] row_mask:0xf bank_mask:0xf',
              'row_half_mirror row_mask:0xf bank_mask:0xf',
              'row_mirror row_mask:0xf bank_mask:0xf',
              'row_bcast:15 row_mask:0xa bank_mask:0xf',
              'row_bcast:31 row_mask:0xc bank_mask:0xf']:
        a('s_nop 1')
        a(f'{op}_dpp v{v}, v{v}, v{v} {m}')

def round_bf16(a, v, t):
    a(f'v_cvt_pk_bf16_f32 v{t}, v{v}, v{v}')
    a(f'v_lshlrev_b32 v{v}, 16, v{t}')

def unpack(a, src, lo, hi):
    a(f'v_lshlrev_b32 v{lo}, 16, v{src}')
    a(f'v_and_b32 v{hi}, 0xffff0000, v{src}')

def exp_bf16(a, v, t0, t1, s_l2e, s_l2elo, s_ln2):
    a(f'v_mul_f32 v{t0}, s{s_l2e}, v{v}')
    a(f'v_fma_f32 v{t1}, v{v}, s{s_l2e}, -v{t0}')
    a(f'v_fmac_f32 v{t1}, s{s_l2elo}, v{v}')
    a(f'v_exp_f32 v{t0}, v{t0}')
    a(f'v_mul_f32 v{t1}, s{s_ln2}, v{t1}')
    a(f'v_fma_f32 v{v}, v{t0}, v{t1}, v{t0}')
    round_bf16(a, v, t0)

def ln_stats(a, src, tmp, vs1, vs2, vmean, vrs, vt, s0, s1, s2_):
    a(f'v_readfirstlane_b32 s{s2_}, v{src}')
    a('s_nop 1')
    for i in range(10):
        a(f'v_subrev_f32 v{tmp+i}, s{s2_}, v{src+i}')
    a(f'''
    v_add_f32 v{vs1}, v{tmp}, v{tmp+1}
    v_mul_f32 v{vs2}, v{tmp}, v{tmp}
    v_add_f32 v{vmean}, v{tmp+2}, v{tmp+3}
    v_mul_f32 v{vrs}, v{tmp+1}, v{tmp+1}
    ''')
    for i in range(4, 10, 2):
        a(f'v_add_f32 v{vs1}, v{vs1}, v{tmp+i}')
        a(f'v_add_f32 v{vmean}, v{vmean}, v{tmp+i+1}')
    for i in range(2, 10, 2):
        a(f'v_fmac_f32 v{vs2}, v{tmp+i}, v{tmp+i}')
        a(f'v_fmac_f32 v{vrs}, v{tmp+i+1}, v{tmp+i+1}')
    a(f'v_add_f32 v{vs1}, v{vs1}, v{vmean}')
    a(f'v_add_f32 v{vs2}, v{vs2}, v{vrs}')
    for m in ['quad_perm:[1,0,3,2] row_mask:0xf bank_mask:0xf',
              'quad_perm:[2,3,0,1] row_mask:0xf bank_mask:0xf',
              'row_half_mirror row_mask:0xf bank_mask:0xf',
              'row_mirror row_mask:0xf bank_mask:0xf',
              'row_bcast:15 row_mask:0xa bank_mask:0xf',
              'row_bcast:31 row_mask:0xc bank_mask:0xf']:
        a('s_nop 0')
        a(f'v_add_f32_dpp v{vs1}, v{vs1}, v{vs1} {m}')
        a(f'v_add_f32_dpp v{vs2}, v{vs2}, v{vs2} {m}')
    a(f'''
    v_mov_b32 v{vt}, {fbits(1.0/640):#x}
    v_readlane_b32 s{s0}, v{vs1}, 63
    v_readlane_b32 s{s1}, v{vs2}, 63
    s_nop 0
    v_mul_f32 v{vmean}, s{s0}, v{vt}
    v_mul_f32 v{vrs}, s{s1}, v{vt}
    v_fma_f32 v{vrs}, -v{vmean}, v{vmean}, v{vrs}
    v_add_f32 v{vmean}, s{s2_}, v{vmean}
    v_max_f32 v{vrs}, 0, v{vrs}
    ''')
    round_bf16(a, vrs, vt)
    a(f'v_add_f32 v{vrs}, {fbits(1e-5):#x}, v{vrs}')
    round_bf16(a, vrs, vt)
    a(f'v_sqrt_f32 v{vrs}, v{vrs}')
    a('s_nop 0')
    round_bf16(a, vrs, vt)
    a(f'v_rcp_f32 v{vrs}, v{vrs}')
    round_bf16(a, vmean, vt)

def reduceN(a, R, n):
    h = n // 2; qn = n // 4
    a('s_nop 1')
    for j in range(h):
        a(f'v_permlane32_swap_b32 v{R+j}, v{R+j+h}')
    for j in range(h):
        a(f'v_add_f32 v{R+j}, v{R+j}, v{R+j+h}')
    a('s_nop 1')
    for j in range(qn):
        a(f'v_permlane16_swap_b32 v{R+j}, v{R+j+qn}')
    for j in range(qn):
        a(f'v_add_f32 v{R+j}, v{R+j}, v{R+j+qn}')
    for m in ['quad_perm:[1,0,3,2]', 'quad_perm:[2,3,0,1]', 'row_half_mirror', 'row_mirror']:
        a('s_nop 0')
        for j in range(qn):
            a(f'v_add_f32_dpp v{R+j}, v{R+j}, v{R+j} {m} row_mask:0xf bank_mask:0xf')

KT_RS = 544
KT_E0 = 41
KT_SZ = 57 * KT_RS
L_TILE = 3 * KT_SZ
TS = 1344
L_KC = L_TILE + 8 * TS
KC_SZ = 1344
L_UP = L_KC + 3 * KC_SZ
US = 1152
UP_SZ = 4 * US
L_MISC = L_UP + 3 * UP_SZ
M_CNT1 = L_MISC
M_CNT2 = L_MISC + 4
M_SCALE = L_MISC + 16
M_PAIR = L_MISC + 96
M_KEYS = L_MISC + 32
M_GKEY = L_MISC + 64
M_P2 = L_MISC + 384
M_P1 = L_MISC + 1024
LDS_TOTAL = L_MISC + 3072
CS = 4224
CP_SZ = 4 * CS
L_RED = 3 * CP_SZ
L_Y2 = 0

VX = 200
VT = 206
VW = 168
GA = 152
VU = 160

def gen(a):
    a.L.append(f'.globl {KNAME}')
    a.L.append('.p2align 8')
    a.L.append(f'.type {KNAME},@function')
    a.label(KNAME)
    end = 'L_end'
    stamp_init(a)
    stamp(a, 0)
    a(f'''
    s_cmp_ge_u32 s2, 256
    s_cbranch_scc1 {end}x
    s_load_dwordx8 s[4:11], s[0:1], 0
    s_load_dwordx4 s[12:15], s[0:1], 32
    s_load_dwordx2 s[16:17], s[0:1], 48    ; D
    s_load_dwordx2 s[18:19], s[0:1], 112   ; ws
    s_load_dwordx8 s[64:71], s[0:1], 64
    s_load_dwordx4 s[72:75], s[0:1], 96
    v_lshrrev_b32 v1, 6, v0
    v_and_b32 v2, 63, v0                   ; lane
    v_readfirstlane_b32 s20, v1            ; wave
    s_and_b32 s21, s2, 7
    s_lshl_b32 s21, s21, 5
    s_lshr_b32 s22, s2, 3
    s_add_u32 s21, s21, s22                ; rb
    s_lshl_b32 s22, s21, 3
    s_add_u32 s22, s22, s20                ; row
    s_mul_i32 s23, s22, 1280
    v_lshlrev_b32 v3, 4, v2                ; lane*16
    v_lshlrev_b32 v4, 2, v2                ; lane*4
    s_and_b32 s60, s2, 7
    s_lshl_b32 s60, s60, 4
    s_lshr_b32 s61, s2, 4
    s_add_u32 s3, s60, s61                 ; p'
    s_mul_i32 s60, s3, 5
    s_bfe_u32 s61, s2, 0x10003             ; odd
    s_lshl_b32 s100, s3, 12
    s_add_u32 s100, s100, {WS_YS}
    s_lshl_b32 s3, s3, 1
    s_add_u32 s3, s3, s61
    s_lshl_b32 s3, s3, 13
    s_add_u32 s3, s3, {WS_YT}
    s_mul_i32 s62, s61, 3
    s_add_u32 s62, s62, s60                ; chA
    s_add_u32 s63, s60, 2                  ; chS
    s_lshr_b32 s56, s20, 1
    s_add_u32 s57, s62, s56
    s_cmp_eq_u32 s56, 2
    s_cselect_b32 s57, s63, s57
    ''')
    if CODEPF:
        lcp = a.newlabel('cp')
        a(f'''
        s_cmp_lg_u32 s20, 6
        s_cbranch_scc1 {lcp}
        s_getpc_b64 s[24:25]
        s_lshr_b32 s26, s2, 3
        s_lshl_b32 s26, s26, 10
        v_add_u32 v5, s26, v3
        s_cmp_lt_u32 s26, CODE_BYTES
        s_cbranch_scc0 {lcp}
        global_load_dwordx4 v[240:243], v5, s[24:25]
        ''')
        a.label(lcp)
    a(f'''
    s_waitcnt lgkmcnt(0)
    ''')
    srd(a, 24, 4, 5, 2621440)
    srd(a, 32, 18, 19, WS_SIZE)
    srd(a, 28, 16, 17, 1280)
    lnz = a.newlabel('nz')
    a(f'''
    s_lshl_b32 s17, s2, 3
    s_add_u32 s17, s17, s20
    s_cmp_lg_u32 s17, 7
    s_cbranch_scc1 {lnz}
    v_mov_b32 v8, 0
    v_mov_b32 v9, 0
    v_mov_b32 v10, 0
    v_mov_b32 v11, 0
    s_mov_b32 s4, {WS_FLAG1}
    buffer_store_dwordx4 v[8:11], v3, s[32:35], s4 offen sc1
    buffer_store_dwordx4 v[8:11], v3, s[32:35], s4 offen offset:1024 sc1
    buffer_store_dwordx4 v[8:11], v3, s[32:35], s4 offen offset:2048 sc1
    buffer_store_dwordx4 v[8:11], v3, s[32:35], s4 offen offset:3072 sc1
    v_lshlrev_b32 v12, 12, v2
    s_mov_b32 s4, {WS_GO + 256}
    s_mov_b64 exec, {(1<<NREP)-1:#x}
    buffer_store_dword v8, v12, s[32:35], s4 offen sc1
    s_mov_b64 exec, -1
    s_nop 1
    ''')
    a.label(lnz)
    a('''
    buffer_load_dwordx4 v[8:11], v3, s[24:27], s23 offen
    buffer_load_dword v12, v4, s[24:27], s23 offen offset:1024
    ''')
    srd(a, 36, 6, 7, 163840)
    srd(a, 40, 8, 9, 163840)
    srd(a, 44, 10, 11, 163840)
    srd(a, 48, 12, 13, 163840)
    srd(a, 52, 14, 15, 1280)
    a('''
    buffer_load_dwordx4 v[14:17], v3, s[28:31], 0 offen
    buffer_load_dword v18, v4, s[28:31], 0 offen offset:1024
    s_lshl_b32 s58, s57, 8
    s_and_b32 s59, s20, 1
    s_lshl_b32 s59, s59, 7
    s_add_u32 s59, s59, s58
    v_lshlrev_b32 v5, 1, v2
    s_lshl_b32 s16, s57, 1
    v_mov_b32 v6, 0
    buffer_load_ushort v20, v5, s[36:39], s59 offen
    buffer_load_ushort v21, v5, s[40:43], s59 offen
    buffer_load_ushort v22, v5, s[44:47], s59 offen
    buffer_load_ushort v23, v5, s[48:51], s59 offen
    buffer_load_dword v24, v4, s[44:47], s58 offen
    buffer_load_dword v25, v4, s[48:51], s58 offen
    buffer_load_ushort v26, v6, s[52:55], s16 offen
    ''')
    def prefetch(PD=216):
        srd(a, 36, 66, 67, 640 * 3456)
        srd(a, 40, 68, 69, 640 * 3456)
        srd(a, 44, 70, 71, 1728 * 1280)
        a(f'''
        s_and_b32 s4, s2, 7
        s_lshr_b32 s5, s2, 3
        s_mul_i32 s6, s4, 432
        s_mul_i32 s7, s5, {20*3456}
        s_add_u32 s6, s6, s7
        v_lshrrev_b32 v5, 5, v2
        v_mul_u32_u24 v5, 3456, v5
        v_and_b32 v6, 31, v2
        v_lshl_add_u32 v5, v6, 4, v5
        v_mov_b32 v7, {OOB:#x}
        v_cmp_gt_u32 vcc, 27, v6
        s_cmp_eq_u32 s20, 6
        s_cselect_b32 s36, s36, s40
        v_cndmask_b32 v5, v7, v5, vcc
        s_cselect_b32 s37, s37, s41
        ''')
        for i in range(10):
            a(f's_add_u32 s7, s6, {2*i*3456}')
            a(f'buffer_load_dwordx4 v[{PD+4*(i%2)}:{PD+3+4*(i%2)}], v5, s[36:39], s7 offen')
    if PF == 'start':
        lns = a.newlabel('ns')
        a(f'''
        s_cmp_lt_u32 s20, 6
        s_cbranch_scc1 {lns}
        ''')
        prefetch()
        a.label(lns)
    if WARM:
        lnw = a.newlabel('nw')
        a(f'''
        s_cmp_ge_u32 s20, 6
        s_cbranch_scc1 {lnw}
        v_lshlrev_b32 v27, {WSH}, v2
        s_mov_b32 s8, 0
        s_mov_b32 s4, s18
        s_mov_b32 s5, s19
        s_mov_b32 s6, {WS_SIZE // 2}
        s_cmp_eq_u32 s20, 1
        s_cselect_b32 s4, s72, s4
        s_cselect_b32 s5, s73, s5
        s_cselect_b32 s6, 2621440, s6
        s_cmp_eq_u32 s20, 2
        s_cselect_b32 s4, s74, s4
        s_cselect_b32 s5, s75, s5
        s_cselect_b32 s6, 256, s6
        s_cmp_eq_u32 s20, 3
        s_cselect_b32 s4, s64, s4
        s_cselect_b32 s5, s65, s5
        s_cselect_b32 s6, 1280, s6
        s_cmp_eq_u32 s20, 4
        s_cselect_b32 s4, s66, s4
        s_cselect_b32 s5, s67, s5
        s_cselect_b32 s6, {640*3456}, s6
        s_cmp_eq_u32 s20, 5
        s_cselect_b32 s8, {64 << WSH}, s8
        s_and_b32 s5, s5, 0xffff
        s_mov_b32 s7, 0x00020000
        buffer_load_dword v244, v27, s[4:7], s8 offen
        ''')
        a.label(lnw)
    lnr = a.newlabel('nr')
    a(f'''
    s_cmp_lg_u32 s17, 7
    s_cbranch_scc1 {lnr}
    ''')
    srd(a, 4, 74, 75, 256)
    a(f'''
    v_mov_b32 v27, 0
    v_mov_b32 v28, 1
    s_waitcnt vmcnt({26 if PF == 'start' else 11})
    s_mov_b64 exec, 1
    buffer_store_dword v28, v27, s[4:7], 0 offen sc1      ; READY
    s_mov_b64 exec, -1
    ''')
    a.label(lnr)
    a(f'''
    v_mov_b32 v27, 0
    v_lshrrev_b32 v28, 5, v0
    v_mul_u32_u24 v28, {US}, v28
    v_and_b32 v29, 31, v0
    v_lshl_add_u32 v28, v29, 2, v28
    v_add_u32 v28, {L_UP}, v28
    v_cmp_gt_u32 vcc, 384, v0
    s_and_saveexec_b64 s[4:5], vcc
    ds_write_b32 v28, v27
    s_mov_b64 exec, s[4:5]
    v_lshrrev_b32 v28, 2, v0
    v_mul_u32_u24 v28, {KC_SZ}, v28
    v_and_b32 v29, 3, v0
    v_lshl_add_u32 v28, v29, 2, v28
    v_add_u32 v28, {L_KC}, v28
    v_lshlrev_b32 v29, 2, v0
    v_add_u32 v29, {L_MISC}, v29
    v_cmp_gt_u32 vcc, 12, v0
    s_and_saveexec_b64 s[4:5], vcc
    ds_write_b32 v28, v27
    ds_write_b32 v29, v27
    ds_write_b32 v29, v27 offset:96
    s_mov_b64 exec, s[4:5]
    ''')
    a('v_lshlrev_b32 v5, 2, v0')
    a(f'v_mov_b32 v27, {L_KC}')
    for d in range(7):
        a(f'''
        v_add_u32 v31, {d-3}, v5
        v_cvt_f32_i32 v32, v31
        v_cvt_pk_bf16_f32 v32, v32, v32
        v_and_b32 v32, 0xffff, v32
        v_subrev_u32 v32, {(134<<7)-128}, v32
        v_cmp_gt_i32 vcc, 256, v31
        s_nop 1
        v_cndmask_b32 v32, v32, v31, vcc
        v_lshl_add_u32 v32, v32, 1, v27
        v_add_u32 v32, 16, v32
        v_cmp_gt_i32 vcc, 0, v31
        s_nop 1
        v_cndmask_b32 v{GA+d}, v32, v27, vcc
        ''')
    a(f'''
    v_lshrrev_b32 v31, 3, v0
    v_mul_u32_u24 v31, {CS}, v31
    v_and_b32 v32, 7, v0
    v_lshl_add_u32 v{VU+4}, v32, 2, v31
    ''')
    for e in range(2):
        vi, vr, vk, va, vl = 31, 32, 33, VU + 2 * e, VU + 2 * e + 1
        a(f'''
        v_add_u32 v{vi}, {512*e}, v0
        v_mul_u32_u24 v{vr}, 43691, v{vi}
        v_lshrrev_b32 v{vr}, 17, v{vr}
        v_mul_u32_u24 v{vk}, 3, v{vr}
        v_sub_u32 v{vk}, v{vi}, v{vk}
        v_mul_u32_u24 v{va}, 10240, v{vr}
        v_lshl_add_u32 v{va}, v{vk}, 4, v{va}
        s_lshl_b32 s5, s61, 1
        v_add_u32 v{vk}, s5, v{vk}
        v_subrev_u32 v{vl}, 3, v{vk}
        v_cmp_gt_u32 vcc, 3, v{vk}
        s_nop 1
        v_cndmask_b32 v{vk}, v{vl}, v{vk}, vcc
        v_mul_u32_u24 v{vl}, {UP_SZ}, v{vk}
        v_lshl_add_u32 v{vl}, v{vr}, 2, v{vl}
        v_add_u32 v{vl}, {L_UP + 128}, v{vl}
        ''')
    a(f'''
    v_mov_b32 v31, {OOB:#x}
    v_cmp_gt_u32 vcc, 256, v0
    s_nop 1
    v_cndmask_b32 v{VU+2}, v31, v{VU+2}, vcc
    ''')
    a(f'''
    v_mov_b32 v36, 0
    v_mov_b32 v37, 0
    v_mov_b32 v38, 0
    v_mov_b32 v39, 0
    v_lshlrev_b32 v35, 4, v0
    buffer_store_dwordx4 v[36:39], v35, s[32:35], s3 offen sc1
    v_lshrrev_b32 v32, 5, v0
    v_mov_b32 v33, 0x8f
    v_mov_b32 v34, 0x70
    s_cmp_eq_u32 s61, 0
    s_cselect_b64 vcc, -1, 0
    v_cndmask_b32 v33, v34, v33, vcc
    v_lshrrev_b32 v33, v32, v33
    v_and_b32 v33, 1, v33
    v_cmp_ne_u32 vcc, 0, v33
    v_mov_b32 v33, {OOB:#x}
    s_nop 0
    v_cndmask_b32 v35, v33, v35, vcc
    buffer_store_dwordx4 v[36:39], v35, s[32:35], s100 offen sc1
    ''')
    X = 30
    def wait2(n):
        if PF == 'start':
            l1 = a.newlabel('w'); l2 = a.newlabel('w')
            a(f'''
            s_cmp_ge_u32 s20, 6
            s_cbranch_scc1 {l1}
            s_waitcnt vmcnt({n})
            s_branch {l2}
            ''')
            a.label(l1)
            a(f's_waitcnt vmcnt({n+15})')
            a.label(l2)
        else:
            a(f's_waitcnt vmcnt({n})')
    wait2(11)
    srd(a, 24, 74, 75, 256)
    for i in range(4):
        unpack(a, 8 + i, X + 2 * i, X + 2 * i + 1)
        a(f'v_mov_b32 v{VX+i}, v{8+i}')
    unpack(a, 12, X + 8, X + 9)
    a(f'v_mov_b32 v{VX+4}, v12')
    ln_stats(a, X, 44, 40, 43, 41, 42, 54, 4, 5, 6)
    wait2(9)
    for i in range(4):
        unpack(a, 14 + i, 54 + 2 * i, 55 + 2 * i)
    unpack(a, 18, 62, 63)
    for p in range(5):
        x0, x1 = X + 2 * p, X + 2 * p + 1
        a(f'''
        v_sub_f32 v{x0}, v{x0}, v41
        v_sub_f32 v{x1}, v{x1}, v41
        v_cvt_pk_bf16_f32 v44, v{x0}, v{x1}
        v_lshlrev_b32 v{x0}, 16, v44
        v_and_b32 v{x1}, 0xffff0000, v44
        v_mul_f32 v{x0}, v{x0}, v42
        v_mul_f32 v{x1}, v{x1}, v42
        v_cvt_pk_bf16_f32 v44, v{x0}, v{x1}
        v_lshlrev_b32 v{x0}, 16, v44
        v_and_b32 v{x1}, 0xffff0000, v44
        v_cvt_pk_f16_f32 v{64+p}, v{x0}, v{x1}
        ''')
    a(f'''
    s_and_b32 s4, s20, 3
    s_lshl_b32 s4, s4, 1
    s_lshr_b32 s5, s20, 2
    s_or_b32 s4, s4, s5
    s_mul_i32 s4, s4, {TS}
    s_add_u32 s4, s4, {L_TILE}
    v_add_u32 v44, s4, v3
    v_add_u32 v45, s4, v4
    ds_write_b128 v44, v[64:67]
    ds_write_b32 v45, v68 offset:1024
    ''')
    for p in range(5):
        x0, x1 = X + 2 * p, X + 2 * p + 1
        a(f'''
        v_mul_f32 v{x0}, v{x0}, v{54+2*p}
        v_mul_f32 v{x1}, v{x1}, v{55+2*p}
        v_cvt_pk_bf16_f32 v{VT+p}, v{x0}, v{x1}
        ''')
    l67 = a.newlabel('w67'); l45 = a.newlabel('w45')
    a(f'''
    v_lshrrev_b32 v44, 2, v2
    v_and_b32 v44, 3, v44
    v_mul_u32_u24 v44, {TS}, v44
    v_lshrrev_b32 v45, 4, v2
    v_lshlrev_b32 v45, 5, v45
    v_add_u32 v44, v44, v45
    v_and_b32 v45, 3, v2
    v_lshlrev_b32 v45, 3, v45
    v_add_u32 v44, v44, v45
    s_sub_u32 s6, s20, 2
    s_cmp_lt_u32 s20, 6
    s_cselect_b32 s6, s20, s6
    s_lshl_b32 s4, s6, 7
    s_add_u32 s4, s4, {L_TILE}
    v_add_u32 v44, s4, v44
    s_mul_i32 s4, s21, 10240
    s_lshl_b32 s5, s6, 10
    s_add_u32 s4, s4, s5
    s_add_u32 s4, s4, {WS_U}
    v_mov_b32 v46, 0
    buffer_load_dword v49, v46, s[24:27], 0 offen sc1
    s_waitcnt lgkmcnt(0)
    s_barrier
    s_lshr_b32 s5, s20, 1
    s_cmp_eq_u32 s5, 2
    s_cbranch_scc1 {l45}
    ds_read_b64_tr_b16 v[64:65], v44
    ds_read_b64_tr_b16 v[66:67], v44 offset:{4*TS}
    s_cmp_lt_u32 s20, 6
    s_cbranch_scc1 {l67}
    ds_read_b64_tr_b16 v[68:69], v44 offset:256
    ds_read_b64_tr_b16 v[70:71], v44 offset:{4*TS+256}
    ds_read_b64_tr_b16 v[72:73], v44 offset:512
    ds_read_b64_tr_b16 v[74:75], v44 offset:{4*TS+512}
    s_add_u32 s5, s4, 4096
    s_waitcnt lgkmcnt(2)
    buffer_store_dwordx4 v[68:71], v3, s[32:35], s4 offen offset:2048 sc1
    s_waitcnt lgkmcnt(0)
    buffer_store_dwordx4 v[72:75], v3, s[32:35], s5 offen sc1
    ''')
    a.label(l67)
    a('''
    s_waitcnt lgkmcnt(0)
    buffer_store_dwordx4 v[64:67], v3, s[32:35], s4 offen sc1
    ''')
    a.label(l45)
    if not TAILST: stamp(a, 2)
    def zero_mailboxes():
        lz = a.newlabel('zero')
        a(f'''
        v_mov_b32 v46, 0
        v_mov_b32 v47, 0
        v_lshlrev_b32 v48, 3, v0
        s_mul_i32 s5, s2, 5120
        s_add_u32 s5, s5, {WS_CAND}
        buffer_store_dwordx2 v[46:47], v48, s[32:35], s5 offen sc1
        s_cmp_ge_u32 s20, 2
        s_cbranch_scc1 {lz}
        s_add_u32 s5, s5, 4096
        buffer_store_dwordx2 v[46:47], v48, s[32:35], s5 offen sc1
        s_cmp_ge_u32 s20, 1
        s_cbranch_scc1 {lz}
        s_mov_b64 exec, 0x3
        v_lshlrev_b32 v48, 12, v0
        s_lshl_b32 s5, s2, 4
        s_add_u32 s5, s5, {WS_KEY}
        buffer_store_dword v46, v48, s[32:35], s5 offen sc1
        v_lshlrev_b32 v48, 7, v0
        s_and_b32 s5, s2, {NREP-1}
        s_lshl_b32 s5, s5, 12
        s_add_u32 s5, s5, {WS_GO}
        s_cmp_lt_u32 s2, {NREP}
        s_cselect_b32 s5, s5, 0x40000000
        buffer_store_dwordx2 v[46:47], v48, s[32:35], s5 offen sc1
        s_mov_b64 exec, -1
        ''')
        a.label(lz)
        lz2 = a.newlabel('zero2'); lz3 = a.newlabel('zero3')
        a(f'''
        s_cmp_ge_u32 s2, 216
        s_cbranch_scc1 {lz2}
        s_cmp_lt_u32 s20, 3
        s_cbranch_scc1 {lz3}
        s_mul_i32 s5, s2, 2560
        s_add_u32 s5, s5, {WS_YP - 3*512}
        v_lshlrev_b32 v48, 3, v0
        buffer_store_dwordx2 v[46:47], v48, s[32:35], s5 offen sc1
        s_add_u32 s5, s5, {SET1}
        buffer_store_dwordx2 v[46:47], v48, s[32:35], s5 offen sc1
        s_branch {lz2}
        ''')
        a.label(lz3)
        a.label(lz2)
    def spin(body, slp=0):
        lsp = a.newlabel('spin'); lso = a.newlabel('spinout')
        a('s_mov_b32 s4, 0')
        a.label(lsp)
        a(body)
        a(f'''
        s_add_u32 s4, s4, 1
        s_cmp_ge_u32 s4, {SPIN_MAX}
        s_cbranch_scc1 {lso}
        s_cmp_eq_u64 vcc, exec
        s_cbranch_scc1 {lso}
        ''')
        if slp: a(f's_sleep {slp}')
        a(f's_branch {lsp}')
        a.label(lso)
    def signal(cnt_addr, which, lgkm=False, vm=0):
        ls = a.newlabel('sig')
        a(f'''
        s_waitcnt vmcnt({vm})
        v_mov_b32 v46, {cnt_addr}
        v_mov_b32 v47, 1
        s_mov_b64 exec, 1
        ds_add_rtn_u32 v48, v46, v47
        s_waitcnt lgkmcnt(0)
        v_readfirstlane_b32 s4, v48
        s_lshl_b32 s5, s2, 4
        s_add_u32 s5, s5, {WS_FLAG1 if which == 1 else WS_FLAG2}
        s_cmp_lg_u32 s4, 7
        s_cbranch_scc1 {ls}
        v_mov_b32 v46, 0
        ''')
        if which == 1:
            lrd = a.newlabel('rdy')
            a(f'''
            v_cmp_ne_u32 vcc, 0, v49
            s_cbranch_vccnz {lrd}
            ''')
            spin('''
            buffer_load_dword v48, v46, s[24:27], 0 offen sc1
            s_waitcnt vmcnt(0)
            v_cmp_ne_u32 vcc, 0, v48
            ''')
            a.label(lrd)
        a('buffer_store_dword v47, v46, s[32:35], s5 offen sc1')
        a.label(ls)
        a('s_mov_b64 exec, -1')
    def gather_flags(base, r):
        lsp = a.newlabel('gf'); lso = a.newlabel('gfo')
        a(f'''
        s_mov_b32 s5, {base}
        s_mov_b32 s6, {base + 2048}
        s_mov_b32 s4, 0
        ''')
        a.label(lsp)
        a(f'''
        buffer_load_dword v{r}, v3, s[32:35], s5 offen sc1
        buffer_load_dword v{r+1}, v3, s[32:35], s5 offen offset:1024 sc1
        buffer_load_dword v{r+2}, v3, s[32:35], s6 offen sc1
        buffer_load_dword v{r+3}, v3, s[32:35], s6 offen offset:1024 sc1
        s_add_u32 s4, s4, 1
        s_waitcnt vmcnt(0)
        v_min_u32 v{r+4}, v{r}, v{r+1}
        v_min3_u32 v{r+4}, v{r+4}, v{r+2}, v{r+3}
        v_cmp_eq_u32 vcc, 0, v{r+4}
        s_cmp_ge_u32 s4, {SPIN_MAX}
        s_cbranch_scc1 {lso}
        s_and_b64 exec, exec, vcc
        s_cbranch_execnz {lsp}
        ''')
        a.label(lso)
        a('s_mov_b64 exec, -1')
    def bcast(goaddr, vval, vt):
        a(f'''
        v_lshlrev_b32 v{vt}, 12, v2
        s_mov_b32 s5, {goaddr}
        s_mov_b64 exec, {(1<<NREP)-1:#x}
        buffer_store_dword v{vval}, v{vt}, s[32:35], s5 offen sc1
        s_mov_b64 exec, -1
        ''')
    def slave(goaddr, vr=47):
        a(f'''
        s_and_b32 s5, s2, {NREP-1}
        s_lshl_b32 s5, s5, 12
        s_add_u32 s5, s5, {goaddr}
        v_mov_b32 v46, 0
        ''')
        spin(f'''
        buffer_load_dword v{vr}, v46, s[32:35], s5 offen sc1
        s_waitcnt vmcnt(0)
        v_cmp_ne_u32 vcc, 0, v{vr}
        ''')
    def master1():
        gather_flags(WS_FLAG1, 44)
        a('v_mov_b32 v47, 1')
        bcast(WS_GO + 256, 47, 46)
    def sync2():
        lsl = a.newlabel('sl'); ld = a.newlabel('sd')
        a(f'''
        s_cmp_lg_u32 s2, 0
        s_cbranch_scc1 {lsl}
        ''')
        gather_flags(WS_FLAG2, 44)
        a('v_mov_b32 v47, 1')
        bcast(WS_GO, 47, 46)
        a(f's_branch {ld}')
        a.label(lsl)
        slave(WS_GO)
        a.label(ld)
    lmf = a.newlabel('kmfma'); lpf = a.newlabel('pf')
    a(f'''
    s_cmp_ge_u32 s20, 6
    s_cbranch_scc1 {lpf}
    s_mov_b32 s8, {fbits(LOG2E_HI):#x}
    s_mov_b32 s9, {fbits(LOG2E_LO):#x}
    s_mov_b32 s10, {fbits(LN2):#x}
    s_mov_b32 s11, {fbits(INV2PI):#x}
    s_waitcnt vmcnt({4 if WARM else 3})
    v_lshlrev_b32 v20, 16, v20
    v_lshlrev_b32 v21, 16, v21
    v_lshlrev_b32 v22, 16, v22
    v_lshlrev_b32 v23, 16, v23
    v_lshlrev_b32 v26, 16, v26
    v_and_b32 v24, 0x7f807f80, v24
    v_and_b32 v25, 0x7f807f80, v25
    v_pk_max_u16 v24, v24, v25
    v_lshrrev_b32 v25, 16, v24
    v_and_b32 v24, 0xffff, v24
    v_max_u32 v24, v24, v25
    ''')
    wave_reduce(a, 'v_max_u32', 24)
    lsk4 = a.newlabel('sk4')
    a(f'''
    s_cmp_lt_u32 s20, 4
    s_cbranch_scc1 {lsk4}
    ''')
    signal(M_CNT1, 1)
    a.label(lsk4)
    exp_bf16(a, 20, 27, 28, 8, 9, 10)
    exp_bf16(a, 26, 27, 28, 8, 9, 10)
    a(f'''
    v_readlane_b32 s12, v24, 63
    s_lshr_b32 s12, s12, 7
    s_min_u32 s12, s12, 252
    s_sub_u32 s13, 253, s12
    s_lshl_b32 s13, s13, 23
    s_add_u32 s14, s12, 2
    s_lshl_b32 s14, s14, 23
    v_mul_f32 v20, v20, v26
    v_mul_f32 v21, v21, v26
    v_mul_f32 v20, s8, v20
    v_sub_f32 v20, 0, v20
    v_mul_f32 v21, s11, v21
    v_mul_f32 v22, s13, v22
    v_mul_f32 v23, s13, v23
    v_mul_f32 v26, s14, v26
    s_lshl_b32 s15, s56, 2
    s_add_u32 s15, s15, {M_SCALE}
    v_mov_b32 v27, s15
    s_mov_b64 exec, 1
    ds_write_b32 v27, v26
    s_mov_b64 exec, -1
    s_mul_i32 s15, s56, {KT_SZ}
    s_and_b32 s16, s20, 1
    s_lshl_b32 s16, s16, 8
    s_add_u32 s15, s15, s16
    v_add_u32 v27, s15, v4
    ''')
    def cmul(r, x, y, t=28):
        a(f'v_pk_mul_f32 v[{t}:{t+1}], v[{x}:{x+1}], v[{y}:{y+1}] op_sel:[1,1] op_sel_hi:[1,0]')
        a(f'v_pk_fma_f32 v[{r}:{r+1}], v[{x}:{x+1}], v[{y}:{y+1}], v[{t}:{t+1}] op_sel:[0,0,0] op_sel_hi:[0,1,1] neg_lo:[0,0,1]')
    pk = [0]
    def putG(row, x):
        r = 76 + (pk[0] % 8); pk[0] += 1
        a(f'v_cvt_pk_f16_f32 v{r}, v{x}, -v{x+1}')
        a(f'ds_write_b32 v27, v{r} offset:{row*KT_RS}')
    def putE(b, x):
        r = 76 + (pk[0] % 8); pk[0] += 1
        a(f'v_cvt_pk_f16_f32 v{r}, v{x}, v{x+1}')
        a(f'ds_write_b32 v27, v{r} offset:{(KT_E0+b)*KT_RS}')
    def direct(dst, p):
        a(f'''
        v_mul_f32 v28, {fbits(float(p)):#x}, v20
        v_mul_f32 v29, {fbits(float(p)):#x}, v21
        v_exp_f32 v28, v28
        v_fract_f32 v29, v29
        v_cos_f32 v{dst}, v29
        v_sin_f32 v{dst+1}, v29
        s_nop 0
        v_mul_f32 v{dst}, v{dst}, v28
        v_mul_f32 v{dst+1}, v{dst+1}, v28
        ''')
    def ES(c): return 30 + 2 * c
    direct(ES(1), 1)
    direct(50, 128)
    direct(52, 8)
    cmul(ES(2), ES(1), ES(1))
    cmul(ES(3), ES(2), ES(1))
    cmul(ES(4), ES(2), ES(2))
    cmul(ES(5), ES(4), ES(1))
    cmul(ES(6), ES(4), ES(2))
    cmul(ES(7), ES(4), ES(3))
    a('v_mov_b32 v62, 0x00003c00')
    a(f'ds_write_b32 v27, v62 offset:{KT_E0*KT_RS}')
    putE(1, 52)
    E = 52
    ereg = [58, 60]
    for b in range(2, 16):
        ne = ereg[b % 2]
        cmul(ne, E, 52)
        putE(b, ne)
        E = ne
    H = 22
    tmp = [58, 60, 62, 64]
    ti = [0]
    def prodG(row, h, e):
        t = tmp[ti[0] % 4]; ti[0] += 1
        cmul(t, h, e)
        putG(row, t)
    hreg = [54, 56]
    for aa in range(17):
        if aa < 2:
            putG(8 * aa, H)
            for c in range(1, 8):
                prodG(8 * aa + c, H, ES(c))
        elif aa < 4:
            base = 16 + 4 * (aa - 2)
            putG(base, H)
            for c in range(1, 4):
                prodG(base + c, H, ES(2 * c))
        elif aa < 8:
            base = 24 + 2 * (aa - 4)
            putG(base, H)
            prodG(base + 1, H, ES(4))
        else:
            putG(32 + (aa - 8), H)
        if aa < 16:
            nh = hreg[aa % 2]
            cmul(nh, H, 50)
            H = nh
        if aa == SIGPOS:
            lsk = a.newlabel('sk')
            a(f'''
            s_cmp_ge_u32 s20, 4
            s_cbranch_scc1 {lsk}
            ''')
            signal(M_CNT1, 1, lgkm=True)
            a.label(lsk)
            if not TAILST: stamp(a, 4)
    a(f'''
    s_lshl_b32 s4, s56, 2
    s_add_u32 s4, s4, {M_PAIR}
    v_mov_b32 v46, s4
    v_mov_b32 v47, 1
    s_waitcnt lgkmcnt(0)
    s_mov_b64 exec, 1
    ds_add_u32 v46, v47
    ''')
    spin('''
    ds_read_b32 v48, v46
    s_waitcnt lgkmcnt(0)
    v_cmp_le_u32 vcc, 2, v48
    ''')
    a('s_mov_b64 exec, -1')
    a('s_and_b32 s30, s20, 1')
    a(f's_branch {lmf}')
    a.label(lpf)
    signal(M_CNT1, 1)
    if not TAILST: stamp(a, 4)
    lnm = a.newlabel('notmaster')
    a(f'''
    s_cmp_lg_u32 s2, 0
    s_cbranch_scc1 {lnm}
    s_cmp_lg_u32 s20, 7
    s_cbranch_scc1 {lnm}
    ''')
    master1()
    a.label(lnm)
    if PF == 'late':
        prefetch()
    lk2 = a.newlabel('kdone'); lt67 = a.newlabel('t67')
    a('s_sub_u32 s5, s20, 6')
    a.label(lt67)
    a(f'''
    s_lshl_b32 s4, s5, 2
    s_add_u32 s4, s4, {M_PAIR}
    v_mov_b32 v46, s4
    s_mov_b32 s7, s5
    s_mov_b64 exec, 1
    ''')
    spin('''
    ds_read_b32 v48, v46
    s_waitcnt lgkmcnt(0)
    v_cmp_le_u32 vcc, 2, v48
    ''', slp=1)
    a('''
    s_mov_b64 exec, -1
    s_mov_b32 s56, s7
    s_mov_b32 s30, 2
    ''')
    a.label(lmf)
    a(f'''
    v_and_b32 v44, 15, v2
    v_lshrrev_b32 v45, 4, v2
    v_mul_u32_u24 v46, {KT_RS}, v44
    v_lshl_add_u32 v46, v45, 4, v46
    s_mov_b32 s4, s30
    s_mov_b32 s5, s56
    ''')
    ltask = a.newlabel('task')
    a.label(ltask)
    a(f'''
    s_mov_b32 s6, s4                       ; tile
    s_mul_i32 s8, s5, {KT_SZ}
    s_mul_i32 s9, s6, {16*KT_RS}
    s_add_u32 s9, s9, s8
    s_add_u32 s8, s8, {KT_E0*KT_RS}
    v_add_u32 v47, s9, v46
    v_add_u32 v48, s8, v46
    ''')
    for ks in range(8):
        a(f'ds_read_b128 v[{64+8*ks}:{67+8*ks}], v47 offset:{64*ks}')
        a(f'ds_read_b128 v[{68+8*ks}:{71+8*ks}], v48 offset:{64*ks}')
    lt2 = a.newlabel('t2'); lt1 = a.newlabel('t1'); lnext = a.newlabel('next')
    a(f'''
    s_mul_i32 s8, s5, {KC_SZ}
    s_add_u32 s8, s8, {L_KC + 16}
    s_cmp_eq_u32 s6, 2
    s_cbranch_scc1 {lt2}
    ''')
    for ks in range(8):
        a(f's_waitcnt lgkmcnt({14-2*ks})')
        c = '0' if ks == 0 else 'v[56:59]'
        a(f'v_mfma_f32_16x16x32_f16 v[56:59], v[{64+8*ks}:{67+8*ks}], v[{68+8*ks}:{71+8*ks}], {c}')
    a(f'''
    s_cmp_eq_u32 s6, 1
    s_cbranch_scc1 {lt1}
    v_lshrrev_b32 v49, 1, v45
    v_lshlrev_b32 v49, 8, v49
    v_lshl_add_u32 v49, v44, 4, v49
    v_and_b32 v50, 1, v45
    v_lshl_add_u32 v49, v50, 3, v49
    v_add_u32 v49, s8, v49
    s_nop 4
    v_cvt_pk_f16_f32 v60, v56, v57
    v_cvt_pk_f16_f32 v61, v58, v59
    ds_write_b64 v49, v[60:61]
    s_branch {lnext}
    ''')
    a.label(lt1)
    a(f'''
    v_lshlrev_b32 v49, 7, v45
    v_add_u32 v49, s8, v49
    v_lshl_add_u32 v50, v44, 3, v49
    v_add_u32 v50, 512, v50
    v_add_u32 v51, 4, v50
    v_lshl_add_u32 v52, v44, 2, v49
    v_add_u32 v52, 512, v52
    v_add_u32 v53, 64, v52
    v_cmp_gt_u32 vcc, 2, v45
    s_nop 1
    v_cndmask_b32 v50, v52, v50, vcc
    v_cndmask_b32 v51, v53, v51, vcc
    v_cvt_pk_f16_f32 v60, v56, v57
    v_cvt_pk_f16_f32 v61, v58, v59
    ds_write_b32 v50, v60
    ds_write_b32 v51, v61
    s_branch {lnext}
    ''')
    a.label(lt2)
    for ks in range(8):
        a(f's_waitcnt lgkmcnt({14-2*ks})')
        c = '0' if ks == 0 else 'v[56:59]'
        a(f'v_mfma_f32_16x16x32_f16 v[56:59], v[{68+8*ks}:{71+8*ks}], v[{64+8*ks}:{67+8*ks}], {c}')
    a(f'''
    v_lshlrev_b32 v49, 5, v44
    v_lshl_add_u32 v49, v45, 3, v49
    v_add_u32 v49, 1024, v49
    v_add_u32 v49, s8, v49
    v_cmp_gt_u32 vcc, 9, v44
    s_nop 4
    v_cvt_pk_f16_f32 v60, v56, v57
    v_cvt_pk_f16_f32 v61, v58, v59
    s_and_saveexec_b64 s[10:11], vcc
    ds_write_b64 v49, v[60:61]
    s_mov_b64 exec, s[10:11]
    ''')
    a.label(lnext)
    a(f'''
    s_cmp_lg_u32 s20, 6
    s_cbranch_scc1 {lk2}
    s_cmp_lg_u32 s5, 0
    s_cbranch_scc1 {lk2}
    s_mov_b32 s5, 2
    s_branch {lt67}
    ''')
    a.label(lk2)
    srd(a, 44, 70, 71, 1728 * 1280)
    a(f'''
    s_and_b32 s52, s2, 7
    s_mul_i32 s52, s52, 27
    s_lshr_b32 s53, s2, 3
    s_add_u32 s52, s52, s53                ; cb
    s_and_b32 s54, s20, 1
    s_cmp_eq_u32 s54, 0
    s_cselect_b32 s40, s66, s68
    s_cselect_b32 s41, s67, s69
    s_and_b32 s41, s41, 0xffff
    s_mov_b32 s42, {640*3456}
    s_mov_b32 s43, 0x00020000
    s_bfe_u32 s54, s20, 0x10001
    s_mul_i32 s54, s54, 320
    s_mul_i32 s12, s54, 3456
    s_lshl_b32 s55, s52, 4
    s_add_u32 s12, s12, s55
    s_mul_i32 s17, s52, {8*1280}
    s_lshl_b32 s55, s20, 8
    s_add_u32 s17, s17, s55
    s_cmp_lt_u32 s20, 5
    s_cselect_b32 s17, s17, 0x40000000
    s_cmp_lt_u32 s2, 216
    s_cselect_b32 s12, s12, 0x40000000
    s_cselect_b32 s17, s17, 0x40000000
    s_add_u32 s13, s12, {64*3456}
    s_add_u32 s14, s12, {128*3456}
    s_add_u32 s15, s12, {192*3456}
    s_add_u32 s16, s12, {256*3456}
    s_add_u32 s18, s17, {3*1280}
    s_add_u32 s19, s17, {6*1280}
    v_mul_u32_u24 v16, 3456, v2
    ''')
    WLG = [f'buffer_load_dwordx4 v[{VW+4*e}:{VW+4*e+3}], v16, s[40:43], s{12+e} offen' for e in range(5)]
    WLD = [f'buffer_load_dword v{VW+20+r}, v4, s[44:47], s{17 + r//3} offen offset:{1280*(r%3)}' for r in range(8)]
    WL = WLD
    lp1 = a.newlabel('p1'); lp0 = a.newlabel('p0')
    a(f'''
    s_cmp_eq_u32 s20, 7
    s_cbranch_scc1 {lp0}
    ''')
    if WPOS == 'B':
        for ins in WL:
            a(ins)
    if WLDPOS == 'B':
        for ins in WLD:
            a(ins)
    a(f's_branch {lp1}')
    a.label(lp0)
    slave(WS_GO + 256)
    a.label(lp1)
    a(f'''
    v_lshlrev_b32 v6, 3, v0
    v_mov_b32 v18, 0
    s_lshl_b32 s4, s61, 1
    s_add_u32 s4, s4, s60
    s_lshl_b32 s4, s4, 4
    s_add_u32 s4, s4, {WS_U}
    s_waitcnt lgkmcnt(0)
    s_barrier
    buffer_load_dwordx4 v[8:11], v{VU}, s[32:35], s4 offen sc1
    buffer_load_dwordx4 v[12:15], v{VU+2}, s[32:35], s4 offen sc1
    ''')
    if not TAILST: stamp(a, 6)
    if PF == 'ug':
        srd(a, 36, 66, 67, 640 * 3456)
        a(f'''
        s_cmp_lt_u32 s20, 4
        s_cselect_b32 s36, s66, s68
        s_cselect_b32 s37, s67, s69
        s_and_b32 s37, s37, 0xffff
        s_and_b32 s4, s2, 7
        s_lshr_b32 s5, s2, 3
        s_mul_i32 s6, s4, 432
        s_mul_i32 s7, s5, {20*3456}
        s_add_u32 s6, s6, s7
        s_and_b32 s7, s20, 3
        s_mul_i32 s7, s7, {5*3456}
        s_add_u32 s6, s6, s7
        v_lshrrev_b32 v19, 5, v2
        v_mul_u32_u24 v19, 3456, v19
        v_and_b32 v20, 31, v2
        v_lshl_add_u32 v19, v20, 4, v19
        v_mov_b32 v21, {OOB:#x}
        v_cmp_gt_u32 vcc, 27, v20
        s_add_u32 s7, s6, {2*3456}
        s_add_u32 s8, s6, {4*3456}
        v_cndmask_b32 v19, v21, v19, vcc
        buffer_load_dwordx4 v[196:199], v19, s[36:39], s6 offen
        buffer_load_dwordx4 v[196:199], v19, s[36:39], s7 offen
        v_cmp_gt_u32 vcc, 27, v2
        s_mul_i32 s6, s4, 160
        s_mul_i32 s7, s5, {54*1280}
        v_cndmask_b32 v19, v21, v19, vcc
        buffer_load_dwordx4 v[196:199], v19, s[36:39], s8 offen
        s_add_u32 s6, s6, s7
        s_mul_i32 s7, s20, {7*1280}
        s_add_u32 s6, s6, s7
        v_mul_u32_u24 v19, 29, v2
        v_lshrrev_b32 v19, 8, v19
        v_mul_u32_u24 v20, 9, v19
        v_sub_u32 v20, v2, v20
        v_mul_u32_u24 v19, 1280, v19
        v_lshl_add_u32 v19, v20, 4, v19
        v_mul_u32_u24 v22, 20, v20
        v_lshrrev_b32 v22, 4, v22
        v_cmp_gt_u32 vcc, 63, v2
        s_nop 1
        v_cndmask_b32 v19, v21, v19, vcc
        buffer_load_dwordx4 v[196:199], v19, s[44:47], s6 offen
        ''')
    for c in range(3):
        r = 32 + 16 * c
        for dd in range(7):
            a(f'ds_read_u16 v{r+dd}, v{GA+dd} offset:{c*KC_SZ}')
    a('''
    v_cmp_gt_u32 vcc, 96, v0
    s_and_saveexec_b64 s[4:5], vcc
    ds_write_b32 v164, v18
    s_mov_b64 exec, s[4:5]
    ''')
    for c in range(3):
        r = 32 + 16 * c
        a(f's_waitcnt lgkmcnt({min(15, 7*(2-c) + 4*c)})')
        for i in range(6):
            a(f'v_lshl_or_b32 v{r+8+i}, v{r+i+1}, 16, v{r+i}')
        for s_ in range(4):
            off = c * CP_SZ + s_ * CS + 32
            a(f'v_add_u32 v7, {off}, v6')
            a(f'ds_write2_b32 v7, v{r+8+3-s_}, v{r+8+5-s_} offset0:0 offset1:1')
    a(f'''
    v_cmp_gt_u32 vcc, 256, v0
    s_waitcnt vmcnt({5 if PF == 'ug' else 1})
    ds_write_b32 v{VU+1}, v8
    ds_write_b32 v{VU+1}, v9 offset:{US}
    ds_write_b32 v{VU+1}, v10 offset:{2*US}
    ds_write_b32 v{VU+1}, v11 offset:{3*US}
    s_waitcnt vmcnt({4 if PF == 'ug' else 0})
    s_and_saveexec_b64 s[4:5], vcc
    ds_write_b32 v{VU+3}, v12
    ds_write_b32 v{VU+3}, v13 offset:{US}
    ds_write_b32 v{VU+3}, v14 offset:{2*US}
    ds_write_b32 v{VU+3}, v15 offset:{3*US}
    s_mov_b64 exec, s[4:5]
    ''')
    if WPOS == 'B':
        lw0 = a.newlabel('w0')
        a(f'''
        s_cmp_lg_u32 s20, 0
        s_cbranch_scc1 {lw0}
        ''')
        for ins in WL:
            a(ins)
        a.label(lw0)
    if WPOS == 'U':
        for ins in WL:
            a(ins)
    if PF == 'ug2':
        lnp = a.newlabel('np')
        a(f'''
        s_cmp_lt_u32 s20, 6
        s_cbranch_scc1 {lnp}
        s_mov_b32 s8, s40
        s_mov_b32 s9, s41
        ''')
        prefetch()
        a('''
        s_mov_b32 s40, s8
        s_mov_b32 s41, s9
        ''')
        a.label(lnp)
    zero_mailboxes()
    srd(a, 28, 64, 65, 1280)
    a('''
    buffer_load_dwordx4 v[160:163], v3, s[28:31], 0 offen
    buffer_load_dword v205, v4, s[28:31], 0 offen offset:1024
    ''')
    a(f'''
    v_lshrrev_b32 v8, 4, v2
    v_mul_u32_u24 v9, {CS}, v8
    v_bfe_u32 v10, v2, 2, 2
    v_and_b32 v11, 3, v2
    v_sub_u32 v10, v11, v10
    v_lshl_add_u32 v9, v10, 3, v9
    v_add_u32 v9, 32, v9
    v_mul_u32_u24 v10, {US}, v8
    v_and_b32 v11, 15, v2
    v_lshl_add_u32 v10, v11, 3, v10
    v_add_u32 v10, {L_UP+8}, v10
    v_lshlrev_b32 v12, 5, v11
    v_lshl_add_u32 v12, v8, 3, v12
    v_lshlrev_b32 v13, 4, v2
    v_mov_b32 v5, {M_SCALE}
    ds_read_b96 v[20:22], v5
    ''')
    ACC = 24
    for i in range(8, 32):
        a(f'v_mov_b32 v{ACC+i}, 0')
    a('''
    s_waitcnt lgkmcnt(0)
    s_barrier
    ''')
    for i in range(8):
        a(f'v_mov_b32 v{ACC+i}, 0')
    a('''
    v_readfirstlane_b32 s48, v20
    v_readfirstlane_b32 s49, v21
    v_readfirstlane_b32 s50, v22
    ''')
    stamp(a, 8)
    if CONVST: cstamp(a, 10)
    if PF == 'conv':
        lnp = a.newlabel('np')
        a(f'''
        s_cmp_lt_u32 s20, 6
        s_cbranch_scc1 {lnp}
        s_mov_b32 s8, s40
        s_mov_b32 s9, s41
        s_mov_b32 s10, s42
        ''')
        prefetch(152)
        a('''
        s_mov_b32 s40, s8
        s_mov_b32 s41, s9
        s_mov_b32 s42, s10
        ''')
        a.label(lnp)
    def loads(setbase, tiles_mx, cls_idx, va=14, vb=15):
        out = []
        for m in range(tiles_mx + 1):
            fa, fb = setbase[0] + 4 * m, setbase[1] + 4 * m
            oa = 512 * m + 64 * (3 - cls_idx)
            ob = 128 * m + 16 * cls_idx
            out.append(f'ds_read_b64_tr_b16 v[{fa}:{fa+1}], v{va} offset:{oa+32}')
            out.append(f'ds_read_b64_tr_b16 v[{fa+2}:{fa+3}], v{va} offset:{oa}')
            out.append(f'ds_read_b64 v[{fb}:{fb+1}], v{vb} offset:{ob}')
            out.append(f'ds_read_b64 v[{fb+2}:{fb+3}], v{vb} offset:{ob+8}')
        return out
    SETS = [(56, 88), (120, 216)]
    SACC = [196, 212, 152, 156, 164]
    def job(st, accmap, nload, nxt, extra, first=False, older=0):
        tiles = list(accmap)
        mx = max(tiles)
        mf = []
        for s in range(mx + 1):
            grp = []
            for (m, aa) in [(s, i) for i in range(s + 1)] + [(i, s) for i in range(s)]:
                c = m + aa
                if c in accmap:
                    r = accmap[c]
                    grp.append(f'v_mfma_f32_16x16x32_f16 v[{r}:{r+3}], v[{st[0]+4*m}:{st[0]+4*m+3}], v[{st[1]+4*aa}:{st[1]+4*aa+3}], v[{r}:{r+3}]')
            mf.append(grp)
        nmf = sum(len(g) for g in mf)
        per = 1 if nmf >= len(nxt) else 2
        wq = list(extra)
        wstep = max(1, nmf // (len(wq) + 1))
        k = 0; nm = 0
        for s_ in range(mx + 1):
            allowed = nload - 4 * (s_ + 1) + k
            if mf[s_]:
                a(f's_waitcnt lgkmcnt({min(15, allowed)})')
            for ins in mf[s_]:
                a(ins)
                nm += 1
                if wq and nm % wstep == 0:
                    a(wq.pop(0))
                if not first or s_ >= 2:
                    for _ in range(per):
                        if k < len(nxt):
                            a(nxt[k]); k += 1
        while k < len(nxt):
            a(nxt[k]); k += 1
        for ins in wq: a(ins)
    def epilogue(c, sreg_scale, sreg_out):
        r = ACC + 4 * c
        a(f'''
        v_fma_f32 v{r}, s{sreg_scale}, v{r}, 0
        v_fma_f32 v{r+1}, s{sreg_scale}, v{r+1}, 0
        v_fma_f32 v{r+2}, s{sreg_scale}, v{r+2}, 0
        v_fma_f32 v{r+3}, s{sreg_scale}, v{r+3}, 0
        v_cvt_pk_bf16_f32 v{r}, v{r}, v{r+1}
        v_cvt_pk_bf16_f32 v{r+1}, v{r+2}, v{r+3}
        v_xor_b32 v{r}, 0x80008000, v{r}
        v_xor_b32 v{r+1}, 0x80008000, v{r+1}
        buffer_store_dwordx2 v[{r}:{r+1}], v12, s[32:35], s{sreg_out} offen offset:{512*c} sc1
        ''')
    lS = a.newlabel('shared'); lcd = a.newlabel('convdone')
    FA = 56
    a(f'''
    s_cmp_ge_u32 s20, 4
    s_cbranch_scc1 {lS}
    s_lshr_b32 s4, s20, 1                  ; slot 0/1
    s_and_b32 s5, s20, 1
    s_lshl_b32 s6, s5, 2
    s_mul_i32 s7, s4, {CP_SZ}
    s_sub_u32 s8, 4, s6                    ; 7-(first+3)
    s_lshl_b32 s8, s8, 6
    s_add_u32 s7, s7, s8
    v_add_u32 v14, s7, v9
    s_mul_i32 s7, s4, {UP_SZ}
    s_lshl_b32 s8, s6, 4
    s_add_u32 s7, s7, s8
    v_add_u32 v15, s7, v10
    ''')
    for ins in loads(SETS[0], 7, 0):
        a(ins)
    a(f'''
    s_lshl_b32 s6, s20, 1
    s_sub_u32 s8, 4, s6
    s_lshl_b32 s8, s8, 6
    s_add_u32 s7, s8, {2*CP_SZ}
    v_add_u32 v22, s7, v9
    s_lshl_b32 s8, s6, 4
    s_add_u32 s7, s8, {2*UP_SZ}
    v_add_u32 v19, s7, v10
    s_lshl_b32 s11, s20, 10
    s_add_u32 s11, s11, {L_RED + 32768}
    v_add_u32 v20, s11, v13
    s_lshl_b32 s10, s20, 11
    s_add_u32 s10, s10, s3
    v_add_u32 v13, {L_RED}, v13
    v_lshlrev_b32 v18, 6, v11
    v_lshl_add_u32 v18, v8, 4, v18         ; 64n + 16q
    ''')
    for r in SACC:
        for e in range(4):
            a(f'v_mov_b32 v{r+e}, 0')
    main = {c: ACC + 4 * c for c in range(8)}
    for ci in range(4):
        nxt = loads(SETS[(ci + 1) % 2], 7, ci + 1) if ci < 3 else loads(SETS[0], 7, 0, 22, 19)
        ex = (WLD[:4] if ci == 1 else (WLD[4:] if ci == 2 else [])) if WLDPOS == 'conv' else []
        job(SETS[ci % 2], main, 32, nxt, ex, first=(ci == 0))
    lSo = a.newlabel('so'); lsd = a.newlabel('sd')
    a(f'''
    s_cmp_eq_u32 s61, 1
    s_cbranch_scc1 {lSo}
    ''')
    for par in range(2):
        tiles = [0, 1, 2, 3, 7] if par == 0 else [4, 5, 6]
        amap = {c: SACC[i] for i, c in enumerate(tiles)}
        if par == 1:
            a.label(lSo)
        job(SETS[0], amap, 32, loads(SETS[1], max(tiles), 1, 22, 19), [])
        job(SETS[1], amap, 4 * (max(tiles) + 1), [], [])
        a('s_nop 7')
        a('s_nop 1')
        for i, c in enumerate(tiles):
            a(f'ds_write_b128 v20, v[{SACC[i]}:{SACC[i]+3}] offset:{4096*i}')
        if par == 0:
            a(f's_branch {lsd}')
    a.label(lsd)
    stamp(a, 7)
    lws = [a.newlabel(f'rw{w}') for w in range(4)]
    a(f'''
    s_cmp_eq_u32 s20, 1
    s_cbranch_scc1 {lws[1]}
    s_cmp_eq_u32 s20, 2
    s_cbranch_scc1 {lws[2]}
    s_cmp_eq_u32 s20, 3
    s_cbranch_scc1 {lws[3]}
    ''')
    for w in range(4):
        a.label(lws[w])
        for c in range(8):
            if c >> 1 != w:
                a(f'ds_write_b128 v13, v[{ACC+4*c}:{ACC+4*c+3}] offset:{8192*w + 1024*c}')
        a('s_waitcnt vmcnt(8) lgkmcnt(0)' if WLDPOS == 'conv' else 's_waitcnt vmcnt(0) lgkmcnt(0)')
        a('s_barrier')
        if REDST: stamp(a, 5)
        others = [x for x in range(4) if x != w]
        partner = w ^ 1
        oth = [x for x in others if x != partner]
        for j in range(2):
            c = 2 * w + j
            for k, x in enumerate([partner] + oth):
                a(f'ds_read_b128 v[{FA+12*j+4*k}:{FA+12*j+4*k+3}], v13 offset:{8192*x + 1024*c}')
        for j in range(2):
            c = 2 * w + j
            own = ACC + 4 * c; f0 = FA + 12 * j
            a(f's_waitcnt lgkmcnt({3*(1-j)})')
            for e in range(4):
                a(f'v_add_f32 v{own+e}, v{own+e}, v{f0+e}')
                a(f'v_add_f32 v{f0+4+e}, v{f0+4+e}, v{f0+8+e}')
            ra, rb_ = (own, f0 + 4) if w < 2 else (f0 + 4, own)
            q = FA + 32 + 4 * j
            for e in range(4):
                a(f'v_fma_f32 v{ra+e}, s48, v{ra+e}, 0')
                a(f'v_fma_f32 v{rb_+e}, s49, v{rb_+e}, 0')
            a(f'''
            v_cvt_pk_bf16_f32 v{q}, v{ra}, v{ra+1}
            v_cvt_pk_bf16_f32 v{q+1}, v{ra+2}, v{ra+3}
            v_cvt_pk_bf16_f32 v{q+2}, v{rb_}, v{rb_+1}
            v_cvt_pk_bf16_f32 v{q+3}, v{rb_+2}, v{rb_+3}
            v_xor_b32 v{q}, 0x80008000, v{q}
            v_xor_b32 v{q+1}, 0x80008000, v{q+1}
            v_xor_b32 v{q+2}, 0x80008000, v{q+2}
            v_xor_b32 v{q+3}, 0x80008000, v{q+3}
            s_nop 0
            v_permlane16_swap_b32 v{q}, v{q+2}
            v_permlane16_swap_b32 v{q+1}, v{q+3}
            buffer_store_dwordx4 v[{q}:{q+3}], v18, s[32:35], s10 offen offset:{1024*j} sc1
            ''')
        a(f's_branch {lcd}')
    a.label(lS)
    lSo2 = a.newlabel('sharedodd')
    if PF == 'ug2':
        a('s_waitcnt vmcnt(0)')
    for ins in (WLD if WLDPOS == 'conv' else []) + WLG:
        a(ins)
    a(f'''
    s_sub_u32 s5, s20, 4                   ; ww
    s_mov_b32 s10, s100
    v_add_u32 v13, {L_RED + 32768}, v13
    s_waitcnt vmcnt({13 if WLDPOS == 'conv' else 5})
    s_barrier
    s_cmp_eq_u32 s61, 1
    s_cbranch_scc1 {lSo2}
    ''')
    for par in range(2):
        tiles = [0, 1, 2, 3, 7] if par == 0 else [4, 5, 6]
        if par == 1:
            a.label(lSo2)
        for ww in range(4):
            lnx = a.newlabel('nx')
            a(f's_cmp_lg_u32 s5, {ww}')
            a(f's_cbranch_scc1 {lnx}')
            for i, c in enumerate(tiles):
                if i % 4 != ww: continue
                for k in range(4):
                    a(f'ds_read_b128 v[{FA+4*k}:{FA+4*k+3}], v13 offset:{4096*i + 1024*k}')
                a('s_waitcnt lgkmcnt(0)')
                for e in range(4):
                    a(f'v_add_f32 v{FA+e}, v{FA+e}, v{FA+4+e}')
                    a(f'v_add_f32 v{FA+8+e}, v{FA+8+e}, v{FA+12+e}')
                    a(f'v_add_f32 v{ACC+4*c+e}, v{FA+e}, v{FA+8+e}')
                epilogue(c, 50, 10)
            a(f's_branch {lcd}')
            a.label(lnx)
        a(f's_branch {lcd}')
    a.label(lcd)
    if PRIO: a('s_setprio 0')
    stamp(a, 9)
    srd(a, 36, 72, 73, 2621440)
    lg = a.newlabel('g'); lg1 = a.newlabel('g1'); lg2 = a.newlabel('g2'); lgo = a.newlabel('go')
    a(f'''
    v_lshrrev_b32 v7, 1, v0
    v_lshlrev_b32 v5, 13, v7
    v_and_b32 v6, 1, v0
    v_lshl_add_u32 v5, v6, 4, v5
    v_lshrrev_b32 v33, 2, v0
    v_mul_u32_u24 v33, 5, v33
    v_add_u32 v6, v6, v33
    v_and_b32 v7, 1, v7
    v_mul_u32_u24 v7, 3, v7
    v_add_u32 v6, v6, v7
    v_lshlrev_b32 v6, 2, v6
    v_lshlrev_b32 v7, 12, v0
    v_mul_u32_u24 v33, 20, v0
    v_add_u32 v33, 8, v33
    s_lshl_b32 s48, s21, 5
    s_add_u32 s48, s48, {WS_YT}
    s_lshl_b32 s49, s21, 4
    s_add_u32 s49, s49, {WS_YS}
    v_cmp_gt_u32 vcc, 128, v0
    s_mov_b64 s[6:7], -1
    s_mov_b64 s[8:9], vcc
    s_mov_b32 s4, 0
    ''')
    a.label(lg)
    a(f'''
    s_mov_b64 exec, s[6:7]
    s_cbranch_execz {lg1}
    buffer_load_dwordx4 v[8:11], v5, s[32:35], s48 offen sc1
    ''')
    a.label(lg1)
    a(f'''
    s_mov_b64 exec, s[8:9]
    s_cbranch_execz {lg2}
    buffer_load_dwordx4 v[12:15], v7, s[32:35], s49 offen sc1
    ''')
    a.label(lg2)
    a(f'''
    s_mov_b64 exec, -1
    s_add_u32 s4, s4, 1
    s_waitcnt vmcnt(0)
    v_min_u32 v36, v8, v9
    v_min3_u32 v36, v36, v10, v11
    v_min_u32 v37, v12, v13
    v_min3_u32 v37, v37, v14, v15
    v_cmp_eq_u32 vcc, 0, v36
    v_cmp_eq_u32 s[10:11], 0, v37
    s_and_b64 s[6:7], s[6:7], vcc
    s_and_b64 s[8:9], s[8:9], s[10:11]
    s_cmp_ge_u32 s4, {SPIN_MAX}
    s_cbranch_scc1 {lgo}
    s_or_b64 s[10:11], s[6:7], s[8:9]
    s_cbranch_scc1 {lg}
    ''')
    a.label(lgo)
    stamp(a, 3)
    if STAMPS:
        a('s_mov_b32 s78, s4')
    a(f'''
    v_cmp_gt_u32 vcc, 128, v0
    ds_write2st64_b32 v6, v8, v9 offset0:0 offset1:10
    ds_write2st64_b32 v6, v10, v11 offset0:20 offset1:30
    s_and_saveexec_b64 s[42:43], vcc
    ds_write2st64_b32 v33, v12, v13 offset0:0 offset1:10
    ds_write2st64_b32 v33, v14, v15 offset0:20 offset1:30
    s_mov_b64 exec, s[42:43]
    s_lshr_b32 s44, s20, 1
    s_mul_i32 s44, s44, 2560
    v_lshlrev_b32 v7, 5, v2
    v_add_u32 v7, s44, v7
    v_lshlrev_b32 v33, 3, v2
    v_add_u32 v33, s44, v33
    s_and_b32 s45, s20, 1
    s_mul_i32 s45, s45, 0x02020000
    s_add_u32 s45, s45, 0x01000c0c
    ''')
    XR = 40; T = 50; W = 60; H = 70
    for i in range(4):
        unpack(a, VX + i, XR + 2 * i, XR + 2 * i + 1)
        unpack(a, VT + i, T + 2 * i, T + 2 * i + 1)
        unpack(a, 160 + i, W + 2 * i, W + 2 * i + 1)
    unpack(a, VX + 4, XR + 8, XR + 9)
    unpack(a, VT + 4, T + 8, T + 9)
    unpack(a, 205, W + 8, W + 9)
    a(f'''
    s_waitcnt lgkmcnt(0)
    s_barrier
    ds_read_b128 v[8:11], v7
    ds_read_b128 v[12:15], v7 offset:16
    ds_read_b64 v[34:35], v33 offset:2048
    ''')
    if not CONVST: stamp(a, 10)
    X = XR
    a('s_waitcnt lgkmcnt(0)')
    ysrc = list(range(8, 16)) + [34, 35]
    for i in range(10):
        a(f'v_perm_b32 v{ysrc[i]}, v{ysrc[i]}, v{ysrc[i]}, s45')
    for p in range(5):
        i0, i1 = 2 * p, 2 * p + 1
        a(f'''
        v_sub_f32 v{T+i0}, v{T+i0}, v{ysrc[i0]}
        v_sub_f32 v{T+i1}, v{T+i1}, v{ysrc[i1]}
        v_cvt_pk_bf16_f32 v36, v{T+i0}, v{T+i1}
        v_lshlrev_b32 v{T+i0}, 16, v36
        v_and_b32 v{T+i1}, 0xffff0000, v36
        v_add_f32 v{T+i0}, v{X+i0}, v{T+i0}
        v_add_f32 v{T+i1}, v{X+i1}, v{T+i1}
        v_cvt_pk_bf16_f32 v36, v{T+i0}, v{T+i1}
        v_lshlrev_b32 v{H+i0}, 16, v36
        v_and_b32 v{H+i1}, 0xffff0000, v36
        ''')
    ln_stats(a, H, X, 36, 21, 37, 38, 39, 46, 47, 48)
    a('v_mov_b32 v36, 0')
    a('v_mov_b32 v21, 0')
    for p in range(5):
        i0, i1 = 2 * p, 2 * p + 1
        a(f'''
        v_sub_f32 v{X+i0}, v{H+i0}, v37
        v_sub_f32 v{X+i1}, v{H+i1}, v37
        v_cvt_pk_bf16_f32 v39, v{X+i0}, v{X+i1}
        v_lshlrev_b32 v{X+i0}, 16, v39
        v_and_b32 v{X+i1}, 0xffff0000, v39
        v_mul_f32 v{X+i0}, v{X+i0}, v38
        v_mul_f32 v{X+i1}, v{X+i1}, v38
        v_cvt_pk_bf16_f32 v39, v{X+i0}, v{X+i1}
        v_lshlrev_b32 v{X+i0}, 16, v39
        v_and_b32 v{X+i1}, 0xffff0000, v39
        v_fmac_f32 v36, v{X+i0}, v{W+i0}
        v_fmac_f32 v21, v{X+i1}, v{W+i1}
        ''')
    a('v_add_f32 v36, v36, v21')
    wave_reduce(a, 'v_add_f32', 36)
    a(f'''
    v_cvt_pk_bf16_f32 v36, v36, v36
    v_and_b32 v36, 0xffff, v36
    v_xor_b32 v37, 0xffff, v36
    v_or_b32 v38, 0x8000, v36
    v_cmp_lt_u32 vcc, 0x7fff, v36
    s_sub_u32 s46, 4095, s22
    s_lshl_b32 s49, s20, 2
    v_cndmask_b32 v36, v38, v37, vcc
    v_lshl_or_b32 v36, v36, 16, s46
    s_add_u32 s49, s49, {M_KEYS}
    v_mov_b32 v37, s49
    v_readlane_b32 s48, v36, 63
    s_nop 1
    v_mov_b32 v38, s48
    ds_write_b32 v37, v38
    ''')
    for p in range(5):
        i0, i1 = 2 * p, 2 * p + 1
        a(f'''
        v_add_f32 v{T+i0}, v{H+i0}, v{X+i0}
        v_add_f32 v{T+i1}, v{H+i1}, v{X+i1}
        v_cvt_pk_bf16_f32 v{92+p}, v{T+i0}, v{T+i1}
        ''')
    lnb = a.newlabel('notbest'); lpoll = a.newlabel('poll'); lb2 = a.newlabel('b2')
    a(f'''
    v_and_b32 v37, 7, v2
    v_lshlrev_b32 v37, 2, v37
    v_add_u32 v37, {M_KEYS}, v37
    s_waitcnt lgkmcnt(0)
    s_barrier
    ds_read_b32 v38, v37
    s_waitcnt lgkmcnt(0)
    s_nop 1
    v_max_u32_dpp v38, v38, v38 quad_perm:[1,0,3,2] row_mask:0xf bank_mask:0xf
    s_nop 1
    v_max_u32_dpp v38, v38, v38 quad_perm:[2,3,0,1] row_mask:0xf bank_mask:0xf
    s_nop 1
    v_max_u32_dpp v38, v38, v38 row_half_mirror row_mask:0xf bank_mask:0xf
    s_nop 0
    v_readfirstlane_b32 s50, v38
    s_cmp_lg_u32 s50, s48
    s_cbranch_scc1 {lnb}
    s_lshl_b32 s51, s21, 4
    s_add_u32 s51, s51, {WS_KEY}
    v_mov_b32 v37, 0
    s_mov_b64 exec, 1
    buffer_store_dword v38, v37, s[32:35], s51 offen sc1
    s_mov_b64 exec, -1
    ''')
    for i in range(10):
        a(f'v_or_b32 v{X+i}, 1, v{X+i}')
        a(f'v_or_b32 v{H+i}, 1, v{H+i}')
    a(f'''
    s_mul_i32 s51, s21, 5120
    s_add_u32 s51, s51, {WS_CAND}
    v_lshlrev_b32 v37, 5, v2
    v_lshlrev_b32 v39, 3, v2
    buffer_store_dwordx4 v[{X}:{X+3}], v37, s[32:35], s51 offen sc1
    buffer_store_dwordx4 v[{X+4}:{X+7}], v37, s[32:35], s51 offen offset:16 sc1
    buffer_store_dwordx2 v[{X+8}:{X+9}], v39, s[32:35], s51 offen offset:2048 sc1
    s_add_u32 s51, s51, 2560
    buffer_store_dwordx4 v[{H}:{H+3}], v37, s[32:35], s51 offen sc1
    buffer_store_dwordx4 v[{H+4}:{H+7}], v37, s[32:35], s51 offen offset:16 sc1
    buffer_store_dwordx2 v[{H+8}:{H+9}], v39, s[32:35], s51 offen offset:2048 sc1
    s_branch {lpoll}
    ''')
    a.label(lnb)
    a('''
    buffer_store_dwordx4 v[92:95], v3, s[36:39], s23 offen OUTFLAG
    buffer_store_dword v96, v4, s[36:39], s23 offen offset:1024 OUTFLAG
    ''')
    a.label(lpoll)
    if TAILST and not CONVST: stamp(a, 2)
    UW = 100
    lks = a.newlabel('kslave'); lkd = a.newlabel('kd'); lu3 = a.newlabel('u3')
    for i in range(28):
        unpack(a, VW + i, UW + 2 * i, UW + 2 * i + 1)
    latt = a.newlabel('attempt'); lpost = a.newlabel('post'); lgb = a.newlabel('gb')
    a('''
    s_mov_b32 s58, s48
    s_mov_b32 s59, s50
    s_mov_b32 s56, 0
    ''')
    a.label(latt)
    a(f'''
    s_cmp_lg_u32 s20, 0
    s_cbranch_scc1 {lb2}
    s_cmp_lg_u32 s2, 255
    s_cbranch_scc1 {lks}
    ''')
    lm = a.newlabel('m'); lmo = a.newlabel('mo'); lmn = a.newlabel('mn')
    a(f'''
    s_mov_b32 s5, {WS_KEY}
    s_mov_b32 s6, {WS_KEY + 2048}
    s_mov_b32 s4, 0
    s_mov_b32 s7, 0
    v_lshlrev_b32 v14, 12, v2
    s_mov_b32 s9, {WS_GO + 128}
    ''')
    a.label(lm)
    a(f'''
    buffer_load_dword v8, v3, s[32:35], s5 offen sc1
    buffer_load_dword v9, v3, s[32:35], s5 offen offset:1024 sc1
    buffer_load_dword v10, v3, s[32:35], s6 offen sc1
    buffer_load_dword v11, v3, s[32:35], s6 offen offset:1024 sc1
    s_add_u32 s4, s4, 1
    s_waitcnt vmcnt(0)
    v_cmp_ne_u32 vcc, 0, v8
    v_cmp_ne_u32 s[10:11], 0, v9
    s_bcnt1_i32_b64 s8, vcc
    s_bcnt1_i32_b64 s12, s[10:11]
    v_cmp_ne_u32 vcc, 0, v10
    v_cmp_ne_u32 s[10:11], 0, v11
    s_add_u32 s8, s8, s12
    s_bcnt1_i32_b64 s12, vcc
    s_add_u32 s8, s8, s12
    s_bcnt1_i32_b64 s12, s[10:11]
    s_add_u32 s8, s8, s12
    s_cmp_ge_u32 s4, {SPIN_MAX}
    s_cselect_b32 s8, 256, s8
    s_cmp_lt_u32 s8, {SPEC_TH}
    s_cbranch_scc1 {lm}
    s_cmp_eq_u32 s8, 256
    s_cbranch_scc1 {lmn}
    s_cmp_lg_u32 s7, 0
    s_cbranch_scc1 {lm}
    ''')
    a.label(lmn)
    a('''
    v_max_u32 v12, v8, v9
    v_max3_u32 v12, v12, v10, v11
    ''')
    wave_reduce(a, 'v_max_u32', 12)
    a(f'''
    s_nop 0
    v_readlane_b32 s12, v12, 63
    s_cmp_eq_u32 s7, 0
    s_cselect_b32 s7, s12, s7
    s_cmp_eq_u32 s8, 256
    s_cselect_b32 s12, s12, 0
    v_mov_b32 v8, s7
    v_mov_b32 v9, s12
    s_mov_b64 exec, {(1<<NREP)-1:#x}
    buffer_store_dwordx2 v[8:9], v14, s[32:35], s9 offen sc1
    s_mov_b64 exec, -1
    s_cmp_eq_u32 s8, 256
    s_cbranch_scc0 {lm}
    s_branch {lkd}
    ''')
    a.label(lks)
    a(f'''
    s_and_b32 s5, s2, {NREP-1}
    s_lshl_b32 s5, s5, 12
    s_add_u32 s5, s5, {WS_GO + 128}
    v_mov_b32 v46, 0
    s_cmp_lt_u32 s2, 216
    s_cselect_b32 s6, -1, 0
    s_cmp_eq_u32 s56, 0
    s_cselect_b32 s6, s6, 0
    ''')
    spin('''
    buffer_load_dwordx2 v[8:9], v46, s[32:35], s5 offen sc1
    s_waitcnt vmcnt(0)
    v_and_b32 v10, s6, v8
    v_or_b32 v10, v10, v9
    v_cmp_ne_u32 vcc, 0, v10
    ''')
    a.label(lkd)
    a(f'''
    v_mov_b32 v10, {M_GKEY}
    s_mov_b64 exec, 1
    ds_write_b64 v10, v[8:9]
    s_mov_b64 exec, -1
    s_waitcnt lgkmcnt(0)
    ''')
    a.label(lb2)
    lw = a.newlabel('iswin'); ldown = a.newlabel('down')
    a(f'''
    s_barrier
    v_mov_b32 v10, {M_GKEY}
    ds_read_b64 v[8:9], v10
    s_waitcnt lgkmcnt(0)
    v_readfirstlane_b32 s57, v8            ; p
    v_readfirstlane_b32 s44, v9            ; f
    s_cmp_eq_u32 s44, 0
    s_cbranch_scc1 {lw}
    s_cmp_lg_u32 s59, s58
    s_cbranch_scc1 {lw}
    s_cmp_eq_u32 s44, s58
    s_cbranch_scc1 {lw}
    buffer_store_dwordx4 v[92:95], v3, s[36:39], s23 offen OUTFLAG
    buffer_store_dword v96, v4, s[36:39], s23 offen offset:1024 OUTFLAG
    ''')
    a.label(lw)
    if TAILST and not CONVST: stamp(a, 4)
    a(f'''
    s_mov_b32 s51, s44
    s_cmp_eq_u32 s44, 0
    s_cselect_b32 s44, s57, s44
    s_cmp_eq_u32 s44, s56
    s_cbranch_scc1 {end}
    s_mov_b32 s56, s44
    s_cmp_eq_u32 s44, s57
    s_cselect_b32 s19, 0, {SET1}
    s_and_b32 s45, s44, 0x7ff
    s_sub_u32 s45, 2047, s45
    s_lshr_b32 s46, s45, 3
    s_mul_i32 s46, s46, 5120
    s_add_u32 s46, s46, {WS_CAND}
    s_cmp_ge_u32 s2, 216
    s_cbranch_scc1 {ldown}
    ; ---- G (waves 4-7) ----
    s_cmp_lt_u32 s20, 4
    s_cbranch_scc1 {lgb}
    s_lshl_b32 s47, s54, 2
    s_add_u32 s47, s47, s46
    ''')
    spin('''
    buffer_load_dword v12, v4, s[32:35], s47 offen sc1
    buffer_load_dword v13, v4, s[32:35], s47 offen offset:256 sc1
    buffer_load_dword v14, v4, s[32:35], s47 offen offset:512 sc1
    buffer_load_dword v15, v4, s[32:35], s47 offen offset:768 sc1
    buffer_load_dword v16, v4, s[32:35], s47 offen offset:1024 sc1
    s_waitcnt vmcnt(0)
    v_and_b32 v17, v12, v13
    v_and_b32 v18, v14, v15
    v_and_b32 v17, v17, v16
    v_and_b32 v17, v17, v18
    v_and_b32 v17, 1, v17
    v_cmp_ne_u32 vcc, 0, v17
    ''')
    if TAILST and not CONVST: stamp(a, 6)
    for i in range(12, 17):
        a(f'v_and_b32 v{i}, 0xffff0000, v{i}')
    R = 40
    for e in range(5):
        for i in range(8):
            op = 'v_mul_f32' if e == 0 else 'v_fmac_f32'
            a(f'{op} v{R+i}, v{12+e}, v{UW+8*e+i}')
    reduceN(a, R, 8)
    a(f'''
    v_lshrrev_b32 v6, 4, v2
    v_lshlrev_b32 v6, 3, v6
    s_lshl_b32 s47, s20, 5
    s_add_u32 s47, s47, {M_P1 - 128}
    v_add_u32 v6, s47, v6
    s_mov_b32 exec_lo, 0x00010001
    s_mov_b32 exec_hi, 0x00010001
    ds_write_b64 v6, v[{R}:{R+1}]
    s_mov_b64 exec, -1
    s_waitcnt lgkmcnt(0)
    ''')
    a.label(lgb)
    a(f'''
    s_barrier
    s_cmp_ge_u32 s20, 5
    s_cbranch_scc1 {lpost}
    v_and_b32 v6, 7, v2
    v_lshlrev_b32 v6, 2, v6
    v_add_u32 v6, {M_P1}, v6
    ds_read_b32 v8, v6
    ds_read_b32 v9, v6 offset:64
    ds_read_b32 v12, v6 offset:32
    ds_read_b32 v13, v6 offset:96
    s_mul_i32 s47, s2, 2560
    s_lshl_b32 s48, s20, 9
    s_add_u32 s47, s47, s48
    s_add_u32 s47, s47, {WS_YP}
    s_add_u32 s47, s47, s19
    v_lshlrev_b32 v5, 3, v2
    s_waitcnt lgkmcnt(0)
    v_add_f32 v8, v8, v9
    v_add_f32 v12, v12, v13
    ''')
    round_bf16(a, 8, 9)
    round_bf16(a, 12, 9)
    a(f'''
    v_mul_f32 v9, {fbits(-LOG2E):#x}, v8
    v_exp_f32 v9, v9
    s_nop 0
    v_add_f32 v9, 1.0, v9
    v_rcp_f32 v9, v9
    s_nop 0
    v_mul_f32 v8, v8, v9
    ''')
    round_bf16(a, 8, 9)
    a('v_mul_f32 v8, v8, v12')
    round_bf16(a, 8, 9)
    a('s_nop 0')
    for r in range(8):
        a(f'v_readlane_b32 s{4+r}, v8, {r}')
    a('s_nop 1')
    for r in range(8):
        op = 'v_mul_f32' if r == 0 else 'v_fmac_f32'
        a(f'{op} v10, s{4+r}, v{UW+40+2*r}')
        a(f'{op} v11, s{4+r}, v{UW+41+2*r}')
    a(f'''
    v_or_b32 v10, 1, v10
    v_or_b32 v11, 1, v11
    buffer_store_dwordx2 v[10:11], v5, s[32:35], s47 offen sc1
    ''')
    if not CONVST and not REDST: stamp(a, 5)
    a.label(lpost)
    a(f'''
    s_cmp_eq_u32 s51, 0
    s_cbranch_scc1 {latt}
    s_branch {end}
    ''')
    a.label(ldown)
    a(f'''
    s_sub_u32 s53, s2, 216
    v_lshrrev_b32 v5, 2, v0
    v_mul_u32_u24 v5, 2560, v5
    v_and_b32 v6, 3, v0
    v_lshl_add_u32 v5, v6, 4, v5
    v_mov_b32 v7, {OOB:#x}
    v_cmp_gt_u32 vcc, 352, v0
    v_mov_b32 v8, 1
    s_lshl_b32 s47, s53, 6
    v_cndmask_b32 v6, v7, v5, vcc
    v_cndmask_b32 v7, v8, 0, vcc
    s_add_u32 s55, s47, s46
    s_add_u32 s47, s47, {WS_YP}
    s_add_u32 s47, s47, s19
    s_add_u32 s48, s47, {128*2560}
    v_and_b32 v22, 15, v2
    v_lshlrev_b32 v22, 2, v22
    ''')
    spin('''
    buffer_load_dword v20, v22, s[32:35], s55 offen sc1
    buffer_load_dword v21, v22, s[32:35], s55 offen offset:2560 sc1
    s_waitcnt vmcnt(0)
    v_and_b32 v16, v20, v21
    v_and_b32 v16, 1, v16
    v_cmp_ne_u32 vcc, 0, v16
    ''')
    lf = a.newlabel('f'); lf1 = a.newlabel('f1'); lf2 = a.newlabel('f2'); lfo = a.newlabel('fo')
    a(f'''
    v_mov_b32 v12, 0
    v_mov_b32 v13, 0
    v_mov_b32 v14, 0
    v_mov_b32 v15, 0
    v_cmp_gt_u32 vcc, 352, v0
    s_mov_b64 s[6:7], -1
    s_mov_b64 s[8:9], vcc
    s_mov_b32 s4, 0
    ''')
    a.label(lf)
    a(f'''
    s_mov_b64 exec, s[6:7]
    s_cbranch_execz {lf1}
    buffer_load_dwordx4 v[8:11], v5, s[32:35], s47 offen sc1
    ''')
    a.label(lf1)
    a(f'''
    s_mov_b64 exec, s[8:9]
    s_cbranch_execz {lf2}
    buffer_load_dwordx4 v[12:15], v5, s[32:35], s48 offen sc1
    ''')
    a.label(lf2)
    a(f'''
    s_mov_b64 exec, -1
    s_add_u32 s4, s4, 1
    s_waitcnt vmcnt(0)
    v_and_b32 v16, v8, v9
    v_and_b32 v17, v10, v11
    v_and_b32 v18, v12, v13
    v_and_b32 v19, v14, v15
    v_and_b32 v16, v16, v17
    v_and_b32 v18, v18, v19
    v_and_b32 v16, 1, v16
    v_and_b32 v18, 1, v18
    v_cmp_eq_u32 vcc, 0, v16
    v_cmp_eq_u32 s[10:11], 0, v18
    s_and_b64 s[6:7], s[6:7], vcc
    s_and_b64 s[8:9], s[8:9], s[10:11]
    s_cmp_ge_u32 s4, {SPIN_MAX}
    s_cbranch_scc1 {lfo}
    s_or_b64 s[10:11], s[6:7], s[8:9]
    s_cbranch_scc1 {lf}
    ''')
    a.label(lfo)
    a(f'''
    v_add_f32 v8, v8, v12
    v_add_f32 v9, v9, v13
    v_add_f32 v10, v10, v14
    v_add_f32 v11, v11, v15
    v_and_b32 v20, 0xffff0000, v20
    v_and_b32 v21, 0xffff0000, v21
    v_permlane32_swap_b32 v8, v10
    v_permlane32_swap_b32 v9, v11
    v_add_f32 v8, v8, v10
    v_add_f32 v9, v9, v11
    s_nop 1
    v_permlane16_swap_b32 v8, v9
    v_add_f32 v8, v8, v9
    s_nop 1
    v_add_f32_dpp v8, v8, v8 row_ror:4 row_mask:0xf bank_mask:0xf
    s_nop 1
    v_add_f32_dpp v8, v8, v8 row_ror:8 row_mask:0xf bank_mask:0xf
    v_and_b32 v7, 3, v2
    v_lshlrev_b32 v7, 4, v7
    v_lshrrev_b32 v9, 4, v2
    v_lshl_add_u32 v7, v9, 2, v7
    s_lshl_b32 s47, s20, 6
    s_add_u32 s47, s47, {M_P2}
    v_add_u32 v7, s47, v7
    s_mov_b32 exec_lo, 0x000f000f
    s_mov_b32 exec_hi, 0x000f000f
    ds_write_b32 v7, v8
    s_mov_b64 exec, -1
    s_waitcnt lgkmcnt(0)
    s_barrier
    s_cmp_lg_u32 s20, 0
    s_cbranch_scc1 {end}
    v_add_u32 v6, {M_P2}, v22
    ds_read_b32 v8, v6
    ds_read_b32 v9, v6 offset:64
    ds_read_b32 v10, v6 offset:128
    ds_read_b32 v11, v6 offset:192
    ds_read_b32 v12, v6 offset:256
    ds_read_b32 v13, v6 offset:320
    ds_read_b32 v14, v6 offset:384
    ds_read_b32 v15, v6 offset:448
    s_lshr_b32 s48, s44, 16
    s_xor_b32 s49, s48, 0xffff
    s_and_b32 s50, s48, 0x7fff
    s_cmp_ge_u32 s48, 0x8000
    s_cselect_b32 s48, s50, s49
    s_lshl_b32 s48, s48, 16
    v_mov_b32 v18, s48
    v_mul_f32 v18, {fbits(-LOG2E):#x}, v18
    v_exp_f32 v18, v18
    s_nop 0
    v_add_f32 v18, 1.0, v18
    v_rcp_f32 v18, v18
    s_waitcnt lgkmcnt(0)
    v_add_f32 v8, v8, v9
    v_add_f32 v10, v10, v11
    v_add_f32 v12, v12, v13
    v_add_f32 v14, v14, v15
    v_add_f32 v8, v8, v10
    v_add_f32 v12, v12, v14
    v_add_f32 v8, v8, v12
    ''')
    round_bf16(a, 8, 9)
    round_bf16(a, 18, 9)
    a('v_mul_f32 v8, v8, v18')
    round_bf16(a, 8, 9)
    a('v_add_f32 v8, v20, v8')
    round_bf16(a, 8, 9)
    a(f'''
    v_add_f32 v8, v21, v8
    v_cvt_pk_bf16_f32 v8, v8, v8
    s_mul_i32 s45, s45, 1280
    s_lshl_b32 s47, s53, 5
    s_add_u32 s45, s45, s47
    v_lshlrev_b32 v7, 1, v2
    s_mov_b64 exec, 0xffff
    buffer_store_short v8, v7, s[36:39], s45 offen
    s_mov_b64 exec, -1
    ''')
    a.label(end)
    stamp_flush(a)
    a.label(end + 'x')
    a('s_endpgm')

def main():
    global STAMPS
    global PF
    if len(sys.argv) > 2 and sys.argv[2] == 'stamps': STAMPS = True
    global WPOS, TAILST, OUTF
    import os
    OUTF = os.environ.get('OUTF', OUTF)
    global PRIO, CONVST, SPEC_TH, REDST
    REDST = bool(os.environ.get('REDST'))
    global WLDPOS
    WLDPOS = os.environ.get('WLDPOS', WLDPOS)
    PF = os.environ.get('PF', PF)
    SPEC_TH = int(os.environ.get('SPEC_TH', SPEC_TH))
    CONVST = bool(os.environ.get('CONVST'))
    PRIO = int(os.environ.get('PRIO', PRIO))
    if len(sys.argv) > 4: TAILST = True
    if len(sys.argv) > 3: WPOS = sys.argv[3]
    a = A()
    gen(a)
    hdr = f'; @launch grid=(256,1,1) block=(512,1,1) lds={LDS_TOTAL}\n'
    hdr += '.amdgcn_target "amdgcn-amd-amdhsa--gfx950"\n.text\n.set CODE_BYTES, 20480\n'
    out = hdr + a.text().replace('OUTFLAG', OUTF) + f'''.section .rodata,"a"
.p2align 6
.amdhsa_kernel {KNAME}
  .amdhsa_next_free_vgpr 248
  .amdhsa_next_free_sgpr 102
  .amdhsa_accum_offset 248
  .amdhsa_group_segment_fixed_size 0
  .amdhsa_kernarg_size 120
  .amdhsa_user_sgpr_count 2
  .amdhsa_user_sgpr_kernarg_segment_ptr 1
  .amdhsa_system_sgpr_workgroup_id_x 1
.end_amdhsa_kernel
'''
    path = sys.argv[1] if len(sys.argv) > 1 else f'cdna_kernels/{NAME}.s'
    open(path, 'w').write(out)
    print('wrote', path, len(out))

if __name__ == '__main__':
    main()
```

```python
import struct, sys

NAME = 'sequential_preLN__ssm_conv_s4d__moe_arch_mod__prompt'
KNAME = NAME + '_kernel'

WS_U = 0x000000
WS_YS = 0x480000
WS_YT = 0x280000
WS_CAND = 0x520000
WS_KEY = 0x500000
WS_FLAG2 = 0x501000
WS_FLAG1 = 0x502000
WS_GO = 0x508000
WS_PART = 0x6A0000
WS_YP = 0x6C0000
WS_ACT = 0x504000
WS_STAMP = 0xE00000
WS_SIZE = 0x1000000
NREP = 8
SPIN_MAX = 1 << 18
OOB = 0x7ffffff0
STAMPS = False
TAILST = False
CONVST = False
REDST = False
WARM = True
PF = 'ug2'
SIGPOS = 2
WPOS = 'conv'
CODEPF = True
SPEC_TH = 176
WLDPOS = 'B'
SET1 = 0x100000
OUTF = 'nt'
WSH = 21
PRIO = 0

def fbits(x):
    return struct.unpack('<I', struct.pack('<f', x))[0]

LOG2E = 1.4426950408889634
LOG2E_HI = struct.unpack('<f', struct.pack('<f', LOG2E))[0]
LOG2E_LO = LOG2E - LOG2E_HI
LN2 = 0.6931471805599453
INV2PI = 0.15915494309189535

class A:
    def __init__(self):
        self.L = []
        self.uid = 0
    def __call__(self, s):
        for line in s.strip('\n').split('\n'):
            if line.strip():
                self.L.append('    ' + line.strip())
    def label(self, s):
        self.L.append(s + ':')
    def newlabel(self, base):
        self.uid += 1
        return f'L_{base}_{self.uid}'
    def text(self):
        return '\n'.join(self.L) + '\n'

NSTAMP = 12
def stamp(a, i):
    if STAMPS:
        a(f's_memrealtime s[{76+2*i}:{77+2*i}]')
def cstamp(a, i):
    if STAMPS:
        a(f's_memtime s[{76+2*i}:{77+2*i}]')
def stamp_init(a):
    if STAMPS:
        for i in range(NSTAMP):
            a(f's_mov_b32 s{76+2*i}, 0')
def stamp_flush(a):
    if STAMPS:
        a('s_mov_b64 exec, -1')
        a(f's_memrealtime s[{76+2*(NSTAMP-1)}:{77+2*(NSTAMP-1)}]')
        a('s_waitcnt lgkmcnt(0)')
        for i in range(NSTAMP):
            a(f'v_mov_b32 v{8+i}, s{76+2*i}')
        a(f'''
        s_lshl_b32 s76, s2, 3
        s_add_u32 s76, s76, s20
        s_lshl_b32 s76, s76, 6
        s_add_u32 s76, s76, {WS_STAMP}
        v_mov_b32 v24, 0
        s_mov_b64 exec, 1
        buffer_store_dwordx4 v[8:11], v24, s[32:35], s76 offen
        buffer_store_dwordx4 v[12:15], v24, s[32:35], s76 offen offset:16
        buffer_store_dwordx4 v[16:19], v24, s[32:35], s76 offen offset:32
        ''')

def srd(a, s, lo, hi, size):
    a(f's_mov_b32 s{s}, s{lo}')
    a(f's_and_b32 s{s+1}, s{hi}, 0xffff')
    a(f's_mov_b32 s{s+2}, {size}')
    a(f's_mov_b32 s{s+3}, 0x00020000')

def wave_reduce(a, op, v):
    for m in ['quad_perm:[1,0,3,2] row_mask:0xf bank_mask:0xf',
              'quad_perm:[2,3,0,1] row_mask:0xf bank_mask:0xf',
              'row_half_mirror row_mask:0xf bank_mask:0xf',
              'row_mirror row_mask:0xf bank_mask:0xf',
              'row_bcast:15 row_mask:0xa bank_mask:0xf',
              'row_bcast:31 row_mask:0xc bank_mask:0xf']:
        a('s_nop 1')
        a(f'{op}_dpp v{v}, v{v}, v{v} {m}')

def round_bf16(a, v, t):
    a(f'v_cvt_pk_bf16_f32 v{t}, v{v}, v{v}')
    a(f'v_lshlrev_b32 v{v}, 16, v{t}')

def unpack(a, src, lo, hi):
    a(f'v_lshlrev_b32 v{lo}, 16, v{src}')
    a(f'v_and_b32 v{hi}, 0xffff0000, v{src}')

def exp_bf16(a, v, t0, t1, s_l2e, s_l2elo, s_ln2):
    a(f'v_mul_f32 v{t0}, s{s_l2e}, v{v}')
    a(f'v_fma_f32 v{t1}, v{v}, s{s_l2e}, -v{t0}')
    a(f'v_fmac_f32 v{t1}, s{s_l2elo}, v{v}')
    a(f'v_exp_f32 v{t0}, v{t0}')
    a(f'v_mul_f32 v{t1}, s{s_ln2}, v{t1}')
    a(f'v_fma_f32 v{v}, v{t0}, v{t1}, v{t0}')
    round_bf16(a, v, t0)

def ln_stats(a, src, tmp, vs1, vs2, vmean, vrs, vt, s0, s1, s2_):
    a(f'v_readfirstlane_b32 s{s2_}, v{src}')
    a('s_nop 1')
    for i in range(10):
        a(f'v_subrev_f32 v{tmp+i}, s{s2_}, v{src+i}')
    a(f'''
    v_add_f32 v{vs1}, v{tmp}, v{tmp+1}
    v_mul_f32 v{vs2}, v{tmp}, v{tmp}
    v_add_f32 v{vmean}, v{tmp+2}, v{tmp+3}
    v_mul_f32 v{vrs}, v{tmp+1}, v{tmp+1}
    ''')
    for i in range(4, 10, 2):
        a(f'v_add_f32 v{vs1}, v{vs1}, v{tmp+i}')
        a(f'v_add_f32 v{vmean}, v{vmean}, v{tmp+i+1}')
    for i in range(2, 10, 2):
        a(f'v_fmac_f32 v{vs2}, v{tmp+i}, v{tmp+i}')
        a(f'v_fmac_f32 v{vrs}, v{tmp+i+1}, v{tmp+i+1}')
    a(f'v_add_f32 v{vs1}, v{vs1}, v{vmean}')
    a(f'v_add_f32 v{vs2}, v{vs2}, v{vrs}')
    for m in ['quad_perm:[1,0,3,2] row_mask:0xf bank_mask:0xf',
              'quad_perm:[2,3,0,1] row_mask:0xf bank_mask:0xf',
              'row_half_mirror row_mask:0xf bank_mask:0xf',
              'row_mirror row_mask:0xf bank_mask:0xf',
              'row_bcast:15 row_mask:0xa bank_mask:0xf',
              'row_bcast:31 row_mask:0xc bank_mask:0xf']:
        a('s_nop 0')
        a(f'v_add_f32_dpp v{vs1}, v{vs1}, v{vs1} {m}')
        a(f'v_add_f32_dpp v{vs2}, v{vs2}, v{vs2} {m}')
    a(f'''
    v_mov_b32 v{vt}, {fbits(1.0/640):#x}
    v_readlane_b32 s{s0}, v{vs1}, 63
    v_readlane_b32 s{s1}, v{vs2}, 63
    s_nop 0
    v_mul_f32 v{vmean}, s{s0}, v{vt}
    v_mul_f32 v{vrs}, s{s1}, v{vt}
    v_fma_f32 v{vrs}, -v{vmean}, v{vmean}, v{vrs}
    v_add_f32 v{vmean}, s{s2_}, v{vmean}
    v_max_f32 v{vrs}, 0, v{vrs}
    ''')
    round_bf16(a, vrs, vt)
    a(f'v_add_f32 v{vrs}, {fbits(1e-5):#x}, v{vrs}')
    round_bf16(a, vrs, vt)
    a(f'v_sqrt_f32 v{vrs}, v{vrs}')
    a('s_nop 0')
    round_bf16(a, vrs, vt)
    a(f'v_rcp_f32 v{vrs}, v{vrs}')
    round_bf16(a, vmean, vt)

def reduceN(a, R, n):
    h = n // 2; qn = n // 4
    a('s_nop 1')
    for j in range(h):
        a(f'v_permlane32_swap_b32 v{R+j}, v{R+j+h}')
    for j in range(h):
        a(f'v_add_f32 v{R+j}, v{R+j}, v{R+j+h}')
    a('s_nop 1')
    for j in range(qn):
        a(f'v_permlane16_swap_b32 v{R+j}, v{R+j+qn}')
    for j in range(qn):
        a(f'v_add_f32 v{R+j}, v{R+j}, v{R+j+qn}')
    for m in ['quad_perm:[1,0,3,2]', 'quad_perm:[2,3,0,1]', 'row_half_mirror', 'row_mirror']:
        a('s_nop 0')
        for j in range(qn):
            a(f'v_add_f32_dpp v{R+j}, v{R+j}, v{R+j} {m} row_mask:0xf bank_mask:0xf')

KT_RS = 544
KT_E0 = 41
KT_SZ = 57 * KT_RS
L_TILE = 3 * KT_SZ
TS = 1344
L_KC = L_TILE + 8 * TS
KC_SZ = 1344
L_UP = L_KC + 3 * KC_SZ
US = 1152
UP_SZ = 4 * US
L_MISC = L_UP + 3 * UP_SZ
M_CNT1 = L_MISC
M_CNT2 = L_MISC + 4
M_SCALE = L_MISC + 16
M_PAIR = L_MISC + 96
M_KEYS = L_MISC + 32
M_GKEY = L_MISC + 64
M_P2 = L_MISC + 384
M_P1 = L_MISC + 1024
LDS_TOTAL = L_MISC + 3072
CS = 4224
CP_SZ = 4 * CS
L_RED = 3 * CP_SZ
L_Y2 = 0

VX = 200
VT = 206
VW = 168
GA = 152
VU = 160

def gen(a):
    a.L.append(f'.globl {KNAME}')
    a.L.append('.p2align 8')
    a.L.append(f'.type {KNAME},@function')
    a.label(KNAME)
    end = 'L_end'
    stamp_init(a)
    stamp(a, 0)
    a(f'''
    s_cmp_ge_u32 s2, 256
    s_cbranch_scc1 {end}x
    s_load_dwordx8 s[4:11], s[0:1], 0
    s_load_dwordx4 s[12:15], s[0:1], 32
    s_load_dwordx2 s[16:17], s[0:1], 48    ; D
    s_load_dwordx2 s[18:19], s[0:1], 112   ; ws
    s_load_dwordx8 s[64:71], s[0:1], 64
    s_load_dwordx4 s[72:75], s[0:1], 96
    v_lshrrev_b32 v1, 6, v0
    v_and_b32 v2, 63, v0                   ; lane
    v_readfirstlane_b32 s20, v1            ; wave
    s_and_b32 s21, s2, 7
    s_lshl_b32 s21, s21, 5
    s_lshr_b32 s22, s2, 3
    s_add_u32 s21, s21, s22                ; rb
    s_lshl_b32 s22, s21, 3
    s_add_u32 s22, s22, s20                ; row
    s_mul_i32 s23, s22, 1280
    v_lshlrev_b32 v3, 4, v2                ; lane*16
    v_lshlrev_b32 v4, 2, v2                ; lane*4
    s_and_b32 s60, s2, 7
    s_lshl_b32 s60, s60, 4
    s_lshr_b32 s61, s2, 4
    s_add_u32 s3, s60, s61                 ; p'
    s_mul_i32 s60, s3, 5
    s_bfe_u32 s61, s2, 0x10003             ; odd
    s_lshl_b32 s100, s3, 12
    s_add_u32 s100, s100, {WS_YS}
    s_lshl_b32 s3, s3, 1
    s_add_u32 s3, s3, s61
    s_lshl_b32 s3, s3, 13
    s_add_u32 s3, s3, {WS_YT}
    s_mul_i32 s62, s61, 3
    s_add_u32 s62, s62, s60                ; chA
    s_add_u32 s63, s60, 2                  ; chS
    s_lshr_b32 s56, s20, 1
    s_add_u32 s57, s62, s56
    s_cmp_eq_u32 s56, 2
    s_cselect_b32 s57, s63, s57
    ''')
    if CODEPF:
        lcp = a.newlabel('cp')
        a(f'''
        s_cmp_lg_u32 s20, 6
        s_cbranch_scc1 {lcp}
        s_getpc_b64 s[24:25]
        L_pc_here:
        s_lshr_b32 s26, s2, 3
        s_lshl_b32 s26, s26, 10
        v_add_u32 v5, s26, v3
        s_cmp_lt_u32 s26, (L_endx - L_pc_here) & 0xfffffc00
        s_cbranch_scc0 {lcp}
        global_load_dwordx4 v[240:243], v5, s[24:25]
        ''')
        a.label(lcp)
    a(f'''
    s_waitcnt lgkmcnt(0)
    ''')
    srd(a, 24, 4, 5, 2621440)
    srd(a, 32, 18, 19, WS_SIZE)
    srd(a, 28, 16, 17, 1280)
    lnz = a.newlabel('nz')
    a(f'''
    s_lshl_b32 s17, s2, 3
    s_add_u32 s17, s17, s20
    s_cmp_lg_u32 s17, 7
    s_cbranch_scc1 {lnz}
    v_mov_b32 v8, 0
    v_mov_b32 v9, 0
    v_mov_b32 v10, 0
    v_mov_b32 v11, 0
    s_mov_b32 s4, {WS_FLAG1}
    buffer_store_dwordx4 v[8:11], v3, s[32:35], s4 offen sc1
    buffer_store_dwordx4 v[8:11], v3, s[32:35], s4 offen offset:1024 sc1
    buffer_store_dwordx4 v[8:11], v3, s[32:35], s4 offen offset:2048 sc1
    buffer_store_dwordx4 v[8:11], v3, s[32:35], s4 offen offset:3072 sc1
    v_lshlrev_b32 v12, 12, v2
    s_mov_b32 s4, {WS_GO + 256}
    s_mov_b64 exec, {(1<<NREP)-1:#x}
    buffer_store_dword v8, v12, s[32:35], s4 offen sc1
    s_mov_b64 exec, -1
    s_nop 1
    ''')
    a.label(lnz)
    a('''
    buffer_load_dwordx4 v[8:11], v3, s[24:27], s23 offen
    buffer_load_dword v12, v4, s[24:27], s23 offen offset:1024
    ''')
    srd(a, 36, 6, 7, 163840)
    srd(a, 40, 8, 9, 163840)
    srd(a, 44, 10, 11, 163840)
    srd(a, 48, 12, 13, 163840)
    srd(a, 52, 14, 15, 1280)
    a('''
    buffer_load_dwordx4 v[14:17], v3, s[28:31], 0 offen
    buffer_load_dword v18, v4, s[28:31], 0 offen offset:1024
    s_lshl_b32 s58, s57, 8
    s_and_b32 s59, s20, 1
    s_lshl_b32 s59, s59, 7
    s_add_u32 s59, s59, s58
    v_lshlrev_b32 v5, 1, v2
    s_lshl_b32 s16, s57, 1
    v_mov_b32 v6, 0
    buffer_load_ushort v20, v5, s[36:39], s59 offen
    buffer_load_ushort v21, v5, s[40:43], s59 offen
    buffer_load_ushort v22, v5, s[44:47], s59 offen
    buffer_load_ushort v23, v5, s[48:51], s59 offen
    buffer_load_dword v24, v4, s[44:47], s58 offen
    buffer_load_dword v25, v4, s[48:51], s58 offen
    buffer_load_ushort v26, v6, s[52:55], s16 offen
    ''')
    def prefetch(PD=216):
        srd(a, 36, 66, 67, 640 * 3456)
        srd(a, 40, 68, 69, 640 * 3456)
        srd(a, 44, 70, 71, 1728 * 1280)
        a(f'''
        s_and_b32 s4, s2, 7
        s_lshr_b32 s5, s2, 3
        s_mul_i32 s6, s4, 432
        s_mul_i32 s7, s5, {20*3456}
        s_add_u32 s6, s6, s7
        v_lshrrev_b32 v5, 5, v2
        v_mul_u32_u24 v5, 3456, v5
        v_and_b32 v6, 31, v2
        v_lshl_add_u32 v5, v6, 4, v5
        v_mov_b32 v7, {OOB:#x}
        v_cmp_gt_u32 vcc, 27, v6
        s_cmp_eq_u32 s20, 6
        s_cselect_b32 s36, s36, s40
        v_cndmask_b32 v5, v7, v5, vcc
        s_cselect_b32 s37, s37, s41
        ''')
        for i in range(10):
            a(f's_add_u32 s7, s6, {2*i*3456}')
            a(f'buffer_load_dwordx4 v[{PD+4*(i%2)}:{PD+3+4*(i%2)}], v5, s[36:39], s7 offen')
    if PF == 'start':
        lns = a.newlabel('ns')
        a(f'''
        s_cmp_lt_u32 s20, 6
        s_cbranch_scc1 {lns}
        ''')
        prefetch()
        a.label(lns)
    if WARM:
        lnw = a.newlabel('nw')
        a(f'''
        s_cmp_ge_u32 s20, 6
        s_cbranch_scc1 {lnw}
        v_lshlrev_b32 v27, {WSH}, v2
        s_mov_b32 s8, 0
        s_mov_b32 s4, s18
        s_mov_b32 s5, s19
        s_mov_b32 s6, {WS_SIZE // 2}
        s_cmp_eq_u32 s20, 1
        s_cselect_b32 s4, s72, s4
        s_cselect_b32 s5, s73, s5
        s_cselect_b32 s6, 2621440, s6
        s_cmp_eq_u32 s20, 2
        s_cselect_b32 s4, s74, s4
        s_cselect_b32 s5, s75, s5
        s_cselect_b32 s6, 256, s6
        s_cmp_eq_u32 s20, 3
        s_cselect_b32 s4, s64, s4
        s_cselect_b32 s5, s65, s5
        s_cselect_b32 s6, 1280, s6
        s_cmp_eq_u32 s20, 4
        s_cselect_b32 s4, s66, s4
        s_cselect_b32 s5, s67, s5
        s_cselect_b32 s6, {640*3456}, s6
        s_cmp_eq_u32 s20, 5
        s_cselect_b32 s8, {64 << WSH}, s8
        s_and_b32 s5, s5, 0xffff
        s_mov_b32 s7, 0x00020000
        buffer_load_dword v244, v27, s[4:7], s8 offen
        ''')
        a.label(lnw)
    lnr = a.newlabel('nr')
    a(f'''
    s_cmp_lg_u32 s17, 7
    s_cbranch_scc1 {lnr}
    ''')
    srd(a, 4, 74, 75, 256)
    a(f'''
    v_mov_b32 v27, 0
    v_mov_b32 v28, 1
    s_waitcnt vmcnt({26 if PF == 'start' else 11})
    s_mov_b64 exec, 1
    buffer_store_dword v28, v27, s[4:7], 0 offen sc1      ; READY
    s_mov_b64 exec, -1
    ''')
    a.label(lnr)
    a(f'''
    v_mov_b32 v27, 0
    v_lshrrev_b32 v28, 5, v0
    v_mul_u32_u24 v28, {US}, v28
    v_and_b32 v29, 31, v0
    v_lshl_add_u32 v28, v29, 2, v28
    v_add_u32 v28, {L_UP}, v28
    v_cmp_gt_u32 vcc, 384, v0
    s_and_saveexec_b64 s[4:5], vcc
    ds_write_b32 v28, v27
    s_mov_b64 exec, s[4:5]
    v_lshrrev_b32 v28, 2, v0
    v_mul_u32_u24 v28, {KC_SZ}, v28
    v_and_b32 v29, 3, v0
    v_lshl_add_u32 v28, v29, 2, v28
    v_add_u32 v28, {L_KC}, v28
    v_lshlrev_b32 v29, 2, v0
    v_add_u32 v29, {L_MISC}, v29
    v_cmp_gt_u32 vcc, 12, v0
    s_and_saveexec_b64 s[4:5], vcc
    ds_write_b32 v28, v27
    ds_write_b32 v29, v27
    ds_write_b32 v29, v27 offset:96
    s_mov_b64 exec, s[4:5]
    ''')
    a('v_lshlrev_b32 v5, 2, v0')
    a(f'v_mov_b32 v27, {L_KC}')
    for d in range(7):
        a(f'''
        v_add_u32 v31, {d-3}, v5
        v_cvt_f32_i32 v32, v31
        v_cvt_pk_bf16_f32 v32, v32, v32
        v_and_b32 v32, 0xffff, v32
        v_subrev_u32 v32, {(134<<7)-128}, v32
        v_cmp_gt_i32 vcc, 256, v31
        s_nop 1
        v_cndmask_b32 v32, v32, v31, vcc
        v_lshl_add_u32 v32, v32, 1, v27
        v_add_u32 v32, 16, v32
        v_cmp_gt_i32 vcc, 0, v31
        s_nop 1
        v_cndmask_b32 v{GA+d}, v32, v27, vcc
        ''')
    a(f'''
    v_lshrrev_b32 v31, 3, v0
    v_mul_u32_u24 v31, {CS}, v31
    v_and_b32 v32, 7, v0
    v_lshl_add_u32 v{VU+4}, v32, 2, v31
    ''')
    for e in range(2):
        vi, vr, vk, va, vl = 31, 32, 33, VU + 2 * e, VU + 2 * e + 1
        a(f'''
        v_add_u32 v{vi}, {512*e}, v0
        v_mul_u32_u24 v{vr}, 43691, v{vi}
        v_lshrrev_b32 v{vr}, 17, v{vr}
        v_mul_u32_u24 v{vk}, 3, v{vr}
        v_sub_u32 v{vk}, v{vi}, v{vk}
        v_mul_u32_u24 v{va}, 10240, v{vr}
        v_lshl_add_u32 v{va}, v{vk}, 4, v{va}
        s_lshl_b32 s5, s61, 1
        v_add_u32 v{vk}, s5, v{vk}
        v_subrev_u32 v{vl}, 3, v{vk}
        v_cmp_gt_u32 vcc, 3, v{vk}
        s_nop 1
        v_cndmask_b32 v{vk}, v{vl}, v{vk}, vcc
        v_mul_u32_u24 v{vl}, {UP_SZ}, v{vk}
        v_lshl_add_u32 v{vl}, v{vr}, 2, v{vl}
        v_add_u32 v{vl}, {L_UP + 128}, v{vl}
        ''')
    a(f'''
    v_mov_b32 v31, {OOB:#x}
    v_cmp_gt_u32 vcc, 256, v0
    s_nop 1
    v_cndmask_b32 v{VU+2}, v31, v{VU+2}, vcc
    ''')
    a(f'''
    v_mov_b32 v36, 0
    v_mov_b32 v37, 0
    v_mov_b32 v38, 0
    v_mov_b32 v39, 0
    v_lshlrev_b32 v35, 4, v0
    buffer_store_dwordx4 v[36:39], v35, s[32:35], s3 offen sc1
    v_lshrrev_b32 v32, 5, v0
    v_mov_b32 v33, 0x8f
    v_mov_b32 v34, 0x70
    s_cmp_eq_u32 s61, 0
    s_cselect_b64 vcc, -1, 0
    v_cndmask_b32 v33, v34, v33, vcc
    v_lshrrev_b32 v33, v32, v33
    v_and_b32 v33, 1, v33
    v_cmp_ne_u32 vcc, 0, v33
    v_mov_b32 v33, {OOB:#x}
    s_nop 0
    v_cndmask_b32 v35, v33, v35, vcc
    buffer_store_dwordx4 v[36:39], v35, s[32:35], s100 offen sc1
    ''')
    X = 30
    def wait2(n):
        if PF == 'start':
            l1 = a.newlabel('w'); l2 = a.newlabel('w')
            a(f'''
            s_cmp_ge_u32 s20, 6
            s_cbranch_scc1 {l1}
            s_waitcnt vmcnt({n})
            s_branch {l2}
            ''')
            a.label(l1)
            a(f's_waitcnt vmcnt({n+15})')
            a.label(l2)
        else:
            a(f's_waitcnt vmcnt({n})')
    wait2(11)
    srd(a, 24, 74, 75, 256)
    for i in range(4):
        unpack(a, 8 + i, X + 2 * i, X + 2 * i + 1)
        a(f'v_mov_b32 v{VX+i}, v{8+i}')
    unpack(a, 12, X + 8, X + 9)
    a(f'v_mov_b32 v{VX+4}, v12')
    ln_stats(a, X, 44, 40, 43, 41, 42, 54, 4, 5, 6)
    wait2(9)
    for i in range(4):
        unpack(a, 14 + i, 54 + 2 * i, 55 + 2 * i)
    unpack(a, 18, 62, 63)
    for p in range(5):
        x0, x1 = X + 2 * p, X + 2 * p + 1
        a(f'''
        v_sub_f32 v{x0}, v{x0}, v41
        v_sub_f32 v{x1}, v{x1}, v41
        v_cvt_pk_bf16_f32 v44, v{x0}, v{x1}
        v_lshlrev_b32 v{x0}, 16, v44
        v_and_b32 v{x1}, 0xffff0000, v44
        v_mul_f32 v{x0}, v{x0}, v42
        v_mul_f32 v{x1}, v{x1}, v42
        v_cvt_pk_bf16_f32 v44, v{x0}, v{x1}
        v_lshlrev_b32 v{x0}, 16, v44
        v_and_b32 v{x1}, 0xffff0000, v44
        v_cvt_pk_f16_f32 v{64+p}, v{x0}, v{x1}
        ''')
    a(f'''
    s_and_b32 s4, s20, 3
    s_lshl_b32 s4, s4, 1
    s_lshr_b32 s5, s20, 2
    s_or_b32 s4, s4, s5
    s_mul_i32 s4, s4, {TS}
    s_add_u32 s4, s4, {L_TILE}
    v_add_u32 v44, s4, v3
    v_add_u32 v45, s4, v4
    ds_write_b128 v44, v[64:67]
    ds_write_b32 v45, v68 offset:1024
    ''')
    for p in range(5):
        x0, x1 = X + 2 * p, X + 2 * p + 1
        a(f'''
        v_mul_f32 v{x0}, v{x0}, v{54+2*p}
        v_mul_f32 v{x1}, v{x1}, v{55+2*p}
        v_cvt_pk_bf16_f32 v{VT+p}, v{x0}, v{x1}
        ''')
    l67 = a.newlabel('w67'); l45 = a.newlabel('w45')
    a(f'''
    v_lshrrev_b32 v44, 2, v2
    v_and_b32 v44, 3, v44
    v_mul_u32_u24 v44, {TS}, v44
    v_lshrrev_b32 v45, 4, v2
    v_lshlrev_b32 v45, 5, v45
    v_add_u32 v44, v44, v45
    v_and_b32 v45, 3, v2
    v_lshlrev_b32 v45, 3, v45
    v_add_u32 v44, v44, v45
    s_sub_u32 s6, s20, 2
    s_cmp_lt_u32 s20, 6
    s_cselect_b32 s6, s20, s6
    s_lshl_b32 s4, s6, 7
    s_add_u32 s4, s4, {L_TILE}
    v_add_u32 v44, s4, v44
    s_mul_i32 s4, s21, 10240
    s_lshl_b32 s5, s6, 10
    s_add_u32 s4, s4, s5
    s_add_u32 s4, s4, {WS_U}
    v_mov_b32 v46, 0
    buffer_load_dword v49, v46, s[24:27], 0 offen sc1
    s_waitcnt lgkmcnt(0)
    s_barrier
    s_lshr_b32 s5, s20, 1
    s_cmp_eq_u32 s5, 2
    s_cbranch_scc1 {l45}
    ds_read_b64_tr_b16 v[64:65], v44
    ds_read_b64_tr_b16 v[66:67], v44 offset:{4*TS}
    s_cmp_lt_u32 s20, 6
    s_cbranch_scc1 {l67}
    ds_read_b64_tr_b16 v[68:69], v44 offset:256
    ds_read_b64_tr_b16 v[70:71], v44 offset:{4*TS+256}
    ds_read_b64_tr_b16 v[72:73], v44 offset:512
    ds_read_b64_tr_b16 v[74:75], v44 offset:{4*TS+512}
    s_add_u32 s5, s4, 4096
    s_waitcnt lgkmcnt(2)
    buffer_store_dwordx4 v[68:71], v3, s[32:35], s4 offen offset:2048 sc1
    s_waitcnt lgkmcnt(0)
    buffer_store_dwordx4 v[72:75], v3, s[32:35], s5 offen sc1
    ''')
    a.label(l67)
    a('''
    s_waitcnt lgkmcnt(0)
    buffer_store_dwordx4 v[64:67], v3, s[32:35], s4 offen sc1
    ''')
    a.label(l45)
    if not TAILST: stamp(a, 2)
    def zero_mailboxes():
        lz = a.newlabel('zero')
        a(f'''
        v_mov_b32 v46, 0
        v_mov_b32 v47, 0
        v_lshlrev_b32 v48, 3, v0
        s_mul_i32 s5, s2, 5120
        s_add_u32 s5, s5, {WS_CAND}
        buffer_store_dwordx2 v[46:47], v48, s[32:35], s5 offen sc1
        s_cmp_ge_u32 s20, 2
        s_cbranch_scc1 {lz}
        s_add_u32 s5, s5, 4096
        buffer_store_dwordx2 v[46:47], v48, s[32:35], s5 offen sc1
        s_cmp_ge_u32 s20, 1
        s_cbranch_scc1 {lz}
        s_mov_b64 exec, 0x3
        v_lshlrev_b32 v48, 12, v0
        s_lshl_b32 s5, s2, 4
        s_add_u32 s5, s5, {WS_KEY}
        buffer_store_dword v46, v48, s[32:35], s5 offen sc1
        v_lshlrev_b32 v48, 7, v0
        s_and_b32 s5, s2, {NREP-1}
        s_lshl_b32 s5, s5, 12
        s_add_u32 s5, s5, {WS_GO}
        s_cmp_lt_u32 s2, {NREP}
        s_cselect_b32 s5, s5, 0x40000000
        buffer_store_dwordx2 v[46:47], v48, s[32:35], s5 offen sc1
        s_mov_b64 exec, -1
        ''')
        a.label(lz)
        lz2 = a.newlabel('zero2'); lz3 = a.newlabel('zero3')
        a(f'''
        s_cmp_ge_u32 s2, 216
        s_cbranch_scc1 {lz2}
        s_cmp_lt_u32 s20, 3
        s_cbranch_scc1 {lz3}
        s_mul_i32 s5, s2, 2560
        s_add_u32 s5, s5, {WS_YP - 3*512}
        v_lshlrev_b32 v48, 3, v0
        buffer_store_dwordx2 v[46:47], v48, s[32:35], s5 offen sc1
        s_add_u32 s5, s5, {SET1}
        buffer_store_dwordx2 v[46:47], v48, s[32:35], s5 offen sc1
        s_branch {lz2}
        ''')
        a.label(lz3)
        a.label(lz2)
    def spin(body, slp=0):
        lsp = a.newlabel('spin'); lso = a.newlabel('spinout')
        a('s_mov_b32 s4, 0')
        a.label(lsp)
        a(body)
        a(f'''
        s_add_u32 s4, s4, 1
        s_cmp_ge_u32 s4, {SPIN_MAX}
        s_cbranch_scc1 {lso}
        s_cmp_eq_u64 vcc, exec
        s_cbranch_scc1 {lso}
        ''')
        if slp: a(f's_sleep {slp}')
        a(f's_branch {lsp}')
        a.label(lso)
    def signal(cnt_addr, which, lgkm=False, vm=0):
        ls = a.newlabel('sig')
        a(f'''
        s_waitcnt vmcnt({vm})
        v_mov_b32 v46, {cnt_addr}
        v_mov_b32 v47, 1
        s_mov_b64 exec, 1
        ds_add_rtn_u32 v48, v46, v47
        s_waitcnt lgkmcnt(0)
        v_readfirstlane_b32 s4, v48
        s_lshl_b32 s5, s2, 4
        s_add_u32 s5, s5, {WS_FLAG1 if which == 1 else WS_FLAG2}
        s_cmp_lg_u32 s4, 7
        s_cbranch_scc1 {ls}
        v_mov_b32 v46, 0
        ''')
        if which == 1:
            lrd = a.newlabel('rdy')
            a(f'''
            v_cmp_ne_u32 vcc, 0, v49
            s_cbranch_vccnz {lrd}
            ''')
            spin('''
            buffer_load_dword v48, v46, s[24:27], 0 offen sc1
            s_waitcnt vmcnt(0)
            v_cmp_ne_u32 vcc, 0, v48
            ''')
            a.label(lrd)
        a('buffer_store_dword v47, v46, s[32:35], s5 offen sc1')
        a.label(ls)
        a('s_mov_b64 exec, -1')
    def gather_flags(base, r):
        lsp = a.newlabel('gf'); lso = a.newlabel('gfo')
        a(f'''
        s_mov_b32 s5, {base}
        s_mov_b32 s6, {base + 2048}
        s_mov_b32 s4, 0
        ''')
        a.label(lsp)
        a(f'''
        buffer_load_dword v{r}, v3, s[32:35], s5 offen sc1
        buffer_load_dword v{r+1}, v3, s[32:35], s5 offen offset:1024 sc1
        buffer_load_dword v{r+2}, v3, s[32:35], s6 offen sc1
        buffer_load_dword v{r+3}, v3, s[32:35], s6 offen offset:1024 sc1
        s_add_u32 s4, s4, 1
        s_waitcnt vmcnt(0)
        v_min_u32 v{r+4}, v{r}, v{r+1}
        v_min3_u32 v{r+4}, v{r+4}, v{r+2}, v{r+3}
        v_cmp_eq_u32 vcc, 0, v{r+4}
        s_cmp_ge_u32 s4, {SPIN_MAX}
        s_cbranch_scc1 {lso}
        s_and_b64 exec, exec, vcc
        s_cbranch_execnz {lsp}
        ''')
        a.label(lso)
        a('s_mov_b64 exec, -1')
    def bcast(goaddr, vval, vt):
        a(f'''
        v_lshlrev_b32 v{vt}, 12, v2
        s_mov_b32 s5, {goaddr}
        s_mov_b64 exec, {(1<<NREP)-1:#x}
        buffer_store_dword v{vval}, v{vt}, s[32:35], s5 offen sc1
        s_mov_b64 exec, -1
        ''')
    def slave(goaddr, vr=47):
        a(f'''
        s_and_b32 s5, s2, {NREP-1}
        s_lshl_b32 s5, s5, 12
        s_add_u32 s5, s5, {goaddr}
        v_mov_b32 v46, 0
        ''')
        spin(f'''
        buffer_load_dword v{vr}, v46, s[32:35], s5 offen sc1
        s_waitcnt vmcnt(0)
        v_cmp_ne_u32 vcc, 0, v{vr}
        ''')
    def master1():
        gather_flags(WS_FLAG1, 44)
        a('v_mov_b32 v47, 1')
        bcast(WS_GO + 256, 47, 46)
    def sync2():
        lsl = a.newlabel('sl'); ld = a.newlabel('sd')
        a(f'''
        s_cmp_lg_u32 s2, 0
        s_cbranch_scc1 {lsl}
        ''')
        gather_flags(WS_FLAG2, 44)
        a('v_mov_b32 v47, 1')
        bcast(WS_GO, 47, 46)
        a(f's_branch {ld}')
        a.label(lsl)
        slave(WS_GO)
        a.label(ld)
    lmf = a.newlabel('kmfma'); lpf = a.newlabel('pf')
    a(f'''
    s_cmp_ge_u32 s20, 6
    s_cbranch_scc1 {lpf}
    s_mov_b32 s8, {fbits(LOG2E_HI):#x}
    s_mov_b32 s9, {fbits(LOG2E_LO):#x}
    s_mov_b32 s10, {fbits(LN2):#x}
    s_mov_b32 s11, {fbits(INV2PI):#x}
    s_waitcnt vmcnt({4 if WARM else 3})
    v_lshlrev_b32 v20, 16, v20
    v_lshlrev_b32 v21, 16, v21
    v_lshlrev_b32 v22, 16, v22
    v_lshlrev_b32 v23, 16, v23
    v_lshlrev_b32 v26, 16, v26
    v_and_b32 v24, 0x7f807f80, v24
    v_and_b32 v25, 0x7f807f80, v25
    v_pk_max_u16 v24, v24, v25
    v_lshrrev_b32 v25, 16, v24
    v_and_b32 v24, 0xffff, v24
    v_max_u32 v24, v24, v25
    ''')
    wave_reduce(a, 'v_max_u32', 24)
    lsk4 = a.newlabel('sk4')
    a(f'''
    s_cmp_lt_u32 s20, 4
    s_cbranch_scc1 {lsk4}
    ''')
    signal(M_CNT1, 1)
    a.label(lsk4)
    exp_bf16(a, 20, 27, 28, 8, 9, 10)
    exp_bf16(a, 26, 27, 28, 8, 9, 10)
    a(f'''
    v_readlane_b32 s12, v24, 63
    s_lshr_b32 s12, s12, 7
    s_min_u32 s12, s12, 252
    s_sub_u32 s13, 253, s12
    s_lshl_b32 s13, s13, 23
    s_add_u32 s14, s12, 2
    s_lshl_b32 s14, s14, 23
    v_mul_f32 v20, v20, v26
    v_mul_f32 v21, v21, v26
    v_mul_f32 v20, s8, v20
    v_sub_f32 v20, 0, v20
    v_mul_f32 v21, s11, v21
    v_mul_f32 v22, s13, v22
    v_mul_f32 v23, s13, v23
    v_mul_f32 v26, s14, v26
    s_lshl_b32 s15, s56, 2
    s_add_u32 s15, s15, {M_SCALE}
    v_mov_b32 v27, s15
    s_mov_b64 exec, 1
    ds_write_b32 v27, v26
    s_mov_b64 exec, -1
    s_mul_i32 s15, s56, {KT_SZ}
    s_and_b32 s16, s20, 1
    s_lshl_b32 s16, s16, 8
    s_add_u32 s15, s15, s16
    v_add_u32 v27, s15, v4
    ''')
    def cmul(r, x, y, t=28):
        a(f'v_pk_mul_f32 v[{t}:{t+1}], v[{x}:{x+1}], v[{y}:{y+1}] op_sel:[1,1] op_sel_hi:[1,0]')
        a(f'v_pk_fma_f32 v[{r}:{r+1}], v[{x}:{x+1}], v[{y}:{y+1}], v[{t}:{t+1}] op_sel:[0,0,0] op_sel_hi:[0,1,1] neg_lo:[0,0,1]')
    pk = [0]
    def putG(row, x):
        r = 76 + (pk[0] % 8); pk[0] += 1
        a(f'v_cvt_pk_f16_f32 v{r}, v{x}, -v{x+1}')
        a(f'ds_write_b32 v27, v{r} offset:{row*KT_RS}')
    def putE(b, x):
        r = 76 + (pk[0] % 8); pk[0] += 1
        a(f'v_cvt_pk_f16_f32 v{r}, v{x}, v{x+1}')
        a(f'ds_write_b32 v27, v{r} offset:{(KT_E0+b)*KT_RS}')
    def direct(dst, p):
        a(f'''
        v_mul_f32 v28, {fbits(float(p)):#x}, v20
        v_mul_f32 v29, {fbits(float(p)):#x}, v21
        v_exp_f32 v28, v28
        v_fract_f32 v29, v29
        v_cos_f32 v{dst}, v29
        v_sin_f32 v{dst+1}, v29
        s_nop 0
        v_mul_f32 v{dst}, v{dst}, v28
        v_mul_f32 v{dst+1}, v{dst+1}, v28
        ''')
    def ES(c): return 30 + 2 * c
    direct(ES(1), 1)
    direct(50, 128)
    direct(52, 8)
    cmul(ES(2), ES(1), ES(1))
    cmul(ES(3), ES(2), ES(1))
    cmul(ES(4), ES(2), ES(2))
    cmul(ES(5), ES(4), ES(1))
    cmul(ES(6), ES(4), ES(2))
    cmul(ES(7), ES(4), ES(3))
    a('v_mov_b32 v62, 0x00003c00')
    a(f'ds_write_b32 v27, v62 offset:{KT_E0*KT_RS}')
    putE(1, 52)
    E = 52
    ereg = [58, 60]
    for b in range(2, 16):
        ne = ereg[b % 2]
        cmul(ne, E, 52)
        putE(b, ne)
        E = ne
    H = 22
    tmp = [58, 60, 62, 64]
    ti = [0]
    def prodG(row, h, e):
        t = tmp[ti[0] % 4]; ti[0] += 1
        cmul(t, h, e)
        putG(row, t)
    hreg = [54, 56]
    for aa in range(17):
        if aa < 2:
            putG(8 * aa, H)
            for c in range(1, 8):
                prodG(8 * aa + c, H, ES(c))
        elif aa < 4:
            base = 16 + 4 * (aa - 2)
            putG(base, H)
            for c in range(1, 4):
                prodG(base + c, H, ES(2 * c))
        elif aa < 8:
            base = 24 + 2 * (aa - 4)
            putG(base, H)
            prodG(base + 1, H, ES(4))
        else:
            putG(32 + (aa - 8), H)
        if aa < 16:
            nh = hreg[aa % 2]
            cmul(nh, H, 50)
            H = nh
        if aa == SIGPOS:
            lsk = a.newlabel('sk')
            a(f'''
            s_cmp_ge_u32 s20, 4
            s_cbranch_scc1 {lsk}
            ''')
            signal(M_CNT1, 1, lgkm=True)
            a.label(lsk)
            if not TAILST: stamp(a, 4)
    a(f'''
    s_lshl_b32 s4, s56, 2
    s_add_u32 s4, s4, {M_PAIR}
    v_mov_b32 v46, s4
    v_mov_b32 v47, 1
    s_waitcnt lgkmcnt(0)
    s_mov_b64 exec, 1
    ds_add_u32 v46, v47
    ''')
    spin('''
    ds_read_b32 v48, v46
    s_waitcnt lgkmcnt(0)
    v_cmp_le_u32 vcc, 2, v48
    ''')
    a('s_mov_b64 exec, -1')
    a('s_and_b32 s30, s20, 1')
    a(f's_branch {lmf}')
    a.label(lpf)
    signal(M_CNT1, 1)
    if not TAILST: stamp(a, 4)
    a('v_readfirstlane_b32 s101, v49')
    lnm = a.newlabel('notmaster')
    a(f'''
    s_cmp_lg_u32 s2, 0
    s_cbranch_scc1 {lnm}
    s_cmp_lg_u32 s20, 7
    s_cbranch_scc1 {lnm}
    ''')
    master1()
    a.label(lnm)
    if PF == 'late':
        prefetch()
    lk2 = a.newlabel('kdone'); lt67 = a.newlabel('t67')
    a('s_sub_u32 s5, s20, 6')
    a.label(lt67)
    a(f'''
    s_lshl_b32 s4, s5, 2
    s_add_u32 s4, s4, {M_PAIR}
    v_mov_b32 v46, s4
    s_mov_b32 s7, s5
    s_mov_b64 exec, 1
    ''')
    spin('''
    ds_read_b32 v48, v46
    s_waitcnt lgkmcnt(0)
    v_cmp_le_u32 vcc, 2, v48
    ''', slp=1)
    a('''
    s_mov_b64 exec, -1
    s_mov_b32 s56, s7
    s_mov_b32 s30, 2
    ''')
    a.label(lmf)
    a(f'''
    v_and_b32 v44, 15, v2
    v_lshrrev_b32 v45, 4, v2
    v_mul_u32_u24 v46, {KT_RS}, v44
    v_lshl_add_u32 v46, v45, 4, v46
    s_mov_b32 s4, s30
    s_mov_b32 s5, s56
    ''')
    ltask = a.newlabel('task')
    a.label(ltask)
    a(f'''
    s_mov_b32 s6, s4                       ; tile
    s_mul_i32 s8, s5, {KT_SZ}
    s_mul_i32 s9, s6, {16*KT_RS}
    s_add_u32 s9, s9, s8
    s_add_u32 s8, s8, {KT_E0*KT_RS}
    v_add_u32 v47, s9, v46
    v_add_u32 v48, s8, v46
    ''')
    for ks in range(8):
        a(f'ds_read_b128 v[{64+8*ks}:{67+8*ks}], v47 offset:{64*ks}')
        a(f'ds_read_b128 v[{68+8*ks}:{71+8*ks}], v48 offset:{64*ks}')
    lt2 = a.newlabel('t2'); lt1 = a.newlabel('t1'); lnext = a.newlabel('next')
    a(f'''
    s_mul_i32 s8, s5, {KC_SZ}
    s_add_u32 s8, s8, {L_KC + 16}
    s_cmp_eq_u32 s6, 2
    s_cbranch_scc1 {lt2}
    ''')
    for ks in range(8):
        a(f's_waitcnt lgkmcnt({14-2*ks})')
        c = '0' if ks == 0 else 'v[56:59]'
        a(f'v_mfma_f32_16x16x32_f16 v[56:59], v[{64+8*ks}:{67+8*ks}], v[{68+8*ks}:{71+8*ks}], {c}')
    a(f'''
    s_cmp_eq_u32 s6, 1
    s_cbranch_scc1 {lt1}
    v_lshrrev_b32 v49, 1, v45
    v_lshlrev_b32 v49, 8, v49
    v_lshl_add_u32 v49, v44, 4, v49
    v_and_b32 v50, 1, v45
    v_lshl_add_u32 v49, v50, 3, v49
    v_add_u32 v49, s8, v49
    s_nop 4
    v_cvt_pk_f16_f32 v60, v56, v57
    v_cvt_pk_f16_f32 v61, v58, v59
    ds_write_b64 v49, v[60:61]
    s_branch {lnext}
    ''')
    a.label(lt1)
    a(f'''
    v_lshlrev_b32 v49, 7, v45
    v_add_u32 v49, s8, v49
    v_lshl_add_u32 v50, v44, 3, v49
    v_add_u32 v50, 512, v50
    v_add_u32 v51, 4, v50
    v_lshl_add_u32 v52, v44, 2, v49
    v_add_u32 v52, 512, v52
    v_add_u32 v53, 64, v52
    v_cmp_gt_u32 vcc, 2, v45
    s_nop 1
    v_cndmask_b32 v50, v52, v50, vcc
    v_cndmask_b32 v51, v53, v51, vcc
    v_cvt_pk_f16_f32 v60, v56, v57
    v_cvt_pk_f16_f32 v61, v58, v59
    ds_write_b32 v50, v60
    ds_write_b32 v51, v61
    s_branch {lnext}
    ''')
    a.label(lt2)
    for ks in range(8):
        a(f's_waitcnt lgkmcnt({14-2*ks})')
        c = '0' if ks == 0 else 'v[56:59]'
        a(f'v_mfma_f32_16x16x32_f16 v[56:59], v[{68+8*ks}:{71+8*ks}], v[{64+8*ks}:{67+8*ks}], {c}')
    a(f'''
    v_lshlrev_b32 v49, 5, v44
    v_lshl_add_u32 v49, v45, 3, v49
    v_add_u32 v49, 1024, v49
    v_add_u32 v49, s8, v49
    v_cmp_gt_u32 vcc, 9, v44
    s_nop 4
    v_cvt_pk_f16_f32 v60, v56, v57
    v_cvt_pk_f16_f32 v61, v58, v59
    s_and_saveexec_b64 s[10:11], vcc
    ds_write_b64 v49, v[60:61]
    s_mov_b64 exec, s[10:11]
    ''')
    a.label(lnext)
    a(f'''
    s_cmp_lg_u32 s20, 6
    s_cbranch_scc1 {lk2}
    s_cmp_lg_u32 s5, 0
    s_cbranch_scc1 {lk2}
    s_mov_b32 s5, 2
    s_branch {lt67}
    ''')
    a.label(lk2)
    srd(a, 44, 70, 71, 1728 * 1280)
    a(f'''
    s_and_b32 s52, s2, 7
    s_mul_i32 s52, s52, 27
    s_lshr_b32 s53, s2, 3
    s_add_u32 s52, s52, s53                ; cb
    s_and_b32 s54, s20, 1
    s_cmp_eq_u32 s54, 0
    s_cselect_b32 s40, s66, s68
    s_cselect_b32 s41, s67, s69
    s_and_b32 s41, s41, 0xffff
    s_mov_b32 s42, {640*3456}
    s_mov_b32 s43, 0x00020000
    s_bfe_u32 s54, s20, 0x10001
    s_mul_i32 s54, s54, 320
    s_mul_i32 s12, s54, 3456
    s_lshl_b32 s55, s52, 4
    s_add_u32 s12, s12, s55
    s_mul_i32 s17, s52, {8*1280}
    s_lshl_b32 s55, s20, 8
    s_add_u32 s17, s17, s55
    s_cmp_lt_u32 s20, 5
    s_cselect_b32 s17, s17, 0x40000000
    s_cmp_lt_u32 s2, 216
    s_cselect_b32 s12, s12, 0x40000000
    s_cselect_b32 s17, s17, 0x40000000
    s_add_u32 s13, s12, {64*3456}
    s_add_u32 s14, s12, {128*3456}
    s_add_u32 s15, s12, {192*3456}
    s_add_u32 s16, s12, {256*3456}
    s_add_u32 s18, s17, {3*1280}
    s_add_u32 s19, s17, {6*1280}
    v_mul_u32_u24 v16, 3456, v2
    ''')
    WLG = [f'buffer_load_dwordx4 v[{VW+4*e}:{VW+4*e+3}], v16, s[40:43], s{12+e} offen' for e in range(5)]
    WLD = [f'buffer_load_dword v{VW+20+r}, v4, s[44:47], s{17 + r//3} offen offset:{1280*(r%3)}' for r in range(8)]
    WL = WLD
    lp1 = a.newlabel('p1'); lp0 = a.newlabel('p0')
    a(f'''
    s_cmp_eq_u32 s20, 7
    s_cbranch_scc1 {lp0}
    ''')
    if WPOS == 'B':
        for ins in WL:
            a(ins)
    if WLDPOS == 'B':
        for ins in WLD:
            a(ins)
    a(f's_branch {lp1}')
    a.label(lp0)
    lrd2 = a.newlabel('rdy2')
    a(f'''
    v_mov_b32 v46, 0
    s_cmp_lg_u32 s101, 0
    s_cbranch_scc1 {lrd2}
    ''')
    spin('''
    buffer_load_dword v49, v46, s[24:27], 0 offen sc1
    s_waitcnt vmcnt(0)
    v_cmp_ne_u32 vcc, 0, v49
    ''')
    a.label(lrd2)
    slave(WS_GO + 256)
    a.label(lp1)
    a(f'''
    v_lshlrev_b32 v6, 3, v0
    v_mov_b32 v18, 0
    s_lshl_b32 s4, s61, 1
    s_add_u32 s4, s4, s60
    s_lshl_b32 s4, s4, 4
    s_add_u32 s4, s4, {WS_U}
    s_waitcnt lgkmcnt(0)
    s_barrier
    buffer_load_dwordx4 v[8:11], v{VU}, s[32:35], s4 offen sc1
    buffer_load_dwordx4 v[12:15], v{VU+2}, s[32:35], s4 offen sc1
    ''')
    if not TAILST: stamp(a, 6)
    if PF == 'ug':
        srd(a, 36, 66, 67, 640 * 3456)
        a(f'''
        s_cmp_lt_u32 s20, 4
        s_cselect_b32 s36, s66, s68
        s_cselect_b32 s37, s67, s69
        s_and_b32 s37, s37, 0xffff
        s_and_b32 s4, s2, 7
        s_lshr_b32 s5, s2, 3
        s_mul_i32 s6, s4, 432
        s_mul_i32 s7, s5, {20*3456}
        s_add_u32 s6, s6, s7
        s_and_b32 s7, s20, 3
        s_mul_i32 s7, s7, {5*3456}
        s_add_u32 s6, s6, s7
        v_lshrrev_b32 v19, 5, v2
        v_mul_u32_u24 v19, 3456, v19
        v_and_b32 v20, 31, v2
        v_lshl_add_u32 v19, v20, 4, v19
        v_mov_b32 v21, {OOB:#x}
        v_cmp_gt_u32 vcc, 27, v20
        s_add_u32 s7, s6, {2*3456}
        s_add_u32 s8, s6, {4*3456}
        v_cndmask_b32 v19, v21, v19, vcc
        buffer_load_dwordx4 v[196:199], v19, s[36:39], s6 offen
        buffer_load_dwordx4 v[196:199], v19, s[36:39], s7 offen
        v_cmp_gt_u32 vcc, 27, v2
        s_mul_i32 s6, s4, 160
        s_mul_i32 s7, s5, {54*1280}
        v_cndmask_b32 v19, v21, v19, vcc
        buffer_load_dwordx4 v[196:199], v19, s[36:39], s8 offen
        s_add_u32 s6, s6, s7
        s_mul_i32 s7, s20, {7*1280}
        s_add_u32 s6, s6, s7
        v_mul_u32_u24 v19, 29, v2
        v_lshrrev_b32 v19, 8, v19
        v_mul_u32_u24 v20, 9, v19
        v_sub_u32 v20, v2, v20
        v_mul_u32_u24 v19, 1280, v19
        v_lshl_add_u32 v19, v20, 4, v19
        v_mul_u32_u24 v22, 20, v20
        v_lshrrev_b32 v22, 4, v22
        v_cmp_gt_u32 vcc, 63, v2
        s_nop 1
        v_cndmask_b32 v19, v21, v19, vcc
        buffer_load_dwordx4 v[196:199], v19, s[44:47], s6 offen
        ''')
    for c in range(3):
        r = 32 + 16 * c
        for dd in range(7):
            a(f'ds_read_u16 v{r+dd}, v{GA+dd} offset:{c*KC_SZ}')
    a('''
    v_cmp_gt_u32 vcc, 96, v0
    s_and_saveexec_b64 s[4:5], vcc
    ds_write_b32 v164, v18
    s_mov_b64 exec, s[4:5]
    ''')
    for c in range(3):
        r = 32 + 16 * c
        a(f's_waitcnt lgkmcnt({min(15, 7*(2-c) + 4*c)})')
        for i in range(6):
            a(f'v_lshl_or_b32 v{r+8+i}, v{r+i+1}, 16, v{r+i}')
        for s_ in range(4):
            off = c * CP_SZ + s_ * CS + 32
            a(f'v_add_u32 v7, {off}, v6')
            a(f'ds_write2_b32 v7, v{r+8+3-s_}, v{r+8+5-s_} offset0:0 offset1:1')
    a(f'''
    v_cmp_gt_u32 vcc, 256, v0
    s_waitcnt vmcnt({5 if PF == 'ug' else 1})
    ds_write_b32 v{VU+1}, v8
    ds_write_b32 v{VU+1}, v9 offset:{US}
    ds_write_b32 v{VU+1}, v10 offset:{2*US}
    ds_write_b32 v{VU+1}, v11 offset:{3*US}
    s_waitcnt vmcnt({4 if PF == 'ug' else 0})
    s_and_saveexec_b64 s[4:5], vcc
    ds_write_b32 v{VU+3}, v12
    ds_write_b32 v{VU+3}, v13 offset:{US}
    ds_write_b32 v{VU+3}, v14 offset:{2*US}
    ds_write_b32 v{VU+3}, v15 offset:{3*US}
    s_mov_b64 exec, s[4:5]
    ''')
    if WPOS == 'B':
        lw0 = a.newlabel('w0')
        a(f'''
        s_cmp_lg_u32 s20, 0
        s_cbranch_scc1 {lw0}
        ''')
        for ins in WL:
            a(ins)
        a.label(lw0)
    if WPOS == 'U':
        for ins in WL:
            a(ins)
    if PF == 'ug2':
        lnp = a.newlabel('np')
        a(f'''
        s_cmp_lt_u32 s20, 6
        s_cbranch_scc1 {lnp}
        s_mov_b32 s8, s40
        s_mov_b32 s9, s41
        ''')
        prefetch()
        a('''
        s_mov_b32 s40, s8
        s_mov_b32 s41, s9
        ''')
        a.label(lnp)
    zero_mailboxes()
    srd(a, 28, 64, 65, 1280)
    a('''
    buffer_load_dwordx4 v[160:163], v3, s[28:31], 0 offen
    buffer_load_dword v205, v4, s[28:31], 0 offen offset:1024
    ''')
    a(f'''
    v_lshrrev_b32 v8, 4, v2
    v_mul_u32_u24 v9, {CS}, v8
    v_bfe_u32 v10, v2, 2, 2
    v_and_b32 v11, 3, v2
    v_sub_u32 v10, v11, v10
    v_lshl_add_u32 v9, v10, 3, v9
    v_add_u32 v9, 32, v9
    v_mul_u32_u24 v10, {US}, v8
    v_and_b32 v11, 15, v2
    v_lshl_add_u32 v10, v11, 3, v10
    v_add_u32 v10, {L_UP+8}, v10
    v_lshlrev_b32 v12, 5, v11
    v_lshl_add_u32 v12, v8, 3, v12
    v_lshlrev_b32 v13, 4, v2
    v_mov_b32 v5, {M_SCALE}
    ds_read_b96 v[20:22], v5
    ''')
    ACC = 24
    for i in range(8, 32):
        a(f'v_mov_b32 v{ACC+i}, 0')
    a('''
    s_waitcnt lgkmcnt(0)
    s_barrier
    ''')
    for i in range(8):
        a(f'v_mov_b32 v{ACC+i}, 0')
    a('''
    v_readfirstlane_b32 s48, v20
    v_readfirstlane_b32 s49, v21
    v_readfirstlane_b32 s50, v22
    ''')
    stamp(a, 8)
    if CONVST: cstamp(a, 10)
    if PF == 'conv':
        lnp = a.newlabel('np')
        a(f'''
        s_cmp_lt_u32 s20, 6
        s_cbranch_scc1 {lnp}
        s_mov_b32 s8, s40
        s_mov_b32 s9, s41
        s_mov_b32 s10, s42
        ''')
        prefetch(152)
        a('''
        s_mov_b32 s40, s8
        s_mov_b32 s41, s9
        s_mov_b32 s42, s10
        ''')
        a.label(lnp)
    def loads(setbase, tiles_mx, cls_idx, va=14, vb=15):
        out = []
        for m in range(tiles_mx + 1):
            fa, fb = setbase[0] + 4 * m, setbase[1] + 4 * m
            oa = 512 * m + 64 * (3 - cls_idx)
            ob = 128 * m + 16 * cls_idx
            out.append(f'ds_read_b64_tr_b16 v[{fa}:{fa+1}], v{va} offset:{oa+32}')
            out.append(f'ds_read_b64_tr_b16 v[{fa+2}:{fa+3}], v{va} offset:{oa}')
            out.append(f'ds_read_b64 v[{fb}:{fb+1}], v{vb} offset:{ob}')
            out.append(f'ds_read_b64 v[{fb+2}:{fb+3}], v{vb} offset:{ob+8}')
        return out
    SETS = [(56, 88), (120, 216)]
    SACC = [196, 212, 152, 156, 164]
    def job(st, accmap, nload, nxt, extra, first=False, older=0):
        tiles = list(accmap)
        mx = max(tiles)
        mf = []
        for s in range(mx + 1):
            grp = []
            for (m, aa) in [(s, i) for i in range(s + 1)] + [(i, s) for i in range(s)]:
                c = m + aa
                if c in accmap:
                    r = accmap[c]
                    grp.append(f'v_mfma_f32_16x16x32_f16 v[{r}:{r+3}], v[{st[0]+4*m}:{st[0]+4*m+3}], v[{st[1]+4*aa}:{st[1]+4*aa+3}], v[{r}:{r+3}]')
            mf.append(grp)
        nmf = sum(len(g) for g in mf)
        per = 1 if nmf >= len(nxt) else 2
        wq = list(extra)
        wstep = max(1, nmf // (len(wq) + 1))
        k = 0; nm = 0
        for s_ in range(mx + 1):
            allowed = nload - 4 * (s_ + 1) + k
            if mf[s_]:
                a(f's_waitcnt lgkmcnt({min(15, allowed)})')
            for ins in mf[s_]:
                a(ins)
                nm += 1
                if wq and nm % wstep == 0:
                    a(wq.pop(0))
                if not first or s_ >= 2:
                    for _ in range(per):
                        if k < len(nxt):
                            a(nxt[k]); k += 1
        while k < len(nxt):
            a(nxt[k]); k += 1
        for ins in wq: a(ins)
    def epilogue(c, sreg_scale, sreg_out):
        r = ACC + 4 * c
        a(f'''
        v_fma_f32 v{r}, s{sreg_scale}, v{r}, 0
        v_fma_f32 v{r+1}, s{sreg_scale}, v{r+1}, 0
        v_fma_f32 v{r+2}, s{sreg_scale}, v{r+2}, 0
        v_fma_f32 v{r+3}, s{sreg_scale}, v{r+3}, 0
        v_cvt_pk_bf16_f32 v{r}, v{r}, v{r+1}
        v_cvt_pk_bf16_f32 v{r+1}, v{r+2}, v{r+3}
        v_xor_b32 v{r}, 0x80008000, v{r}
        v_xor_b32 v{r+1}, 0x80008000, v{r+1}
        buffer_store_dwordx2 v[{r}:{r+1}], v12, s[32:35], s{sreg_out} offen offset:{512*c} sc1
        ''')
    lS = a.newlabel('shared'); lcd = a.newlabel('convdone')
    FA = 56
    a(f'''
    s_cmp_ge_u32 s20, 4
    s_cbranch_scc1 {lS}
    s_lshr_b32 s4, s20, 1                  ; slot 0/1
    s_and_b32 s5, s20, 1
    s_lshl_b32 s6, s5, 2
    s_mul_i32 s7, s4, {CP_SZ}
    s_sub_u32 s8, 4, s6                    ; 7-(first+3)
    s_lshl_b32 s8, s8, 6
    s_add_u32 s7, s7, s8
    v_add_u32 v14, s7, v9
    s_mul_i32 s7, s4, {UP_SZ}
    s_lshl_b32 s8, s6, 4
    s_add_u32 s7, s7, s8
    v_add_u32 v15, s7, v10
    ''')
    for ins in loads(SETS[0], 7, 0):
        a(ins)
    a(f'''
    s_lshl_b32 s6, s20, 1
    s_sub_u32 s8, 4, s6
    s_lshl_b32 s8, s8, 6
    s_add_u32 s7, s8, {2*CP_SZ}
    v_add_u32 v22, s7, v9
    s_lshl_b32 s8, s6, 4
    s_add_u32 s7, s8, {2*UP_SZ}
    v_add_u32 v19, s7, v10
    s_lshl_b32 s11, s20, 10
    s_add_u32 s11, s11, {L_RED + 32768}
    v_add_u32 v20, s11, v13
    s_lshl_b32 s10, s20, 11
    s_add_u32 s10, s10, s3
    v_add_u32 v13, {L_RED}, v13
    v_lshlrev_b32 v18, 6, v11
    v_lshl_add_u32 v18, v8, 4, v18         ; 64n + 16q
    ''')
    for r in SACC:
        for e in range(4):
            a(f'v_mov_b32 v{r+e}, 0')
    main = {c: ACC + 4 * c for c in range(8)}
    for ci in range(4):
        nxt = loads(SETS[(ci + 1) % 2], 7, ci + 1) if ci < 3 else loads(SETS[0], 7, 0, 22, 19)
        ex = (WLD[:4] if ci == 1 else (WLD[4:] if ci == 2 else [])) if WLDPOS == 'conv' else []
        job(SETS[ci % 2], main, 32, nxt, ex, first=(ci == 0))
    lSo = a.newlabel('so'); lsd = a.newlabel('sd')
    a(f'''
    s_cmp_eq_u32 s61, 1
    s_cbranch_scc1 {lSo}
    ''')
    for par in range(2):
        tiles = [0, 1, 2, 3, 7] if par == 0 else [4, 5, 6]
        amap = {c: SACC[i] for i, c in enumerate(tiles)}
        if par == 1:
            a.label(lSo)
        job(SETS[0], amap, 32, loads(SETS[1], max(tiles), 1, 22, 19), [])
        job(SETS[1], amap, 4 * (max(tiles) + 1), [], [])
        a('s_nop 7')
        a('s_nop 1')
        for i, c in enumerate(tiles):
            a(f'ds_write_b128 v20, v[{SACC[i]}:{SACC[i]+3}] offset:{4096*i}')
        if par == 0:
            a(f's_branch {lsd}')
    a.label(lsd)
    stamp(a, 7)
    lws = [a.newlabel(f'rw{w}') for w in range(4)]
    a(f'''
    s_cmp_eq_u32 s20, 1
    s_cbranch_scc1 {lws[1]}
    s_cmp_eq_u32 s20, 2
    s_cbranch_scc1 {lws[2]}
    s_cmp_eq_u32 s20, 3
    s_cbranch_scc1 {lws[3]}
    ''')
    for w in range(4):
        a.label(lws[w])
        for c in range(8):
            if c >> 1 != w:
                a(f'ds_write_b128 v13, v[{ACC+4*c}:{ACC+4*c+3}] offset:{8192*w + 1024*c}')
        a('s_waitcnt vmcnt(8) lgkmcnt(0)' if WLDPOS == 'conv' else 's_waitcnt vmcnt(0) lgkmcnt(0)')
        a('s_barrier')
        if REDST: stamp(a, 5)
        others = [x for x in range(4) if x != w]
        partner = w ^ 1
        oth = [x for x in others if x != partner]
        for j in range(2):
            c = 2 * w + j
            for k, x in enumerate([partner] + oth):
                a(f'ds_read_b128 v[{FA+12*j+4*k}:{FA+12*j+4*k+3}], v13 offset:{8192*x + 1024*c}')
        for j in range(2):
            c = 2 * w + j
            own = ACC + 4 * c; f0 = FA + 12 * j
            a(f's_waitcnt lgkmcnt({3*(1-j)})')
            for e in range(4):
                a(f'v_add_f32 v{own+e}, v{own+e}, v{f0+e}')
                a(f'v_add_f32 v{f0+4+e}, v{f0+4+e}, v{f0+8+e}')
            ra, rb_ = (own, f0 + 4) if w < 2 else (f0 + 4, own)
            q = FA + 32 + 4 * j
            for e in range(4):
                a(f'v_fma_f32 v{ra+e}, s48, v{ra+e}, 0')
                a(f'v_fma_f32 v{rb_+e}, s49, v{rb_+e}, 0')
            a(f'''
            v_cvt_pk_bf16_f32 v{q}, v{ra}, v{ra+1}
            v_cvt_pk_bf16_f32 v{q+1}, v{ra+2}, v{ra+3}
            v_cvt_pk_bf16_f32 v{q+2}, v{rb_}, v{rb_+1}
            v_cvt_pk_bf16_f32 v{q+3}, v{rb_+2}, v{rb_+3}
            v_xor_b32 v{q}, 0x80008000, v{q}
            v_xor_b32 v{q+1}, 0x80008000, v{q+1}
            v_xor_b32 v{q+2}, 0x80008000, v{q+2}
            v_xor_b32 v{q+3}, 0x80008000, v{q+3}
            s_nop 0
            v_permlane16_swap_b32 v{q}, v{q+2}
            v_permlane16_swap_b32 v{q+1}, v{q+3}
            buffer_store_dwordx4 v[{q}:{q+3}], v18, s[32:35], s10 offen offset:{1024*j} sc1
            ''')
        a(f's_branch {lcd}')
    a.label(lS)
    lSo2 = a.newlabel('sharedodd')
    if PF == 'ug2':
        a('s_waitcnt vmcnt(0)')
    for ins in (WLD if WLDPOS == 'conv' else []) + WLG:
        a(ins)
    a(f'''
    s_sub_u32 s5, s20, 4                   ; ww
    s_mov_b32 s10, s100
    v_add_u32 v13, {L_RED + 32768}, v13
    s_waitcnt vmcnt({13 if WLDPOS == 'conv' else 5})
    s_barrier
    s_cmp_eq_u32 s61, 1
    s_cbranch_scc1 {lSo2}
    ''')
    for par in range(2):
        tiles = [0, 1, 2, 3, 7] if par == 0 else [4, 5, 6]
        if par == 1:
            a.label(lSo2)
        for ww in range(4):
            lnx = a.newlabel('nx')
            a(f's_cmp_lg_u32 s5, {ww}')
            a(f's_cbranch_scc1 {lnx}')
            for i, c in enumerate(tiles):
                if i % 4 != ww: continue
                for k in range(4):
                    a(f'ds_read_b128 v[{FA+4*k}:{FA+4*k+3}], v13 offset:{4096*i + 1024*k}')
                a('s_waitcnt lgkmcnt(0)')
                for e in range(4):
                    a(f'v_add_f32 v{FA+e}, v{FA+e}, v{FA+4+e}')
                    a(f'v_add_f32 v{FA+8+e}, v{FA+8+e}, v{FA+12+e}')
                    a(f'v_add_f32 v{ACC+4*c+e}, v{FA+e}, v{FA+8+e}')
                epilogue(c, 50, 10)
            a(f's_branch {lcd}')
            a.label(lnx)
        a(f's_branch {lcd}')
    a.label(lcd)
    if PRIO: a('s_setprio 0')
    stamp(a, 9)
    srd(a, 36, 72, 73, 2621440)
    lg = a.newlabel('g'); lg1 = a.newlabel('g1'); lg2 = a.newlabel('g2'); lgo = a.newlabel('go')
    a(f'''
    v_lshrrev_b32 v7, 1, v0
    v_lshlrev_b32 v5, 13, v7
    v_and_b32 v6, 1, v0
    v_lshl_add_u32 v5, v6, 4, v5
    v_lshrrev_b32 v33, 2, v0
    v_mul_u32_u24 v33, 5, v33
    v_add_u32 v6, v6, v33
    v_and_b32 v7, 1, v7
    v_mul_u32_u24 v7, 3, v7
    v_add_u32 v6, v6, v7
    v_lshlrev_b32 v6, 2, v6
    v_lshlrev_b32 v7, 12, v0
    v_mul_u32_u24 v33, 20, v0
    v_add_u32 v33, 8, v33
    s_lshl_b32 s48, s21, 5
    s_add_u32 s48, s48, {WS_YT}
    s_lshl_b32 s49, s21, 4
    s_add_u32 s49, s49, {WS_YS}
    v_cmp_gt_u32 vcc, 128, v0
    s_mov_b64 s[6:7], -1
    s_mov_b64 s[8:9], vcc
    s_mov_b32 s4, 0
    ''')
    a.label(lg)
    a(f'''
    s_mov_b64 exec, s[6:7]
    s_cbranch_execz {lg1}
    buffer_load_dwordx4 v[8:11], v5, s[32:35], s48 offen sc1
    ''')
    a.label(lg1)
    a(f'''
    s_mov_b64 exec, s[8:9]
    s_cbranch_execz {lg2}
    buffer_load_dwordx4 v[12:15], v7, s[32:35], s49 offen sc1
    ''')
    a.label(lg2)
    a(f'''
    s_mov_b64 exec, -1
    s_add_u32 s4, s4, 1
    s_waitcnt vmcnt(0)
    v_min_u32 v36, v8, v9
    v_min3_u32 v36, v36, v10, v11
    v_min_u32 v37, v12, v13
    v_min3_u32 v37, v37, v14, v15
    v_cmp_eq_u32 vcc, 0, v36
    v_cmp_eq_u32 s[10:11], 0, v37
    s_and_b64 s[6:7], s[6:7], vcc
    s_and_b64 s[8:9], s[8:9], s[10:11]
    s_cmp_ge_u32 s4, {SPIN_MAX}
    s_cbranch_scc1 {lgo}
    s_or_b64 s[10:11], s[6:7], s[8:9]
    s_cbranch_scc1 {lg}
    ''')
    a.label(lgo)
    stamp(a, 3)
    if STAMPS:
        a('s_mov_b32 s78, s4')
    a(f'''
    v_cmp_gt_u32 vcc, 128, v0
    ds_write2st64_b32 v6, v8, v9 offset0:0 offset1:10
    ds_write2st64_b32 v6, v10, v11 offset0:20 offset1:30
    s_and_saveexec_b64 s[42:43], vcc
    ds_write2st64_b32 v33, v12, v13 offset0:0 offset1:10
    ds_write2st64_b32 v33, v14, v15 offset0:20 offset1:30
    s_mov_b64 exec, s[42:43]
    s_lshr_b32 s44, s20, 1
    s_mul_i32 s44, s44, 2560
    v_lshlrev_b32 v7, 5, v2
    v_add_u32 v7, s44, v7
    v_lshlrev_b32 v33, 3, v2
    v_add_u32 v33, s44, v33
    s_and_b32 s45, s20, 1
    s_mul_i32 s45, s45, 0x02020000
    s_add_u32 s45, s45, 0x01000c0c
    ''')
    XR = 40; T = 50; W = 60; H = 70
    for i in range(4):
        unpack(a, VX + i, XR + 2 * i, XR + 2 * i + 1)
        unpack(a, VT + i, T + 2 * i, T + 2 * i + 1)
        unpack(a, 160 + i, W + 2 * i, W + 2 * i + 1)
    unpack(a, VX + 4, XR + 8, XR + 9)
    unpack(a, VT + 4, T + 8, T + 9)
    unpack(a, 205, W + 8, W + 9)
    a(f'''
    s_waitcnt lgkmcnt(0)
    s_barrier
    ds_read_b128 v[8:11], v7
    ds_read_b128 v[12:15], v7 offset:16
    ds_read_b64 v[34:35], v33 offset:2048
    ''')
    if not CONVST: stamp(a, 10)
    X = XR
    a('s_waitcnt lgkmcnt(0)')
    ysrc = list(range(8, 16)) + [34, 35]
    for i in range(10):
        a(f'v_perm_b32 v{ysrc[i]}, v{ysrc[i]}, v{ysrc[i]}, s45')
    for p in range(5):
        i0, i1 = 2 * p, 2 * p + 1
        a(f'''
        v_sub_f32 v{T+i0}, v{T+i0}, v{ysrc[i0]}
        v_sub_f32 v{T+i1}, v{T+i1}, v{ysrc[i1]}
        v_cvt_pk_bf16_f32 v36, v{T+i0}, v{T+i1}
        v_lshlrev_b32 v{T+i0}, 16, v36
        v_and_b32 v{T+i1}, 0xffff0000, v36
        v_add_f32 v{T+i0}, v{X+i0}, v{T+i0}
        v_add_f32 v{T+i1}, v{X+i1}, v{T+i1}
        v_cvt_pk_bf16_f32 v36, v{T+i0}, v{T+i1}
        v_lshlrev_b32 v{H+i0}, 16, v36
        v_and_b32 v{H+i1}, 0xffff0000, v36
        ''')
    ln_stats(a, H, X, 36, 21, 37, 38, 39, 46, 47, 48)
    a('v_mov_b32 v36, 0')
    a('v_mov_b32 v21, 0')
    for p in range(5):
        i0, i1 = 2 * p, 2 * p + 1
        a(f'''
        v_sub_f32 v{X+i0}, v{H+i0}, v37
        v_sub_f32 v{X+i1}, v{H+i1}, v37
        v_cvt_pk_bf16_f32 v39, v{X+i0}, v{X+i1}
        v_lshlrev_b32 v{X+i0}, 16, v39
        v_and_b32 v{X+i1}, 0xffff0000, v39
        v_mul_f32 v{X+i0}, v{X+i0}, v38
        v_mul_f32 v{X+i1}, v{X+i1}, v38
        v_cvt_pk_bf16_f32 v39, v{X+i0}, v{X+i1}
        v_lshlrev_b32 v{X+i0}, 16, v39
        v_and_b32 v{X+i1}, 0xffff0000, v39
        v_fmac_f32 v36, v{X+i0}, v{W+i0}
        v_fmac_f32 v21, v{X+i1}, v{W+i1}
        ''')
    a('v_add_f32 v36, v36, v21')
    wave_reduce(a, 'v_add_f32', 36)
    a(f'''
    v_cvt_pk_bf16_f32 v36, v36, v36
    v_and_b32 v36, 0xffff, v36
    v_xor_b32 v37, 0xffff, v36
    v_or_b32 v38, 0x8000, v36
    v_cmp_lt_u32 vcc, 0x7fff, v36
    s_sub_u32 s46, 4095, s22
    s_lshl_b32 s49, s20, 2
    v_cndmask_b32 v36, v38, v37, vcc
    v_lshl_or_b32 v36, v36, 16, s46
    s_add_u32 s49, s49, {M_KEYS}
    v_mov_b32 v37, s49
    v_readlane_b32 s48, v36, 63
    s_nop 1
    v_mov_b32 v38, s48
    ds_write_b32 v37, v38
    ''')
    for p in range(5):
        i0, i1 = 2 * p, 2 * p + 1
        a(f'''
        v_add_f32 v{T+i0}, v{H+i0}, v{X+i0}
        v_add_f32 v{T+i1}, v{H+i1}, v{X+i1}
        v_cvt_pk_bf16_f32 v{92+p}, v{T+i0}, v{T+i1}
        ''')
    lnb = a.newlabel('notbest'); lpoll = a.newlabel('poll'); lb2 = a.newlabel('b2')
    a(f'''
    v_and_b32 v37, 7, v2
    v_lshlrev_b32 v37, 2, v37
    v_add_u32 v37, {M_KEYS}, v37
    s_waitcnt lgkmcnt(0)
    s_barrier
    ds_read_b32 v38, v37
    s_waitcnt lgkmcnt(0)
    s_nop 1
    v_max_u32_dpp v38, v38, v38 quad_perm:[1,0,3,2] row_mask:0xf bank_mask:0xf
    s_nop 1
    v_max_u32_dpp v38, v38, v38 quad_perm:[2,3,0,1] row_mask:0xf bank_mask:0xf
    s_nop 1
    v_max_u32_dpp v38, v38, v38 row_half_mirror row_mask:0xf bank_mask:0xf
    s_nop 0
    v_readfirstlane_b32 s50, v38
    s_cmp_lg_u32 s50, s48
    s_cbranch_scc1 {lnb}
    s_lshl_b32 s51, s21, 4
    s_add_u32 s51, s51, {WS_KEY}
    v_mov_b32 v37, 0
    s_mov_b64 exec, 1
    buffer_store_dword v38, v37, s[32:35], s51 offen sc1
    s_mov_b64 exec, -1
    ''')
    for i in range(10):
        a(f'v_or_b32 v{X+i}, 1, v{X+i}')
        a(f'v_or_b32 v{H+i}, 1, v{H+i}')
    a(f'''
    s_mul_i32 s51, s21, 5120
    s_add_u32 s51, s51, {WS_CAND}
    v_lshlrev_b32 v37, 5, v2
    v_lshlrev_b32 v39, 3, v2
    buffer_store_dwordx4 v[{X}:{X+3}], v37, s[32:35], s51 offen sc1
    buffer_store_dwordx4 v[{X+4}:{X+7}], v37, s[32:35], s51 offen offset:16 sc1
    buffer_store_dwordx2 v[{X+8}:{X+9}], v39, s[32:35], s51 offen offset:2048 sc1
    s_add_u32 s51, s51, 2560
    buffer_store_dwordx4 v[{H}:{H+3}], v37, s[32:35], s51 offen sc1
    buffer_store_dwordx4 v[{H+4}:{H+7}], v37, s[32:35], s51 offen offset:16 sc1
    buffer_store_dwordx2 v[{H+8}:{H+9}], v39, s[32:35], s51 offen offset:2048 sc1
    s_branch {lpoll}
    ''')
    a.label(lnb)
    a('''
    buffer_store_dwordx4 v[92:95], v3, s[36:39], s23 offen OUTFLAG
    buffer_store_dword v96, v4, s[36:39], s23 offen offset:1024 OUTFLAG
    ''')
    a.label(lpoll)
    if TAILST and not CONVST: stamp(a, 2)
    UW = 100
    lks = a.newlabel('kslave'); lkd = a.newlabel('kd'); lu3 = a.newlabel('u3')
    for i in range(28):
        unpack(a, VW + i, UW + 2 * i, UW + 2 * i + 1)
    latt = a.newlabel('attempt'); lpost = a.newlabel('post'); lgb = a.newlabel('gb')
    a('''
    s_mov_b32 s58, s48
    s_mov_b32 s59, s50
    s_mov_b32 s56, 0
    ''')
    a.label(latt)
    a(f'''
    s_cmp_lg_u32 s20, 0
    s_cbranch_scc1 {lb2}
    s_cmp_lg_u32 s2, 255
    s_cbranch_scc1 {lks}
    ''')
    lm = a.newlabel('m'); lmo = a.newlabel('mo'); lmn = a.newlabel('mn')
    a(f'''
    s_mov_b32 s5, {WS_KEY}
    s_mov_b32 s6, {WS_KEY + 2048}
    s_mov_b32 s4, 0
    s_mov_b32 s7, 0
    v_lshlrev_b32 v14, 12, v2
    s_mov_b32 s9, {WS_GO + 128}
    ''')
    a.label(lm)
    a(f'''
    buffer_load_dword v8, v3, s[32:35], s5 offen sc1
    buffer_load_dword v9, v3, s[32:35], s5 offen offset:1024 sc1
    buffer_load_dword v10, v3, s[32:35], s6 offen sc1
    buffer_load_dword v11, v3, s[32:35], s6 offen offset:1024 sc1
    s_add_u32 s4, s4, 1
    s_waitcnt vmcnt(0)
    v_cmp_ne_u32 vcc, 0, v8
    v_cmp_ne_u32 s[10:11], 0, v9
    s_bcnt1_i32_b64 s8, vcc
    s_bcnt1_i32_b64 s12, s[10:11]
    v_cmp_ne_u32 vcc, 0, v10
    v_cmp_ne_u32 s[10:11], 0, v11
    s_add_u32 s8, s8, s12
    s_bcnt1_i32_b64 s12, vcc
    s_add_u32 s8, s8, s12
    s_bcnt1_i32_b64 s12, s[10:11]
    s_add_u32 s8, s8, s12
    s_cmp_ge_u32 s4, {SPIN_MAX}
    s_cselect_b32 s8, 256, s8
    s_cmp_lt_u32 s8, {SPEC_TH}
    s_cbranch_scc1 {lm}
    s_cmp_eq_u32 s8, 256
    s_cbranch_scc1 {lmn}
    s_cmp_lg_u32 s7, 0
    s_cbranch_scc1 {lm}
    ''')
    a.label(lmn)
    a('''
    v_max_u32 v12, v8, v9
    v_max3_u32 v12, v12, v10, v11
    ''')
    wave_reduce(a, 'v_max_u32', 12)
    a(f'''
    s_nop 0
    v_readlane_b32 s12, v12, 63
    s_cmp_eq_u32 s7, 0
    s_cselect_b32 s7, s12, s7
    s_cmp_eq_u32 s8, 256
    s_cselect_b32 s12, s12, 0
    v_mov_b32 v8, s7
    v_mov_b32 v9, s12
    s_mov_b64 exec, {(1<<NREP)-1:#x}
    buffer_store_dwordx2 v[8:9], v14, s[32:35], s9 offen sc1
    s_mov_b64 exec, -1
    s_cmp_eq_u32 s8, 256
    s_cbranch_scc0 {lm}
    s_branch {lkd}
    ''')
    a.label(lks)
    a(f'''
    s_and_b32 s5, s2, {NREP-1}
    s_lshl_b32 s5, s5, 12
    s_add_u32 s5, s5, {WS_GO + 128}
    v_mov_b32 v46, 0
    s_cmp_lt_u32 s2, 216
    s_cselect_b32 s6, -1, 0
    s_cmp_eq_u32 s56, 0
    s_cselect_b32 s6, s6, 0
    ''')
    spin('''
    buffer_load_dwordx2 v[8:9], v46, s[32:35], s5 offen sc1
    s_waitcnt vmcnt(0)
    v_and_b32 v10, s6, v8
    v_or_b32 v10, v10, v9
    v_cmp_ne_u32 vcc, 0, v10
    ''')
    a.label(lkd)
    a(f'''
    v_mov_b32 v10, {M_GKEY}
    s_mov_b64 exec, 1
    ds_write_b64 v10, v[8:9]
    s_mov_b64 exec, -1
    s_waitcnt lgkmcnt(0)
    ''')
    a.label(lb2)
    lw = a.newlabel('iswin'); ldown = a.newlabel('down')
    a(f'''
    s_barrier
    v_mov_b32 v10, {M_GKEY}
    ds_read_b64 v[8:9], v10
    s_waitcnt lgkmcnt(0)
    v_readfirstlane_b32 s57, v8            ; p
    v_readfirstlane_b32 s44, v9            ; f
    s_cmp_eq_u32 s44, 0
    s_cbranch_scc1 {lw}
    s_cmp_lg_u32 s59, s58
    s_cbranch_scc1 {lw}
    s_cmp_eq_u32 s44, s58
    s_cbranch_scc1 {lw}
    buffer_store_dwordx4 v[92:95], v3, s[36:39], s23 offen OUTFLAG
    buffer_store_dword v96, v4, s[36:39], s23 offen offset:1024 OUTFLAG
    ''')
    a.label(lw)
    if TAILST and not CONVST: stamp(a, 4)
    a(f'''
    s_mov_b32 s51, s44
    s_cmp_eq_u32 s44, 0
    s_cselect_b32 s44, s57, s44
    s_cmp_eq_u32 s44, s56
    s_cbranch_scc1 {end}
    s_mov_b32 s56, s44
    s_cmp_eq_u32 s44, s57
    s_cselect_b32 s19, 0, {SET1}
    s_and_b32 s45, s44, 0x7ff
    s_sub_u32 s45, 2047, s45
    s_lshr_b32 s46, s45, 3
    s_mul_i32 s46, s46, 5120
    s_add_u32 s46, s46, {WS_CAND}
    s_cmp_ge_u32 s2, 216
    s_cbranch_scc1 {ldown}
    ; ---- G (waves 4-7) ----
    s_cmp_lt_u32 s20, 4
    s_cbranch_scc1 {lgb}
    s_lshl_b32 s47, s54, 2
    s_add_u32 s47, s47, s46
    ''')
    spin('''
    buffer_load_dword v12, v4, s[32:35], s47 offen sc1
    buffer_load_dword v13, v4, s[32:35], s47 offen offset:256 sc1
    buffer_load_dword v14, v4, s[32:35], s47 offen offset:512 sc1
    buffer_load_dword v15, v4, s[32:35], s47 offen offset:768 sc1
    buffer_load_dword v16, v4, s[32:35], s47 offen offset:1024 sc1
    s_waitcnt vmcnt(0)
    v_and_b32 v17, v12, v13
    v_and_b32 v18, v14, v15
    v_and_b32 v17, v17, v16
    v_and_b32 v17, v17, v18
    v_and_b32 v17, 1, v17
    v_cmp_ne_u32 vcc, 0, v17
    ''')
    if TAILST and not CONVST: stamp(a, 6)
    for i in range(12, 17):
        a(f'v_and_b32 v{i}, 0xffff0000, v{i}')
    R = 40
    for e in range(5):
        for i in range(8):
            op = 'v_mul_f32' if e == 0 else 'v_fmac_f32'
            a(f'{op} v{R+i}, v{12+e}, v{UW+8*e+i}')
    reduceN(a, R, 8)
    a(f'''
    v_lshrrev_b32 v6, 4, v2
    v_lshlrev_b32 v6, 3, v6
    s_lshl_b32 s47, s20, 5
    s_add_u32 s47, s47, {M_P1 - 128}
    v_add_u32 v6, s47, v6
    s_mov_b32 exec_lo, 0x00010001
    s_mov_b32 exec_hi, 0x00010001
    ds_write_b64 v6, v[{R}:{R+1}]
    s_mov_b64 exec, -1
    s_waitcnt lgkmcnt(0)
    ''')
    a.label(lgb)
    a(f'''
    s_barrier
    s_cmp_ge_u32 s20, 5
    s_cbranch_scc1 {lpost}
    v_and_b32 v6, 7, v2
    v_lshlrev_b32 v6, 2, v6
    v_add_u32 v6, {M_P1}, v6
    ds_read_b32 v8, v6
    ds_read_b32 v9, v6 offset:64
    ds_read_b32 v12, v6 offset:32
    ds_read_b32 v13, v6 offset:96
    s_mul_i32 s47, s2, 2560
    s_lshl_b32 s48, s20, 9
    s_add_u32 s47, s47, s48
    s_add_u32 s47, s47, {WS_YP}
    s_add_u32 s47, s47, s19
    v_lshlrev_b32 v5, 3, v2
    s_waitcnt lgkmcnt(0)
    v_add_f32 v8, v8, v9
    v_add_f32 v12, v12, v13
    ''')
    round_bf16(a, 8, 9)
    round_bf16(a, 12, 9)
    a(f'''
    v_mul_f32 v9, {fbits(-LOG2E):#x}, v8
    v_exp_f32 v9, v9
    s_nop 0
    v_add_f32 v9, 1.0, v9
    v_rcp_f32 v9, v9
    s_nop 0
    v_mul_f32 v8, v8, v9
    ''')
    round_bf16(a, 8, 9)
    a('v_mul_f32 v8, v8, v12')
    round_bf16(a, 8, 9)
    a('s_nop 0')
    for r in range(8):
        a(f'v_readlane_b32 s{4+r}, v8, {r}')
    a('s_nop 1')
    for r in range(8):
        op = 'v_mul_f32' if r == 0 else 'v_fmac_f32'
        a(f'{op} v10, s{4+r}, v{UW+40+2*r}')
        a(f'{op} v11, s{4+r}, v{UW+41+2*r}')
    a(f'''
    v_or_b32 v10, 1, v10
    v_or_b32 v11, 1, v11
    buffer_store_dwordx2 v[10:11], v5, s[32:35], s47 offen sc1
    ''')
    if not CONVST and not REDST: stamp(a, 5)
    a.label(lpost)
    a(f'''
    s_cmp_eq_u32 s51, 0
    s_cbranch_scc1 {latt}
    s_branch {end}
    ''')
    a.label(ldown)
    a(f'''
    s_sub_u32 s53, s2, 216
    v_lshrrev_b32 v5, 2, v0
    v_mul_u32_u24 v5, 2560, v5
    v_and_b32 v6, 3, v0
    v_lshl_add_u32 v5, v6, 4, v5
    v_mov_b32 v7, {OOB:#x}
    v_cmp_gt_u32 vcc, 352, v0
    v_mov_b32 v8, 1
    s_lshl_b32 s47, s53, 6
    v_cndmask_b32 v6, v7, v5, vcc
    v_cndmask_b32 v7, v8, 0, vcc
    s_add_u32 s55, s47, s46
    s_add_u32 s47, s47, {WS_YP}
    s_add_u32 s47, s47, s19
    s_add_u32 s48, s47, {128*2560}
    v_and_b32 v22, 15, v2
    v_lshlrev_b32 v22, 2, v22
    ''')
    spin('''
    buffer_load_dword v20, v22, s[32:35], s55 offen sc1
    buffer_load_dword v21, v22, s[32:35], s55 offen offset:2560 sc1
    s_waitcnt vmcnt(0)
    v_and_b32 v16, v20, v21
    v_and_b32 v16, 1, v16
    v_cmp_ne_u32 vcc, 0, v16
    ''')
    lf = a.newlabel('f'); lf1 = a.newlabel('f1'); lf2 = a.newlabel('f2'); lfo = a.newlabel('fo')
    a(f'''
    v_mov_b32 v12, 0
    v_mov_b32 v13, 0
    v_mov_b32 v14, 0
    v_mov_b32 v15, 0
    v_cmp_gt_u32 vcc, 352, v0
    s_mov_b64 s[6:7], -1
    s_mov_b64 s[8:9], vcc
    s_mov_b32 s4, 0
    ''')
    a.label(lf)
    a(f'''
    s_mov_b64 exec, s[6:7]
    s_cbranch_execz {lf1}
    buffer_load_dwordx4 v[8:11], v5, s[32:35], s47 offen sc1
    ''')
    a.label(lf1)
    a(f'''
    s_mov_b64 exec, s[8:9]
    s_cbranch_execz {lf2}
    buffer_load_dwordx4 v[12:15], v5, s[32:35], s48 offen sc1
    ''')
    a.label(lf2)
    a(f'''
    s_mov_b64 exec, -1
    s_add_u32 s4, s4, 1
    s_waitcnt vmcnt(0)
    v_and_b32 v16, v8, v9
    v_and_b32 v17, v10, v11
    v_and_b32 v18, v12, v13
    v_and_b32 v19, v14, v15
    v_and_b32 v16, v16, v17
    v_and_b32 v18, v18, v19
    v_and_b32 v16, 1, v16
    v_and_b32 v18, 1, v18
    v_cmp_eq_u32 vcc, 0, v16
    v_cmp_eq_u32 s[10:11], 0, v18
    s_and_b64 s[6:7], s[6:7], vcc
    s_and_b64 s[8:9], s[8:9], s[10:11]
    s_cmp_ge_u32 s4, {SPIN_MAX}
    s_cbranch_scc1 {lfo}
    s_or_b64 s[10:11], s[6:7], s[8:9]
    s_cbranch_scc1 {lf}
    ''')
    a.label(lfo)
    a(f'''
    v_add_f32 v8, v8, v12
    v_add_f32 v9, v9, v13
    v_add_f32 v10, v10, v14
    v_add_f32 v11, v11, v15
    v_and_b32 v20, 0xffff0000, v20
    v_and_b32 v21, 0xffff0000, v21
    v_permlane32_swap_b32 v8, v10
    v_permlane32_swap_b32 v9, v11
    v_add_f32 v8, v8, v10
    v_add_f32 v9, v9, v11
    s_nop 1
    v_permlane16_swap_b32 v8, v9
    v_add_f32 v8, v8, v9
    s_nop 1
    v_add_f32_dpp v8, v8, v8 row_ror:4 row_mask:0xf bank_mask:0xf
    s_nop 1
    v_add_f32_dpp v8, v8, v8 row_ror:8 row_mask:0xf bank_mask:0xf
    v_and_b32 v7, 3, v2
    v_lshlrev_b32 v7, 4, v7
    v_lshrrev_b32 v9, 4, v2
    v_lshl_add_u32 v7, v9, 2, v7
    s_lshl_b32 s47, s20, 6
    s_add_u32 s47, s47, {M_P2}
    v_add_u32 v7, s47, v7
    s_mov_b32 exec_lo, 0x000f000f
    s_mov_b32 exec_hi, 0x000f000f
    ds_write_b32 v7, v8
    s_mov_b64 exec, -1
    s_waitcnt lgkmcnt(0)
    s_barrier
    s_cmp_lg_u32 s20, 0
    s_cbranch_scc1 {end}
    v_add_u32 v6, {M_P2}, v22
    ds_read_b32 v8, v6
    ds_read_b32 v9, v6 offset:64
    ds_read_b32 v10, v6 offset:128
    ds_read_b32 v11, v6 offset:192
    ds_read_b32 v12, v6 offset:256
    ds_read_b32 v13, v6 offset:320
    ds_read_b32 v14, v6 offset:384
    ds_read_b32 v15, v6 offset:448
    s_lshr_b32 s48, s44, 16
    s_xor_b32 s49, s48, 0xffff
    s_and_b32 s50, s48, 0x7fff
    s_cmp_ge_u32 s48, 0x8000
    s_cselect_b32 s48, s50, s49
    s_lshl_b32 s48, s48, 16
    v_mov_b32 v18, s48
    v_mul_f32 v18, {fbits(-LOG2E):#x}, v18
    v_exp_f32 v18, v18
    s_nop 0
    v_add_f32 v18, 1.0, v18
    v_rcp_f32 v18, v18
    s_waitcnt lgkmcnt(0)
    v_add_f32 v8, v8, v9
    v_add_f32 v10, v10, v11
    v_add_f32 v12, v12, v13
    v_add_f32 v14, v14, v15
    v_add_f32 v8, v8, v10
    v_add_f32 v12, v12, v14
    v_add_f32 v8, v8, v12
    ''')
    round_bf16(a, 8, 9)
    round_bf16(a, 18, 9)
    a('v_mul_f32 v8, v8, v18')
    round_bf16(a, 8, 9)
    a('v_add_f32 v8, v20, v8')
    round_bf16(a, 8, 9)
    a(f'''
    v_add_f32 v8, v21, v8
    v_cvt_pk_bf16_f32 v8, v8, v8
    s_mul_i32 s45, s45, 1280
    s_lshl_b32 s47, s53, 5
    s_add_u32 s45, s45, s47
    v_lshlrev_b32 v7, 1, v2
    s_mov_b64 exec, 0xffff
    buffer_store_short v8, v7, s[36:39], s45 offen
    s_mov_b64 exec, -1
    ''')
    a.label(end)
    stamp_flush(a)
    a.label(end + 'x')
    a('s_endpgm')

def main():
    global STAMPS
    global PF
    if len(sys.argv) > 2 and sys.argv[2] == 'stamps': STAMPS = True
    global WPOS, TAILST, OUTF
    import os
    OUTF = os.environ.get('OUTF', OUTF)
    global PRIO, CONVST, SPEC_TH, REDST
    REDST = bool(os.environ.get('REDST'))
    global WLDPOS
    WLDPOS = os.environ.get('WLDPOS', WLDPOS)
    PF = os.environ.get('PF', PF)
    SPEC_TH = int(os.environ.get('SPEC_TH', SPEC_TH))
    CONVST = bool(os.environ.get('CONVST'))
    PRIO = int(os.environ.get('PRIO', PRIO))
    if len(sys.argv) > 4: TAILST = True
    if len(sys.argv) > 3: WPOS = sys.argv[3]
    a = A()
    gen(a)
    hdr = f'; @launch grid=(256,1,1) block=(512,1,1) lds={LDS_TOTAL}\n'
    hdr += '.amdgcn_target "amdgcn-amd-amdhsa--gfx950"\n.text\n'
    out = hdr + a.text().replace('OUTFLAG', OUTF) + f'''.section .rodata,"a"
.p2align 6
.amdhsa_kernel {KNAME}
  .amdhsa_next_free_vgpr 248
  .amdhsa_next_free_sgpr 102
  .amdhsa_accum_offset 248
  .amdhsa_group_segment_fixed_size 0
  .amdhsa_kernarg_size 120
  .amdhsa_user_sgpr_count 2
  .amdhsa_user_sgpr_kernarg_segment_ptr 1
  .amdhsa_system_sgpr_workgroup_id_x 1
.end_amdhsa_kernel
'''
    path = sys.argv[1] if len(sys.argv) > 1 else f'cdna_kernels/{NAME}.s'
    open(path, 'w').write(out)
    print('wrote', path, len(out))

if __name__ == '__main__':
    main()
```

```python
import struct, sys

NAME = 'sequential_preLN__ssm_conv_s4d__moe_arch_mod__prompt'
KNAME = NAME + '_kernel'

WS_U = 0x000000
WS_YS = 0x480000
WS_YT = 0x280000
WS_CAND = 0x520000
WS_KEY = 0x500000
WS_FLAG2 = 0x501000
WS_FLAG1 = 0x502000
WS_GO = 0x508000
WS_PART = 0x6A0000
WS_YP = 0x6C0000
WS_ACT = 0x504000
WS_STAMP = 0xE00000
WS_SIZE = 0x1000000
NREP = 8
SPIN_MAX = 1 << 18
OOB = 0x7ffffff0
STAMPS = False
TAILST = False
CONVST = False
REDST = False
WARM = True
PF = 'ug2'
SIGPOS = 2
WPOS = 'conv'
CODEPF = True
SPEC_TH = 176
WLDPOS = 'B'
SET1 = 0x100000
OUTF = 'nt'
WSH = 21
PRIO = 0

def fbits(x):
    return struct.unpack('<I', struct.pack('<f', x))[0]

LOG2E = 1.4426950408889634
LOG2E_HI = struct.unpack('<f', struct.pack('<f', LOG2E))[0]
LOG2E_LO = LOG2E - LOG2E_HI
LN2 = 0.6931471805599453
INV2PI = 0.15915494309189535

class A:
    def __init__(self):
        self.L = []
        self.uid = 0
    def __call__(self, s):
        for line in s.strip('\n').split('\n'):
            if line.strip():
                self.L.append('    ' + line.strip())
    def label(self, s):
        self.L.append(s + ':')
    def newlabel(self, base):
        self.uid += 1
        return f'L_{base}_{self.uid}'
    def text(self):
        return '\n'.join(self.L) + '\n'

NSTAMP = 12
def stamp(a, i):
    if STAMPS:
        a(f's_memrealtime s[{76+2*i}:{77+2*i}]')
def cstamp(a, i):
    if STAMPS:
        a(f's_memtime s[{76+2*i}:{77+2*i}]')
def stamp_init(a):
    if STAMPS:
        for i in range(NSTAMP):
            a(f's_mov_b32 s{76+2*i}, 0')
def stamp_flush(a):
    if STAMPS:
        a('s_mov_b64 exec, -1')
        a(f's_memrealtime s[{76+2*(NSTAMP-1)}:{77+2*(NSTAMP-1)}]')
        a('s_waitcnt lgkmcnt(0)')
        for i in range(NSTAMP):
            a(f'v_mov_b32 v{8+i}, s{76+2*i}')
        a(f'''
        s_lshl_b32 s76, s2, 3
        s_add_u32 s76, s76, s20
        s_lshl_b32 s76, s76, 6
        s_add_u32 s76, s76, {WS_STAMP}
        v_mov_b32 v24, 0
        s_mov_b64 exec, 1
        buffer_store_dwordx4 v[8:11], v24, s[32:35], s76 offen
        buffer_store_dwordx4 v[12:15], v24, s[32:35], s76 offen offset:16
        buffer_store_dwordx4 v[16:19], v24, s[32:35], s76 offen offset:32
        ''')

def srd(a, s, lo, hi, size):
    a(f's_mov_b32 s{s}, s{lo}')
    a(f's_and_b32 s{s+1}, s{hi}, 0xffff')
    a(f's_mov_b32 s{s+2}, {size}')
    a(f's_mov_b32 s{s+3}, 0x00020000')

def wave_reduce(a, op, v):
    for m in ['quad_perm:[1,0,3,2] row_mask:0xf bank_mask:0xf',
              'quad_perm:[2,3,0,1] row_mask:0xf bank_mask:0xf',
              'row_half_mirror row_mask:0xf bank_mask:0xf',
              'row_mirror row_mask:0xf bank_mask:0xf',
              'row_bcast:15 row_mask:0xa bank_mask:0xf',
              'row_bcast:31 row_mask:0xc bank_mask:0xf']:
        a('s_nop 1')
        a(f'{op}_dpp v{v}, v{v}, v{v} {m}')

def round_bf16(a, v, t):
    a(f'v_cvt_pk_bf16_f32 v{t}, v{v}, v{v}')
    a(f'v_lshlrev_b32 v{v}, 16, v{t}')

def unpack(a, src, lo, hi):
    a(f'v_lshlrev_b32 v{lo}, 16, v{src}')
    a(f'v_and_b32 v{hi}, 0xffff0000, v{src}')

def exp_bf16(a, v, t0, t1, s_l2e, s_l2elo, s_ln2):
    a(f'v_mul_f32 v{t0}, s{s_l2e}, v{v}')
    a(f'v_fma_f32 v{t1}, v{v}, s{s_l2e}, -v{t0}')
    a(f'v_fmac_f32 v{t1}, s{s_l2elo}, v{v}')
    a(f'v_exp_f32 v{t0}, v{t0}')
    a(f'v_mul_f32 v{t1}, s{s_ln2}, v{t1}')
    a(f'v_fma_f32 v{v}, v{t0}, v{t1}, v{t0}')
    round_bf16(a, v, t0)

def ln_stats(a, src, tmp, vs1, vs2, vmean, vrs, vt, s0, s1, s2_):
    a(f'v_readfirstlane_b32 s{s2_}, v{src}')
    a('s_nop 1')
    for i in range(10):
        a(f'v_subrev_f32 v{tmp+i}, s{s2_}, v{src+i}')
    a(f'''
    v_add_f32 v{vs1}, v{tmp}, v{tmp+1}
    v_mul_f32 v{vs2}, v{tmp}, v{tmp}
    v_add_f32 v{vmean}, v{tmp+2}, v{tmp+3}
    v_mul_f32 v{vrs}, v{tmp+1}, v{tmp+1}
    ''')
    for i in range(4, 10, 2):
        a(f'v_add_f32 v{vs1}, v{vs1}, v{tmp+i}')
        a(f'v_add_f32 v{vmean}, v{vmean}, v{tmp+i+1}')
    for i in range(2, 10, 2):
        a(f'v_fmac_f32 v{vs2}, v{tmp+i}, v{tmp+i}')
        a(f'v_fmac_f32 v{vrs}, v{tmp+i+1}, v{tmp+i+1}')
    a(f'v_add_f32 v{vs1}, v{vs1}, v{vmean}')
    a(f'v_add_f32 v{vs2}, v{vs2}, v{vrs}')
    for m in ['quad_perm:[1,0,3,2] row_mask:0xf bank_mask:0xf',
              'quad_perm:[2,3,0,1] row_mask:0xf bank_mask:0xf',
              'row_half_mirror row_mask:0xf bank_mask:0xf',
              'row_mirror row_mask:0xf bank_mask:0xf',
              'row_bcast:15 row_mask:0xa bank_mask:0xf',
              'row_bcast:31 row_mask:0xc bank_mask:0xf']:
        a('s_nop 0')
        a(f'v_add_f32_dpp v{vs1}, v{vs1}, v{vs1} {m}')
        a(f'v_add_f32_dpp v{vs2}, v{vs2}, v{vs2} {m}')
    a(f'''
    v_mov_b32 v{vt}, {fbits(1.0/640):#x}
    v_readlane_b32 s{s0}, v{vs1}, 63
    v_readlane_b32 s{s1}, v{vs2}, 63
    s_nop 0
    v_mul_f32 v{vmean}, s{s0}, v{vt}
    v_mul_f32 v{vrs}, s{s1}, v{vt}
    v_fma_f32 v{vrs}, -v{vmean}, v{vmean}, v{vrs}
    v_add_f32 v{vmean}, s{s2_}, v{vmean}
    v_max_f32 v{vrs}, 0, v{vrs}
    ''')
    round_bf16(a, vrs, vt)
    a(f'v_add_f32 v{vrs}, {fbits(1e-5):#x}, v{vrs}')
    round_bf16(a, vrs, vt)
    a(f'v_sqrt_f32 v{vrs}, v{vrs}')
    a('s_nop 0')
    round_bf16(a, vrs, vt)
    a(f'v_rcp_f32 v{vrs}, v{vrs}')
    round_bf16(a, vmean, vt)

def reduceN(a, R, n):
    h = n // 2; qn = n // 4
    a('s_nop 1')
    for j in range(h):
        a(f'v_permlane32_swap_b32 v{R+j}, v{R+j+h}')
    for j in range(h):
        a(f'v_add_f32 v{R+j}, v{R+j}, v{R+j+h}')
    a('s_nop 1')
    for j in range(qn):
        a(f'v_permlane16_swap_b32 v{R+j}, v{R+j+qn}')
    for j in range(qn):
        a(f'v_add_f32 v{R+j}, v{R+j}, v{R+j+qn}')
    for m in ['quad_perm:[1,0,3,2]', 'quad_perm:[2,3,0,1]', 'row_half_mirror', 'row_mirror']:
        a('s_nop 0')
        for j in range(qn):
            a(f'v_add_f32_dpp v{R+j}, v{R+j}, v{R+j} {m} row_mask:0xf bank_mask:0xf')

KT_RS = 544
KT_E0 = 41
KT_SZ = 57 * KT_RS
L_TILE = 3 * KT_SZ
TS = 1344
L_KC = L_TILE + 8 * TS
KC_SZ = 1344
L_UP = L_KC + 3 * KC_SZ
US = 1152
UP_SZ = 4 * US
L_MISC = L_UP + 3 * UP_SZ
M_CNT1 = L_MISC
M_CNT2 = L_MISC + 4
M_SCALE = L_MISC + 16
M_PAIR = L_MISC + 96
M_KEYS = L_MISC + 32
M_GKEY = L_MISC + 64
M_P2 = L_MISC + 384
M_P1 = L_MISC + 1024
LDS_TOTAL = L_MISC + 3072
CS = 4224
CP_SZ = 4 * CS
L_RED = 3 * CP_SZ
L_Y2 = 0

VX = 200
VT = 206
VW = 168
GA = 152
VU = 160

def gen(a):
    a.L.append(f'.globl {KNAME}')
    a.L.append('.p2align 8')
    a.L.append(f'.type {KNAME},@function')
    a.label(KNAME)
    end = 'L_end'
    stamp_init(a)
    stamp(a, 0)
    a(f'''
    s_cmp_ge_u32 s2, 256
    s_cbranch_scc1 {end}x
    s_load_dwordx8 s[4:11], s[0:1], 0
    s_load_dwordx4 s[12:15], s[0:1], 32
    s_load_dwordx2 s[16:17], s[0:1], 48    ; D
    s_load_dwordx2 s[18:19], s[0:1], 112   ; ws
    s_load_dwordx8 s[64:71], s[0:1], 64
    s_load_dwordx4 s[72:75], s[0:1], 96
    v_lshrrev_b32 v1, 6, v0
    v_and_b32 v2, 63, v0                   ; lane
    v_readfirstlane_b32 s20, v1            ; wave
    s_and_b32 s21, s2, 7
    s_lshl_b32 s21, s21, 5
    s_lshr_b32 s22, s2, 3
    s_add_u32 s21, s21, s22                ; rb
    s_lshl_b32 s22, s21, 3
    s_add_u32 s22, s22, s20                ; row
    s_mul_i32 s23, s22, 1280
    v_lshlrev_b32 v3, 4, v2                ; lane*16
    v_lshlrev_b32 v4, 2, v2                ; lane*4
    s_and_b32 s60, s2, 7
    s_lshl_b32 s60, s60, 4
    s_lshr_b32 s61, s2, 4
    s_add_u32 s3, s60, s61                 ; p'
    s_mul_i32 s60, s3, 5
    s_bfe_u32 s61, s2, 0x10003             ; odd
    s_lshl_b32 s100, s3, 12
    s_add_u32 s100, s100, {WS_YS}
    s_lshl_b32 s3, s3, 1
    s_add_u32 s3, s3, s61
    s_lshl_b32 s3, s3, 13
    s_add_u32 s3, s3, {WS_YT}
    s_mul_i32 s62, s61, 3
    s_add_u32 s62, s62, s60                ; chA
    s_add_u32 s63, s60, 2                  ; chS
    s_lshr_b32 s56, s20, 1
    s_add_u32 s57, s62, s56
    s_cmp_eq_u32 s56, 2
    s_cselect_b32 s57, s63, s57
    ''')
    if CODEPF:
        lcp = a.newlabel('cp')
        a(f'''
        s_cmp_lg_u32 s20, 6
        s_cbranch_scc1 {lcp}
        s_getpc_b64 s[24:25]
        L_pc_here:
        s_lshr_b32 s26, s2, 3
        s_lshl_b32 s26, s26, 10
        v_add_u32 v5, s26, v3
        s_cmp_lt_u32 s26, (L_endx - L_pc_here) & 0xfffffc00
        s_cbranch_scc0 {lcp}
        global_load_dwordx4 v[240:243], v5, s[24:25]
        ''')
        a.label(lcp)
    a(f'''
    s_waitcnt lgkmcnt(0)
    ''')
    srd(a, 24, 4, 5, 2621440)
    srd(a, 32, 18, 19, WS_SIZE)
    srd(a, 28, 16, 17, 1280)
    lnz = a.newlabel('nz')
    a(f'''
    s_lshl_b32 s17, s2, 3
    s_add_u32 s17, s17, s20
    s_cmp_lg_u32 s17, 7
    s_cbranch_scc1 {lnz}
    v_mov_b32 v8, 0
    v_mov_b32 v9, 0
    v_mov_b32 v10, 0
    v_mov_b32 v11, 0
    s_mov_b32 s4, {WS_FLAG1}
    buffer_store_dwordx4 v[8:11], v3, s[32:35], s4 offen sc1
    buffer_store_dwordx4 v[8:11], v3, s[32:35], s4 offen offset:1024 sc1
    buffer_store_dwordx4 v[8:11], v3, s[32:35], s4 offen offset:2048 sc1
    buffer_store_dwordx4 v[8:11], v3, s[32:35], s4 offen offset:3072 sc1
    v_lshlrev_b32 v12, 12, v2
    s_mov_b32 s4, {WS_GO + 256}
    s_mov_b64 exec, {(1<<NREP)-1:#x}
    buffer_store_dword v8, v12, s[32:35], s4 offen sc1
    s_mov_b64 exec, -1
    s_nop 1
    ''')
    a.label(lnz)
    a('''
    buffer_load_dwordx4 v[8:11], v3, s[24:27], s23 offen
    buffer_load_dword v12, v4, s[24:27], s23 offen offset:1024
    ''')
    srd(a, 36, 6, 7, 163840)
    srd(a, 40, 8, 9, 163840)
    srd(a, 44, 10, 11, 163840)
    srd(a, 48, 12, 13, 163840)
    srd(a, 52, 14, 15, 1280)
    a('''
    buffer_load_dwordx4 v[14:17], v3, s[28:31], 0 offen
    buffer_load_dword v18, v4, s[28:31], 0 offen offset:1024
    s_lshl_b32 s58, s57, 8
    s_and_b32 s59, s20, 1
    s_lshl_b32 s59, s59, 7
    s_add_u32 s59, s59, s58
    v_lshlrev_b32 v5, 1, v2
    s_lshl_b32 s16, s57, 1
    v_mov_b32 v6, 0
    buffer_load_ushort v20, v5, s[36:39], s59 offen
    buffer_load_ushort v21, v5, s[40:43], s59 offen
    buffer_load_ushort v22, v5, s[44:47], s59 offen
    buffer_load_ushort v23, v5, s[48:51], s59 offen
    buffer_load_dword v24, v4, s[44:47], s58 offen
    buffer_load_dword v25, v4, s[48:51], s58 offen
    buffer_load_ushort v26, v6, s[52:55], s16 offen
    ''')
    def prefetch(PD=216):
        srd(a, 36, 66, 67, 640 * 3456)
        srd(a, 40, 68, 69, 640 * 3456)
        srd(a, 44, 70, 71, 1728 * 1280)
        a(f'''
        s_and_b32 s4, s2, 7
        s_lshr_b32 s5, s2, 3
        s_mul_i32 s6, s4, 432
        s_mul_i32 s7, s5, {20*3456}
        s_add_u32 s6, s6, s7
        v_lshrrev_b32 v5, 5, v2
        v_mul_u32_u24 v5, 3456, v5
        v_and_b32 v6, 31, v2
        v_lshl_add_u32 v5, v6, 4, v5
        v_mov_b32 v7, {OOB:#x}
        v_cmp_gt_u32 vcc, 27, v6
        s_cmp_eq_u32 s20, 6
        s_cselect_b32 s36, s36, s40
        v_cndmask_b32 v5, v7, v5, vcc
        s_cselect_b32 s37, s37, s41
        ''')
        for i in range(10):
            a(f's_add_u32 s7, s6, {2*i*3456}')
            a(f'buffer_load_dwordx4 v[{PD+4*(i%2)}:{PD+3+4*(i%2)}], v5, s[36:39], s7 offen')
    if PF == 'start':
        lns = a.newlabel('ns')
        a(f'''
        s_cmp_lt_u32 s20, 6
        s_cbranch_scc1 {lns}
        ''')
        prefetch()
        a.label(lns)
    if WARM:
        lnw = a.newlabel('nw')
        a(f'''
        s_cmp_ge_u32 s20, 6
        s_cbranch_scc1 {lnw}
        v_lshlrev_b32 v27, {WSH}, v2
        s_mov_b32 s8, 0
        s_mov_b32 s4, s18
        s_mov_b32 s5, s19
        s_mov_b32 s6, {WS_SIZE // 2}
        s_cmp_eq_u32 s20, 1
        s_cselect_b32 s4, s72, s4
        s_cselect_b32 s5, s73, s5
        s_cselect_b32 s6, 2621440, s6
        s_cmp_eq_u32 s20, 2
        s_cselect_b32 s4, s74, s4
        s_cselect_b32 s5, s75, s5
        s_cselect_b32 s6, 256, s6
        s_cmp_eq_u32 s20, 3
        s_cselect_b32 s4, s64, s4
        s_cselect_b32 s5, s65, s5
        s_cselect_b32 s6, 1280, s6
        s_cmp_eq_u32 s20, 4
        s_cselect_b32 s4, s66, s4
        s_cselect_b32 s5, s67, s5
        s_cselect_b32 s6, {640*3456}, s6
        s_cmp_eq_u32 s20, 5
        s_cselect_b32 s8, {64 << WSH}, s8
        s_and_b32 s5, s5, 0xffff
        s_mov_b32 s7, 0x00020000
        buffer_load_dword v244, v27, s[4:7], s8 offen
        ''')
        a.label(lnw)
    lnr = a.newlabel('nr')
    a(f'''
    s_cmp_lg_u32 s17, 7
    s_cbranch_scc1 {lnr}
    ''')
    srd(a, 4, 74, 75, 256)
    a(f'''
    v_mov_b32 v27, 0
    v_mov_b32 v28, 1
    s_waitcnt vmcnt({26 if PF == 'start' else 11})
    s_mov_b64 exec, 1
    buffer_store_dword v28, v27, s[4:7], 0 offen sc1      ; READY
    s_mov_b64 exec, -1
    ''')
    a.label(lnr)
    a(f'''
    v_mov_b32 v27, 0
    v_lshrrev_b32 v28, 5, v0
    v_mul_u32_u24 v28, {US}, v28
    v_and_b32 v29, 31, v0
    v_lshl_add_u32 v28, v29, 2, v28
    v_add_u32 v28, {L_UP}, v28
    v_cmp_gt_u32 vcc, 384, v0
    s_and_saveexec_b64 s[4:5], vcc
    ds_write_b32 v28, v27
    s_mov_b64 exec, s[4:5]
    v_lshrrev_b32 v28, 2, v0
    v_mul_u32_u24 v28, {KC_SZ}, v28
    v_and_b32 v29, 3, v0
    v_lshl_add_u32 v28, v29, 2, v28
    v_add_u32 v28, {L_KC}, v28
    v_lshlrev_b32 v29, 2, v0
    v_add_u32 v29, {L_MISC}, v29
    v_cmp_gt_u32 vcc, 12, v0
    s_and_saveexec_b64 s[4:5], vcc
    ds_write_b32 v28, v27
    ds_write_b32 v29, v27
    ds_write_b32 v29, v27 offset:96
    s_mov_b64 exec, s[4:5]
    ''')
    a('v_lshlrev_b32 v5, 2, v0')
    a(f'v_mov_b32 v27, {L_KC}')
    for d in range(7):
        a(f'''
        v_add_u32 v31, {d-3}, v5
        v_cvt_f32_i32 v32, v31
        v_cvt_pk_bf16_f32 v32, v32, v32
        v_and_b32 v32, 0xffff, v32
        v_subrev_u32 v32, {(134<<7)-128}, v32
        v_cmp_gt_i32 vcc, 256, v31
        s_nop 1
        v_cndmask_b32 v32, v32, v31, vcc
        v_lshl_add_u32 v32, v32, 1, v27
        v_add_u32 v32, 16, v32
        v_cmp_gt_i32 vcc, 0, v31
        s_nop 1
        v_cndmask_b32 v{GA+d}, v32, v27, vcc
        ''')
    a(f'''
    v_lshrrev_b32 v31, 3, v0
    v_mul_u32_u24 v31, {CS}, v31
    v_and_b32 v32, 7, v0
    v_lshl_add_u32 v{VU+4}, v32, 2, v31
    ''')
    for e in range(2):
        vi, vr, vk, va, vl = 31, 32, 33, VU + 2 * e, VU + 2 * e + 1
        a(f'''
        v_add_u32 v{vi}, {512*e}, v0
        v_mul_u32_u24 v{vr}, 43691, v{vi}
        v_lshrrev_b32 v{vr}, 17, v{vr}
        v_mul_u32_u24 v{vk}, 3, v{vr}
        v_sub_u32 v{vk}, v{vi}, v{vk}
        v_mul_u32_u24 v{va}, 10240, v{vr}
        v_lshl_add_u32 v{va}, v{vk}, 4, v{va}
        s_lshl_b32 s5, s61, 1
        v_add_u32 v{vk}, s5, v{vk}
        v_subrev_u32 v{vl}, 3, v{vk}
        v_cmp_gt_u32 vcc, 3, v{vk}
        s_nop 1
        v_cndmask_b32 v{vk}, v{vl}, v{vk}, vcc
        v_mul_u32_u24 v{vl}, {UP_SZ}, v{vk}
        v_lshl_add_u32 v{vl}, v{vr}, 2, v{vl}
        v_add_u32 v{vl}, {L_UP + 128}, v{vl}
        ''')
    a(f'''
    v_mov_b32 v31, {OOB:#x}
    v_cmp_gt_u32 vcc, 256, v0
    s_nop 1
    v_cndmask_b32 v{VU+2}, v31, v{VU+2}, vcc
    ''')
    a(f'''
    v_mov_b32 v36, 0
    v_mov_b32 v37, 0
    v_mov_b32 v38, 0
    v_mov_b32 v39, 0
    v_lshlrev_b32 v35, 4, v0
    buffer_store_dwordx4 v[36:39], v35, s[32:35], s3 offen sc1
    v_lshrrev_b32 v32, 5, v0
    v_mov_b32 v33, 0x8f
    v_mov_b32 v34, 0x70
    s_cmp_eq_u32 s61, 0
    s_cselect_b64 vcc, -1, 0
    v_cndmask_b32 v33, v34, v33, vcc
    v_lshrrev_b32 v33, v32, v33
    v_and_b32 v33, 1, v33
    v_cmp_ne_u32 vcc, 0, v33
    v_mov_b32 v33, {OOB:#x}
    s_nop 0
    v_cndmask_b32 v35, v33, v35, vcc
    buffer_store_dwordx4 v[36:39], v35, s[32:35], s100 offen sc1
    ''')
    X = 30
    def wait2(n):
        if PF == 'start':
            l1 = a.newlabel('w'); l2 = a.newlabel('w')
            a(f'''
            s_cmp_ge_u32 s20, 6
            s_cbranch_scc1 {l1}
            s_waitcnt vmcnt({n})
            s_branch {l2}
            ''')
            a.label(l1)
            a(f's_waitcnt vmcnt({n+15})')
            a.label(l2)
        else:
            a(f's_waitcnt vmcnt({n})')
    wait2(11)
    srd(a, 24, 74, 75, 256)
    for i in range(4):
        unpack(a, 8 + i, X + 2 * i, X + 2 * i + 1)
        a(f'v_mov_b32 v{VX+i}, v{8+i}')
    unpack(a, 12, X + 8, X + 9)
    a(f'v_mov_b32 v{VX+4}, v12')
    ln_stats(a, X, 44, 40, 43, 41, 42, 54, 4, 5, 6)
    wait2(9)
    for i in range(4):
        unpack(a, 14 + i, 54 + 2 * i, 55 + 2 * i)
    unpack(a, 18, 62, 63)
    for p in range(5):
        x0, x1 = X + 2 * p, X + 2 * p + 1
        a(f'''
        v_sub_f32 v{x0}, v{x0}, v41
        v_sub_f32 v{x1}, v{x1}, v41
        v_cvt_pk_bf16_f32 v44, v{x0}, v{x1}
        v_lshlrev_b32 v{x0}, 16, v44
        v_and_b32 v{x1}, 0xffff0000, v44
        v_mul_f32 v{x0}, v{x0}, v42
        v_mul_f32 v{x1}, v{x1}, v42
        v_cvt_pk_bf16_f32 v44, v{x0}, v{x1}
        v_lshlrev_b32 v{x0}, 16, v44
        v_and_b32 v{x1}, 0xffff0000, v44
        v_cvt_pk_f16_f32 v{64+p}, v{x0}, v{x1}
        ''')
    a(f'''
    s_and_b32 s4, s20, 3
    s_lshl_b32 s4, s4, 1
    s_lshr_b32 s5, s20, 2
    s_or_b32 s4, s4, s5
    s_mul_i32 s4, s4, {TS}
    s_add_u32 s4, s4, {L_TILE}
    v_add_u32 v44, s4, v3
    v_add_u32 v45, s4, v4
    ds_write_b128 v44, v[64:67]
    ds_write_b32 v45, v68 offset:1024
    ''')
    for p in range(5):
        x0, x1 = X + 2 * p, X + 2 * p + 1
        a(f'''
        v_mul_f32 v{x0}, v{x0}, v{54+2*p}
        v_mul_f32 v{x1}, v{x1}, v{55+2*p}
        v_cvt_pk_bf16_f32 v{VT+p}, v{x0}, v{x1}
        ''')
    l67 = a.newlabel('w67'); l45 = a.newlabel('w45')
    a(f'''
    v_lshrrev_b32 v44, 2, v2
    v_and_b32 v44, 3, v44
    v_mul_u32_u24 v44, {TS}, v44
    v_lshrrev_b32 v45, 4, v2
    v_lshlrev_b32 v45, 5, v45
    v_add_u32 v44, v44, v45
    v_and_b32 v45, 3, v2
    v_lshlrev_b32 v45, 3, v45
    v_add_u32 v44, v44, v45
    s_sub_u32 s6, s20, 2
    s_cmp_lt_u32 s20, 6
    s_cselect_b32 s6, s20, s6
    s_lshl_b32 s4, s6, 7
    s_add_u32 s4, s4, {L_TILE}
    v_add_u32 v44, s4, v44
    s_mul_i32 s4, s21, 10240
    s_lshl_b32 s5, s6, 10
    s_add_u32 s4, s4, s5
    s_add_u32 s4, s4, {WS_U}
    v_mov_b32 v46, 0
    buffer_load_dword v49, v46, s[24:27], 0 offen sc1
    s_waitcnt lgkmcnt(0)
    s_barrier
    s_lshr_b32 s5, s20, 1
    s_cmp_eq_u32 s5, 2
    s_cbranch_scc1 {l45}
    ds_read_b64_tr_b16 v[64:65], v44
    ds_read_b64_tr_b16 v[66:67], v44 offset:{4*TS}
    s_cmp_lt_u32 s20, 6
    s_cbranch_scc1 {l67}
    ds_read_b64_tr_b16 v[68:69], v44 offset:256
    ds_read_b64_tr_b16 v[70:71], v44 offset:{4*TS+256}
    ds_read_b64_tr_b16 v[72:73], v44 offset:512
    ds_read_b64_tr_b16 v[74:75], v44 offset:{4*TS+512}
    s_add_u32 s5, s4, 4096
    s_waitcnt lgkmcnt(2)
    buffer_store_dwordx4 v[68:71], v3, s[32:35], s4 offen offset:2048 sc1
    s_waitcnt lgkmcnt(0)
    buffer_store_dwordx4 v[72:75], v3, s[32:35], s5 offen sc1
    ''')
    a.label(l67)
    a('''
    s_waitcnt lgkmcnt(0)
    buffer_store_dwordx4 v[64:67], v3, s[32:35], s4 offen sc1
    ''')
    a.label(l45)
    if not TAILST: stamp(a, 2)
    def zero_mailboxes():
        lz = a.newlabel('zero')
        a(f'''
        v_mov_b32 v46, 0
        v_mov_b32 v47, 0
        v_lshlrev_b32 v48, 3, v0
        s_mul_i32 s5, s2, 5120
        s_add_u32 s5, s5, {WS_CAND}
        buffer_store_dwordx2 v[46:47], v48, s[32:35], s5 offen sc1
        s_cmp_ge_u32 s20, 2
        s_cbranch_scc1 {lz}
        s_add_u32 s5, s5, 4096
        buffer_store_dwordx2 v[46:47], v48, s[32:35], s5 offen sc1
        s_cmp_ge_u32 s20, 1
        s_cbranch_scc1 {lz}
        s_mov_b64 exec, 0x3
        v_lshlrev_b32 v48, 12, v0
        s_lshl_b32 s5, s2, 4
        s_add_u32 s5, s5, {WS_KEY}
        buffer_store_dword v46, v48, s[32:35], s5 offen sc1
        v_lshlrev_b32 v48, 7, v0
        s_and_b32 s5, s2, {NREP-1}
        s_lshl_b32 s5, s5, 12
        s_add_u32 s5, s5, {WS_GO}
        s_cmp_lt_u32 s2, {NREP}
        s_cselect_b32 s5, s5, 0x40000000
        buffer_store_dwordx2 v[46:47], v48, s[32:35], s5 offen sc1
        s_mov_b64 exec, -1
        ''')
        a.label(lz)
        lz2 = a.newlabel('zero2'); lz3 = a.newlabel('zero3')
        a(f'''
        s_cmp_ge_u32 s2, 216
        s_cbranch_scc1 {lz2}
        s_cmp_lt_u32 s20, 3
        s_cbranch_scc1 {lz3}
        s_mul_i32 s5, s2, 2560
        s_add_u32 s5, s5, {WS_YP - 3*512}
        v_lshlrev_b32 v48, 3, v0
        buffer_store_dwordx2 v[46:47], v48, s[32:35], s5 offen sc1
        s_add_u32 s5, s5, {SET1}
        buffer_store_dwordx2 v[46:47], v48, s[32:35], s5 offen sc1
        s_branch {lz2}
        ''')
        a.label(lz3)
        a.label(lz2)
    def spin(body, slp=0):
        lsp = a.newlabel('spin'); lso = a.newlabel('spinout')
        a('s_mov_b32 s4, 0')
        a.label(lsp)
        a(body)
        a(f'''
        s_add_u32 s4, s4, 1
        s_cmp_ge_u32 s4, {SPIN_MAX}
        s_cbranch_scc1 {lso}
        s_cmp_eq_u64 vcc, exec
        s_cbranch_scc1 {lso}
        ''')
        if slp: a(f's_sleep {slp}')
        a(f's_branch {lsp}')
        a.label(lso)
    def signal(cnt_addr, which, lgkm=False, vm=0):
        ls = a.newlabel('sig')
        a(f'''
        s_waitcnt vmcnt({vm})
        v_mov_b32 v46, {cnt_addr}
        v_mov_b32 v47, 1
        s_mov_b64 exec, 1
        ds_add_rtn_u32 v48, v46, v47
        s_waitcnt lgkmcnt(0)
        v_readfirstlane_b32 s4, v48
        s_lshl_b32 s5, s2, 4
        s_add_u32 s5, s5, {WS_FLAG1 if which == 1 else WS_FLAG2}
        s_cmp_lg_u32 s4, 7
        s_cbranch_scc1 {ls}
        v_mov_b32 v46, 0
        ''')
        if which == 1:
            lrd = a.newlabel('rdy')
            a(f'''
            v_cmp_ne_u32 vcc, 0, v49
            s_cbranch_vccnz {lrd}
            ''')
            spin('''
            buffer_load_dword v48, v46, s[24:27], 0 offen sc1
            s_waitcnt vmcnt(0)
            v_cmp_ne_u32 vcc, 0, v48
            ''')
            a.label(lrd)
        a('buffer_store_dword v47, v46, s[32:35], s5 offen sc1')
        a.label(ls)
        a('s_mov_b64 exec, -1')
    def gather_flags(base, r):
        lsp = a.newlabel('gf'); lso = a.newlabel('gfo')
        a(f'''
        s_mov_b32 s5, {base}
        s_mov_b32 s6, {base + 2048}
        s_mov_b32 s4, 0
        ''')
        a.label(lsp)
        a(f'''
        buffer_load_dword v{r}, v3, s[32:35], s5 offen sc1
        buffer_load_dword v{r+1}, v3, s[32:35], s5 offen offset:1024 sc1
        buffer_load_dword v{r+2}, v3, s[32:35], s6 offen sc1
        buffer_load_dword v{r+3}, v3, s[32:35], s6 offen offset:1024 sc1
        s_add_u32 s4, s4, 1
        s_waitcnt vmcnt(0)
        v_min_u32 v{r+4}, v{r}, v{r+1}
        v_min3_u32 v{r+4}, v{r+4}, v{r+2}, v{r+3}
        v_cmp_eq_u32 vcc, 0, v{r+4}
        s_cmp_ge_u32 s4, {SPIN_MAX}
        s_cbranch_scc1 {lso}
        s_and_b64 exec, exec, vcc
        s_cbranch_execnz {lsp}
        ''')
        a.label(lso)
        a('s_mov_b64 exec, -1')
    def bcast(goaddr, vval, vt):
        a(f'''
        v_lshlrev_b32 v{vt}, 12, v2
        s_mov_b32 s5, {goaddr}
        s_mov_b64 exec, {(1<<NREP)-1:#x}
        buffer_store_dword v{vval}, v{vt}, s[32:35], s5 offen sc1
        s_mov_b64 exec, -1
        ''')
    def slave(goaddr, vr=47):
        a(f'''
        s_and_b32 s5, s2, {NREP-1}
        s_lshl_b32 s5, s5, 12
        s_add_u32 s5, s5, {goaddr}
        v_mov_b32 v46, 0
        ''')
        spin(f'''
        buffer_load_dword v{vr}, v46, s[32:35], s5 offen sc1
        s_waitcnt vmcnt(0)
        v_cmp_ne_u32 vcc, 0, v{vr}
        ''')
    def master1():
        gather_flags(WS_FLAG1, 44)
        a('v_mov_b32 v47, 1')
        bcast(WS_GO + 256, 47, 46)
    def sync2():
        lsl = a.newlabel('sl'); ld = a.newlabel('sd')
        a(f'''
        s_cmp_lg_u32 s2, 0
        s_cbranch_scc1 {lsl}
        ''')
        gather_flags(WS_FLAG2, 44)
        a('v_mov_b32 v47, 1')
        bcast(WS_GO, 47, 46)
        a(f's_branch {ld}')
        a.label(lsl)
        slave(WS_GO)
        a.label(ld)
    lmf = a.newlabel('kmfma'); lpf = a.newlabel('pf')
    a(f'''
    s_cmp_ge_u32 s20, 6
    s_cbranch_scc1 {lpf}
    s_mov_b32 s8, {fbits(LOG2E_HI):#x}
    s_mov_b32 s9, {fbits(LOG2E_LO):#x}
    s_mov_b32 s10, {fbits(LN2):#x}
    s_mov_b32 s11, {fbits(INV2PI):#x}
    s_waitcnt vmcnt({4 if WARM else 3})
    v_lshlrev_b32 v20, 16, v20
    v_lshlrev_b32 v21, 16, v21
    v_lshlrev_b32 v22, 16, v22
    v_lshlrev_b32 v23, 16, v23
    v_lshlrev_b32 v26, 16, v26
    v_and_b32 v24, 0x7f807f80, v24
    v_and_b32 v25, 0x7f807f80, v25
    v_pk_max_u16 v24, v24, v25
    v_lshrrev_b32 v25, 16, v24
    v_and_b32 v24, 0xffff, v24
    v_max_u32 v24, v24, v25
    ''')
    wave_reduce(a, 'v_max_u32', 24)
    lsk4 = a.newlabel('sk4')
    a(f'''
    s_cmp_lt_u32 s20, 4
    s_cbranch_scc1 {lsk4}
    ''')
    signal(M_CNT1, 1)
    a.label(lsk4)
    exp_bf16(a, 20, 27, 28, 8, 9, 10)
    exp_bf16(a, 26, 27, 28, 8, 9, 10)
    a(f'''
    v_readlane_b32 s12, v24, 63
    s_lshr_b32 s12, s12, 7
    s_min_u32 s12, s12, 252
    s_sub_u32 s13, 253, s12
    s_lshl_b32 s13, s13, 23
    s_add_u32 s14, s12, 2
    s_lshl_b32 s14, s14, 23
    v_mul_f32 v20, v20, v26
    v_mul_f32 v21, v21, v26
    v_mul_f32 v20, s8, v20
    v_sub_f32 v20, 0, v20
    v_mul_f32 v21, s11, v21
    v_mul_f32 v22, s13, v22
    v_mul_f32 v23, s13, v23
    v_mul_f32 v26, s14, v26
    s_lshl_b32 s15, s56, 2
    s_add_u32 s15, s15, {M_SCALE}
    v_mov_b32 v27, s15
    s_mov_b64 exec, 1
    ds_write_b32 v27, v26
    s_mov_b64 exec, -1
    s_mul_i32 s15, s56, {KT_SZ}
    s_and_b32 s16, s20, 1
    s_lshl_b32 s16, s16, 8
    s_add_u32 s15, s15, s16
    v_add_u32 v27, s15, v4
    ''')
    def cmul(r, x, y, t=28):
        a(f'v_pk_mul_f32 v[{t}:{t+1}], v[{x}:{x+1}], v[{y}:{y+1}] op_sel:[1,1] op_sel_hi:[1,0]')
        a(f'v_pk_fma_f32 v[{r}:{r+1}], v[{x}:{x+1}], v[{y}:{y+1}], v[{t}:{t+1}] op_sel:[0,0,0] op_sel_hi:[0,1,1] neg_lo:[0,0,1]')
    pk = [0]
    def putG(row, x):
        r = 76 + (pk[0] % 8); pk[0] += 1
        a(f'v_cvt_pk_f16_f32 v{r}, v{x}, -v{x+1}')
        a(f'ds_write_b32 v27, v{r} offset:{row*KT_RS}')
    def putE(b, x):
        r = 76 + (pk[0] % 8); pk[0] += 1
        a(f'v_cvt_pk_f16_f32 v{r}, v{x}, v{x+1}')
        a(f'ds_write_b32 v27, v{r} offset:{(KT_E0+b)*KT_RS}')
    def direct(dst, p):
        a(f'''
        v_mul_f32 v28, {fbits(float(p)):#x}, v20
        v_mul_f32 v29, {fbits(float(p)):#x}, v21
        v_exp_f32 v28, v28
        v_fract_f32 v29, v29
        v_cos_f32 v{dst}, v29
        v_sin_f32 v{dst+1}, v29
        s_nop 0
        v_mul_f32 v{dst}, v{dst}, v28
        v_mul_f32 v{dst+1}, v{dst+1}, v28
        ''')
    def ES(c): return 30 + 2 * c
    direct(ES(1), 1)
    direct(50, 128)
    direct(52, 8)
    cmul(ES(2), ES(1), ES(1))
    cmul(ES(3), ES(2), ES(1))
    cmul(ES(4), ES(2), ES(2))
    cmul(ES(5), ES(4), ES(1))
    cmul(ES(6), ES(4), ES(2))
    cmul(ES(7), ES(4), ES(3))
    a('v_mov_b32 v62, 0x00003c00')
    a(f'ds_write_b32 v27, v62 offset:{KT_E0*KT_RS}')
    putE(1, 52)
    E = 52
    ereg = [58, 60]
    for b in range(2, 16):
        ne = ereg[b % 2]
        cmul(ne, E, 52)
        putE(b, ne)
        E = ne
    H = 22
    tmp = [58, 60, 62, 64]
    ti = [0]
    def prodG(row, h, e):
        t = tmp[ti[0] % 4]; ti[0] += 1
        cmul(t, h, e)
        putG(row, t)
    hreg = [54, 56]
    for aa in range(17):
        if aa < 2:
            putG(8 * aa, H)
            for c in range(1, 8):
                prodG(8 * aa + c, H, ES(c))
        elif aa < 4:
            base = 16 + 4 * (aa - 2)
            putG(base, H)
            for c in range(1, 4):
                prodG(base + c, H, ES(2 * c))
        elif aa < 8:
            base = 24 + 2 * (aa - 4)
            putG(base, H)
            prodG(base + 1, H, ES(4))
        else:
            putG(32 + (aa - 8), H)
        if aa < 16:
            nh = hreg[aa % 2]
            cmul(nh, H, 50)
            H = nh
        if aa == SIGPOS:
            lsk = a.newlabel('sk')
            a(f'''
            s_cmp_ge_u32 s20, 4
            s_cbranch_scc1 {lsk}
            ''')
            signal(M_CNT1, 1, lgkm=True)
            a.label(lsk)
            if not TAILST: stamp(a, 4)
    a(f'''
    s_lshl_b32 s4, s56, 2
    s_add_u32 s4, s4, {M_PAIR}
    v_mov_b32 v46, s4
    v_mov_b32 v47, 1
    s_waitcnt lgkmcnt(0)
    s_mov_b64 exec, 1
    ds_add_u32 v46, v47
    ''')
    spin('''
    ds_read_b32 v48, v46
    s_waitcnt lgkmcnt(0)
    v_cmp_le_u32 vcc, 2, v48
    ''')
    a('s_mov_b64 exec, -1')
    a('s_and_b32 s30, s20, 1')
    a(f's_branch {lmf}')
    a.label(lpf)
    signal(M_CNT1, 1)
    if not TAILST: stamp(a, 4)
    a('v_readfirstlane_b32 s101, v49')
    lnm = a.newlabel('notmaster')
    a(f'''
    s_cmp_lg_u32 s2, 0
    s_cbranch_scc1 {lnm}
    s_cmp_lg_u32 s20, 7
    s_cbranch_scc1 {lnm}
    ''')
    master1()
    a.label(lnm)
    if PF == 'late':
        prefetch()
    lk2 = a.newlabel('kdone'); lt67 = a.newlabel('t67')
    a('s_sub_u32 s5, s20, 6')
    a.label(lt67)
    a(f'''
    s_lshl_b32 s4, s5, 2
    s_add_u32 s4, s4, {M_PAIR}
    v_mov_b32 v46, s4
    s_mov_b32 s7, s5
    s_mov_b64 exec, 1
    ''')
    spin('''
    ds_read_b32 v48, v46
    s_waitcnt lgkmcnt(0)
    v_cmp_le_u32 vcc, 2, v48
    ''', slp=1)
    a('''
    s_mov_b64 exec, -1
    s_mov_b32 s56, s7
    s_mov_b32 s30, 2
    ''')
    a.label(lmf)
    a(f'''
    v_and_b32 v44, 15, v2
    v_lshrrev_b32 v45, 4, v2
    v_mul_u32_u24 v46, {KT_RS}, v44
    v_lshl_add_u32 v46, v45, 4, v46
    s_mov_b32 s4, s30
    s_mov_b32 s5, s56
    ''')
    ltask = a.newlabel('task')
    a.label(ltask)
    a(f'''
    s_mov_b32 s6, s4                       ; tile
    s_mul_i32 s8, s5, {KT_SZ}
    s_mul_i32 s9, s6, {16*KT_RS}
    s_add_u32 s9, s9, s8
    s_add_u32 s8, s8, {KT_E0*KT_RS}
    v_add_u32 v47, s9, v46
    v_add_u32 v48, s8, v46
    ''')
    for ks in range(8):
        a(f'ds_read_b128 v[{64+8*ks}:{67+8*ks}], v47 offset:{64*ks}')
        a(f'ds_read_b128 v[{68+8*ks}:{71+8*ks}], v48 offset:{64*ks}')
    lt2 = a.newlabel('t2'); lt1 = a.newlabel('t1'); lnext = a.newlabel('next')
    a(f'''
    s_mul_i32 s8, s5, {KC_SZ}
    s_add_u32 s8, s8, {L_KC + 16}
    s_cmp_eq_u32 s6, 2
    s_cbranch_scc1 {lt2}
    ''')
    for ks in range(8):
        a(f's_waitcnt lgkmcnt({14-2*ks})')
        c = '0' if ks == 0 else 'v[56:59]'
        a(f'v_mfma_f32_16x16x32_f16 v[56:59], v[{64+8*ks}:{67+8*ks}], v[{68+8*ks}:{71+8*ks}], {c}')
    a(f'''
    s_cmp_eq_u32 s6, 1
    s_cbranch_scc1 {lt1}
    v_lshrrev_b32 v49, 1, v45
    v_lshlrev_b32 v49, 8, v49
    v_lshl_add_u32 v49, v44, 4, v49
    v_and_b32 v50, 1, v45
    v_lshl_add_u32 v49, v50, 3, v49
    v_add_u32 v49, s8, v49
    s_nop 4
    v_cvt_pk_f16_f32 v60, v56, v57
    v_cvt_pk_f16_f32 v61, v58, v59
    ds_write_b64 v49, v[60:61]
    s_branch {lnext}
    ''')
    a.label(lt1)
    a(f'''
    v_lshlrev_b32 v49, 7, v45
    v_add_u32 v49, s8, v49
    v_lshl_add_u32 v50, v44, 3, v49
    v_add_u32 v50, 512, v50
    v_add_u32 v51, 4, v50
    v_lshl_add_u32 v52, v44, 2, v49
    v_add_u32 v52, 512, v52
    v_add_u32 v53, 64, v52
    v_cmp_gt_u32 vcc, 2, v45
    s_nop 1
    v_cndmask_b32 v50, v52, v50, vcc
    v_cndmask_b32 v51, v53, v51, vcc
    v_cvt_pk_f16_f32 v60, v56, v57
    v_cvt_pk_f16_f32 v61, v58, v59
    ds_write_b32 v50, v60
    ds_write_b32 v51, v61
    s_branch {lnext}
    ''')
    a.label(lt2)
    for ks in range(8):
        a(f's_waitcnt lgkmcnt({14-2*ks})')
        c = '0' if ks == 0 else 'v[56:59]'
        a(f'v_mfma_f32_16x16x32_f16 v[56:59], v[{68+8*ks}:{71+8*ks}], v[{64+8*ks}:{67+8*ks}], {c}')
    a(f'''
    v_lshlrev_b32 v49, 5, v44
    v_lshl_add_u32 v49, v45, 3, v49
    v_add_u32 v49, 1024, v49
    v_add_u32 v49, s8, v49
    v_cmp_gt_u32 vcc, 9, v44
    s_nop 4
    v_cvt_pk_f16_f32 v60, v56, v57
    v_cvt_pk_f16_f32 v61, v58, v59
    s_and_saveexec_b64 s[10:11], vcc
    ds_write_b64 v49, v[60:61]
    s_mov_b64 exec, s[10:11]
    ''')
    a.label(lnext)
    a(f'''
    s_cmp_lg_u32 s20, 6
    s_cbranch_scc1 {lk2}
    s_cmp_lg_u32 s5, 0
    s_cbranch_scc1 {lk2}
    s_mov_b32 s5, 2
    s_branch {lt67}
    ''')
    a.label(lk2)
    srd(a, 44, 70, 71, 1728 * 1280)
    a(f'''
    s_and_b32 s52, s2, 7
    s_mul_i32 s52, s52, 27
    s_lshr_b32 s53, s2, 3
    s_add_u32 s52, s52, s53                ; cb
    s_and_b32 s54, s20, 1
    s_cmp_eq_u32 s54, 0
    s_cselect_b32 s40, s66, s68
    s_cselect_b32 s41, s67, s69
    s_and_b32 s41, s41, 0xffff
    s_mov_b32 s42, {640*3456}
    s_mov_b32 s43, 0x00020000
    s_bfe_u32 s54, s20, 0x10001
    s_mul_i32 s54, s54, 320
    s_mul_i32 s12, s54, 3456
    s_lshl_b32 s55, s52, 4
    s_add_u32 s12, s12, s55
    s_mul_i32 s17, s52, {8*1280}
    s_lshl_b32 s55, s20, 8
    s_add_u32 s17, s17, s55
    s_cmp_lt_u32 s20, 5
    s_cselect_b32 s17, s17, 0x40000000
    s_cmp_lt_u32 s2, 216
    s_cselect_b32 s12, s12, 0x40000000
    s_cselect_b32 s17, s17, 0x40000000
    s_add_u32 s13, s12, {64*3456}
    s_add_u32 s14, s12, {128*3456}
    s_add_u32 s15, s12, {192*3456}
    s_add_u32 s16, s12, {256*3456}
    s_add_u32 s18, s17, {3*1280}
    s_add_u32 s19, s17, {6*1280}
    v_mul_u32_u24 v16, 3456, v2
    ''')
    WLG = [f'buffer_load_dwordx4 v[{VW+4*e}:{VW+4*e+3}], v16, s[40:43], s{12+e} offen' for e in range(5)]
    WLD = [f'buffer_load_dword v{VW+20+r}, v4, s[44:47], s{17 + r//3} offen offset:{1280*(r%3)}' for r in range(8)]
    WL = WLD
    lp1 = a.newlabel('p1'); lp0 = a.newlabel('p0')
    a(f'''
    s_cmp_eq_u32 s20, 7
    s_cbranch_scc1 {lp0}
    ''')
    if WPOS == 'B':
        for ins in WL:
            a(ins)
    if WLDPOS == 'B':
        for ins in WLD:
            a(ins)
    a(f's_branch {lp1}')
    a.label(lp0)
    lrd2 = a.newlabel('rdy2')
    a(f'''
    v_mov_b32 v46, 0
    s_cmp_lg_u32 s101, 0
    s_cbranch_scc1 {lrd2}
    ''')
    spin('''
    buffer_load_dword v49, v46, s[24:27], 0 offen sc1
    s_waitcnt vmcnt(0)
    v_cmp_ne_u32 vcc, 0, v49
    ''')
    a.label(lrd2)
    slave(WS_GO + 256)
    a.label(lp1)
    a(f'''
    v_lshlrev_b32 v6, 3, v0
    v_mov_b32 v18, 0
    s_lshl_b32 s4, s61, 1
    s_add_u32 s4, s4, s60
    s_lshl_b32 s4, s4, 4
    s_add_u32 s4, s4, {WS_U}
    s_waitcnt lgkmcnt(0)
    s_barrier
    buffer_load_dwordx4 v[8:11], v{VU}, s[32:35], s4 offen sc1
    buffer_load_dwordx4 v[12:15], v{VU+2}, s[32:35], s4 offen sc1
    ''')
    if not TAILST: stamp(a, 6)
    if PF == 'ug':
        srd(a, 36, 66, 67, 640 * 3456)
        a(f'''
        s_cmp_lt_u32 s20, 4
        s_cselect_b32 s36, s66, s68
        s_cselect_b32 s37, s67, s69
        s_and_b32 s37, s37, 0xffff
        s_and_b32 s4, s2, 7
        s_lshr_b32 s5, s2, 3
        s_mul_i32 s6, s4, 432
        s_mul_i32 s7, s5, {20*3456}
        s_add_u32 s6, s6, s7
        s_and_b32 s7, s20, 3
        s_mul_i32 s7, s7, {5*3456}
        s_add_u32 s6, s6, s7
        v_lshrrev_b32 v19, 5, v2
        v_mul_u32_u24 v19, 3456, v19
        v_and_b32 v20, 31, v2
        v_lshl_add_u32 v19, v20, 4, v19
        v_mov_b32 v21, {OOB:#x}
        v_cmp_gt_u32 vcc, 27, v20
        s_add_u32 s7, s6, {2*3456}
        s_add_u32 s8, s6, {4*3456}
        v_cndmask_b32 v19, v21, v19, vcc
        buffer_load_dwordx4 v[196:199], v19, s[36:39], s6 offen
        buffer_load_dwordx4 v[196:199], v19, s[36:39], s7 offen
        v_cmp_gt_u32 vcc, 27, v2
        s_mul_i32 s6, s4, 160
        s_mul_i32 s7, s5, {54*1280}
        v_cndmask_b32 v19, v21, v19, vcc
        buffer_load_dwordx4 v[196:199], v19, s[36:39], s8 offen
        s_add_u32 s6, s6, s7
        s_mul_i32 s7, s20, {7*1280}
        s_add_u32 s6, s6, s7
        v_mul_u32_u24 v19, 29, v2
        v_lshrrev_b32 v19, 8, v19
        v_mul_u32_u24 v20, 9, v19
        v_sub_u32 v20, v2, v20
        v_mul_u32_u24 v19, 1280, v19
        v_lshl_add_u32 v19, v20, 4, v19
        v_mul_u32_u24 v22, 20, v20
        v_lshrrev_b32 v22, 4, v22
        v_cmp_gt_u32 vcc, 63, v2
        s_nop 1
        v_cndmask_b32 v19, v21, v19, vcc
        buffer_load_dwordx4 v[196:199], v19, s[44:47], s6 offen
        ''')
    for c in range(3):
        r = 32 + 16 * c
        for dd in range(7):
            a(f'ds_read_u16 v{r+dd}, v{GA+dd} offset:{c*KC_SZ}')
    a('''
    v_cmp_gt_u32 vcc, 96, v0
    s_and_saveexec_b64 s[4:5], vcc
    ds_write_b32 v164, v18
    s_mov_b64 exec, s[4:5]
    ''')
    for c in range(3):
        r = 32 + 16 * c
        a(f's_waitcnt lgkmcnt({min(15, 7*(2-c) + 4*c)})')
        for i in range(6):
            a(f'v_lshl_or_b32 v{r+8+i}, v{r+i+1}, 16, v{r+i}')
        for s_ in range(4):
            off = c * CP_SZ + s_ * CS + 32
            a(f'v_add_u32 v7, {off}, v6')
            a(f'ds_write2_b32 v7, v{r+8+3-s_}, v{r+8+5-s_} offset0:0 offset1:1')
    a(f'''
    v_cmp_gt_u32 vcc, 256, v0
    s_waitcnt vmcnt({5 if PF == 'ug' else 1})
    ds_write_b32 v{VU+1}, v8
    ds_write_b32 v{VU+1}, v9 offset:{US}
    ds_write_b32 v{VU+1}, v10 offset:{2*US}
    ds_write_b32 v{VU+1}, v11 offset:{3*US}
    s_waitcnt vmcnt({4 if PF == 'ug' else 0})
    s_and_saveexec_b64 s[4:5], vcc
    ds_write_b32 v{VU+3}, v12
    ds_write_b32 v{VU+3}, v13 offset:{US}
    ds_write_b32 v{VU+3}, v14 offset:{2*US}
    ds_write_b32 v{VU+3}, v15 offset:{3*US}
    s_mov_b64 exec, s[4:5]
    ''')
    if WPOS == 'B':
        lw0 = a.newlabel('w0')
        a(f'''
        s_cmp_lg_u32 s20, 0
        s_cbranch_scc1 {lw0}
        ''')
        for ins in WL:
            a(ins)
        a.label(lw0)
    if WPOS == 'U':
        for ins in WL:
            a(ins)
    if PF == 'ug2':
        lnp = a.newlabel('np')
        a(f'''
        s_cmp_lt_u32 s20, 6
        s_cbranch_scc1 {lnp}
        s_mov_b32 s8, s40
        s_mov_b32 s9, s41
        ''')
        prefetch()
        a('''
        s_mov_b32 s40, s8
        s_mov_b32 s41, s9
        ''')
        a.label(lnp)
    zero_mailboxes()
    srd(a, 28, 64, 65, 1280)
    a('''
    buffer_load_dwordx4 v[160:163], v3, s[28:31], 0 offen
    buffer_load_dword v205, v4, s[28:31], 0 offen offset:1024
    ''')
    a(f'''
    v_lshrrev_b32 v8, 4, v2
    v_mul_u32_u24 v9, {CS}, v8
    v_bfe_u32 v10, v2, 2, 2
    v_and_b32 v11, 3, v2
    v_sub_u32 v10, v11, v10
    v_lshl_add_u32 v9, v10, 3, v9
    v_add_u32 v9, 32, v9
    v_mul_u32_u24 v10, {US}, v8
    v_and_b32 v11, 15, v2
    v_lshl_add_u32 v10, v11, 3, v10
    v_add_u32 v10, {L_UP+8}, v10
    v_lshlrev_b32 v12, 5, v11
    v_lshl_add_u32 v12, v8, 3, v12
    v_lshlrev_b32 v13, 4, v2
    v_mov_b32 v5, {M_SCALE}
    ds_read_b96 v[20:22], v5
    ''')
    ACC = 24
    for i in range(8, 32):
        a(f'v_mov_b32 v{ACC+i}, 0')
    a('''
    s_waitcnt lgkmcnt(0)
    s_barrier
    ''')
    for i in range(8):
        a(f'v_mov_b32 v{ACC+i}, 0')
    a('''
    v_readfirstlane_b32 s48, v20
    v_readfirstlane_b32 s49, v21
    v_readfirstlane_b32 s50, v22
    ''')
    stamp(a, 8)
    if CONVST: cstamp(a, 10)
    if PF == 'conv':
        lnp = a.newlabel('np')
        a(f'''
        s_cmp_lt_u32 s20, 6
        s_cbranch_scc1 {lnp}
        s_mov_b32 s8, s40
        s_mov_b32 s9, s41
        s_mov_b32 s10, s42
        ''')
        prefetch(152)
        a('''
        s_mov_b32 s40, s8
        s_mov_b32 s41, s9
        s_mov_b32 s42, s10
        ''')
        a.label(lnp)
    def loads(setbase, tiles_mx, cls_idx, va=14, vb=15):
        out = []
        for m in range(tiles_mx + 1):
            fa, fb = setbase[0] + 4 * m, setbase[1] + 4 * m
            oa = 512 * m + 64 * (3 - cls_idx)
            ob = 128 * m + 16 * cls_idx
            out.append(f'ds_read_b64_tr_b16 v[{fa}:{fa+1}], v{va} offset:{oa+32}')
            out.append(f'ds_read_b64_tr_b16 v[{fa+2}:{fa+3}], v{va} offset:{oa}')
            out.append(f'ds_read_b64 v[{fb}:{fb+1}], v{vb} offset:{ob}')
            out.append(f'ds_read_b64 v[{fb+2}:{fb+3}], v{vb} offset:{ob+8}')
        return out
    SETS = [(56, 88), (120, 216)]
    SACC = [196, 212, 152, 156, 164]
    def job(st, accmap, nload, nxt, extra, first=False, older=0):
        tiles = list(accmap)
        mx = max(tiles)
        mf = []
        for s in range(mx + 1):
            grp = []
            for (m, aa) in [(s, i) for i in range(s + 1)] + [(i, s) for i in range(s)]:
                c = m + aa
                if c in accmap:
                    r = accmap[c]
                    grp.append(f'v_mfma_f32_16x16x32_f16 v[{r}:{r+3}], v[{st[0]+4*m}:{st[0]+4*m+3}], v[{st[1]+4*aa}:{st[1]+4*aa+3}], v[{r}:{r+3}]')
            mf.append(grp)
        nmf = sum(len(g) for g in mf)
        per = 1 if nmf >= len(nxt) else 2
        wq = list(extra)
        wstep = max(1, nmf // (len(wq) + 1))
        k = 0; nm = 0
        for s_ in range(mx + 1):
            allowed = nload - 4 * (s_ + 1) + k
            if mf[s_]:
                a(f's_waitcnt lgkmcnt({min(15, allowed)})')
            for ins in mf[s_]:
                a(ins)
                nm += 1
                if wq and nm % wstep == 0:
                    a(wq.pop(0))
                if not first or s_ >= 2:
                    for _ in range(per):
                        if k < len(nxt):
                            a(nxt[k]); k += 1
        while k < len(nxt):
            a(nxt[k]); k += 1
        for ins in wq: a(ins)
    def epilogue(c, sreg_scale, sreg_out):
        r = ACC + 4 * c
        a(f'''
        v_fma_f32 v{r}, s{sreg_scale}, v{r}, 0
        v_fma_f32 v{r+1}, s{sreg_scale}, v{r+1}, 0
        v_fma_f32 v{r+2}, s{sreg_scale}, v{r+2}, 0
        v_fma_f32 v{r+3}, s{sreg_scale}, v{r+3}, 0
        v_cvt_pk_bf16_f32 v{r}, v{r}, v{r+1}
        v_cvt_pk_bf16_f32 v{r+1}, v{r+2}, v{r+3}
        v_xor_b32 v{r}, 0x80008000, v{r}
        v_xor_b32 v{r+1}, 0x80008000, v{r+1}
        buffer_store_dwordx2 v[{r}:{r+1}], v12, s[32:35], s{sreg_out} offen offset:{512*c} sc1
        ''')
    lS = a.newlabel('shared'); lcd = a.newlabel('convdone')
    FA = 56
    a(f'''
    s_cmp_ge_u32 s20, 4
    s_cbranch_scc1 {lS}
    s_lshr_b32 s4, s20, 1                  ; slot 0/1
    s_and_b32 s5, s20, 1
    s_lshl_b32 s6, s5, 2
    s_mul_i32 s7, s4, {CP_SZ}
    s_sub_u32 s8, 4, s6                    ; 7-(first+3)
    s_lshl_b32 s8, s8, 6
    s_add_u32 s7, s7, s8
    v_add_u32 v14, s7, v9
    s_mul_i32 s7, s4, {UP_SZ}
    s_lshl_b32 s8, s6, 4
    s_add_u32 s7, s7, s8
    v_add_u32 v15, s7, v10
    ''')
    for ins in loads(SETS[0], 7, 0):
        a(ins)
    a(f'''
    s_lshl_b32 s6, s20, 1
    s_sub_u32 s8, 4, s6
    s_lshl_b32 s8, s8, 6
    s_add_u32 s7, s8, {2*CP_SZ}
    v_add_u32 v22, s7, v9
    s_lshl_b32 s8, s6, 4
    s_add_u32 s7, s8, {2*UP_SZ}
    v_add_u32 v19, s7, v10
    s_lshl_b32 s11, s20, 10
    s_add_u32 s11, s11, {L_RED + 32768}
    v_add_u32 v20, s11, v13
    s_lshl_b32 s10, s20, 11
    s_add_u32 s10, s10, s3
    v_add_u32 v13, {L_RED}, v13
    v_lshlrev_b32 v18, 6, v11
    v_lshl_add_u32 v18, v8, 4, v18         ; 64n + 16q
    ''')
    for r in SACC:
        for e in range(4):
            a(f'v_mov_b32 v{r+e}, 0')
    main = {c: ACC + 4 * c for c in range(8)}
    for ci in range(4):
        nxt = loads(SETS[(ci + 1) % 2], 7, ci + 1) if ci < 3 else loads(SETS[0], 7, 0, 22, 19)
        ex = (WLD[:4] if ci == 1 else (WLD[4:] if ci == 2 else [])) if WLDPOS == 'conv' else []
        job(SETS[ci % 2], main, 32, nxt, ex, first=(ci == 0))
    lSo = a.newlabel('so'); lsd = a.newlabel('sd')
    a(f'''
    s_cmp_eq_u32 s61, 1
    s_cbranch_scc1 {lSo}
    ''')
    for par in range(2):
        tiles = [0, 1, 2, 3, 7] if par == 0 else [4, 5, 6]
        amap = {c: SACC[i] for i, c in enumerate(tiles)}
        if par == 1:
            a.label(lSo)
        job(SETS[0], amap, 32, loads(SETS[1], max(tiles), 1, 22, 19), [])
        job(SETS[1], amap, 4 * (max(tiles) + 1), [], [])
        a('s_nop 7')
        a('s_nop 1')
        for i, c in enumerate(tiles):
            a(f'ds_write_b128 v20, v[{SACC[i]}:{SACC[i]+3}] offset:{4096*i}')
        if par == 0:
            a(f's_branch {lsd}')
    a.label(lsd)
    stamp(a, 7)
    lws = [a.newlabel(f'rw{w}') for w in range(4)]
    a(f'''
    s_cmp_eq_u32 s20, 1
    s_cbranch_scc1 {lws[1]}
    s_cmp_eq_u32 s20, 2
    s_cbranch_scc1 {lws[2]}
    s_cmp_eq_u32 s20, 3
    s_cbranch_scc1 {lws[3]}
    ''')
    for w in range(4):
        a.label(lws[w])
        for c in range(8):
            if c >> 1 != w:
                a(f'ds_write_b128 v13, v[{ACC+4*c}:{ACC+4*c+3}] offset:{8192*w + 1024*c}')
        a('s_waitcnt vmcnt(8) lgkmcnt(0)' if WLDPOS == 'conv' else 's_waitcnt vmcnt(0) lgkmcnt(0)')
        a('s_barrier')
        if REDST: stamp(a, 5)
        others = [x for x in range(4) if x != w]
        partner = w ^ 1
        oth = [x for x in others if x != partner]
        for j in range(2):
            c = 2 * w + j
            for k, x in enumerate([partner] + oth):
                a(f'ds_read_b128 v[{FA+12*j+4*k}:{FA+12*j+4*k+3}], v13 offset:{8192*x + 1024*c}')
        for j in range(2):
            c = 2 * w + j
            own = ACC + 4 * c; f0 = FA + 12 * j
            a(f's_waitcnt lgkmcnt({3*(1-j)})')
            for e in range(4):
                a(f'v_add_f32 v{own+e}, v{own+e}, v{f0+e}')
                a(f'v_add_f32 v{f0+4+e}, v{f0+4+e}, v{f0+8+e}')
            ra, rb_ = (own, f0 + 4) if w < 2 else (f0 + 4, own)
            q = FA + 32 + 4 * j
            for e in range(4):
                a(f'v_fma_f32 v{ra+e}, s48, v{ra+e}, 0')
                a(f'v_fma_f32 v{rb_+e}, s49, v{rb_+e}, 0')
            a(f'''
            v_cvt_pk_bf16_f32 v{q}, v{ra}, v{ra+1}
            v_cvt_pk_bf16_f32 v{q+1}, v{ra+2}, v{ra+3}
            v_cvt_pk_bf16_f32 v{q+2}, v{rb_}, v{rb_+1}
            v_cvt_pk_bf16_f32 v{q+3}, v{rb_+2}, v{rb_+3}
            v_xor_b32 v{q}, 0x80008000, v{q}
            v_xor_b32 v{q+1}, 0x80008000, v{q+1}
            v_xor_b32 v{q+2}, 0x80008000, v{q+2}
            v_xor_b32 v{q+3}, 0x80008000, v{q+3}
            s_nop 0
            v_permlane16_swap_b32 v{q}, v{q+2}
            v_permlane16_swap_b32 v{q+1}, v{q+3}
            buffer_store_dwordx4 v[{q}:{q+3}], v18, s[32:35], s10 offen offset:{1024*j} sc1
            ''')
        a(f's_branch {lcd}')
    a.label(lS)
    lSo2 = a.newlabel('sharedodd')
    if PF == 'ug2':
        a('s_waitcnt vmcnt(0)')
    for ins in (WLD if WLDPOS == 'conv' else []) + WLG:
        a(ins)
    a(f'''
    s_sub_u32 s5, s20, 4                   ; ww
    s_mov_b32 s10, s100
    v_add_u32 v13, {L_RED + 32768}, v13
    s_waitcnt vmcnt({13 if WLDPOS == 'conv' else 5})
    s_barrier
    s_cmp_eq_u32 s61, 1
    s_cbranch_scc1 {lSo2}
    ''')
    for par in range(2):
        tiles = [0, 1, 2, 3, 7] if par == 0 else [4, 5, 6]
        if par == 1:
            a.label(lSo2)
        for ww in range(4):
            lnx = a.newlabel('nx')
            a(f's_cmp_lg_u32 s5, {ww}')
            a(f's_cbranch_scc1 {lnx}')
            for i, c in enumerate(tiles):
                if i % 4 != ww: continue
                for k in range(4):
                    a(f'ds_read_b128 v[{FA+4*k}:{FA+4*k+3}], v13 offset:{4096*i + 1024*k}')
                a('s_waitcnt lgkmcnt(0)')
                for e in range(4):
                    a(f'v_add_f32 v{FA+e}, v{FA+e}, v{FA+4+e}')
                    a(f'v_add_f32 v{FA+8+e}, v{FA+8+e}, v{FA+12+e}')
                    a(f'v_add_f32 v{ACC+4*c+e}, v{FA+e}, v{FA+8+e}')
                epilogue(c, 50, 10)
            a(f's_branch {lcd}')
            a.label(lnx)
        a(f's_branch {lcd}')
    a.label(lcd)
    if PRIO: a('s_setprio 0')
    stamp(a, 9)
    srd(a, 36, 72, 73, 2621440)
    lg = a.newlabel('g'); lg1 = a.newlabel('g1'); lg2 = a.newlabel('g2'); lgo = a.newlabel('go')
    a(f'''
    v_lshrrev_b32 v7, 1, v0
    v_lshlrev_b32 v5, 13, v7
    v_and_b32 v6, 1, v0
    v_lshl_add_u32 v5, v6, 4, v5
    v_lshrrev_b32 v33, 2, v0
    v_mul_u32_u24 v33, 5, v33
    v_add_u32 v6, v6, v33
    v_and_b32 v7, 1, v7
    v_mul_u32_u24 v7, 3, v7
    v_add_u32 v6, v6, v7
    v_lshlrev_b32 v6, 2, v6
    v_lshlrev_b32 v7, 12, v0
    v_mul_u32_u24 v33, 20, v0
    v_add_u32 v33, 8, v33
    s_lshl_b32 s48, s21, 5
    s_add_u32 s48, s48, {WS_YT}
    s_lshl_b32 s49, s21, 4
    s_add_u32 s49, s49, {WS_YS}
    v_cmp_gt_u32 vcc, 128, v0
    s_mov_b64 s[6:7], -1
    s_mov_b64 s[8:9], vcc
    s_mov_b32 s4, 0
    ''')
    a.label(lg)
    a(f'''
    s_mov_b64 exec, s[6:7]
    s_cbranch_execz {lg1}
    buffer_load_dwordx4 v[8:11], v5, s[32:35], s48 offen sc1
    ''')
    a.label(lg1)
    a(f'''
    s_mov_b64 exec, s[8:9]
    s_cbranch_execz {lg2}
    buffer_load_dwordx4 v[12:15], v7, s[32:35], s49 offen sc1
    ''')
    a.label(lg2)
    a(f'''
    s_mov_b64 exec, -1
    s_add_u32 s4, s4, 1
    s_waitcnt vmcnt(0)
    v_min_u32 v36, v8, v9
    v_min3_u32 v36, v36, v10, v11
    v_min_u32 v37, v12, v13
    v_min3_u32 v37, v37, v14, v15
    v_cmp_eq_u32 vcc, 0, v36
    v_cmp_eq_u32 s[10:11], 0, v37
    s_and_b64 s[6:7], s[6:7], vcc
    s_and_b64 s[8:9], s[8:9], s[10:11]
    s_cmp_ge_u32 s4, {SPIN_MAX}
    s_cbranch_scc1 {lgo}
    s_or_b64 s[10:11], s[6:7], s[8:9]
    s_cbranch_scc1 {lg}
    ''')
    a.label(lgo)
    stamp(a, 3)
    if STAMPS:
        a('s_mov_b32 s78, s4')
    a(f'''
    v_cmp_gt_u32 vcc, 128, v0
    ds_write2st64_b32 v6, v8, v9 offset0:0 offset1:10
    ds_write2st64_b32 v6, v10, v11 offset0:20 offset1:30
    s_and_saveexec_b64 s[42:43], vcc
    ds_write2st64_b32 v33, v12, v13 offset0:0 offset1:10
    ds_write2st64_b32 v33, v14, v15 offset0:20 offset1:30
    s_mov_b64 exec, s[42:43]
    s_lshr_b32 s44, s20, 1
    s_mul_i32 s44, s44, 2560
    v_lshlrev_b32 v7, 5, v2
    v_add_u32 v7, s44, v7
    v_lshlrev_b32 v33, 3, v2
    v_add_u32 v33, s44, v33
    s_and_b32 s45, s20, 1
    s_mul_i32 s45, s45, 0x02020000
    s_add_u32 s45, s45, 0x01000c0c
    ''')
    XR = 40; T = 50; W = 60; H = 70
    for i in range(4):
        unpack(a, VX + i, XR + 2 * i, XR + 2 * i + 1)
        unpack(a, VT + i, T + 2 * i, T + 2 * i + 1)
        unpack(a, 160 + i, W + 2 * i, W + 2 * i + 1)
    unpack(a, VX + 4, XR + 8, XR + 9)
    unpack(a, VT + 4, T + 8, T + 9)
    unpack(a, 205, W + 8, W + 9)
    a(f'''
    s_waitcnt lgkmcnt(0)
    s_barrier
    ds_read_b128 v[8:11], v7
    ds_read_b128 v[12:15], v7 offset:16
    ds_read_b64 v[34:35], v33 offset:2048
    ''')
    if not CONVST: stamp(a, 10)
    X = XR
    a('s_waitcnt lgkmcnt(0)')
    ysrc = list(range(8, 16)) + [34, 35]
    for i in range(10):
        a(f'v_perm_b32 v{ysrc[i]}, v{ysrc[i]}, v{ysrc[i]}, s45')
    for p in range(5):
        i0, i1 = 2 * p, 2 * p + 1
        a(f'''
        v_sub_f32 v{T+i0}, v{T+i0}, v{ysrc[i0]}
        v_sub_f32 v{T+i1}, v{T+i1}, v{ysrc[i1]}
        v_cvt_pk_bf16_f32 v36, v{T+i0}, v{T+i1}
        v_lshlrev_b32 v{T+i0}, 16, v36
        v_and_b32 v{T+i1}, 0xffff0000, v36
        v_add_f32 v{T+i0}, v{X+i0}, v{T+i0}
        v_add_f32 v{T+i1}, v{X+i1}, v{T+i1}
        v_cvt_pk_bf16_f32 v36, v{T+i0}, v{T+i1}
        v_lshlrev_b32 v{H+i0}, 16, v36
        v_and_b32 v{H+i1}, 0xffff0000, v36
        ''')
    ln_stats(a, H, X, 36, 21, 37, 38, 39, 46, 47, 48)
    a('v_mov_b32 v36, 0')
    a('v_mov_b32 v21, 0')
    for p in range(5):
        i0, i1 = 2 * p, 2 * p + 1
        a(f'''
        v_sub_f32 v{X+i0}, v{H+i0}, v37
        v_sub_f32 v{X+i1}, v{H+i1}, v37
        v_cvt_pk_bf16_f32 v39, v{X+i0}, v{X+i1}
        v_lshlrev_b32 v{X+i0}, 16, v39
        v_and_b32 v{X+i1}, 0xffff0000, v39
        v_mul_f32 v{X+i0}, v{X+i0}, v38
        v_mul_f32 v{X+i1}, v{X+i1}, v38
        v_cvt_pk_bf16_f32 v39, v{X+i0}, v{X+i1}
        v_lshlrev_b32 v{X+i0}, 16, v39
        v_and_b32 v{X+i1}, 0xffff0000, v39
        v_fmac_f32 v36, v{X+i0}, v{W+i0}
        v_fmac_f32 v21, v{X+i1}, v{W+i1}
        ''')
    a('v_add_f32 v36, v36, v21')
    wave_reduce(a, 'v_add_f32', 36)
    a(f'''
    v_cvt_pk_bf16_f32 v36, v36, v36
    v_and_b32 v36, 0xffff, v36
    v_xor_b32 v37, 0xffff, v36
    v_or_b32 v38, 0x8000, v36
    v_cmp_lt_u32 vcc, 0x7fff, v36
    s_sub_u32 s46, 4095, s22
    s_lshl_b32 s49, s20, 2
    v_cndmask_b32 v36, v38, v37, vcc
    v_lshl_or_b32 v36, v36, 16, s46
    s_add_u32 s49, s49, {M_KEYS}
    v_mov_b32 v37, s49
    v_readlane_b32 s48, v36, 63
    s_nop 1
    v_mov_b32 v38, s48
    ds_write_b32 v37, v38
    ''')
    for p in range(5):
        i0, i1 = 2 * p, 2 * p + 1
        a(f'''
        v_add_f32 v{T+i0}, v{H+i0}, v{X+i0}
        v_add_f32 v{T+i1}, v{H+i1}, v{X+i1}
        v_cvt_pk_bf16_f32 v{92+p}, v{T+i0}, v{T+i1}
        ''')
    lnb = a.newlabel('notbest'); lpoll = a.newlabel('poll'); lb2 = a.newlabel('b2')
    a(f'''
    v_and_b32 v37, 7, v2
    v_lshlrev_b32 v37, 2, v37
    v_add_u32 v37, {M_KEYS}, v37
    s_waitcnt lgkmcnt(0)
    s_barrier
    ds_read_b32 v38, v37
    s_waitcnt lgkmcnt(0)
    s_nop 1
    v_max_u32_dpp v38, v38, v38 quad_perm:[1,0,3,2] row_mask:0xf bank_mask:0xf
    s_nop 1
    v_max_u32_dpp v38, v38, v38 quad_perm:[2,3,0,1] row_mask:0xf bank_mask:0xf
    s_nop 1
    v_max_u32_dpp v38, v38, v38 row_half_mirror row_mask:0xf bank_mask:0xf
    s_nop 0
    v_readfirstlane_b32 s50, v38
    s_cmp_lg_u32 s50, s48
    s_cbranch_scc1 {lnb}
    s_lshl_b32 s51, s21, 4
    s_add_u32 s51, s51, {WS_KEY}
    v_mov_b32 v37, 0
    s_mov_b64 exec, 1
    buffer_store_dword v38, v37, s[32:35], s51 offen sc1
    s_mov_b64 exec, -1
    ''')
    for i in range(10):
        a(f'v_or_b32 v{X+i}, 1, v{X+i}')
        a(f'v_or_b32 v{H+i}, 1, v{H+i}')
    a(f'''
    s_mul_i32 s51, s21, 5120
    s_add_u32 s51, s51, {WS_CAND}
    v_lshlrev_b32 v37, 5, v2
    v_lshlrev_b32 v39, 3, v2
    buffer_store_dwordx4 v[{X}:{X+3}], v37, s[32:35], s51 offen sc1
    buffer_store_dwordx4 v[{X+4}:{X+7}], v37, s[32:35], s51 offen offset:16 sc1
    buffer_store_dwordx2 v[{X+8}:{X+9}], v39, s[32:35], s51 offen offset:2048 sc1
    s_add_u32 s51, s51, 2560
    buffer_store_dwordx4 v[{H}:{H+3}], v37, s[32:35], s51 offen sc1
    buffer_store_dwordx4 v[{H+4}:{H+7}], v37, s[32:35], s51 offen offset:16 sc1
    buffer_store_dwordx2 v[{H+8}:{H+9}], v39, s[32:35], s51 offen offset:2048 sc1
    s_branch {lpoll}
    ''')
    a.label(lnb)
    a('''
    buffer_store_dwordx4 v[92:95], v3, s[36:39], s23 offen OUTFLAG
    buffer_store_dword v96, v4, s[36:39], s23 offen offset:1024 OUTFLAG
    ''')
    a.label(lpoll)
    if TAILST and not CONVST: stamp(a, 2)
    UW = 100
    lks = a.newlabel('kslave'); lkd = a.newlabel('kd'); lu3 = a.newlabel('u3')
    for i in range(28):
        unpack(a, VW + i, UW + 2 * i, UW + 2 * i + 1)
    latt = a.newlabel('attempt'); lpost = a.newlabel('post'); lgb = a.newlabel('gb')
    a('''
    s_mov_b32 s58, s48
    s_mov_b32 s59, s50
    s_mov_b32 s56, 0
    ''')
    a.label(latt)
    a(f'''
    s_cmp_lg_u32 s20, 0
    s_cbranch_scc1 {lb2}
    s_cmp_lg_u32 s2, 255
    s_cbranch_scc1 {lks}
    ''')
    lm = a.newlabel('m'); lmo = a.newlabel('mo'); lmn = a.newlabel('mn')
    a(f'''
    s_mov_b32 s5, {WS_KEY}
    s_mov_b32 s6, {WS_KEY + 2048}
    s_mov_b32 s4, 0
    s_mov_b32 s7, 0
    v_lshlrev_b32 v14, 12, v2
    s_mov_b32 s9, {WS_GO + 128}
    ''')
    a.label(lm)
    a(f'''
    buffer_load_dword v8, v3, s[32:35], s5 offen sc1
    buffer_load_dword v9, v3, s[32:35], s5 offen offset:1024 sc1
    buffer_load_dword v10, v3, s[32:35], s6 offen sc1
    buffer_load_dword v11, v3, s[32:35], s6 offen offset:1024 sc1
    s_add_u32 s4, s4, 1
    s_waitcnt vmcnt(0)
    v_cmp_ne_u32 vcc, 0, v8
    v_cmp_ne_u32 s[10:11], 0, v9
    s_bcnt1_i32_b64 s8, vcc
    s_bcnt1_i32_b64 s12, s[10:11]
    v_cmp_ne_u32 vcc, 0, v10
    v_cmp_ne_u32 s[10:11], 0, v11
    s_add_u32 s8, s8, s12
    s_bcnt1_i32_b64 s12, vcc
    s_add_u32 s8, s8, s12
    s_bcnt1_i32_b64 s12, s[10:11]
    s_add_u32 s8, s8, s12
    s_cmp_ge_u32 s4, {SPIN_MAX}
    s_cselect_b32 s8, 256, s8
    s_cmp_lt_u32 s8, {SPEC_TH}
    s_cbranch_scc1 {lm}
    s_cmp_eq_u32 s8, 256
    s_cbranch_scc1 {lmn}
    s_cmp_lg_u32 s7, 0
    s_cbranch_scc1 {lm}
    ''')
    a.label(lmn)
    a('''
    v_max_u32 v12, v8, v9
    v_max3_u32 v12, v12, v10, v11
    ''')
    wave_reduce(a, 'v_max_u32', 12)
    a(f'''
    s_nop 0
    v_readlane_b32 s12, v12, 63
    s_cmp_eq_u32 s7, 0
    s_cselect_b32 s7, s12, s7
    s_cmp_eq_u32 s8, 256
    s_cselect_b32 s12, s12, 0
    v_mov_b32 v8, s7
    v_mov_b32 v9, s12
    s_mov_b64 exec, {(1<<NREP)-1:#x}
    buffer_store_dwordx2 v[8:9], v14, s[32:35], s9 offen sc1
    s_mov_b64 exec, -1
    s_cmp_eq_u32 s8, 256
    s_cbranch_scc0 {lm}
    s_branch {lkd}
    ''')
    a.label(lks)
    a(f'''
    s_and_b32 s5, s2, {NREP-1}
    s_lshl_b32 s5, s5, 12
    s_add_u32 s5, s5, {WS_GO + 128}
    v_mov_b32 v46, 0
    s_cmp_lt_u32 s2, 216
    s_cselect_b32 s6, -1, 0
    s_cmp_eq_u32 s56, 0
    s_cselect_b32 s6, s6, 0
    ''')
    spin('''
    buffer_load_dwordx2 v[8:9], v46, s[32:35], s5 offen sc1
    s_waitcnt vmcnt(0)
    v_and_b32 v10, s6, v8
    v_or_b32 v10, v10, v9
    v_cmp_ne_u32 vcc, 0, v10
    ''')
    a.label(lkd)
    a(f'''
    v_mov_b32 v10, {M_GKEY}
    s_mov_b64 exec, 1
    ds_write_b64 v10, v[8:9]
    s_mov_b64 exec, -1
    s_waitcnt lgkmcnt(0)
    ''')
    a.label(lb2)
    lw = a.newlabel('iswin'); ldown = a.newlabel('down')
    a(f'''
    s_barrier
    v_mov_b32 v10, {M_GKEY}
    ds_read_b64 v[8:9], v10
    s_waitcnt lgkmcnt(0)
    v_readfirstlane_b32 s57, v8            ; p
    v_readfirstlane_b32 s44, v9            ; f
    s_cmp_eq_u32 s44, 0
    s_cbranch_scc1 {lw}
    s_cmp_lg_u32 s59, s58
    s_cbranch_scc1 {lw}
    s_cmp_eq_u32 s44, s58
    s_cbranch_scc1 {lw}
    buffer_store_dwordx4 v[92:95], v3, s[36:39], s23 offen OUTFLAG
    buffer_store_dword v96, v4, s[36:39], s23 offen offset:1024 OUTFLAG
    ''')
    a.label(lw)
    if TAILST and not CONVST: stamp(a, 4)
    a(f'''
    s_mov_b32 s51, s44
    s_cmp_eq_u32 s44, 0
    s_cselect_b32 s44, s57, s44
    s_cmp_eq_u32 s44, s56
    s_cbranch_scc1 {end}
    s_mov_b32 s56, s44
    s_cmp_eq_u32 s44, s57
    s_cselect_b32 s19, 0, {SET1}
    s_and_b32 s45, s44, 0x7ff
    s_sub_u32 s45, 2047, s45
    s_lshr_b32 s46, s45, 3
    s_mul_i32 s46, s46, 5120
    s_add_u32 s46, s46, {WS_CAND}
    s_cmp_ge_u32 s2, 216
    s_cbranch_scc1 {ldown}
    ; ---- G (waves 4-7) ----
    s_cmp_lt_u32 s20, 4
    s_cbranch_scc1 {lgb}
    s_lshl_b32 s47, s54, 2
    s_add_u32 s47, s47, s46
    ''')
    spin('''
    buffer_load_dword v12, v4, s[32:35], s47 offen sc1
    buffer_load_dword v13, v4, s[32:35], s47 offen offset:256 sc1
    buffer_load_dword v14, v4, s[32:35], s47 offen offset:512 sc1
    buffer_load_dword v15, v4, s[32:35], s47 offen offset:768 sc1
    buffer_load_dword v16, v4, s[32:35], s47 offen offset:1024 sc1
    s_waitcnt vmcnt(0)
    v_and_b32 v17, v12, v13
    v_and_b32 v18, v14, v15
    v_and_b32 v17, v17, v16
    v_and_b32 v17, v17, v18
    v_and_b32 v17, 1, v17
    v_cmp_ne_u32 vcc, 0, v17
    ''')
    if TAILST and not CONVST: stamp(a, 6)
    for i in range(12, 17):
        a(f'v_and_b32 v{i}, 0xffff0000, v{i}')
    R = 40
    for e in range(5):
        for i in range(8):
            op = 'v_mul_f32' if e == 0 else 'v_fmac_f32'
            a(f'{op} v{R+i}, v{12+e}, v{UW+8*e+i}')
    reduceN(a, R, 8)
    a(f'''
    v_lshrrev_b32 v6, 4, v2
    v_lshlrev_b32 v6, 3, v6
    s_lshl_b32 s47, s20, 5
    s_add_u32 s47, s47, {M_P1 - 128}
    v_add_u32 v6, s47, v6
    s_mov_b32 exec_lo, 0x00010001
    s_mov_b32 exec_hi, 0x00010001
    ds_write_b64 v6, v[{R}:{R+1}]
    s_mov_b64 exec, -1
    s_waitcnt lgkmcnt(0)
    ''')
    a.label(lgb)
    a(f'''
    s_barrier
    s_cmp_ge_u32 s20, 5
    s_cbranch_scc1 {lpost}
    v_and_b32 v6, 7, v2
    v_lshlrev_b32 v6, 2, v6
    v_add_u32 v6, {M_P1}, v6
    ds_read_b32 v8, v6
    ds_read_b32 v9, v6 offset:64
    ds_read_b32 v12, v6 offset:32
    ds_read_b32 v13, v6 offset:96
    s_mul_i32 s47, s2, 2560
    s_lshl_b32 s48, s20, 9
    s_add_u32 s47, s47, s48
    s_add_u32 s47, s47, {WS_YP}
    s_add_u32 s47, s47, s19
    v_lshlrev_b32 v5, 3, v2
    s_waitcnt lgkmcnt(0)
    v_add_f32 v8, v8, v9
    v_add_f32 v12, v12, v13
    ''')
    round_bf16(a, 8, 9)
    round_bf16(a, 12, 9)
    a(f'''
    v_mul_f32 v9, {fbits(-LOG2E):#x}, v8
    v_exp_f32 v9, v9
    s_nop 0
    v_add_f32 v9, 1.0, v9
    v_rcp_f32 v9, v9
    s_nop 0
    v_mul_f32 v8, v8, v9
    ''')
    round_bf16(a, 8, 9)
    a('v_mul_f32 v8, v8, v12')
    round_bf16(a, 8, 9)
    a('s_nop 0')
    for r in range(8):
        a(f'v_readlane_b32 s{4+r}, v8, {r}')
    a('s_nop 1')
    for r in range(8):
        op = 'v_mul_f32' if r == 0 else 'v_fmac_f32'
        a(f'{op} v10, s{4+r}, v{UW+40+2*r}')
        a(f'{op} v11, s{4+r}, v{UW+41+2*r}')
    a(f'''
    v_or_b32 v10, 1, v10
    v_or_b32 v11, 1, v11
    buffer_store_dwordx2 v[10:11], v5, s[32:35], s47 offen sc1
    ''')
    if not CONVST and not REDST: stamp(a, 5)
    a.label(lpost)
    a(f'''
    s_cmp_eq_u32 s51, 0
    s_cbranch_scc1 {latt}
    s_branch {end}
    ''')
    a.label(ldown)
    a(f'''
    s_sub_u32 s53, s2, 216
    v_lshrrev_b32 v5, 2, v0
    v_mul_u32_u24 v5, 2560, v5
    v_and_b32 v6, 3, v0
    v_lshl_add_u32 v5, v6, 4, v5
    v_mov_b32 v7, {OOB:#x}
    v_cmp_gt_u32 vcc, 352, v0
    v_mov_b32 v8, 1
    s_lshl_b32 s47, s53, 6
    v_cndmask_b32 v6, v7, v5, vcc
    v_cndmask_b32 v7, v8, 0, vcc
    s_add_u32 s55, s47, s46
    s_add_u32 s47, s47, {WS_YP}
    s_add_u32 s47, s47, s19
    s_add_u32 s48, s47, {128*2560}
    v_and_b32 v22, 15, v2
    v_lshlrev_b32 v22, 2, v22
    ''')
    spin('''
    buffer_load_dword v20, v22, s[32:35], s55 offen sc1
    buffer_load_dword v21, v22, s[32:35], s55 offen offset:2560 sc1
    s_waitcnt vmcnt(0)
    v_and_b32 v16, v20, v21
    v_and_b32 v16, 1, v16
    v_cmp_ne_u32 vcc, 0, v16
    ''')
    lf = a.newlabel('f'); lf1 = a.newlabel('f1'); lf2 = a.newlabel('f2'); lfo = a.newlabel('fo')
    a(f'''
    v_mov_b32 v12, 0
    v_mov_b32 v13, 0
    v_mov_b32 v14, 0
    v_mov_b32 v15, 0
    v_cmp_gt_u32 vcc, 352, v0
    s_mov_b64 s[6:7], -1
    s_mov_b64 s[8:9], vcc
    s_mov_b32 s4, 0
    ''')
    a.label(lf)
    a(f'''
    s_mov_b64 exec, s[6:7]
    s_cbranch_execz {lf1}
    buffer_load_dwordx4 v[8:11], v5, s[32:35], s47 offen sc1
    ''')
    a.label(lf1)
    a(f'''
    s_mov_b64 exec, s[8:9]
    s_cbranch_execz {lf2}
    buffer_load_dwordx4 v[12:15], v5, s[32:35], s48 offen sc1
    ''')
    a.label(lf2)
    a(f'''
    s_mov_b64 exec, -1
    s_add_u32 s4, s4, 1
    s_waitcnt vmcnt(0)
    v_and_b32 v16, v8, v9
    v_and_b32 v17, v10, v11
    v_and_b32 v18, v12, v13
    v_and_b32 v19, v14, v15
    v_and_b32 v16, v16, v17
    v_and_b32 v18, v18, v19
    v_and_b32 v16, 1, v16
    v_and_b32 v18, 1, v18
    v_cmp_eq_u32 vcc, 0, v16
    v_cmp_eq_u32 s[10:11], 0, v18
    s_and_b64 s[6:7], s[6:7], vcc
    s_and_b64 s[8:9], s[8:9], s[10:11]
    s_cmp_ge_u32 s4, {SPIN_MAX}
    s_cbranch_scc1 {lfo}
    s_or_b64 s[10:11], s[6:7], s[8:9]
    s_cbranch_scc1 {lf}
    ''')
    a.label(lfo)
    a(f'''
    v_add_f32 v8, v8, v12
    v_add_f32 v9, v9, v13
    v_add_f32 v10, v10, v14
    v_add_f32 v11, v11, v15
    v_and_b32 v20, 0xffff0000, v20
    v_and_b32 v21, 0xffff0000, v21
    v_permlane32_swap_b32 v8, v10
    v_permlane32_swap_b32 v9, v11
    v_add_f32 v8, v8, v10
    v_add_f32 v9, v9, v11
    s_nop 1
    v_permlane16_swap_b32 v8, v9
    v_add_f32 v8, v8, v9
    s_nop 1
    v_add_f32_dpp v8, v8, v8 row_ror:4 row_mask:0xf bank_mask:0xf
    s_nop 1
    v_add_f32_dpp v8, v8, v8 row_ror:8 row_mask:0xf bank_mask:0xf
    v_and_b32 v7, 3, v2
    v_lshlrev_b32 v7, 4, v7
    v_lshrrev_b32 v9, 4, v2
    v_lshl_add_u32 v7, v9, 2, v7
    s_lshl_b32 s47, s20, 6
    s_add_u32 s47, s47, {M_P2}
    v_add_u32 v7, s47, v7
    s_mov_b32 exec_lo, 0x000f000f
    s_mov_b32 exec_hi, 0x000f000f
    ds_write_b32 v7, v8
    s_mov_b64 exec, -1
    s_waitcnt lgkmcnt(0)
    s_barrier
    s_cmp_lg_u32 s20, 0
    s_cbranch_scc1 {end}
    v_add_u32 v6, {M_P2}, v22
    ds_read_b32 v8, v6
    ds_read_b32 v9, v6 offset:64
    ds_read_b32 v10, v6 offset:128
    ds_read_b32 v11, v6 offset:192
    ds_read_b32 v12, v6 offset:256
    ds_read_b32 v13, v6 offset:320
    ds_read_b32 v14, v6 offset:384
    ds_read_b32 v15, v6 offset:448
    s_lshr_b32 s48, s44, 16
    s_xor_b32 s49, s48, 0xffff
    s_and_b32 s50, s48, 0x7fff
    s_cmp_ge_u32 s48, 0x8000
    s_cselect_b32 s48, s50, s49
    s_lshl_b32 s48, s48, 16
    v_mov_b32 v18, s48
    v_mul_f32 v18, {fbits(-LOG2E):#x}, v18
    v_exp_f32 v18, v18
    s_nop 0
    v_add_f32 v18, 1.0, v18
    v_rcp_f32 v18, v18
    s_waitcnt lgkmcnt(0)
    v_add_f32 v8, v8, v9
    v_add_f32 v10, v10, v11
    v_add_f32 v12, v12, v13
    v_add_f32 v14, v14, v15
    v_add_f32 v8, v8, v10
    v_add_f32 v12, v12, v14
    v_add_f32 v8, v8, v12
    ''')
    round_bf16(a, 8, 9)
    round_bf16(a, 18, 9)
    a('v_mul_f32 v8, v8, v18')
    round_bf16(a, 8, 9)
    a('v_add_f32 v8, v20, v8')
    round_bf16(a, 8, 9)
    a(f'''
    v_add_f32 v8, v21, v8
    v_cvt_pk_bf16_f32 v8, v8, v8
    s_mul_i32 s45, s45, 1280
    s_lshl_b32 s47, s53, 5
    s_add_u32 s45, s45, s47
    v_lshlrev_b32 v7, 1, v2
    s_mov_b64 exec, 0xffff
    buffer_store_short v8, v7, s[36:39], s45 offen
    s_mov_b64 exec, -1
    ''')
    a.label(end)
    stamp_flush(a)
    a.label(end + 'x')
    a('s_endpgm')

def main():
    global STAMPS
    global PF
    if len(sys.argv) > 2 and sys.argv[2] == 'stamps': STAMPS = True
    global WPOS, TAILST, OUTF
    import os
    OUTF = os.environ.get('OUTF', OUTF)
    global PRIO, CONVST, SPEC_TH, REDST
    REDST = bool(os.environ.get('REDST'))
    global WLDPOS
    WLDPOS = os.environ.get('WLDPOS', WLDPOS)
    PF = os.environ.get('PF', PF)
    SPEC_TH = int(os.environ.get('SPEC_TH', SPEC_TH))
    CONVST = bool(os.environ.get('CONVST'))
    PRIO = int(os.environ.get('PRIO', PRIO))
    if len(sys.argv) > 4: TAILST = True
    if len(sys.argv) > 3: WPOS = sys.argv[3]
    a = A()
    gen(a)
    hdr = f'; @launch grid=(256,1,1) block=(512,1,1) lds={LDS_TOTAL}\n'
    hdr += """; Single persistent kernel, 256 workgroups x 8 waves (one per CU). Generated by a hand-written script. Phases:
;  1. LN1 of 8 rows per workgroup -> u (f16) handed over through d_ws (write-through stores, flag words, master + go word)
;  3. causal convolution as block-Toeplitz f16 MFMA (transposing LDS reads build the Toeplitz fragments)
"""
    hdr += '.amdgcn_target "amdgcn-amd-amdhsa--gfx950"\n.text\n'
    out = hdr + a.text().replace('OUTFLAG', OUTF) + f'''.section .rodata,"a"
.p2align 6
.amdhsa_kernel {KNAME}
  .amdhsa_next_free_vgpr 248
  .amdhsa_next_free_sgpr 102
  .amdhsa_accum_offset 248
  .amdhsa_group_segment_fixed_size 0
  .amdhsa_kernarg_size 120
  .amdhsa_user_sgpr_count 2
  .amdhsa_user_sgpr_kernarg_segment_ptr 1
  .amdhsa_system_sgpr_workgroup_id_x 1
.end_amdhsa_kernel
'''
    path = sys.argv[1] if len(sys.argv) > 1 else f'cdna_kernels/{NAME}.s'
    open(path, 'w').write(out)
    print('wrote', path, len(out))

if __name__ == '__main__':
    main()
```

```python
import struct, sys

NAME = 'sequential_preLN__ssm_conv_s4d__moe_arch_mod__prompt'
KNAME = NAME + '_kernel'

WS_U = 0x000000
WS_YS = 0x480000
WS_YT = 0x280000
WS_CAND = 0x520000
WS_KEY = 0x500000
WS_FLAG2 = 0x501000
WS_FLAG1 = 0x502000
WS_GO = 0x508000
WS_PART = 0x6A0000
WS_YP = 0x6C0000
WS_ACT = 0x504000
WS_STAMP = 0xE00000
WS_SIZE = 0x1000000
NREP = 8
SPIN_MAX = 1 << 18
OOB = 0x7ffffff0
STAMPS = False
TAILST = False
CONVST = False
REDST = False
WARM = True
PF = 'ug2'
SIGPOS = 2
WPOS = 'conv'
CODEPF = True
SPEC_TH = 176
WLDPOS = 'B'
SET1 = 0x100000
OUTF = 'nt'
WSH = 21
PRIO = 0

def fbits(x):
    return struct.unpack('<I', struct.pack('<f', x))[0]

LOG2E = 1.4426950408889634
LOG2E_HI = struct.unpack('<f', struct.pack('<f', LOG2E))[0]
LOG2E_LO = LOG2E - LOG2E_HI
LN2 = 0.6931471805599453
INV2PI = 0.15915494309189535

class A:
    def __init__(self):
        self.L = []
        self.uid = 0
    def __call__(self, s):
        for line in s.strip('\n').split('\n'):
            if line.strip():
                self.L.append('    ' + line.strip())
    def label(self, s):
        self.L.append(s + ':')
    def newlabel(self, base):
        self.uid += 1
        return f'L_{base}_{self.uid}'
    def text(self):
        return '\n'.join(self.L) + '\n'

NSTAMP = 12
def stamp(a, i):
    if STAMPS:
        a(f's_memrealtime s[{76+2*i}:{77+2*i}]')
def cstamp(a, i):
    if STAMPS:
        a(f's_memtime s[{76+2*i}:{77+2*i}]')
def stamp_init(a):
    if STAMPS:
        for i in range(NSTAMP):
            a(f's_mov_b32 s{76+2*i}, 0')
def stamp_flush(a):
    if STAMPS:
        a('s_mov_b64 exec, -1')
        a(f's_memrealtime s[{76+2*(NSTAMP-1)}:{77+2*(NSTAMP-1)}]')
        a('s_waitcnt lgkmcnt(0)')
        for i in range(NSTAMP):
            a(f'v_mov_b32 v{8+i}, s{76+2*i}')
        a(f'''
        s_lshl_b32 s76, s2, 3
        s_add_u32 s76, s76, s20
        s_lshl_b32 s76, s76, 6
        s_add_u32 s76, s76, {WS_STAMP}
        v_mov_b32 v24, 0
        s_mov_b64 exec, 1
        buffer_store_dwordx4 v[8:11], v24, s[32:35], s76 offen
        buffer_store_dwordx4 v[12:15], v24, s[32:35], s76 offen offset:16
        buffer_store_dwordx4 v[16:19], v24, s[32:35], s76 offen offset:32
        ''')

def srd(a, s, lo, hi, size):
    a(f's_mov_b32 s{s}, s{lo}')
    a(f's_and_b32 s{s+1}, s{hi}, 0xffff')
    a(f's_mov_b32 s{s+2}, {size}')
    a(f's_mov_b32 s{s+3}, 0x00020000')

def wave_reduce(a, op, v):
    for m in ['quad_perm:[1,0,3,2] row_mask:0xf bank_mask:0xf',
              'quad_perm:[2,3,0,1] row_mask:0xf bank_mask:0xf',
              'row_half_mirror row_mask:0xf bank_mask:0xf',
              'row_mirror row_mask:0xf bank_mask:0xf',
              'row_bcast:15 row_mask:0xa bank_mask:0xf',
              'row_bcast:31 row_mask:0xc bank_mask:0xf']:
        a('s_nop 1')
        a(f'{op}_dpp v{v}, v{v}, v{v} {m}')

def round_bf16(a, v, t):
    a(f'v_cvt_pk_bf16_f32 v{t}, v{v}, v{v}')
    a(f'v_lshlrev_b32 v{v}, 16, v{t}')

def unpack(a, src, lo, hi):
    a(f'v_lshlrev_b32 v{lo}, 16, v{src}')
    a(f'v_and_b32 v{hi}, 0xffff0000, v{src}')

def exp_bf16(a, v, t0, t1, s_l2e, s_l2elo, s_ln2):
    a(f'v_mul_f32 v{t0}, s{s_l2e}, v{v}')
    a(f'v_fma_f32 v{t1}, v{v}, s{s_l2e}, -v{t0}')
    a(f'v_fmac_f32 v{t1}, s{s_l2elo}, v{v}')
    a(f'v_exp_f32 v{t0}, v{t0}')
    a(f'v_mul_f32 v{t1}, s{s_ln2}, v{t1}')
    a(f'v_fma_f32 v{v}, v{t0}, v{t1}, v{t0}')
    round_bf16(a, v, t0)

def ln_stats(a, src, tmp, vs1, vs2, vmean, vrs, vt, s0, s1, s2_):
    a(f'v_readfirstlane_b32 s{s2_}, v{src}')
    a('s_nop 1')
    for i in range(10):
        a(f'v_subrev_f32 v{tmp+i}, s{s2_}, v{src+i}')
    a(f'''
    v_add_f32 v{vs1}, v{tmp}, v{tmp+1}
    v_mul_f32 v{vs2}, v{tmp}, v{tmp}
    v_add_f32 v{vmean}, v{tmp+2}, v{tmp+3}
    v_mul_f32 v{vrs}, v{tmp+1}, v{tmp+1}
    ''')
    for i in range(4, 10, 2):
        a(f'v_add_f32 v{vs1}, v{vs1}, v{tmp+i}')
        a(f'v_add_f32 v{vmean}, v{vmean}, v{tmp+i+1}')
    for i in range(2, 10, 2):
        a(f'v_fmac_f32 v{vs2}, v{tmp+i}, v{tmp+i}')
        a(f'v_fmac_f32 v{vrs}, v{tmp+i+1}, v{tmp+i+1}')
    a(f'v_add_f32 v{vs1}, v{vs1}, v{vmean}')
    a(f'v_add_f32 v{vs2}, v{vs2}, v{vrs}')
    for m in ['quad_perm:[1,0,3,2] row_mask:0xf bank_mask:0xf',
              'quad_perm:[2,3,0,1] row_mask:0xf bank_mask:0xf',
              'row_half_mirror row_mask:0xf bank_mask:0xf',
              'row_mirror row_mask:0xf bank_mask:0xf',
              'row_bcast:15 row_mask:0xa bank_mask:0xf',
              'row_bcast:31 row_mask:0xc bank_mask:0xf']:
        a('s_nop 0')
        a(f'v_add_f32_dpp v{vs1}, v{vs1}, v{vs1} {m}')
        a(f'v_add_f32_dpp v{vs2}, v{vs2}, v{vs2} {m}')
    a(f'''
    v_mov_b32 v{vt}, {fbits(1.0/640):#x}
    v_readlane_b32 s{s0}, v{vs1}, 63
    v_readlane_b32 s{s1}, v{vs2}, 63
    s_nop 0
    v_mul_f32 v{vmean}, s{s0}, v{vt}
    v_mul_f32 v{vrs}, s{s1}, v{vt}
    v_fma_f32 v{vrs}, -v{vmean}, v{vmean}, v{vrs}
    v_add_f32 v{vmean}, s{s2_}, v{vmean}
    v_max_f32 v{vrs}, 0, v{vrs}
    ''')
    round_bf16(a, vrs, vt)
    a(f'v_add_f32 v{vrs}, {fbits(1e-5):#x}, v{vrs}')
    round_bf16(a, vrs, vt)
    a(f'v_sqrt_f32 v{vrs}, v{vrs}')
    a('s_nop 0')
    round_bf16(a, vrs, vt)
    a(f'v_rcp_f32 v{vrs}, v{vrs}')
    round_bf16(a, vmean, vt)

def reduceN(a, R, n):
    h = n // 2; qn = n // 4
    a('s_nop 1')
    for j in range(h):
        a(f'v_permlane32_swap_b32 v{R+j}, v{R+j+h}')
    for j in range(h):
        a(f'v_add_f32 v{R+j}, v{R+j}, v{R+j+h}')
    a('s_nop 1')
    for j in range(qn):
        a(f'v_permlane16_swap_b32 v{R+j}, v{R+j+qn}')
    for j in range(qn):
        a(f'v_add_f32 v{R+j}, v{R+j}, v{R+j+qn}')
    for m in ['quad_perm:[1,0,3,2]', 'quad_perm:[2,3,0,1]', 'row_half_mirror', 'row_mirror']:
        a('s_nop 0')
        for j in range(qn):
            a(f'v_add_f32_dpp v{R+j}, v{R+j}, v{R+j} {m} row_mask:0xf bank_mask:0xf')

KT_RS = 544
KT_E0 = 41
KT_SZ = 57 * KT_RS
L_TILE = 3 * KT_SZ
TS = 1344
L_KC = L_TILE + 8 * TS
KC_SZ = 1344
L_UP = L_KC + 3 * KC_SZ
US = 1152
UP_SZ = 4 * US
L_MISC = L_UP + 3 * UP_SZ
M_CNT1 = L_MISC
M_CNT2 = L_MISC + 4
M_SCALE = L_MISC + 16
M_PAIR = L_MISC + 96
M_KEYS = L_MISC + 32
M_GKEY = L_MISC + 64
M_P2 = L_MISC + 384
M_P1 = L_MISC + 1024
LDS_TOTAL = L_MISC + 3072
CS = 4224
CP_SZ = 4 * CS
L_RED = 3 * CP_SZ
L_Y2 = 0

VX = 200
VT = 206
VW = 168
GA = 152
VU = 160

def gen(a):
    a.L.append(f'.globl {KNAME}')
    a.L.append('.p2align 8')
    a.L.append(f'.type {KNAME},@function')
    a.label(KNAME)
    end = 'L_end'
    stamp_init(a)
    stamp(a, 0)
    a(f'''
    s_cmp_ge_u32 s2, 256
    s_cbranch_scc1 {end}x
    s_load_dwordx8 s[4:11], s[0:1], 0
    s_load_dwordx4 s[12:15], s[0:1], 32
    s_load_dwordx2 s[16:17], s[0:1], 48    ; D
    s_load_dwordx2 s[18:19], s[0:1], 112   ; ws
    s_load_dwordx8 s[64:71], s[0:1], 64
    s_load_dwordx4 s[72:75], s[0:1], 96
    v_lshrrev_b32 v1, 6, v0
    v_and_b32 v2, 63, v0                   ; lane
    v_readfirstlane_b32 s20, v1            ; wave
    s_and_b32 s21, s2, 7
    s_lshl_b32 s21, s21, 5
    s_lshr_b32 s22, s2, 3
    s_add_u32 s21, s21, s22                ; rb
    s_lshl_b32 s22, s21, 3
    s_add_u32 s22, s22, s20                ; row
    s_mul_i32 s23, s22, 1280
    v_lshlrev_b32 v3, 4, v2                ; lane*16
    v_lshlrev_b32 v4, 2, v2                ; lane*4
    s_and_b32 s60, s2, 7
    s_lshl_b32 s60, s60, 4
    s_lshr_b32 s61, s2, 4
    s_add_u32 s3, s60, s61                 ; p'
    s_mul_i32 s60, s3, 5
    s_bfe_u32 s61, s2, 0x10003             ; odd
    s_lshl_b32 s100, s3, 12
    s_add_u32 s100, s100, {WS_YS}
    s_lshl_b32 s3, s3, 1
    s_add_u32 s3, s3, s61
    s_lshl_b32 s3, s3, 13
    s_add_u32 s3, s3, {WS_YT}
    s_mul_i32 s62, s61, 3
    s_add_u32 s62, s62, s60                ; chA
    s_add_u32 s63, s60, 2                  ; chS
    s_lshr_b32 s56, s20, 1
    s_add_u32 s57, s62, s56
    s_cmp_eq_u32 s56, 2
    s_cselect_b32 s57, s63, s57
    ''')
    if CODEPF:
        lcp = a.newlabel('cp')
        a(f'''
        s_cmp_lg_u32 s20, 6
        s_cbranch_scc1 {lcp}
        s_getpc_b64 s[24:25]
        L_pc_here:
        s_lshr_b32 s26, s2, 3
        s_lshl_b32 s26, s26, 10
        v_add_u32 v5, s26, v3
        s_cmp_lt_u32 s26, (L_endx - L_pc_here) & 0xfffffc00
        s_cbranch_scc0 {lcp}
        global_load_dwordx4 v[240:243], v5, s[24:25]
        ''')
        a.label(lcp)
    a(f'''
    s_waitcnt lgkmcnt(0)
    ''')
    srd(a, 24, 4, 5, 2621440)
    srd(a, 32, 18, 19, WS_SIZE)
    srd(a, 28, 16, 17, 1280)
    lnz = a.newlabel('nz')
    a(f'''
    s_lshl_b32 s17, s2, 3
    s_add_u32 s17, s17, s20
    s_cmp_lg_u32 s17, 7
    s_cbranch_scc1 {lnz}
    v_mov_b32 v8, 0
    v_mov_b32 v9, 0
    v_mov_b32 v10, 0
    v_mov_b32 v11, 0
    s_mov_b32 s4, {WS_FLAG1}
    buffer_store_dwordx4 v[8:11], v3, s[32:35], s4 offen sc1
    buffer_store_dwordx4 v[8:11], v3, s[32:35], s4 offen offset:1024 sc1
    buffer_store_dwordx4 v[8:11], v3, s[32:35], s4 offen offset:2048 sc1
    buffer_store_dwordx4 v[8:11], v3, s[32:35], s4 offen offset:3072 sc1
    v_lshlrev_b32 v12, 12, v2
    s_mov_b32 s4, {WS_GO + 256}
    s_mov_b64 exec, {(1<<NREP)-1:#x}
    buffer_store_dword v8, v12, s[32:35], s4 offen sc1
    s_mov_b64 exec, -1
    s_nop 1
    ''')
    a.label(lnz)
    a('''
    buffer_load_dwordx4 v[8:11], v3, s[24:27], s23 offen
    buffer_load_dword v12, v4, s[24:27], s23 offen offset:1024
    ''')
    srd(a, 36, 6, 7, 163840)
    srd(a, 40, 8, 9, 163840)
    srd(a, 44, 10, 11, 163840)
    srd(a, 48, 12, 13, 163840)
    srd(a, 52, 14, 15, 1280)
    a('''
    buffer_load_dwordx4 v[14:17], v3, s[28:31], 0 offen
    buffer_load_dword v18, v4, s[28:31], 0 offen offset:1024
    s_lshl_b32 s58, s57, 8
    s_and_b32 s59, s20, 1
    s_lshl_b32 s59, s59, 7
    s_add_u32 s59, s59, s58
    v_lshlrev_b32 v5, 1, v2
    s_lshl_b32 s16, s57, 1
    v_mov_b32 v6, 0
    buffer_load_ushort v20, v5, s[36:39], s59 offen
    buffer_load_ushort v21, v5, s[40:43], s59 offen
    buffer_load_ushort v22, v5, s[44:47], s59 offen
    buffer_load_ushort v23, v5, s[48:51], s59 offen
    buffer_load_dword v24, v4, s[44:47], s58 offen
    buffer_load_dword v25, v4, s[48:51], s58 offen
    buffer_load_ushort v26, v6, s[52:55], s16 offen
    ''')
    def prefetch(PD=216):
        srd(a, 36, 66, 67, 640 * 3456)
        srd(a, 40, 68, 69, 640 * 3456)
        srd(a, 44, 70, 71, 1728 * 1280)
        a(f'''
        s_and_b32 s4, s2, 7
        s_lshr_b32 s5, s2, 3
        s_mul_i32 s6, s4, 432
        s_mul_i32 s7, s5, {20*3456}
        s_add_u32 s6, s6, s7
        v_lshrrev_b32 v5, 5, v2
        v_mul_u32_u24 v5, 3456, v5
        v_and_b32 v6, 31, v2
        v_lshl_add_u32 v5, v6, 4, v5
        v_mov_b32 v7, {OOB:#x}
        v_cmp_gt_u32 vcc, 27, v6
        s_cmp_eq_u32 s20, 6
        s_cselect_b32 s36, s36, s40
        v_cndmask_b32 v5, v7, v5, vcc
        s_cselect_b32 s37, s37, s41
        ''')
        for i in range(10):
            a(f's_add_u32 s7, s6, {2*i*3456}')
            a(f'buffer_load_dwordx4 v[{PD+4*(i%2)}:{PD+3+4*(i%2)}], v5, s[36:39], s7 offen')
    if PF == 'start':
        lns = a.newlabel('ns')
        a(f'''
        s_cmp_lt_u32 s20, 6
        s_cbranch_scc1 {lns}
        ''')
        prefetch()
        a.label(lns)
    if WARM:
        lnw = a.newlabel('nw')
        a(f'''
        s_cmp_ge_u32 s20, 6
        s_cbranch_scc1 {lnw}
        v_lshlrev_b32 v27, {WSH}, v2
        s_mov_b32 s8, 0
        s_mov_b32 s4, s18
        s_mov_b32 s5, s19
        s_mov_b32 s6, {WS_SIZE // 2}
        s_cmp_eq_u32 s20, 1
        s_cselect_b32 s4, s72, s4
        s_cselect_b32 s5, s73, s5
        s_cselect_b32 s6, 2621440, s6
        s_cmp_eq_u32 s20, 2
        s_cselect_b32 s4, s74, s4
        s_cselect_b32 s5, s75, s5
        s_cselect_b32 s6, 256, s6
        s_cmp_eq_u32 s20, 3
        s_cselect_b32 s4, s64, s4
        s_cselect_b32 s5, s65, s5
        s_cselect_b32 s6, 1280, s6
        s_cmp_eq_u32 s20, 4
        s_cselect_b32 s4, s66, s4
        s_cselect_b32 s5, s67, s5
        s_cselect_b32 s6, {640*3456}, s6
        s_cmp_eq_u32 s20, 5
        s_cselect_b32 s8, {64 << WSH}, s8
        s_and_b32 s5, s5, 0xffff
        s_mov_b32 s7, 0x00020000
        buffer_load_dword v244, v27, s[4:7], s8 offen
        ''')
        a.label(lnw)
    lnr = a.newlabel('nr')
    a(f'''
    s_cmp_lg_u32 s17, 7
    s_cbranch_scc1 {lnr}
    ''')
    srd(a, 4, 74, 75, 256)
    a(f'''
    v_mov_b32 v27, 0
    v_mov_b32 v28, 1
    s_waitcnt vmcnt({26 if PF == 'start' else 11})
    s_mov_b64 exec, 1
    buffer_store_dword v28, v27, s[4:7], 0 offen sc1      ; READY
    s_mov_b64 exec, -1
    ''')
    a.label(lnr)
    a(f'''
    v_mov_b32 v27, 0
    v_lshrrev_b32 v28, 5, v0
    v_mul_u32_u24 v28, {US}, v28
    v_and_b32 v29, 31, v0
    v_lshl_add_u32 v28, v29, 2, v28
    v_add_u32 v28, {L_UP}, v28
    v_cmp_gt_u32 vcc, 384, v0
    s_and_saveexec_b64 s[4:5], vcc
    ds_write_b32 v28, v27
    s_mov_b64 exec, s[4:5]
    v_lshrrev_b32 v28, 2, v0
    v_mul_u32_u24 v28, {KC_SZ}, v28
    v_and_b32 v29, 3, v0
    v_lshl_add_u32 v28, v29, 2, v28
    v_add_u32 v28, {L_KC}, v28
    v_lshlrev_b32 v29, 2, v0
    v_add_u32 v29, {L_MISC}, v29
    v_cmp_gt_u32 vcc, 12, v0
    s_and_saveexec_b64 s[4:5], vcc
    ds_write_b32 v28, v27
    ds_write_b32 v29, v27
    ds_write_b32 v29, v27 offset:96
    s_mov_b64 exec, s[4:5]
    ''')
    a('v_lshlrev_b32 v5, 2, v0')
    a(f'v_mov_b32 v27, {L_KC}')
    for d in range(7):
        a(f'''
        v_add_u32 v31, {d-3}, v5
        v_cvt_f32_i32 v32, v31
        v_cvt_pk_bf16_f32 v32, v32, v32
        v_and_b32 v32, 0xffff, v32
        v_subrev_u32 v32, {(134<<7)-128}, v32
        v_cmp_gt_i32 vcc, 256, v31
        s_nop 1
        v_cndmask_b32 v32, v32, v31, vcc
        v_lshl_add_u32 v32, v32, 1, v27
        v_add_u32 v32, 16, v32
        v_cmp_gt_i32 vcc, 0, v31
        s_nop 1
        v_cndmask_b32 v{GA+d}, v32, v27, vcc
        ''')
    a(f'''
    v_lshrrev_b32 v31, 3, v0
    v_mul_u32_u24 v31, {CS}, v31
    v_and_b32 v32, 7, v0
    v_lshl_add_u32 v{VU+4}, v32, 2, v31
    ''')
    for e in range(2):
        vi, vr, vk, va, vl = 31, 32, 33, VU + 2 * e, VU + 2 * e + 1
        a(f'''
        v_add_u32 v{vi}, {512*e}, v0
        v_mul_u32_u24 v{vr}, 43691, v{vi}
        v_lshrrev_b32 v{vr}, 17, v{vr}
        v_mul_u32_u24 v{vk}, 3, v{vr}
        v_sub_u32 v{vk}, v{vi}, v{vk}
        v_mul_u32_u24 v{va}, 10240, v{vr}
        v_lshl_add_u32 v{va}, v{vk}, 4, v{va}
        s_lshl_b32 s5, s61, 1
        v_add_u32 v{vk}, s5, v{vk}
        v_subrev_u32 v{vl}, 3, v{vk}
        v_cmp_gt_u32 vcc, 3, v{vk}
        s_nop 1
        v_cndmask_b32 v{vk}, v{vl}, v{vk}, vcc
        v_mul_u32_u24 v{vl}, {UP_SZ}, v{vk}
        v_lshl_add_u32 v{vl}, v{vr}, 2, v{vl}
        v_add_u32 v{vl}, {L_UP + 128}, v{vl}
        ''')
    a(f'''
    v_mov_b32 v31, {OOB:#x}
    v_cmp_gt_u32 vcc, 256, v0
    s_nop 1
    v_cndmask_b32 v{VU+2}, v31, v{VU+2}, vcc
    ''')
    a(f'''
    v_mov_b32 v36, 0
    v_mov_b32 v37, 0
    v_mov_b32 v38, 0
    v_mov_b32 v39, 0
    v_lshlrev_b32 v35, 4, v0
    buffer_store_dwordx4 v[36:39], v35, s[32:35], s3 offen sc1
    v_lshrrev_b32 v32, 5, v0
    v_mov_b32 v33, 0x8f
    v_mov_b32 v34, 0x70
    s_cmp_eq_u32 s61, 0
    s_cselect_b64 vcc, -1, 0
    v_cndmask_b32 v33, v34, v33, vcc
    v_lshrrev_b32 v33, v32, v33
    v_and_b32 v33, 1, v33
    v_cmp_ne_u32 vcc, 0, v33
    v_mov_b32 v33, {OOB:#x}
    s_nop 0
    v_cndmask_b32 v35, v33, v35, vcc
    buffer_store_dwordx4 v[36:39], v35, s[32:35], s100 offen sc1
    ''')
    X = 30
    def wait2(n):
        if PF == 'start':
            l1 = a.newlabel('w'); l2 = a.newlabel('w')
            a(f'''
            s_cmp_ge_u32 s20, 6
            s_cbranch_scc1 {l1}
            s_waitcnt vmcnt({n})
            s_branch {l2}
            ''')
            a.label(l1)
            a(f's_waitcnt vmcnt({n+15})')
            a.label(l2)
        else:
            a(f's_waitcnt vmcnt({n})')
    wait2(11)
    srd(a, 24, 74, 75, 256)
    for i in range(4):
        unpack(a, 8 + i, X + 2 * i, X + 2 * i + 1)
        a(f'v_mov_b32 v{VX+i}, v{8+i}')
    unpack(a, 12, X + 8, X + 9)
    a(f'v_mov_b32 v{VX+4}, v12')
    ln_stats(a, X, 44, 40, 43, 41, 42, 54, 4, 5, 6)
    wait2(9)
    for i in range(4):
        unpack(a, 14 + i, 54 + 2 * i, 55 + 2 * i)
    unpack(a, 18, 62, 63)
    for p in range(5):
        x0, x1 = X + 2 * p, X + 2 * p + 1
        a(f'''
        v_sub_f32 v{x0}, v{x0}, v41
        v_sub_f32 v{x1}, v{x1}, v41
        v_cvt_pk_bf16_f32 v44, v{x0}, v{x1}
        v_lshlrev_b32 v{x0}, 16, v44
        v_and_b32 v{x1}, 0xffff0000, v44
        v_mul_f32 v{x0}, v{x0}, v42
        v_mul_f32 v{x1}, v{x1}, v42
        v_cvt_pk_bf16_f32 v44, v{x0}, v{x1}
        v_lshlrev_b32 v{x0}, 16, v44
        v_and_b32 v{x1}, 0xffff0000, v44
        v_cvt_pk_f16_f32 v{64+p}, v{x0}, v{x1}
        ''')
    a(f'''
    s_and_b32 s4, s20, 3
    s_lshl_b32 s4, s4, 1
    s_lshr_b32 s5, s20, 2
    s_or_b32 s4, s4, s5
    s_mul_i32 s4, s4, {TS}
    s_add_u32 s4, s4, {L_TILE}
    v_add_u32 v44, s4, v3
    v_add_u32 v45, s4, v4
    ds_write_b128 v44, v[64:67]
    ds_write_b32 v45, v68 offset:1024
    ''')
    for p in range(5):
        x0, x1 = X + 2 * p, X + 2 * p + 1
        a(f'''
        v_mul_f32 v{x0}, v{x0}, v{54+2*p}
        v_mul_f32 v{x1}, v{x1}, v{55+2*p}
        v_cvt_pk_bf16_f32 v{VT+p}, v{x0}, v{x1}
        ''')
    l67 = a.newlabel('w67'); l45 = a.newlabel('w45')
    a(f'''
    v_lshrrev_b32 v44, 2, v2
    v_and_b32 v44, 3, v44
    v_mul_u32_u24 v44, {TS}, v44
    v_lshrrev_b32 v45, 4, v2
    v_lshlrev_b32 v45, 5, v45
    v_add_u32 v44, v44, v45
    v_and_b32 v45, 3, v2
    v_lshlrev_b32 v45, 3, v45
    v_add_u32 v44, v44, v45
    s_sub_u32 s6, s20, 2
    s_cmp_lt_u32 s20, 6
    s_cselect_b32 s6, s20, s6
    s_lshl_b32 s4, s6, 7
    s_add_u32 s4, s4, {L_TILE}
    v_add_u32 v44, s4, v44
    s_mul_i32 s4, s21, 10240
    s_lshl_b32 s5, s6, 10
    s_add_u32 s4, s4, s5
    s_add_u32 s4, s4, {WS_U}
    v_mov_b32 v46, 0
    buffer_load_dword v49, v46, s[24:27], 0 offen sc1
    s_waitcnt lgkmcnt(0)
    s_barrier
    s_lshr_b32 s5, s20, 1
    s_cmp_eq_u32 s5, 2
    s_cbranch_scc1 {l45}
    ds_read_b64_tr_b16 v[64:65], v44
    ds_read_b64_tr_b16 v[66:67], v44 offset:{4*TS}
    s_cmp_lt_u32 s20, 6
    s_cbranch_scc1 {l67}
    ds_read_b64_tr_b16 v[68:69], v44 offset:256
    ds_read_b64_tr_b16 v[70:71], v44 offset:{4*TS+256}
    ds_read_b64_tr_b16 v[72:73], v44 offset:512
    ds_read_b64_tr_b16 v[74:75], v44 offset:{4*TS+512}
    s_add_u32 s5, s4, 4096
    s_waitcnt lgkmcnt(2)
    buffer_store_dwordx4 v[68:71], v3, s[32:35], s4 offen offset:2048 sc1
    s_waitcnt lgkmcnt(0)
    buffer_store_dwordx4 v[72:75], v3, s[32:35], s5 offen sc1
    ''')
    a.label(l67)
    a('''
    s_waitcnt lgkmcnt(0)
    buffer_store_dwordx4 v[64:67], v3, s[32:35], s4 offen sc1
    ''')
    a.label(l45)
    if not TAILST: stamp(a, 2)
    def zero_mailboxes():
        lz = a.newlabel('zero')
        a(f'''
        v_mov_b32 v46, 0
        v_mov_b32 v47, 0
        v_lshlrev_b32 v48, 3, v0
        s_mul_i32 s5, s2, 5120
        s_add_u32 s5, s5, {WS_CAND}
        buffer_store_dwordx2 v[46:47], v48, s[32:35], s5 offen sc1
        s_cmp_ge_u32 s20, 2
        s_cbranch_scc1 {lz}
        s_add_u32 s5, s5, 4096
        buffer_store_dwordx2 v[46:47], v48, s[32:35], s5 offen sc1
        s_cmp_ge_u32 s20, 1
        s_cbranch_scc1 {lz}
        s_mov_b64 exec, 0x3
        v_lshlrev_b32 v48, 12, v0
        s_lshl_b32 s5, s2, 4
        s_add_u32 s5, s5, {WS_KEY}
        buffer_store_dword v46, v48, s[32:35], s5 offen sc1
        v_lshlrev_b32 v48, 7, v0
        s_and_b32 s5, s2, {NREP-1}
        s_lshl_b32 s5, s5, 12
        s_add_u32 s5, s5, {WS_GO}
        s_cmp_lt_u32 s2, {NREP}
        s_cselect_b32 s5, s5, 0x40000000
        buffer_store_dwordx2 v[46:47], v48, s[32:35], s5 offen sc1
        s_mov_b64 exec, -1
        ''')
        a.label(lz)
        lz2 = a.newlabel('zero2'); lz3 = a.newlabel('zero3')
        a(f'''
        s_cmp_ge_u32 s2, 216
        s_cbranch_scc1 {lz2}
        s_cmp_lt_u32 s20, 3
        s_cbranch_scc1 {lz3}
        s_mul_i32 s5, s2, 2560
        s_add_u32 s5, s5, {WS_YP - 3*512}
        v_lshlrev_b32 v48, 3, v0
        buffer_store_dwordx2 v[46:47], v48, s[32:35], s5 offen sc1
        s_add_u32 s5, s5, {SET1}
        buffer_store_dwordx2 v[46:47], v48, s[32:35], s5 offen sc1
        s_branch {lz2}
        ''')
        a.label(lz3)
        a.label(lz2)
    def spin(body, slp=0):
        lsp = a.newlabel('spin'); lso = a.newlabel('spinout')
        a('s_mov_b32 s4, 0')
        a.label(lsp)
        a(body)
        a(f'''
        s_add_u32 s4, s4, 1
        s_cmp_ge_u32 s4, {SPIN_MAX}
        s_cbranch_scc1 {lso}
        s_cmp_eq_u64 vcc, exec
        s_cbranch_scc1 {lso}
        ''')
        if slp: a(f's_sleep {slp}')
        a(f's_branch {lsp}')
        a.label(lso)
    def signal(cnt_addr, which, lgkm=False, vm=0):
        ls = a.newlabel('sig')
        a(f'''
        s_waitcnt vmcnt({vm})
        v_mov_b32 v46, {cnt_addr}
        v_mov_b32 v47, 1
        s_mov_b64 exec, 1
        ds_add_rtn_u32 v48, v46, v47
        s_waitcnt lgkmcnt(0)
        v_readfirstlane_b32 s4, v48
        s_lshl_b32 s5, s2, 4
        s_add_u32 s5, s5, {WS_FLAG1 if which == 1 else WS_FLAG2}
        s_cmp_lg_u32 s4, 7
        s_cbranch_scc1 {ls}
        v_mov_b32 v46, 0
        ''')
        if which == 1:
            lrd = a.newlabel('rdy')
            a(f'''
            v_cmp_ne_u32 vcc, 0, v49
            s_cbranch_vccnz {lrd}
            ''')
            spin('''
            buffer_load_dword v48, v46, s[24:27], 0 offen sc1
            s_waitcnt vmcnt(0)
            v_cmp_ne_u32 vcc, 0, v48
            ''')
            a.label(lrd)
        a('buffer_store_dword v47, v46, s[32:35], s5 offen sc1')
        a.label(ls)
        a('s_mov_b64 exec, -1')
    def gather_flags(base, r):
        lsp = a.newlabel('gf'); lso = a.newlabel('gfo')
        a(f'''
        s_mov_b32 s5, {base}
        s_mov_b32 s6, {base + 2048}
        s_mov_b32 s4, 0
        ''')
        a.label(lsp)
        a(f'''
        buffer_load_dword v{r}, v3, s[32:35], s5 offen sc1
        buffer_load_dword v{r+1}, v3, s[32:35], s5 offen offset:1024 sc1
        buffer_load_dword v{r+2}, v3, s[32:35], s6 offen sc1
        buffer_load_dword v{r+3}, v3, s[32:35], s6 offen offset:1024 sc1
        s_add_u32 s4, s4, 1
        s_waitcnt vmcnt(0)
        v_min_u32 v{r+4}, v{r}, v{r+1}
        v_min3_u32 v{r+4}, v{r+4}, v{r+2}, v{r+3}
        v_cmp_eq_u32 vcc, 0, v{r+4}
        s_cmp_ge_u32 s4, {SPIN_MAX}
        s_cbranch_scc1 {lso}
        s_and_b64 exec, exec, vcc
        s_cbranch_execnz {lsp}
        ''')
        a.label(lso)
        a('s_mov_b64 exec, -1')
    def bcast(goaddr, vval, vt):
        a(f'''
        v_lshlrev_b32 v{vt}, 12, v2
        s_mov_b32 s5, {goaddr}
        s_mov_b64 exec, {(1<<NREP)-1:#x}
        buffer_store_dword v{vval}, v{vt}, s[32:35], s5 offen sc1
        s_mov_b64 exec, -1
        ''')
    def slave(goaddr, vr=47):
        a(f'''
        s_and_b32 s5, s2, {NREP-1}
        s_lshl_b32 s5, s5, 12
        s_add_u32 s5, s5, {goaddr}
        v_mov_b32 v46, 0
        ''')
        spin(f'''
        buffer_load_dword v{vr}, v46, s[32:35], s5 offen sc1
        s_waitcnt vmcnt(0)
        v_cmp_ne_u32 vcc, 0, v{vr}
        ''')
    def master1():
        gather_flags(WS_FLAG1, 44)
        a('v_mov_b32 v47, 1')
        bcast(WS_GO + 256, 47, 46)
    def sync2():
        lsl = a.newlabel('sl'); ld = a.newlabel('sd')
        a(f'''
        s_cmp_lg_u32 s2, 0
        s_cbranch_scc1 {lsl}
        ''')
        gather_flags(WS_FLAG2, 44)
        a('v_mov_b32 v47, 1')
        bcast(WS_GO, 47, 46)
        a(f's_branch {ld}')
        a.label(lsl)
        slave(WS_GO)
        a.label(ld)
    lmf = a.newlabel('kmfma'); lpf = a.newlabel('pf')
    a(f'''
    s_cmp_ge_u32 s20, 6
    s_cbranch_scc1 {lpf}
    s_mov_b32 s8, {fbits(LOG2E_HI):#x}
    s_mov_b32 s9, {fbits(LOG2E_LO):#x}
    s_mov_b32 s10, {fbits(LN2):#x}
    s_mov_b32 s11, {fbits(INV2PI):#x}
    s_waitcnt vmcnt({4 if WARM else 3})
    v_lshlrev_b32 v20, 16, v20
    v_lshlrev_b32 v21, 16, v21
    v_lshlrev_b32 v22, 16, v22
    v_lshlrev_b32 v23, 16, v23
    v_lshlrev_b32 v26, 16, v26
    v_and_b32 v24, 0x7f807f80, v24
    v_and_b32 v25, 0x7f807f80, v25
    v_pk_max_u16 v24, v24, v25
    v_lshrrev_b32 v25, 16, v24
    v_and_b32 v24, 0xffff, v24
    v_max_u32 v24, v24, v25
    ''')
    wave_reduce(a, 'v_max_u32', 24)
    lsk4 = a.newlabel('sk4')
    a(f'''
    s_cmp_lt_u32 s20, 4
    s_cbranch_scc1 {lsk4}
    ''')
    signal(M_CNT1, 1)
    a.label(lsk4)
    exp_bf16(a, 20, 27, 28, 8, 9, 10)
    exp_bf16(a, 26, 27, 28, 8, 9, 10)
    a(f'''
    v_readlane_b32 s12, v24, 63
    s_lshr_b32 s12, s12, 7
    s_min_u32 s12, s12, 252
    s_sub_u32 s13, 253, s12
    s_lshl_b32 s13, s13, 23
    s_add_u32 s14, s12, 2
    s_lshl_b32 s14, s14, 23
    v_mul_f32 v20, v20, v26
    v_mul_f32 v21, v21, v26
    v_mul_f32 v20, s8, v20
    v_sub_f32 v20, 0, v20
    v_mul_f32 v21, s11, v21
    v_mul_f32 v22, s13, v22
    v_mul_f32 v23, s13, v23
    v_mul_f32 v26, s14, v26
    s_lshl_b32 s15, s56, 2
    s_add_u32 s15, s15, {M_SCALE}
    v_mov_b32 v27, s15
    s_mov_b64 exec, 1
    ds_write_b32 v27, v26
    s_mov_b64 exec, -1
    s_mul_i32 s15, s56, {KT_SZ}
    s_and_b32 s16, s20, 1
    s_lshl_b32 s16, s16, 8
    s_add_u32 s15, s15, s16
    v_add_u32 v27, s15, v4
    ''')
    def cmul(r, x, y, t=28):
        a(f'v_pk_mul_f32 v[{t}:{t+1}], v[{x}:{x+1}], v[{y}:{y+1}] op_sel:[1,1] op_sel_hi:[1,0]')
        a(f'v_pk_fma_f32 v[{r}:{r+1}], v[{x}:{x+1}], v[{y}:{y+1}], v[{t}:{t+1}] op_sel:[0,0,0] op_sel_hi:[0,1,1] neg_lo:[0,0,1]')
    pk = [0]
    def putG(row, x):
        r = 76 + (pk[0] % 8); pk[0] += 1
        a(f'v_cvt_pk_f16_f32 v{r}, v{x}, -v{x+1}')
        a(f'ds_write_b32 v27, v{r} offset:{row*KT_RS}')
    def putE(b, x):
        r = 76 + (pk[0] % 8); pk[0] += 1
        a(f'v_cvt_pk_f16_f32 v{r}, v{x}, v{x+1}')
        a(f'ds_write_b32 v27, v{r} offset:{(KT_E0+b)*KT_RS}')
    def direct(dst, p):
        a(f'''
        v_mul_f32 v28, {fbits(float(p)):#x}, v20
        v_mul_f32 v29, {fbits(float(p)):#x}, v21
        v_exp_f32 v28, v28
        v_fract_f32 v29, v29
        v_cos_f32 v{dst}, v29
        v_sin_f32 v{dst+1}, v29
        s_nop 0
        v_mul_f32 v{dst}, v{dst}, v28
        v_mul_f32 v{dst+1}, v{dst+1}, v28
        ''')
    def ES(c): return 30 + 2 * c
    direct(ES(1), 1)
    direct(50, 128)
    direct(52, 8)
    cmul(ES(2), ES(1), ES(1))
    cmul(ES(3), ES(2), ES(1))
    cmul(ES(4), ES(2), ES(2))
    cmul(ES(5), ES(4), ES(1))
    cmul(ES(6), ES(4), ES(2))
    cmul(ES(7), ES(4), ES(3))
    a('v_mov_b32 v62, 0x00003c00')
    a(f'ds_write_b32 v27, v62 offset:{KT_E0*KT_RS}')
    putE(1, 52)
    E = 52
    ereg = [58, 60]
    for b in range(2, 16):
        ne = ereg[b % 2]
        cmul(ne, E, 52)
        putE(b, ne)
        E = ne
    H = 22
    tmp = [58, 60, 62, 64]
    ti = [0]
    def prodG(row, h, e):
        t = tmp[ti[0] % 4]; ti[0] += 1
        cmul(t, h, e)
        putG(row, t)
    hreg = [54, 56]
    for aa in range(17):
        if aa < 2:
            putG(8 * aa, H)
            for c in range(1, 8):
                prodG(8 * aa + c, H, ES(c))
        elif aa < 4:
            base = 16 + 4 * (aa - 2)
            putG(base, H)
            for c in range(1, 4):
                prodG(base + c, H, ES(2 * c))
        elif aa < 8:
            base = 24 + 2 * (aa - 4)
            putG(base, H)
            prodG(base + 1, H, ES(4))
        else:
            putG(32 + (aa - 8), H)
        if aa < 16:
            nh = hreg[aa % 2]
            cmul(nh, H, 50)
            H = nh
        if aa == SIGPOS:
            lsk = a.newlabel('sk')
            a(f'''
            s_cmp_ge_u32 s20, 4
            s_cbranch_scc1 {lsk}
            ''')
            signal(M_CNT1, 1, lgkm=True)
            a.label(lsk)
            if not TAILST: stamp(a, 4)
    a(f'''
    s_lshl_b32 s4, s56, 2
    s_add_u32 s4, s4, {M_PAIR}
    v_mov_b32 v46, s4
    v_mov_b32 v47, 1
    s_waitcnt lgkmcnt(0)
    s_mov_b64 exec, 1
    ds_add_u32 v46, v47
    ''')
    spin('''
    ds_read_b32 v48, v46
    s_waitcnt lgkmcnt(0)
    v_cmp_le_u32 vcc, 2, v48
    ''')
    a('s_mov_b64 exec, -1')
    a('s_and_b32 s30, s20, 1')
    a(f's_branch {lmf}')
    a.label(lpf)
    signal(M_CNT1, 1)
    if not TAILST: stamp(a, 4)
    a('v_readfirstlane_b32 s101, v49')
    lnm = a.newlabel('notmaster')
    a(f'''
    s_cmp_lg_u32 s2, 0
    s_cbranch_scc1 {lnm}
    s_cmp_lg_u32 s20, 7
    s_cbranch_scc1 {lnm}
    ''')
    master1()
    a.label(lnm)
    if PF == 'late':
        prefetch()
    lk2 = a.newlabel('kdone'); lt67 = a.newlabel('t67')
    a('s_sub_u32 s5, s20, 6')
    a.label(lt67)
    a(f'''
    s_lshl_b32 s4, s5, 2
    s_add_u32 s4, s4, {M_PAIR}
    v_mov_b32 v46, s4
    s_mov_b32 s7, s5
    s_mov_b64 exec, 1
    ''')
    spin('''
    ds_read_b32 v48, v46
    s_waitcnt lgkmcnt(0)
    v_cmp_le_u32 vcc, 2, v48
    ''', slp=1)
    a('''
    s_mov_b64 exec, -1
    s_mov_b32 s56, s7
    s_mov_b32 s30, 2
    ''')
    a.label(lmf)
    a(f'''
    v_and_b32 v44, 15, v2
    v_lshrrev_b32 v45, 4, v2
    v_mul_u32_u24 v46, {KT_RS}, v44
    v_lshl_add_u32 v46, v45, 4, v46
    s_mov_b32 s4, s30
    s_mov_b32 s5, s56
    ''')
    ltask = a.newlabel('task')
    a.label(ltask)
    a(f'''
    s_mov_b32 s6, s4                       ; tile
    s_mul_i32 s8, s5, {KT_SZ}
    s_mul_i32 s9, s6, {16*KT_RS}
    s_add_u32 s9, s9, s8
    s_add_u32 s8, s8, {KT_E0*KT_RS}
    v_add_u32 v47, s9, v46
    v_add_u32 v48, s8, v46
    ''')
    for ks in range(8):
        a(f'ds_read_b128 v[{64+8*ks}:{67+8*ks}], v47 offset:{64*ks}')
        a(f'ds_read_b128 v[{68+8*ks}:{71+8*ks}], v48 offset:{64*ks}')
    lt2 = a.newlabel('t2'); lt1 = a.newlabel('t1'); lnext = a.newlabel('next')
    a(f'''
    s_mul_i32 s8, s5, {KC_SZ}
    s_add_u32 s8, s8, {L_KC + 16}
    s_cmp_eq_u32 s6, 2
    s_cbranch_scc1 {lt2}
    ''')
    for ks in range(8):
        a(f's_waitcnt lgkmcnt({14-2*ks})')
        c = '0' if ks == 0 else 'v[56:59]'
        a(f'v_mfma_f32_16x16x32_f16 v[56:59], v[{64+8*ks}:{67+8*ks}], v[{68+8*ks}:{71+8*ks}], {c}')
    a(f'''
    s_cmp_eq_u32 s6, 1
    s_cbranch_scc1 {lt1}
    v_lshrrev_b32 v49, 1, v45
    v_lshlrev_b32 v49, 8, v49
    v_lshl_add_u32 v49, v44, 4, v49
    v_and_b32 v50, 1, v45
    v_lshl_add_u32 v49, v50, 3, v49
    v_add_u32 v49, s8, v49
    s_nop 4
    v_cvt_pk_f16_f32 v60, v56, v57
    v_cvt_pk_f16_f32 v61, v58, v59
    ds_write_b64 v49, v[60:61]
    s_branch {lnext}
    ''')
    a.label(lt1)
    a(f'''
    v_lshlrev_b32 v49, 7, v45
    v_add_u32 v49, s8, v49
    v_lshl_add_u32 v50, v44, 3, v49
    v_add_u32 v50, 512, v50
    v_add_u32 v51, 4, v50
    v_lshl_add_u32 v52, v44, 2, v49
    v_add_u32 v52, 512, v52
    v_add_u32 v53, 64, v52
    v_cmp_gt_u32 vcc, 2, v45
    s_nop 1
    v_cndmask_b32 v50, v52, v50, vcc
    v_cndmask_b32 v51, v53, v51, vcc
    v_cvt_pk_f16_f32 v60, v56, v57
    v_cvt_pk_f16_f32 v61, v58, v59
    ds_write_b32 v50, v60
    ds_write_b32 v51, v61
    s_branch {lnext}
    ''')
    a.label(lt2)
    for ks in range(8):
        a(f's_waitcnt lgkmcnt({14-2*ks})')
        c = '0' if ks == 0 else 'v[56:59]'
        a(f'v_mfma_f32_16x16x32_f16 v[56:59], v[{68+8*ks}:{71+8*ks}], v[{64+8*ks}:{67+8*ks}], {c}')
    a(f'''
    v_lshlrev_b32 v49, 5, v44
    v_lshl_add_u32 v49, v45, 3, v49
    v_add_u32 v49, 1024, v49
    v_add_u32 v49, s8, v49
    v_cmp_gt_u32 vcc, 9, v44
    s_nop 4
    v_cvt_pk_f16_f32 v60, v56, v57
    v_cvt_pk_f16_f32 v61, v58, v59
    s_and_saveexec_b64 s[10:11], vcc
    ds_write_b64 v49, v[60:61]
    s_mov_b64 exec, s[10:11]
    ''')
    a.label(lnext)
    a(f'''
    s_cmp_lg_u32 s20, 6
    s_cbranch_scc1 {lk2}
    s_cmp_lg_u32 s5, 0
    s_cbranch_scc1 {lk2}
    s_mov_b32 s5, 2
    s_branch {lt67}
    ''')
    a.label(lk2)
    srd(a, 44, 70, 71, 1728 * 1280)
    a(f'''
    s_and_b32 s52, s2, 7
    s_mul_i32 s52, s52, 27
    s_lshr_b32 s53, s2, 3
    s_add_u32 s52, s52, s53                ; cb
    s_and_b32 s54, s20, 1
    s_cmp_eq_u32 s54, 0
    s_cselect_b32 s40, s66, s68
    s_cselect_b32 s41, s67, s69
    s_and_b32 s41, s41, 0xffff
    s_mov_b32 s42, {640*3456}
    s_mov_b32 s43, 0x00020000
    s_bfe_u32 s54, s20, 0x10001
    s_mul_i32 s54, s54, 320
    s_mul_i32 s12, s54, 3456
    s_lshl_b32 s55, s52, 4
    s_add_u32 s12, s12, s55
    s_mul_i32 s17, s52, {8*1280}
    s_lshl_b32 s55, s20, 8
    s_add_u32 s17, s17, s55
    s_cmp_lt_u32 s20, 5
    s_cselect_b32 s17, s17, 0x40000000
    s_cmp_lt_u32 s2, 216
    s_cselect_b32 s12, s12, 0x40000000
    s_cselect_b32 s17, s17, 0x40000000
    s_add_u32 s13, s12, {64*3456}
    s_add_u32 s14, s12, {128*3456}
    s_add_u32 s15, s12, {192*3456}
    s_add_u32 s16, s12, {256*3456}
    s_add_u32 s18, s17, {3*1280}
    s_add_u32 s19, s17, {6*1280}
    v_mul_u32_u24 v16, 3456, v2
    ''')
    WLG = [f'buffer_load_dwordx4 v[{VW+4*e}:{VW+4*e+3}], v16, s[40:43], s{12+e} offen' for e in range(5)]
    WLD = [f'buffer_load_dword v{VW+20+r}, v4, s[44:47], s{17 + r//3} offen offset:{1280*(r%3)}' for r in range(8)]
    WL = WLD
    lp1 = a.newlabel('p1'); lp0 = a.newlabel('p0')
    a(f'''
    s_cmp_eq_u32 s20, 7
    s_cbranch_scc1 {lp0}
    ''')
    if WPOS == 'B':
        for ins in WL:
            a(ins)
    if WLDPOS == 'B':
        for ins in WLD:
            a(ins)
    a(f's_branch {lp1}')
    a.label(lp0)
    lrd2 = a.newlabel('rdy2')
    a(f'''
    v_mov_b32 v46, 0
    s_cmp_lg_u32 s101, 0
    s_cbranch_scc1 {lrd2}
    ''')
    spin('''
    buffer_load_dword v49, v46, s[24:27], 0 offen sc1
    s_waitcnt vmcnt(0)
    v_cmp_ne_u32 vcc, 0, v49
    ''')
    a.label(lrd2)
    slave(WS_GO + 256)
    a.label(lp1)
    a(f'''
    v_lshlrev_b32 v6, 3, v0
    v_mov_b32 v18, 0
    s_lshl_b32 s4, s61, 1
    s_add_u32 s4, s4, s60
    s_lshl_b32 s4, s4, 4
    s_add_u32 s4, s4, {WS_U}
    s_waitcnt lgkmcnt(0)
    s_barrier
    buffer_load_dwordx4 v[8:11], v{VU}, s[32:35], s4 offen sc1
    buffer_load_dwordx4 v[12:15], v{VU+2}, s[32:35], s4 offen sc1
    ''')
    if not TAILST: stamp(a, 6)
    if PF == 'ug':
        srd(a, 36, 66, 67, 640 * 3456)
        a(f'''
        s_cmp_lt_u32 s20, 4
        s_cselect_b32 s36, s66, s68
        s_cselect_b32 s37, s67, s69
        s_and_b32 s37, s37, 0xffff
        s_and_b32 s4, s2, 7
        s_lshr_b32 s5, s2, 3
        s_mul_i32 s6, s4, 432
        s_mul_i32 s7, s5, {20*3456}
        s_add_u32 s6, s6, s7
        s_and_b32 s7, s20, 3
        s_mul_i32 s7, s7, {5*3456}
        s_add_u32 s6, s6, s7
        v_lshrrev_b32 v19, 5, v2
        v_mul_u32_u24 v19, 3456, v19
        v_and_b32 v20, 31, v2
        v_lshl_add_u32 v19, v20, 4, v19
        v_mov_b32 v21, {OOB:#x}
        v_cmp_gt_u32 vcc, 27, v20
        s_add_u32 s7, s6, {2*3456}
        s_add_u32 s8, s6, {4*3456}
        v_cndmask_b32 v19, v21, v19, vcc
        buffer_load_dwordx4 v[196:199], v19, s[36:39], s6 offen
        buffer_load_dwordx4 v[196:199], v19, s[36:39], s7 offen
        v_cmp_gt_u32 vcc, 27, v2
        s_mul_i32 s6, s4, 160
        s_mul_i32 s7, s5, {54*1280}
        v_cndmask_b32 v19, v21, v19, vcc
        buffer_load_dwordx4 v[196:199], v19, s[36:39], s8 offen
        s_add_u32 s6, s6, s7
        s_mul_i32 s7, s20, {7*1280}
        s_add_u32 s6, s6, s7
        v_mul_u32_u24 v19, 29, v2
        v_lshrrev_b32 v19, 8, v19
        v_mul_u32_u24 v20, 9, v19
        v_sub_u32 v20, v2, v20
        v_mul_u32_u24 v19, 1280, v19
        v_lshl_add_u32 v19, v20, 4, v19
        v_mul_u32_u24 v22, 20, v20
        v_lshrrev_b32 v22, 4, v22
        v_cmp_gt_u32 vcc, 63, v2
        s_nop 1
        v_cndmask_b32 v19, v21, v19, vcc
        buffer_load_dwordx4 v[196:199], v19, s[44:47], s6 offen
        ''')
    for c in range(3):
        r = 32 + 16 * c
        for dd in range(7):
            a(f'ds_read_u16 v{r+dd}, v{GA+dd} offset:{c*KC_SZ}')
    a('''
    v_cmp_gt_u32 vcc, 96, v0
    s_and_saveexec_b64 s[4:5], vcc
    ds_write_b32 v164, v18
    s_mov_b64 exec, s[4:5]
    ''')
    for c in range(3):
        r = 32 + 16 * c
        a(f's_waitcnt lgkmcnt({min(15, 7*(2-c) + 4*c)})')
        for i in range(6):
            a(f'v_lshl_or_b32 v{r+8+i}, v{r+i+1}, 16, v{r+i}')
        for s_ in range(4):
            off = c * CP_SZ + s_ * CS + 32
            a(f'v_add_u32 v7, {off}, v6')
            a(f'ds_write2_b32 v7, v{r+8+3-s_}, v{r+8+5-s_} offset0:0 offset1:1')
    a(f'''
    v_cmp_gt_u32 vcc, 256, v0
    s_waitcnt vmcnt({5 if PF == 'ug' else 1})
    ds_write_b32 v{VU+1}, v8
    ds_write_b32 v{VU+1}, v9 offset:{US}
    ds_write_b32 v{VU+1}, v10 offset:{2*US}
    ds_write_b32 v{VU+1}, v11 offset:{3*US}
    s_waitcnt vmcnt({4 if PF == 'ug' else 0})
    s_and_saveexec_b64 s[4:5], vcc
    ds_write_b32 v{VU+3}, v12
    ds_write_b32 v{VU+3}, v13 offset:{US}
    ds_write_b32 v{VU+3}, v14 offset:{2*US}
    ds_write_b32 v{VU+3}, v15 offset:{3*US}
    s_mov_b64 exec, s[4:5]
    ''')
    if WPOS == 'B':
        lw0 = a.newlabel('w0')
        a(f'''
        s_cmp_lg_u32 s20, 0
        s_cbranch_scc1 {lw0}
        ''')
        for ins in WL:
            a(ins)
        a.label(lw0)
    if WPOS == 'U':
        for ins in WL:
            a(ins)
    if PF == 'ug2':
        lnp = a.newlabel('np')
        a(f'''
        s_cmp_lt_u32 s20, 6
        s_cbranch_scc1 {lnp}
        s_mov_b32 s8, s40
        s_mov_b32 s9, s41
        ''')
        prefetch()
        a('''
        s_mov_b32 s40, s8
        s_mov_b32 s41, s9
        ''')
        a.label(lnp)
    zero_mailboxes()
    srd(a, 28, 64, 65, 1280)
    a('''
    buffer_load_dwordx4 v[160:163], v3, s[28:31], 0 offen
    buffer_load_dword v205, v4, s[28:31], 0 offen offset:1024
    ''')
    a(f'''
    v_lshrrev_b32 v8, 4, v2
    v_mul_u32_u24 v9, {CS}, v8
    v_bfe_u32 v10, v2, 2, 2
    v_and_b32 v11, 3, v2
    v_sub_u32 v10, v11, v10
    v_lshl_add_u32 v9, v10, 3, v9
    v_add_u32 v9, 32, v9
    v_mul_u32_u24 v10, {US}, v8
    v_and_b32 v11, 15, v2
    v_lshl_add_u32 v10, v11, 3, v10
    v_add_u32 v10, {L_UP+8}, v10
    v_lshlrev_b32 v12, 5, v11
    v_lshl_add_u32 v12, v8, 3, v12
    v_lshlrev_b32 v13, 4, v2
    v_mov_b32 v5, {M_SCALE}
    ds_read_b96 v[20:22], v5
    ''')
    ACC = 24
    SACC = [196, 212, 152, 156, 164]
    for i in range(32):
        a(f'v_mov_b32 v{ACC+i}, 0')
    for r in SACC:
        for e in range(4):
            a(f'v_mov_b32 v{r+e}, 0')
    a(f'''
    s_lshr_b32 s4, s20, 1
    s_and_b32 s5, s20, 1
    s_lshl_b32 s6, s5, 2
    s_mul_i32 s7, s4, {CP_SZ}
    s_sub_u32 s8, 4, s6
    s_lshl_b32 s8, s8, 6
    s_add_u32 s7, s7, s8
    v_add_u32 v14, s7, v9
    s_mul_i32 s7, s4, {UP_SZ}
    s_lshl_b32 s8, s6, 4
    s_add_u32 s7, s7, s8
    v_add_u32 v15, s7, v10
    s_waitcnt lgkmcnt(0)
    v_readfirstlane_b32 s48, v20
    v_readfirstlane_b32 s49, v21
    v_readfirstlane_b32 s50, v22
    s_lshl_b32 s6, s20, 1
    s_sub_u32 s8, 4, s6
    s_lshl_b32 s8, s8, 6
    s_add_u32 s7, s8, {2*CP_SZ}
    v_add_u32 v22, s7, v9
    s_lshl_b32 s8, s6, 4
    s_add_u32 s7, s8, {2*UP_SZ}
    v_add_u32 v19, s7, v10
    s_lshl_b32 s11, s20, 10
    s_add_u32 s11, s11, {L_RED + 32768}
    v_add_u32 v20, s11, v13
    s_lshl_b32 s10, s20, 11
    s_add_u32 s10, s10, s3
    v_add_u32 v13, {L_RED}, v13
    v_lshlrev_b32 v18, 6, v11
    v_lshl_add_u32 v18, v8, 4, v18
    s_barrier
    ''')
    stamp(a, 8)
    if CONVST: cstamp(a, 10)
    if PF == 'conv':
        lnp = a.newlabel('np')
        a(f'''
        s_cmp_lt_u32 s20, 6
        s_cbranch_scc1 {lnp}
        s_mov_b32 s8, s40
        s_mov_b32 s9, s41
        s_mov_b32 s10, s42
        ''')
        prefetch(152)
        a('''
        s_mov_b32 s40, s8
        s_mov_b32 s41, s9
        s_mov_b32 s42, s10
        ''')
        a.label(lnp)
    def loads(setbase, tiles_mx, cls_idx, va=14, vb=15):
        out = []
        for m in range(tiles_mx + 1):
            fa, fb = setbase[0] + 4 * m, setbase[1] + 4 * m
            oa = 512 * m + 64 * (3 - cls_idx)
            ob = 128 * m + 16 * cls_idx
            out.append(f'ds_read_b64_tr_b16 v[{fa}:{fa+1}], v{va} offset:{oa+32}')
            out.append(f'ds_read_b64_tr_b16 v[{fa+2}:{fa+3}], v{va} offset:{oa}')
            out.append(f'ds_read_b64 v[{fb}:{fb+1}], v{vb} offset:{ob}')
            out.append(f'ds_read_b64 v[{fb+2}:{fb+3}], v{vb} offset:{ob+8}')
        return out
    SETS = [(56, 88), (120, 216)]
    SACC = [196, 212, 152, 156, 164]
    def job(st, accmap, nload, nxt, extra, first=False, older=0):
        tiles = list(accmap)
        mx = max(tiles)
        mf = []
        for s in range(mx + 1):
            grp = []
            for (m, aa) in [(s, i) for i in range(s + 1)] + [(i, s) for i in range(s)]:
                c = m + aa
                if c in accmap:
                    r = accmap[c]
                    grp.append(f'v_mfma_f32_16x16x32_f16 v[{r}:{r+3}], v[{st[0]+4*m}:{st[0]+4*m+3}], v[{st[1]+4*aa}:{st[1]+4*aa+3}], v[{r}:{r+3}]')
            mf.append(grp)
        nmf = sum(len(g) for g in mf)
        per = 1 if nmf >= len(nxt) else 2
        wq = list(extra)
        wstep = max(1, nmf // (len(wq) + 1))
        k = 0; nm = 0
        for s_ in range(mx + 1):
            allowed = nload - 4 * (s_ + 1) + k
            if mf[s_]:
                a(f's_waitcnt lgkmcnt({min(15, allowed)})')
            for ins in mf[s_]:
                a(ins)
                nm += 1
                if wq and nm % wstep == 0:
                    a(wq.pop(0))
                if not first or s_ >= 2:
                    for _ in range(per):
                        if k < len(nxt):
                            a(nxt[k]); k += 1
        while k < len(nxt):
            a(nxt[k]); k += 1
        for ins in wq: a(ins)
    def job0(st, accmap, own, nxt):
        q = list(own) + list(nxt)
        issued = 0
        def emit(n):
            nonlocal issued
            for _ in range(n):
                if issued < len(q):
                    a(q[issued]); issued += 1
        emit(12)
        for s_ in range(8):
            need = 4 * (s_ + 1)
            while issued < min(len(q), need + 8):
                emit(1)
            a(f's_waitcnt lgkmcnt({min(15, issued - need)})')
            for (m, aa) in [(s_, i) for i in range(s_ + 1)] + [(i, s_) for i in range(s_)]:
                c = m + aa
                if c in accmap:
                    r = accmap[c]
                    a(f'v_mfma_f32_16x16x32_f16 v[{r}:{r+3}], v[{st[0]+4*m}:{st[0]+4*m+3}], v[{st[1]+4*aa}:{st[1]+4*aa+3}], v[{r}:{r+3}]')
                    emit(2 if issued < 40 else 1)
        emit(len(q))
    def epilogue(c, sreg_scale, sreg_out):
        r = ACC + 4 * c
        a(f'''
        v_fma_f32 v{r}, s{sreg_scale}, v{r}, 0
        v_fma_f32 v{r+1}, s{sreg_scale}, v{r+1}, 0
        v_fma_f32 v{r+2}, s{sreg_scale}, v{r+2}, 0
        v_fma_f32 v{r+3}, s{sreg_scale}, v{r+3}, 0
        v_cvt_pk_bf16_f32 v{r}, v{r}, v{r+1}
        v_cvt_pk_bf16_f32 v{r+1}, v{r+2}, v{r+3}
        v_xor_b32 v{r}, 0x80008000, v{r}
        v_xor_b32 v{r+1}, 0x80008000, v{r+1}
        buffer_store_dwordx2 v[{r}:{r+1}], v12, s[32:35], s{sreg_out} offen offset:{512*c} sc1
        ''')
    lS = a.newlabel('shared'); lcd = a.newlabel('convdone')
    FA = 56
    a(f'''
    s_cmp_ge_u32 s20, 4
    s_cbranch_scc1 {lS}
    ''')
    main = {c: ACC + 4 * c for c in range(8)}
    for ci in range(4):
        nxt = loads(SETS[(ci + 1) % 2], 7, ci + 1) if ci < 3 else loads(SETS[0], 7, 0, 22, 19)
        ex = (WLD[:4] if ci == 1 else (WLD[4:] if ci == 2 else [])) if WLDPOS == 'conv' else []
        if ci == 0:
            job0(SETS[0], main, loads(SETS[0], 7, 0), nxt)
        else:
            job(SETS[ci % 2], main, 32, nxt, ex)
        if CONVST: cstamp(a, [2, 4, 5, 6][ci])
    lSo = a.newlabel('so'); lsd = a.newlabel('sd')
    a(f'''
    s_cmp_eq_u32 s61, 1
    s_cbranch_scc1 {lSo}
    ''')
    for par in range(2):
        tiles = [0, 1, 2, 3, 7] if par == 0 else [4, 5, 6]
        amap = {c: SACC[i] for i, c in enumerate(tiles)}
        if par == 1:
            a.label(lSo)
        job(SETS[0], amap, 32, loads(SETS[1], max(tiles), 1, 22, 19), [])
        job(SETS[1], amap, 4 * (max(tiles) + 1), [], [])
        a('s_nop 7')
        a('s_nop 1')
        for i, c in enumerate(tiles):
            a(f'ds_write_b128 v20, v[{SACC[i]}:{SACC[i]+3}] offset:{4096*i}')
        if par == 0:
            a(f's_branch {lsd}')
    a.label(lsd)
    if CONVST: cstamp(a, 3)
    stamp(a, 7)
    lws = [a.newlabel(f'rw{w}') for w in range(4)]
    a(f'''
    s_cmp_eq_u32 s20, 1
    s_cbranch_scc1 {lws[1]}
    s_cmp_eq_u32 s20, 2
    s_cbranch_scc1 {lws[2]}
    s_cmp_eq_u32 s20, 3
    s_cbranch_scc1 {lws[3]}
    ''')
    for w in range(4):
        a.label(lws[w])
        for c in range(8):
            if c >> 1 != w:
                a(f'ds_write_b128 v13, v[{ACC+4*c}:{ACC+4*c+3}] offset:{8192*w + 1024*c}')
        a('s_waitcnt vmcnt(8) lgkmcnt(0)' if WLDPOS == 'conv' else 's_waitcnt vmcnt(0) lgkmcnt(0)')
        a('s_barrier')
        if REDST: stamp(a, 5)
        others = [x for x in range(4) if x != w]
        partner = w ^ 1
        oth = [x for x in others if x != partner]
        for j in range(2):
            c = 2 * w + j
            for k, x in enumerate([partner] + oth):
                a(f'ds_read_b128 v[{FA+12*j+4*k}:{FA+12*j+4*k+3}], v13 offset:{8192*x + 1024*c}')
        for j in range(2):
            c = 2 * w + j
            own = ACC + 4 * c; f0 = FA + 12 * j
            a(f's_waitcnt lgkmcnt({3*(1-j)})')
            for e in range(4):
                a(f'v_add_f32 v{own+e}, v{own+e}, v{f0+e}')
                a(f'v_add_f32 v{f0+4+e}, v{f0+4+e}, v{f0+8+e}')
            ra, rb_ = (own, f0 + 4) if w < 2 else (f0 + 4, own)
            q = FA + 32 + 4 * j
            for e in range(4):
                a(f'v_fma_f32 v{ra+e}, s48, v{ra+e}, 0')
                a(f'v_fma_f32 v{rb_+e}, s49, v{rb_+e}, 0')
            a(f'''
            v_cvt_pk_bf16_f32 v{q}, v{ra}, v{ra+1}
            v_cvt_pk_bf16_f32 v{q+1}, v{ra+2}, v{ra+3}
            v_cvt_pk_bf16_f32 v{q+2}, v{rb_}, v{rb_+1}
            v_cvt_pk_bf16_f32 v{q+3}, v{rb_+2}, v{rb_+3}
            v_xor_b32 v{q}, 0x80008000, v{q}
            v_xor_b32 v{q+1}, 0x80008000, v{q+1}
            v_xor_b32 v{q+2}, 0x80008000, v{q+2}
            v_xor_b32 v{q+3}, 0x80008000, v{q+3}
            s_nop 0
            v_permlane16_swap_b32 v{q}, v{q+2}
            v_permlane16_swap_b32 v{q+1}, v{q+3}
            buffer_store_dwordx4 v[{q}:{q+3}], v18, s[32:35], s10 offen offset:{1024*j} sc1
            ''')
        a(f's_branch {lcd}')
    a.label(lS)
    lSo2 = a.newlabel('sharedodd')
    if PF == 'ug2':
        a('s_waitcnt vmcnt(0)')
    for ins in (WLD if WLDPOS == 'conv' else []) + WLG:
        a(ins)
    a(f'''
    s_sub_u32 s5, s20, 4                   ; ww
    s_mov_b32 s10, s100
    v_add_u32 v13, 32768, v13
    s_waitcnt vmcnt({13 if WLDPOS == 'conv' else 5})
    s_barrier
    s_cmp_eq_u32 s61, 1
    s_cbranch_scc1 {lSo2}
    ''')
    for par in range(2):
        tiles = [0, 1, 2, 3, 7] if par == 0 else [4, 5, 6]
        if par == 1:
            a.label(lSo2)
        for ww in range(4):
            lnx = a.newlabel('nx')
            a(f's_cmp_lg_u32 s5, {ww}')
            a(f's_cbranch_scc1 {lnx}')
            for i, c in enumerate(tiles):
                if i % 4 != ww: continue
                for k in range(4):
                    a(f'ds_read_b128 v[{FA+4*k}:{FA+4*k+3}], v13 offset:{4096*i + 1024*k}')
                a('s_waitcnt lgkmcnt(0)')
                for e in range(4):
                    a(f'v_add_f32 v{FA+e}, v{FA+e}, v{FA+4+e}')
                    a(f'v_add_f32 v{FA+8+e}, v{FA+8+e}, v{FA+12+e}')
                    a(f'v_add_f32 v{ACC+4*c+e}, v{FA+e}, v{FA+8+e}')
                epilogue(c, 50, 10)
            a(f's_branch {lcd}')
            a.label(lnx)
        a(f's_branch {lcd}')
    a.label(lcd)
    if PRIO: a('s_setprio 0')
    stamp(a, 9)
    srd(a, 36, 72, 73, 2621440)
    lg = a.newlabel('g'); lg1 = a.newlabel('g1'); lg2 = a.newlabel('g2'); lgo = a.newlabel('go')
    a(f'''
    v_lshrrev_b32 v7, 1, v0
    v_lshlrev_b32 v5, 13, v7
    v_and_b32 v6, 1, v0
    v_lshl_add_u32 v5, v6, 4, v5
    v_lshrrev_b32 v33, 2, v0
    v_mul_u32_u24 v33, 5, v33
    v_add_u32 v6, v6, v33
    v_and_b32 v7, 1, v7
    v_mul_u32_u24 v7, 3, v7
    v_add_u32 v6, v6, v7
    v_lshlrev_b32 v6, 2, v6
    v_lshlrev_b32 v7, 12, v0
    v_mul_u32_u24 v33, 20, v0
    v_add_u32 v33, 8, v33
    s_lshl_b32 s48, s21, 5
    s_add_u32 s48, s48, {WS_YT}
    s_lshl_b32 s49, s21, 4
    s_add_u32 s49, s49, {WS_YS}
    v_cmp_gt_u32 vcc, 128, v0
    s_mov_b64 s[6:7], -1
    s_mov_b64 s[8:9], vcc
    s_mov_b32 s4, 0
    ''')
    a.label(lg)
    a(f'''
    s_mov_b64 exec, s[6:7]
    s_cbranch_execz {lg1}
    buffer_load_dwordx4 v[8:11], v5, s[32:35], s48 offen sc1
    ''')
    a.label(lg1)
    a(f'''
    s_mov_b64 exec, s[8:9]
    s_cbranch_execz {lg2}
    buffer_load_dwordx4 v[12:15], v7, s[32:35], s49 offen sc1
    ''')
    a.label(lg2)
    a(f'''
    s_mov_b64 exec, -1
    s_add_u32 s4, s4, 1
    s_waitcnt vmcnt(0)
    v_min_u32 v36, v8, v9
    v_min3_u32 v36, v36, v10, v11
    v_min_u32 v37, v12, v13
    v_min3_u32 v37, v37, v14, v15
    v_cmp_eq_u32 vcc, 0, v36
    v_cmp_eq_u32 s[10:11], 0, v37
    s_and_b64 s[6:7], s[6:7], vcc
    s_and_b64 s[8:9], s[8:9], s[10:11]
    s_cmp_ge_u32 s4, {SPIN_MAX}
    s_cbranch_scc1 {lgo}
    s_or_b64 s[10:11], s[6:7], s[8:9]
    s_cbranch_scc1 {lg}
    ''')
    a.label(lgo)
    if not CONVST: stamp(a, 3)
    if STAMPS:
        a('s_mov_b32 s78, s4')
    a(f'''
    v_cmp_gt_u32 vcc, 128, v0
    ds_write2st64_b32 v6, v8, v9 offset0:0 offset1:10
    ds_write2st64_b32 v6, v10, v11 offset0:20 offset1:30
    s_and_saveexec_b64 s[42:43], vcc
    ds_write2st64_b32 v33, v12, v13 offset0:0 offset1:10
    ds_write2st64_b32 v33, v14, v15 offset0:20 offset1:30
    s_mov_b64 exec, s[42:43]
    s_lshr_b32 s44, s20, 1
    s_mul_i32 s44, s44, 2560
    v_lshlrev_b32 v7, 5, v2
    v_add_u32 v7, s44, v7
    v_lshlrev_b32 v33, 3, v2
    v_add_u32 v33, s44, v33
    s_and_b32 s45, s20, 1
    s_mul_i32 s45, s45, 0x02020000
    s_add_u32 s45, s45, 0x01000c0c
    ''')
    XR = 40; T = 50; W = 60; H = 70
    for i in range(4):
        unpack(a, VX + i, XR + 2 * i, XR + 2 * i + 1)
        unpack(a, VT + i, T + 2 * i, T + 2 * i + 1)
        unpack(a, 160 + i, W + 2 * i, W + 2 * i + 1)
    unpack(a, VX + 4, XR + 8, XR + 9)
    unpack(a, VT + 4, T + 8, T + 9)
    unpack(a, 205, W + 8, W + 9)
    a(f'''
    s_waitcnt lgkmcnt(0)
    s_barrier
    ds_read_b128 v[8:11], v7
    ds_read_b128 v[12:15], v7 offset:16
    ds_read_b64 v[34:35], v33 offset:2048
    ''')
    if not CONVST: stamp(a, 10)
    X = XR
    a('s_waitcnt lgkmcnt(0)')
    ysrc = list(range(8, 16)) + [34, 35]
    for i in range(10):
        a(f'v_perm_b32 v{ysrc[i]}, v{ysrc[i]}, v{ysrc[i]}, s45')
    for p in range(5):
        i0, i1 = 2 * p, 2 * p + 1
        a(f'''
        v_sub_f32 v{T+i0}, v{T+i0}, v{ysrc[i0]}
        v_sub_f32 v{T+i1}, v{T+i1}, v{ysrc[i1]}
        v_cvt_pk_bf16_f32 v36, v{T+i0}, v{T+i1}
        v_lshlrev_b32 v{T+i0}, 16, v36
        v_and_b32 v{T+i1}, 0xffff0000, v36
        v_add_f32 v{T+i0}, v{X+i0}, v{T+i0}
        v_add_f32 v{T+i1}, v{X+i1}, v{T+i1}
        v_cvt_pk_bf16_f32 v36, v{T+i0}, v{T+i1}
        v_lshlrev_b32 v{H+i0}, 16, v36
        v_and_b32 v{H+i1}, 0xffff0000, v36
        ''')
    ln_stats(a, H, X, 36, 21, 37, 38, 39, 46, 47, 48)
    a('v_mov_b32 v36, 0')
    a('v_mov_b32 v21, 0')
    for p in range(5):
        i0, i1 = 2 * p, 2 * p + 1
        a(f'''
        v_sub_f32 v{X+i0}, v{H+i0}, v37
        v_sub_f32 v{X+i1}, v{H+i1}, v37
        v_cvt_pk_bf16_f32 v39, v{X+i0}, v{X+i1}
        v_lshlrev_b32 v{X+i0}, 16, v39
        v_and_b32 v{X+i1}, 0xffff0000, v39
        v_mul_f32 v{X+i0}, v{X+i0}, v38
        v_mul_f32 v{X+i1}, v{X+i1}, v38
        v_cvt_pk_bf16_f32 v39, v{X+i0}, v{X+i1}
        v_lshlrev_b32 v{X+i0}, 16, v39
        v_and_b32 v{X+i1}, 0xffff0000, v39
        v_fmac_f32 v36, v{X+i0}, v{W+i0}
        v_fmac_f32 v21, v{X+i1}, v{W+i1}
        ''')
    a('v_add_f32 v36, v36, v21')
    wave_reduce(a, 'v_add_f32', 36)
    a(f'''
    v_cvt_pk_bf16_f32 v36, v36, v36
    v_and_b32 v36, 0xffff, v36
    v_xor_b32 v37, 0xffff, v36
    v_or_b32 v38, 0x8000, v36
    v_cmp_lt_u32 vcc, 0x7fff, v36
    s_sub_u32 s46, 4095, s22
    s_lshl_b32 s49, s20, 2
    v_cndmask_b32 v36, v38, v37, vcc
    v_lshl_or_b32 v36, v36, 16, s46
    s_add_u32 s49, s49, {M_KEYS}
    v_mov_b32 v37, s49
    v_readlane_b32 s48, v36, 63
    s_nop 1
    v_mov_b32 v38, s48
    ds_write_b32 v37, v38
    ''')
    for p in range(5):
        i0, i1 = 2 * p, 2 * p + 1
        a(f'''
        v_add_f32 v{T+i0}, v{H+i0}, v{X+i0}
        v_add_f32 v{T+i1}, v{H+i1}, v{X+i1}
        v_cvt_pk_bf16_f32 v{92+p}, v{T+i0}, v{T+i1}
        ''')
    lnb = a.newlabel('notbest'); lpoll = a.newlabel('poll'); lb2 = a.newlabel('b2')
    a(f'''
    v_and_b32 v37, 7, v2
    v_lshlrev_b32 v37, 2, v37
    v_add_u32 v37, {M_KEYS}, v37
    s_waitcnt lgkmcnt(0)
    s_barrier
    ds_read_b32 v38, v37
    s_waitcnt lgkmcnt(0)
    s_nop 1
    v_max_u32_dpp v38, v38, v38 quad_perm:[1,0,3,2] row_mask:0xf bank_mask:0xf
    s_nop 1
    v_max_u32_dpp v38, v38, v38 quad_perm:[2,3,0,1] row_mask:0xf bank_mask:0xf
    s_nop 1
    v_max_u32_dpp v38, v38, v38 row_half_mirror row_mask:0xf bank_mask:0xf
    s_nop 0
    v_readfirstlane_b32 s50, v38
    s_cmp_lg_u32 s50, s48
    s_cbranch_scc1 {lnb}
    s_lshl_b32 s51, s21, 4
    s_add_u32 s51, s51, {WS_KEY}
    v_mov_b32 v37, 0
    s_mov_b64 exec, 1
    buffer_store_dword v38, v37, s[32:35], s51 offen sc1
    s_mov_b64 exec, -1
    ''')
    for i in range(10):
        a(f'v_or_b32 v{X+i}, 1, v{X+i}')
        a(f'v_or_b32 v{H+i}, 1, v{H+i}')
    a(f'''
    s_mul_i32 s51, s21, 5120
    s_add_u32 s51, s51, {WS_CAND}
    v_lshlrev_b32 v37, 5, v2
    v_lshlrev_b32 v39, 3, v2
    buffer_store_dwordx4 v[{X}:{X+3}], v37, s[32:35], s51 offen sc1
    buffer_store_dwordx4 v[{X+4}:{X+7}], v37, s[32:35], s51 offen offset:16 sc1
    buffer_store_dwordx2 v[{X+8}:{X+9}], v39, s[32:35], s51 offen offset:2048 sc1
    s_add_u32 s51, s51, 2560
    buffer_store_dwordx4 v[{H}:{H+3}], v37, s[32:35], s51 offen sc1
    buffer_store_dwordx4 v[{H+4}:{H+7}], v37, s[32:35], s51 offen offset:16 sc1
    buffer_store_dwordx2 v[{H+8}:{H+9}], v39, s[32:35], s51 offen offset:2048 sc1
    s_branch {lpoll}
    ''')
    a.label(lnb)
    a('''
    buffer_store_dwordx4 v[92:95], v3, s[36:39], s23 offen OUTFLAG
    buffer_store_dword v96, v4, s[36:39], s23 offen offset:1024 OUTFLAG
    ''')
    a.label(lpoll)
    if TAILST and not CONVST: stamp(a, 2)
    UW = 100
    lks = a.newlabel('kslave'); lkd = a.newlabel('kd'); lu3 = a.newlabel('u3')
    for i in range(28):
        unpack(a, VW + i, UW + 2 * i, UW + 2 * i + 1)
    latt = a.newlabel('attempt'); lpost = a.newlabel('post'); lgb = a.newlabel('gb')
    a('''
    s_mov_b32 s58, s48
    s_mov_b32 s59, s50
    s_mov_b32 s56, 0
    ''')
    a.label(latt)
    a(f'''
    s_cmp_lg_u32 s20, 0
    s_cbranch_scc1 {lb2}
    s_cmp_lg_u32 s2, 255
    s_cbranch_scc1 {lks}
    ''')
    lm = a.newlabel('m'); lmo = a.newlabel('mo'); lmn = a.newlabel('mn')
    a(f'''
    s_mov_b32 s5, {WS_KEY}
    s_mov_b32 s6, {WS_KEY + 2048}
    s_mov_b32 s4, 0
    s_mov_b32 s7, 0
    v_lshlrev_b32 v14, 12, v2
    s_mov_b32 s9, {WS_GO + 128}
    ''')
    a.label(lm)
    a(f'''
    buffer_load_dword v8, v3, s[32:35], s5 offen sc1
    buffer_load_dword v9, v3, s[32:35], s5 offen offset:1024 sc1
    buffer_load_dword v10, v3, s[32:35], s6 offen sc1
    buffer_load_dword v11, v3, s[32:35], s6 offen offset:1024 sc1
    s_add_u32 s4, s4, 1
    s_waitcnt vmcnt(0)
    v_cmp_ne_u32 vcc, 0, v8
    v_cmp_ne_u32 s[10:11], 0, v9
    s_bcnt1_i32_b64 s8, vcc
    s_bcnt1_i32_b64 s12, s[10:11]
    v_cmp_ne_u32 vcc, 0, v10
    v_cmp_ne_u32 s[10:11], 0, v11
    s_add_u32 s8, s8, s12
    s_bcnt1_i32_b64 s12, vcc
    s_add_u32 s8, s8, s12
    s_bcnt1_i32_b64 s12, s[10:11]
    s_add_u32 s8, s8, s12
    s_cmp_ge_u32 s4, {SPIN_MAX}
    s_cselect_b32 s8, 256, s8
    s_cmp_lt_u32 s8, {SPEC_TH}
    s_cbranch_scc1 {lm}
    s_cmp_eq_u32 s8, 256
    s_cbranch_scc1 {lmn}
    s_cmp_lg_u32 s7, 0
    s_cbranch_scc1 {lm}
    ''')
    a.label(lmn)
    a('''
    v_max_u32 v12, v8, v9
    v_max3_u32 v12, v12, v10, v11
    ''')
    wave_reduce(a, 'v_max_u32', 12)
    a(f'''
    s_nop 0
    v_readlane_b32 s12, v12, 63
    s_cmp_eq_u32 s7, 0
    s_cselect_b32 s7, s12, s7
    s_cmp_eq_u32 s8, 256
    s_cselect_b32 s12, s12, 0
    v_mov_b32 v8, s7
    v_mov_b32 v9, s12
    s_mov_b64 exec, {(1<<NREP)-1:#x}
    buffer_store_dwordx2 v[8:9], v14, s[32:35], s9 offen sc1
    s_mov_b64 exec, -1
    s_cmp_eq_u32 s8, 256
    s_cbranch_scc0 {lm}
    s_branch {lkd}
    ''')
    a.label(lks)
    a(f'''
    s_and_b32 s5, s2, {NREP-1}
    s_lshl_b32 s5, s5, 12
    s_add_u32 s5, s5, {WS_GO + 128}
    v_mov_b32 v46, 0
    s_cmp_lt_u32 s2, 216
    s_cselect_b32 s6, -1, 0
    s_cmp_eq_u32 s56, 0
    s_cselect_b32 s6, s6, 0
    ''')
    spin('''
    buffer_load_dwordx2 v[8:9], v46, s[32:35], s5 offen sc1
    s_waitcnt vmcnt(0)
    v_and_b32 v10, s6, v8
    v_or_b32 v10, v10, v9
    v_cmp_ne_u32 vcc, 0, v10
    ''')
    a.label(lkd)
    a(f'''
    v_mov_b32 v10, {M_GKEY}
    s_mov_b64 exec, 1
    ds_write_b64 v10, v[8:9]
    s_mov_b64 exec, -1
    s_waitcnt lgkmcnt(0)
    ''')
    a.label(lb2)
    lw = a.newlabel('iswin'); ldown = a.newlabel('down')
    a(f'''
    s_barrier
    v_mov_b32 v10, {M_GKEY}
    ds_read_b64 v[8:9], v10
    s_waitcnt lgkmcnt(0)
    v_readfirstlane_b32 s57, v8            ; p
    v_readfirstlane_b32 s44, v9            ; f
    s_cmp_eq_u32 s44, 0
    s_cbranch_scc1 {lw}
    s_cmp_lg_u32 s59, s58
    s_cbranch_scc1 {lw}
    s_cmp_eq_u32 s44, s58
    s_cbranch_scc1 {lw}
    buffer_store_dwordx4 v[92:95], v3, s[36:39], s23 offen OUTFLAG
    buffer_store_dword v96, v4, s[36:39], s23 offen offset:1024 OUTFLAG
    ''')
    a.label(lw)
    if TAILST and not CONVST: stamp(a, 4)
    a(f'''
    s_mov_b32 s51, s44
    s_cmp_eq_u32 s44, 0
    s_cselect_b32 s44, s57, s44
    s_cmp_eq_u32 s44, s56
    s_cbranch_scc1 {end}
    s_mov_b32 s56, s44
    s_cmp_eq_u32 s44, s57
    s_cselect_b32 s19, 0, {SET1}
    s_and_b32 s45, s44, 0x7ff
    s_sub_u32 s45, 2047, s45
    s_lshr_b32 s46, s45, 3
    s_mul_i32 s46, s46, 5120
    s_add_u32 s46, s46, {WS_CAND}
    s_cmp_ge_u32 s2, 216
    s_cbranch_scc1 {ldown}
    ; ---- G (waves 4-7) ----
    s_cmp_lt_u32 s20, 4
    s_cbranch_scc1 {lgb}
    s_lshl_b32 s47, s54, 2
    s_add_u32 s47, s47, s46
    ''')
    spin('''
    buffer_load_dword v12, v4, s[32:35], s47 offen sc1
    buffer_load_dword v13, v4, s[32:35], s47 offen offset:256 sc1
    buffer_load_dword v14, v4, s[32:35], s47 offen offset:512 sc1
    buffer_load_dword v15, v4, s[32:35], s47 offen offset:768 sc1
    buffer_load_dword v16, v4, s[32:35], s47 offen offset:1024 sc1
    s_waitcnt vmcnt(0)
    v_and_b32 v17, v12, v13
    v_and_b32 v18, v14, v15
    v_and_b32 v17, v17, v16
    v_and_b32 v17, v17, v18
    v_and_b32 v17, 1, v17
    v_cmp_ne_u32 vcc, 0, v17
    ''')
    if TAILST and not CONVST: stamp(a, 6)
    for i in range(12, 17):
        a(f'v_and_b32 v{i}, 0xffff0000, v{i}')
    R = 40
    for e in range(5):
        for i in range(8):
            op = 'v_mul_f32' if e == 0 else 'v_fmac_f32'
            a(f'{op} v{R+i}, v{12+e}, v{UW+8*e+i}')
    reduceN(a, R, 8)
    a(f'''
    v_lshrrev_b32 v6, 4, v2
    v_lshlrev_b32 v6, 3, v6
    s_lshl_b32 s47, s20, 5
    s_add_u32 s47, s47, {M_P1 - 128}
    v_add_u32 v6, s47, v6
    s_mov_b32 exec_lo, 0x00010001
    s_mov_b32 exec_hi, 0x00010001
    ds_write_b64 v6, v[{R}:{R+1}]
    s_mov_b64 exec, -1
    s_waitcnt lgkmcnt(0)
    ''')
    a.label(lgb)
    a(f'''
    s_barrier
    s_cmp_ge_u32 s20, 5
    s_cbranch_scc1 {lpost}
    v_and_b32 v6, 7, v2
    v_lshlrev_b32 v6, 2, v6
    v_add_u32 v6, {M_P1}, v6
    ds_read_b32 v8, v6
    ds_read_b32 v9, v6 offset:64
    ds_read_b32 v12, v6 offset:32
    ds_read_b32 v13, v6 offset:96
    s_mul_i32 s47, s2, 2560
    s_lshl_b32 s48, s20, 9
    s_add_u32 s47, s47, s48
    s_add_u32 s47, s47, {WS_YP}
    s_add_u32 s47, s47, s19
    v_lshlrev_b32 v5, 3, v2
    s_waitcnt lgkmcnt(0)
    v_add_f32 v8, v8, v9
    v_add_f32 v12, v12, v13
    ''')
    round_bf16(a, 8, 9)
    round_bf16(a, 12, 9)
    a(f'''
    v_mul_f32 v9, {fbits(-LOG2E):#x}, v8
    v_exp_f32 v9, v9
    s_nop 0
    v_add_f32 v9, 1.0, v9
    v_rcp_f32 v9, v9
    s_nop 0
    v_mul_f32 v8, v8, v9
    ''')
    round_bf16(a, 8, 9)
    a('v_mul_f32 v8, v8, v12')
    round_bf16(a, 8, 9)
    a('s_nop 0')
    for r in range(8):
        a(f'v_readlane_b32 s{4+r}, v8, {r}')
    a('s_nop 1')
    for r in range(8):
        op = 'v_mul_f32' if r == 0 else 'v_fmac_f32'
        a(f'{op} v10, s{4+r}, v{UW+40+2*r}')
        a(f'{op} v11, s{4+r}, v{UW+41+2*r}')
    a(f'''
    v_or_b32 v10, 1, v10
    v_or_b32 v11, 1, v11
    buffer_store_dwordx2 v[10:11], v5, s[32:35], s47 offen sc1
    ''')
    if not CONVST and not REDST: stamp(a, 5)
    a.label(lpost)
    a(f'''
    s_cmp_eq_u32 s51, 0
    s_cbranch_scc1 {latt}
    s_branch {end}
    ''')
    a.label(ldown)
    a(f'''
    s_sub_u32 s53, s2, 216
    v_lshrrev_b32 v5, 2, v0
    v_mul_u32_u24 v5, 2560, v5
    v_and_b32 v6, 3, v0
    v_lshl_add_u32 v5, v6, 4, v5
    v_mov_b32 v7, {OOB:#x}
    v_cmp_gt_u32 vcc, 352, v0
    v_mov_b32 v8, 1
    s_lshl_b32 s47, s53, 6
    v_cndmask_b32 v6, v7, v5, vcc
    v_cndmask_b32 v7, v8, 0, vcc
    s_add_u32 s55, s47, s46
    s_add_u32 s47, s47, {WS_YP}
    s_add_u32 s47, s47, s19
    s_add_u32 s48, s47, {128*2560}
    v_and_b32 v22, 15, v2
    v_lshlrev_b32 v22, 2, v22
    ''')
    spin('''
    buffer_load_dword v20, v22, s[32:35], s55 offen sc1
    buffer_load_dword v21, v22, s[32:35], s55 offen offset:2560 sc1
    s_waitcnt vmcnt(0)
    v_and_b32 v16, v20, v21
    v_and_b32 v16, 1, v16
    v_cmp_ne_u32 vcc, 0, v16
    ''')
    lf = a.newlabel('f'); lf1 = a.newlabel('f1'); lf2 = a.newlabel('f2'); lfo = a.newlabel('fo')
    a(f'''
    v_mov_b32 v12, 0
    v_mov_b32 v13, 0
    v_mov_b32 v14, 0
    v_mov_b32 v15, 0
    v_cmp_gt_u32 vcc, 352, v0
    s_mov_b64 s[6:7], -1
    s_mov_b64 s[8:9], vcc
    s_mov_b32 s4, 0
    ''')
    a.label(lf)
    a(f'''
    s_mov_b64 exec, s[6:7]
    s_cbranch_execz {lf1}
    buffer_load_dwordx4 v[8:11], v5, s[32:35], s47 offen sc1
    ''')
    a.label(lf1)
    a(f'''
    s_mov_b64 exec, s[8:9]
    s_cbranch_execz {lf2}
    buffer_load_dwordx4 v[12:15], v5, s[32:35], s48 offen sc1
    ''')
    a.label(lf2)
    a(f'''
    s_mov_b64 exec, -1
    s_add_u32 s4, s4, 1
    s_waitcnt vmcnt(0)
    v_and_b32 v16, v8, v9
    v_and_b32 v17, v10, v11
    v_and_b32 v18, v12, v13
    v_and_b32 v19, v14, v15
    v_and_b32 v16, v16, v17
    v_and_b32 v18, v18, v19
    v_and_b32 v16, 1, v16
    v_and_b32 v18, 1, v18
    v_cmp_eq_u32 vcc, 0, v16
    v_cmp_eq_u32 s[10:11], 0, v18
    s_and_b64 s[6:7], s[6:7], vcc
    s_and_b64 s[8:9], s[8:9], s[10:11]
    s_cmp_ge_u32 s4, {SPIN_MAX}
    s_cbranch_scc1 {lfo}
    s_or_b64 s[10:11], s[6:7], s[8:9]
    s_cbranch_scc1 {lf}
    ''')
    a.label(lfo)
    a(f'''
    v_add_f32 v8, v8, v12
    v_add_f32 v9, v9, v13
    v_add_f32 v10, v10, v14
    v_add_f32 v11, v11, v15
    v_and_b32 v20, 0xffff0000, v20
    v_and_b32 v21, 0xffff0000, v21
    v_permlane32_swap_b32 v8, v10
    v_permlane32_swap_b32 v9, v11
    v_add_f32 v8, v8, v10
    v_add_f32 v9, v9, v11
    s_nop 1
    v_permlane16_swap_b32 v8, v9
    v_add_f32 v8, v8, v9
    s_nop 1
    v_add_f32_dpp v8, v8, v8 row_ror:4 row_mask:0xf bank_mask:0xf
    s_nop 1
    v_add_f32_dpp v8, v8, v8 row_ror:8 row_mask:0xf bank_mask:0xf
    v_and_b32 v7, 3, v2
    v_lshlrev_b32 v7, 4, v7
    v_lshrrev_b32 v9, 4, v2
    v_lshl_add_u32 v7, v9, 2, v7
    s_lshl_b32 s47, s20, 6
    s_add_u32 s47, s47, {M_P2}
    v_add_u32 v7, s47, v7
    s_mov_b32 exec_lo, 0x000f000f
    s_mov_b32 exec_hi, 0x000f000f
    ds_write_b32 v7, v8
    s_mov_b64 exec, -1
    s_waitcnt lgkmcnt(0)
    s_barrier
    s_cmp_lg_u32 s20, 0
    s_cbranch_scc1 {end}
    v_add_u32 v6, {M_P2}, v22
    ds_read_b32 v8, v6
    ds_read_b32 v9, v6 offset:64
    ds_read_b32 v10, v6 offset:128
    ds_read_b32 v11, v6 offset:192
    ds_read_b32 v12, v6 offset:256
    ds_read_b32 v13, v6 offset:320
    ds_read_b32 v14, v6 offset:384
    ds_read_b32 v15, v6 offset:448
    s_lshr_b32 s48, s44, 16
    s_xor_b32 s49, s48, 0xffff
    s_and_b32 s50, s48, 0x7fff
    s_cmp_ge_u32 s48, 0x8000
    s_cselect_b32 s48, s50, s49
    s_lshl_b32 s48, s48, 16
    v_mov_b32 v18, s48
    v_mul_f32 v18, {fbits(-LOG2E):#x}, v18
    v_exp_f32 v18, v18
    s_nop 0
    v_add_f32 v18, 1.0, v18
    v_rcp_f32 v18, v18
    s_waitcnt lgkmcnt(0)
    v_add_f32 v8, v8, v9
    v_add_f32 v10, v10, v11
    v_add_f32 v12, v12, v13
    v_add_f32 v14, v14, v15
    v_add_f32 v8, v8, v10
    v_add_f32 v12, v12, v14
    v_add_f32 v8, v8, v12
    ''')
    round_bf16(a, 8, 9)
    round_bf16(a, 18, 9)
    a('v_mul_f32 v8, v8, v18')
    round_bf16(a, 8, 9)
    a('v_add_f32 v8, v20, v8')
    round_bf16(a, 8, 9)
    a(f'''
    v_add_f32 v8, v21, v8
    v_cvt_pk_bf16_f32 v8, v8, v8
    s_mul_i32 s45, s45, 1280
    s_lshl_b32 s47, s53, 5
    s_add_u32 s45, s45, s47
    v_lshlrev_b32 v7, 1, v2
    s_mov_b64 exec, 0xffff
    buffer_store_short v8, v7, s[36:39], s45 offen
    s_mov_b64 exec, -1
    ''')
    a.label(end)
    stamp_flush(a)
    a.label(end + 'x')
    a('s_endpgm')

def main():
    global STAMPS
    global PF
    if len(sys.argv) > 2 and sys.argv[2] == 'stamps': STAMPS = True
    global WPOS, TAILST, OUTF
    import os
    OUTF = os.environ.get('OUTF', OUTF)
    global PRIO, CONVST, SPEC_TH, REDST
    REDST = bool(os.environ.get('REDST'))
    global WLDPOS
    WLDPOS = os.environ.get('WLDPOS', WLDPOS)
    PF = os.environ.get('PF', PF)
    SPEC_TH = int(os.environ.get('SPEC_TH', SPEC_TH))
    CONVST = bool(os.environ.get('CONVST'))
    PRIO = int(os.environ.get('PRIO', PRIO))
    if len(sys.argv) > 4: TAILST = True
    if len(sys.argv) > 3: WPOS = sys.argv[3]
    a = A()
    gen(a)
    hdr = f'; @launch grid=(256,1,1) block=(512,1,1) lds={LDS_TOTAL}\n'
    hdr += """; Single persistent kernel, 256 workgroups x 8 waves (one per CU). Generated by a hand-written script. Phases:
;  1. LN1 of 8 rows per workgroup -> u (f16) handed over through d_ws (write-through stores, flag words, master + go word)
;  3. causal convolution as block-Toeplitz f16 MFMA (transposing LDS reads build the Toeplitz fragments)
"""
    hdr += '.amdgcn_target "amdgcn-amd-amdhsa--gfx950"\n.text\n'
    out = hdr + a.text().replace('OUTFLAG', OUTF) + f'''.section .rodata,"a"
.p2align 6
.amdhsa_kernel {KNAME}
  .amdhsa_next_free_vgpr 248
  .amdhsa_next_free_sgpr 102
  .amdhsa_accum_offset 248
  .amdhsa_group_segment_fixed_size 0
  .amdhsa_kernarg_size 120
  .amdhsa_user_sgpr_count 2
  .amdhsa_user_sgpr_kernarg_segment_ptr 1
  .amdhsa_system_sgpr_workgroup_id_x 1
.end_amdhsa_kernel
'''
    path = sys.argv[1] if len(sys.argv) > 1 else f'cdna_kernels/{NAME}.s'
    open(path, 'w').write(out)
    print('wrote', path, len(out))

if __name__ == '__main__':
    main()
```
